```python
import torch

def _softmax(x, axis=-1):
    return torch.softmax(x, dim=axis)
def _gelu(x):
    return torch.nn.functional.gelu(x, approximate="tanh")
def _silu(x):
    return torch.nn.functional.silu(x)
def _sigmoid(x):
    return torch.sigmoid(x)
def _layernorm(x, axis=-1, eps=1e-5):
    m = x.mean(dim=axis, keepdim=True)
    v = x.var(dim=axis, keepdim=True, unbiased=False)
    return (x - m) / torch.sqrt(v + eps)
def _scatter_add(tgt, idx, src, axis=0):
    return tgt.clone().index_add_(axis, idx, src)
def _segment_sum(src, seg, n):
    out = torch.zeros((n,) + src.shape[1:], dtype=src.dtype)
    return out.index_add_(0, seg, src)
def _pad(x, pw):
    flat = tuple(v for pair in reversed(pw) for v in pair)
    return torch.nn.functional.pad(x, flat)

kernel_name = 'standalone__edge_featured_mpnn_egc__graph'

def setup_inputs():

    _w = (lambda a: (lambda t: t.to(torch.bfloat16) if t.is_floating_point() else t)(torch.as_tensor(a)))
    N, deg, D, De = 12500, 64, 64, max(4, 1)
    E = N * deg
    return {
        "x": _w((lambda *s: torch.randn(*s, dtype=torch.bfloat16) * 0.2)(N, D)),
        "e_attr": _w((lambda *s: torch.randn(*s, dtype=torch.bfloat16) * 0.2)(E, De)),
        "src": _w((lambda lo, hi, *s: torch.randint(lo, hi, s))(0, N, E).to(torch.int64)),
        "dst": _w((lambda lo, hi, *s: torch.randint(lo, hi, s))(0, N, E).to(torch.int64)),
        "u_w": _w((lambda *s: torch.randn(*s, dtype=torch.bfloat16) * 0.05)(D, D)),
        "v_w": _w((lambda *s: torch.randn(*s, dtype=torch.bfloat16) * 0.05)(D, D)),
        "g_w": _w((lambda *s: torch.randn(*s, dtype=torch.bfloat16) * 0.2)(2 * D + De, D)),
    }

def reference(x, e_attr, src, dst, u_w, v_w, g_w):
    N, D = x.shape
    g_in = torch.concatenate([x[dst], x[src], e_attr], axis=-1)
    eta = _sigmoid(g_in @ g_w)
    hv = x @ v_w
    msg = eta * hv[src]
    agg = _segment_sum(msg, dst, N)
    return _silu(x @ u_w + agg)
```

```python
import sys, struct

N = 12500; E = 800000; NB = 256; NPB = 49; CH = 3128; CHB = CH * 12
WS_DESC = 0x00A00000; WS_FRAG = 0x00A80000; WS_SIZE = 0x00B00000
XSHIFT = 4096
NEG_LOG2E = 0xBFB8AA3B
MAGIC49 = 21400
assert all(((d * MAGIC49) >> 20) == d // 49 for d in range(N))

class Asm:
    def __init__(self): self.l = []
    def __call__(self, s): self.l.append("    " + s)
    def lab(self, s): self.l.append(s + ":")
    def c(self, s): self.l.append("    ; " + s)
    def text(self): return "\n".join(self.l) + "\n"

def vr(a, n=1): return f"v{a}" if n == 1 else f"v[{a}:{a+n-1}]"
def sr(a, n=1): return f"s{a}" if n == 1 else f"s[{a}:{a+n-1}]"

def srd(o, d, lo, size):
    o(f"s_mov_b32 s{d}, s{lo}")
    o(f"s_and_b32 s{d+1}, s{lo+1}, 0xffff")
    o(f"s_mov_b32 s{d+2}, {size}")
    o(f"s_mov_b32 s{d+3}, 0x00020000")

def wave_scan(o, v):
    for sh in (1, 2, 4, 8):
        o(f"v_add_u32_dpp v{v}, v{v}, v{v} row_shr:{sh} row_mask:0xf bank_mask:0xf bound_ctrl:0")
        o("s_nop 1")
    o(f"v_add_u32_dpp v{v}, v{v}, v{v} row_bcast:15 row_mask:0xa bank_mask:0xf")
    o("s_nop 1")
    o(f"v_add_u32_dpp v{v}, v{v}, v{v} row_bcast:31 row_mask:0xc bank_mask:0xf")

K1_HIST = 0; K1_BASE = 1024; K1_STAGE = 2048
K1_LDS = 83968
def kernel1(cfg):
    o = Asm()
    ST = cfg.get("st1", "sc0 sc1")
    o.lab("bin_kernel")
    o("s_cmp_ge_u32 s2, 256")
    o("s_cbranch_scc1 L1_end")
    o("s_load_dwordx4 s[36:39], s[0:1], 0")
    o("s_load_dwordx4 s[40:43], s[0:1], 16")
    o("s_load_dwordx4 s[44:47], s[0:1], 32")
    o("s_load_dwordx2 s[48:49], s[0:1], 48")
    o("s_load_dwordx2 s[50:51], s[0:1], 72")
    o("v_lshrrev_b32 v1, 6, v0")
    o("s_movk_i32 s4, 782")
    o("s_cmp_eq_u32 s2, 255")
    o("s_cselect_b32 s4, 590, s4")
    o("v_readfirstlane_b32 s3, v1")
    o("s_mul_i32 s5, s2, 12512")
    o("v_lshl_add_u32 v2, v0, 4, s5")
    o("v_lshlrev_b32 v3, 1, v2")
    o("v_cmp_gt_u32 s[52:53], s4, v0")
    o("s_waitcnt lgkmcnt(0)")
    srd(o, 8, 42, E * 4)
    srd(o, 12, 40, E * 4)
    srd(o, 16, 38, E * 8)
    srd(o, 20, 50, WS_SIZE)
    srd(o, 24, 36, N * 128)
    o("s_mov_b64 exec, s[52:53]")
    o("s_cbranch_execz L1_noload")
    o("buffer_load_dwordx4 v[4:7], v2, s[8:11], 0 offen")
    o("buffer_load_dwordx4 v[8:11], v2, s[12:15], 0 offen")
    o("buffer_load_dwordx4 v[12:15], v3, s[16:19], 0 offen")
    o("buffer_load_dwordx4 v[16:19], v3, s[16:19], 0 offen offset:16")
    o.lab("L1_noload")
    o("s_mov_b64 exec, -1")
    o("v_and_b32 v1, 63, v0")
    o("s_cmp_lt_u32 s3, 13")
    o("s_cbranch_scc1 L1_barA")
    o.c("spare waves: pull this workgroup's share of x through the cache hierarchy")
    o("s_mul_i32 s6, s2, 6272")
    o("v_subrev_u32 v20, 832, v0")
    o("v_lshl_add_u32 v20, v20, 4, s6")
    o("buffer_load_dwordx4 v[52:55], v20, s[24:27], 0 offen")
    o("buffer_load_dwordx4 v[56:59], v20, s[24:27], 0 offen offset:3072")
    o("s_cmp_eq_u32 s3, 13")
    o("s_cbranch_scc0 L1_not13")
    o("v_mov_b32 v32, 0")
    o("v_mov_b32 v33, 0")
    o("v_mov_b32 v34, 0")
    o("v_mov_b32 v35, 0")
    o("v_lshlrev_b32 v21, 4, v1")
    o(f"ds_write_b128 v21, v[32:35] offset:{K1_HIST}")
    o("v_add_u32 v20, 6144, v20")
    o("buffer_load_dwordx4 v[60:63], v20, s[24:27], 0 offen")
    o("s_waitcnt lgkmcnt(0)")
    o("s_branch L1_barA")
    o.lab("L1_not13")
    o("s_cmp_eq_u32 s3, 15")
    o("s_cbranch_scc0 L1_barA")
    o("s_cmp_ge_u32 s2, 33")
    o("s_cbranch_scc1 L1_barA")
    o.c("weight fragment preparation (wave 15 of workgroups 0..32)")
    o("s_lshr_b32 s6, s2, 3")
    o("s_mov_b32 s28, s48")
    o("s_mov_b32 s29, s49")
    o("s_cmp_eq_u32 s6, 1")
    o("s_cselect_b32 s28, s46, s28")
    o("s_cselect_b32 s29, s47, s29")
    o("s_cmp_eq_u32 s6, 3")
    o("s_cselect_b32 s28, s44, s28")
    o("s_cselect_b32 s29, s45, s29")
    o("s_and_b32 s29, s29, 0xffff")
    o("s_and_b32 s7, s6, 1")
    o("s_cmp_eq_u32 s7, 1")
    o("s_movk_i32 s30, 16896")
    o("s_cselect_b32 s30, 8192, s30")
    o("s_mov_b32 s31, 0x00020000")
    o("v_and_b32 v21, 31, v1")
    o("v_lshrrev_b32 v22, 5, v1")
    o("s_cmp_eq_u32 s6, 4")
    o("s_cbranch_scc1 L1_fragC")
    o("s_and_b32 s54, s2, 3")
    o("s_lshl_b32 s54, s54, 11")
    o("s_bfe_u32 s55, s2, 0x10002")
    o("s_lshl_b32 s55, s55, 6")
    o("s_add_u32 s54, s54, s55")
    o("s_cmp_eq_u32 s6, 0")
    o("s_cselect_b32 s55, 8192, 0")
    o("s_add_u32 s54, s54, s55")
    o("v_lshlrev_b32 v22, 10, v22")
    o("v_lshl_add_u32 v21, v21, 1, v22")
    o("v_add_u32 v21, s54, v21")
    for j in range(8):
        o(f"buffer_load_ushort v{40+j}, v21, s[28:31], 0 offen offset:{128*j}")
    o("s_branch L1_barA")
    o.lab("L1_fragC")
    o("v_lshlrev_b32 v21, 1, v21")
    o("v_add_u32 v21, 16384, v21")
    o("v_mov_b32 v23, 0x100000")
    o("v_cmp_eq_u32 vcc, 0, v22")
    o("s_nop 1")
    o("v_cndmask_b32 v21, v23, v21, vcc")
    for e in range(8):
        o(f"buffer_load_ushort v{40+e}, v21, s[28:31], 0 offen offset:{128*(e&3)+64*(e>>2)}")
    o.lab("L1_barA")
    o("s_barrier")
    o("s_cmp_eq_u32 s3, 15")
    o("s_cbranch_scc0 L1_hist")
    o("s_cmp_ge_u32 s2, 33")
    o("s_cbranch_scc1 L1_barB")
    o("s_and_b32 s7, s6, 3")
    o("s_cmp_eq_u32 s7, 0")
    o("s_mov_b32 s54, 1.0")
    o(f"s_cselect_b32 s54, {NEG_LOG2E:#x}, s54")
    o("s_waitcnt vmcnt(0)")
    for j in range(8):
        o(f"v_lshlrev_b32 v{40+j}, 16, v{40+j}")
    for j in range(8):
        o(f"v_mul_f32 v{40+j}, s54, v{40+j}")
    for j in range(4):
        o(f"v_cvt_pk_bf16_f32 v{48+j}, v{40+2*j}, v{41+2*j}")
    o("s_lshl_b32 s55, s2, 10")
    o(f"s_add_u32 s55, s55, {WS_FRAG}")
    o("v_lshl_add_u32 v21, v1, 4, s55")
    o(f"buffer_store_dwordx4 v[48:51], v21, s[20:23], 0 offen {ST}")
    o("s_branch L1_barB")
    o.lab("L1_hist")
    o("s_mov_b64 exec, s[52:53]")
    o("s_cbranch_execz L1_histdone")
    o(f"s_movk_i32 s56, {MAGIC49}")
    o("v_mov_b32 v20, 1")
    o("s_waitcnt vmcnt(3)")
    for i in range(4):
        o(f"v_mul_u32_u24 v{24+i}, s56, v{4+i}")
    for i in range(4):
        o(f"v_lshrrev_b32 v{24+i}, 20, v{24+i}")
    for i in range(4):
        o(f"v_lshlrev_b32 v{28+i}, 2, v{24+i}")
        o(f"ds_add_rtn_u32 v{32+i}, v{28+i}, v20 offset:{K1_HIST}")
    for i in range(4):
        o(f"v_mul_u32_u24 v{24+i}, 49, v{24+i}")
    for i in range(4):
        o(f"v_sub_u32 v{4+i}, v{4+i}, v{24+i}")
    for i in range(4):
        o(f"v_lshlrev_b32 v{4+i}, 26, v{4+i}")
    o("s_waitcnt lgkmcnt(0)")
    o.lab("L1_histdone")
    o("s_mov_b64 exec, -1")
    o.lab("L1_barB")
    o("s_barrier")
    o("s_cmp_eq_u32 s3, 14")
    o("s_cbranch_scc0 L1_barC")
    o.c("wave 14: exclusive scan of the 256 bucket counts")
    o("v_lshlrev_b32 v21, 4, v1")
    o(f"ds_read_b128 v[40:43], v21 offset:{K1_HIST}")
    o("s_waitcnt lgkmcnt(0)")
    o("v_add_u32 v45, v40, v41")
    o("v_add_u32 v46, v45, v42")
    o("v_add_u32 v47, v46, v43")
    o("v_mov_b32 v48, v47")
    o("s_nop 1")
    wave_scan(o, 48)
    o("v_sub_u32 v48, v48, v47")
    o("v_add_u32 v49, v48, v40")
    o("v_add_u32 v50, v48, v45")
    o("v_add_u32 v51, v48, v46")
    for j in range(4):
        o(f"v_mul_u32_u24 v{48+j}, 12, v{48+j}")
    for j in range(4):
        o(f"v_lshl_or_b32 v{40+j}, v{40+j}, 16, v{48+j}")
    for j in range(4):
        o(f"v_add_u32 v{48+j}, {K1_STAGE}, v{48+j}")
    o(f"ds_write_b128 v21, v[48:51] offset:{K1_BASE}")
    o("s_lshl_b32 s55, s2, 10")
    o(f"s_add_u32 s55, s55, {WS_DESC}")
    o("v_add_u32 v21, s55, v21")
    o(f"buffer_store_dwordx4 v[40:43], v21, s[20:23], 0 offen {ST}")
    o("s_waitcnt lgkmcnt(0)")
    o.lab("L1_barC")
    o("s_barrier")
    o("s_mov_b64 exec, s[52:53]")
    o("s_cbranch_execz L1_scatdone")
    for i in range(4):
        o(f"ds_read_b32 v{24+i}, v{28+i} offset:{K1_BASE}")
    o("s_waitcnt vmcnt(2)")
    for i in range(4):
        o(f"v_lshlrev_b32 v{8+i}, 7, v{8+i}")
    for i in range(4):
        o(f"v_add_u32 v{8+i}, {XSHIFT}, v{8+i}")
    for i in range(4):
        o(f"v_or_b32 v{8+i}, v{8+i}, v{4+i}")
    o("s_waitcnt lgkmcnt(0)")
    for i in range(4):
        o(f"v_mad_u32_u24 v{24+i}, v{32+i}, 12, v{24+i}")
    for i in range(4):
        o(f"ds_write_b32 v{24+i}, v{8+i} offset:8")
    o("s_waitcnt vmcnt(0)")
    for i in range(4):
        o(f"ds_write2_b32 v{24+i}, v{12+2*i}, v{13+2*i} offset0:0 offset1:1")
    o("s_waitcnt lgkmcnt(0)")
    o.lab("L1_scatdone")
    o("s_mov_b64 exec, -1")
    o("s_barrier")
    o("v_lshlrev_b32 v20, 4, v0")
    o(f"s_mul_i32 s55, s2, {CHB}")
    o(f"ds_read_b128 v[24:27], v20 offset:{K1_STAGE}")
    o(f"ds_read_b128 v[28:31], v20 offset:{K1_STAGE+16384}")
    o(f"ds_read_b128 v[32:35], v20 offset:{K1_STAGE+32768}")
    o("v_add_u32 v21, 16384, v20")
    o("v_add_u32 v22, 32768, v20")
    o("v_cmp_gt_u32 vcc, 298, v0")
    o("s_waitcnt lgkmcnt(2)")
    o(f"buffer_store_dwordx4 v[24:27], v20, s[20:23], s55 offen {ST}")
    o("s_waitcnt lgkmcnt(1)")
    o(f"buffer_store_dwordx4 v[28:31], v21, s[20:23], s55 offen {ST}")
    o("s_and_saveexec_b64 s[58:59], vcc")
    o("s_cbranch_execz L1_end")
    o("s_waitcnt lgkmcnt(0)")
    o(f"buffer_store_dwordx4 v[32:35], v22, s[20:23], s55 offen {ST}")
    o.lab("L1_end")
    o("s_endpgm")
    return o.text()

CAP = 3584
P4 = 0; AGG = 51200; SRC = 64000; EA = SRC + CAP * 4; GN = EA + CAP * 8; CNT = GN + CAP
MORE = CNT + 256; ZERO8 = MORE + 8; STG = 111616; K2_LDS = STG + 32768
XT = SRC
assert ZERO8 + 8 <= STG and XT % 16 == 0 and EA % 8 == 0
WSMALL = (CAP - 3 * NPB - 31) // 256
OOBSRC = 0x40000000

WB = 128; WV = 160; WC = 192
G = [64, 96]; H = [80, 112]
A = 48; EAR = 46; M = 40; ADP = 36; ADA = 32; SV = 28; GNR = 24; KJ = 20; AAD = 16
V_SRCA = 15; V_EAA = 14; V_GNA = 13; V_LBP = 12; V_EAI = 11; V_LANE = 10; V_DESC = 9; V_LB = 8
REC = 64; CA = 196; BS = 212; DUM = 228
S_W = 20; S_OFF = 21; S_NT = 22; S_T = 23; S_FIRST = 24; S_MORE = 25; S_TOT = 26
MASK = 32; SOFF = 64

def mfma16(d, a, b, c):
    cs = "0" if c is None else vr(c, 16)
    return f"v_mfma_f32_32x32x16_bf16 {vr(d,16)}, {vr(a,4)}, {vr(b,4)}, {cs}"
def mfma8(d, a, b):
    return f"v_mfma_f32_32x32x8_bf16 {vr(d,16)}, {vr(a,2)}, {vr(b,2)}, {vr(d,16)}"

def dma_tile(o):
    for j in range(4):
        o(f"buffer_load_dwordx4 v{SV+j}, s[8:11], 0 offen offset:{1024*j} lds")

def stage(o, cur, cfg):
    nxt = 1 - cur
    hh = nxt
    g, h, gn_, hn = G[cur], H[cur], G[nxt], H[nxt]
    prio = cfg.get("prio", 1)
    for q in range(4):
        o(f"ds_read_b128 {vr(gn_+4*q,4)}, v{ADP+q} offset:{P4+512*hh}")
    if cur == 0:
        o(f"ds_read2_b32 {vr(GNR,2)}, v{V_GNA} offset0:0 offset1:2")
        o(f"ds_read2_b32 {vr(GNR+2,2)}, v{V_GNA} offset0:4 offset1:6")
        o(f"ds_read_b128 {vr(SV,4)}, v{V_SRCA}")
    if prio: o("s_setprio 1")
    k = 0
    for r in range(16):
        if r in (3, 6, 9, 12):
            if r == 3 and cur == 1:
                o("s_waitcnt lgkmcnt(9)")
            o(mfma16(hn, A + 4*k, WV + 16*hh + 4*k, None if k == 0 else hn))
            k += 1
            if r == 3 and cur == 1:
                o(f"s_add_u32 s27, s{S_T}, 16")
                o(f"s_cmp_ge_u32 s27, s{S_NT}")
                o("s_cbranch_scc1 L2_nodma")
                dma_tile(o)
                o.lab("L2_nodma")
        o(f"v_exp_f32 v{g+r}, v{g+r}")
    if prio: o("s_setprio 0")
    for r in range(16):
        o(f"v_add_f32 v{g+r}, 1.0, v{g+r}")
    o("s_waitcnt lgkmcnt(0)")
    if prio: o("s_setprio 1")
    k = 0
    for r in range(16):
        if r in (0, 3, 6, 9):
            o(mfma16(gn_, A + 4*k, WB + 16*hh + 4*k, gn_))
            k += 1
            if r == 9 and cur == 0:
                o("s_waitcnt vmcnt(0)")
                for s in range(4):
                    o(f"ds_read_b128 {vr(A+4*s,4)}, v{AAD+s}")
        if r == 12:
            o(mfma8(gn_, EAR, WC + 2*hh))
            if cur == 0:
                o(f"ds_read_b64 {vr(EAR,2)}, v{V_EAA}")
        o(f"v_rcp_f32 v{g+r}, v{g+r}")
    if prio: o("s_setprio 0")
    if cur == 0:
        for q in range(4):
            o(f"v_lshrrev_b32 v{ADA+q}, 2, v{ADP+q}")
    for j in range(4):
        for q in range(4):
            if j == 0: o(f"v_mul_f32 v{M+q}, v{g+4*q}, v{h+4*q}")
            else: o(f"v_fmac_f32 v{M+q}, v{g+4*q+j}, v{h+4*q+j}")
    for q in range(4):
        o(f"ds_add_f32 v{ADA+q}, v{M+q} offset:{AGG+128*cur}")
    if cur == 0:
        for q in range(4):
            o(f"v_add_u32 v{ADP+q}, v{GNR+q}, v{V_LBP}")
        for j in range(4):
            o(f"v_add_u32 v{SV+j}, v{SV+j}, v{KJ+j}")
        o(f"v_add_u32 v{V_SRCA}, 0x400, v{V_SRCA}")
        o(f"v_add_u32 v{V_GNA}, 0x100, v{V_GNA}")
        o(f"v_add_u32 v{V_EAA}, v{V_EAI}, v{V_EAA}")

def kernel2(cfg):
    o = Asm()
    o.lab("edge_kernel")
    o("s_cmp_ge_u32 s2, 256")
    o("s_cbranch_scc1 L2_end")
    o("s_load_dwordx2 s[4:5], s[0:1], 0")
    o("s_load_dwordx2 s[6:7], s[0:1], 56")
    o("s_load_dwordx2 s[28:29], s[0:1], 72")
    o("v_lshrrev_b32 v1, 6, v0")
    o(f"v_and_b32 v{V_LANE}, 63, v0")
    o("s_and_b32 s30, s2, 7")
    o("s_lshl_b32 s30, s30, 5")
    o("s_lshr_b32 s31, s2, 3")
    o("v_readfirstlane_b32 s3, v1")
    o("s_add_u32 s30, s30, s31")
    for i in range(8):
        o(f"s_mov_b32 s{SOFF+i}, {i*CHB}")
    L = V_LANE
    o(f"v_lshrrev_b32 v2, 4, v{L}")
    o(f"v_and_b32 v3, 15, v{L}")
    o("v_and_b32 v4, 7, v3")
    o("v_lshl_add_u32 v4, v2, 3, v4")
    o("s_lshl_b32 s27, s3, 5")
    o("v_add_u32 v4, s27, v4")
    o("s_lshl_b32 s72, s30, 2")
    o(f"s_add_u32 s72, s72, {WS_DESC}")
    o("v_lshlrev_b32 v4, 10, v4")
    o("s_waitcnt lgkmcnt(0)")
    srd(o, 12, 28, WS_SIZE)
    o(f"buffer_load_dword v{V_DESC}, v4, s[12:15], s72 offen")
    o(f"s_sub_u32 s8, s4, {XSHIFT}")
    o("s_subb_u32 s9, s5, 0")
    o("s_and_b32 s9, s9, 0xffff")
    o(f"s_mov_b32 s10, {N*128+XSHIFT}")
    o("s_mov_b32 s11, 0x00020000")
    srd(o, 16, 6, N * 128)
    o(f"v_lshlrev_b32 v5, 4, v{L}")
    o(f"s_mov_b32 s73, {WS_FRAG+32*1024}")
    o(f"buffer_load_dwordx4 {vr(WC,4)}, v5, s[12:15], s73 offen")
    o("s_lshl_b32 s74, s3, 12")
    o(f"s_add_u32 s75, s74, {STG}")
    o("s_mov_b32 m0, s75")
    o(f"s_add_u32 s73, s74, {WS_FRAG}")
    for j in range(4):
        o(f"buffer_load_dwordx4 v5, s[12:15], s73 offen offset:{1024*j} lds")
    o(f"v_lshrrev_b32 v6, 3, v{L}")
    o(f"v_and_b32 v7, 7, v{L}")
    o(f"v_lshrrev_b32 v1, 5, v{L}")
    o("v_lshlrev_b32 v1, 2, v1")
    o("v_xor_b32 v7, v7, v1")
    for j in range(4):
        o(f"v_xor_b32 v{KJ+j}, {j}, v7")
        o(f"v_lshlrev_b32 v{KJ+j}, 4, v{KJ+j}")
    o("s_and_b32 s76, s3, 3")
    o("s_lshr_b32 s77, s3, 2")
    o("v_xor_b32 v1, s76, v7")
    o("v_lshlrev_b32 v1, 4, v1")
    o("s_mul_i32 s78, s30, 49")
    o("s_lshl_b32 s79, s77, 5")
    o("s_add_u32 s79, s79, s78")
    o("s_add_u32 s79, s79, s76")
    o("s_lshl_b32 s79, s79, 7")
    o(f"s_add_u32 s79, s79, {XSHIFT}")
    o("v_lshl_add_u32 v1, v6, 9, v1")
    o("s_lshl_b32 s80, s3, 10")
    o(f"s_add_u32 s80, s80, {XT}")
    o("s_mov_b32 m0, s80")
    o("v_add_u32 v1, s79, v1")
    o("buffer_load_dwordx4 v1, s[8:11], 0 offen lds")
    o("s_mov_b32 m0, s75")
    for j in range(1, 4):
        o(f"v_subrev_u32 v{KJ+j}, {1024*j}, v{KJ+j}")
    o(f"v_and_b32 v1, 3, v{L}")
    o(f"v_bfe_u32 v2, v{L}, 2, 3")
    o("v_lshl_add_u32 v2, v1, 3, v2")
    o("v_lshlrev_b32 v2, 7, v2")
    o(f"v_bfe_u32 v4, v{L}, 4, 1")
    o("v_lshl_or_b32 v1, v4, 2, v1")
    o(f"v_lshrrev_b32 v4, 5, v{L}")
    o("v_xor_b32 v1, v1, v4")
    for s in range(4):
        o(f"v_xor_b32 v{AAD+s}, {2*s}, v1")
        o(f"v_lshl_add_u32 v{AAD+s}, v{AAD+s}, 4, v2")
    o("s_cmp_lg_u32 s3, 0")
    o("s_cbranch_scc1 L2_nz")
    o("v_mov_b32 v1, 0")
    o(f"v_lshlrev_b32 v2, 2, v{L}")
    o(f"v_add_u32 v2, {CNT}, v2")
    o("ds_write_b32 v2, v1")
    o("ds_write_b32 v2, v1 offset:64")
    o.lab("L2_nz")
    o(f"v_lshrrev_b32 v1, 4, v{L}")
    o("v_lshlrev_b32 v1, 3, v1")
    o("v_add_u32 v1, s27, v1")
    o(f"s_mov_b32 s81, {CHB}")
    o(f"v_mul_lo_u32 v{V_LB}, v1, s81")
    o(f"v_mad_u32_u24 v{V_LB}, v3, 12, v{V_LB}")
    o(f"v_and_b32 v1, 31, v{L}")
    o(f"v_lshlrev_b32 v{V_LBP}, 4, v1")
    o(f"s_mov_b32 s{S_W}, 32")
    o(f"s_mov_b32 s{S_OFF}, 0")
    o(f"s_mov_b32 s{S_FIRST}, 1")
    o("s_mul_i32 s82, s31, 50000")
    o(f"s_add_u32 s82, s82, {XSHIFT}")
    o("v_lshlrev_b32 v7, 4, v0")
    o("s_waitcnt vmcnt(6)")
    o.lab("L2_pass")
    o(f"v_and_b32 v3, 15, v{L}")
    o(f"v_add_u32 v1, s{S_OFF}, v3")
    o("v_add_u32 v2, 16, v1")
    o(f"s_add_u32 s83, s{S_OFF}, s{S_W}")
    o(f"s_mul_i32 s84, s{S_OFF}, 12")
    o(f"v_add_u32 v6, s84, v{V_LB}")
    o(f"v_lshrrev_b32 v4, 16, v{V_DESC}")
    o("v_cmp_lt_u32 vcc, s83, v4")
    o("v_min_u32 v4, s83, v4")
    o(f"v_and_b32 v5, 0xffff, v{V_DESC}")
    o("s_cmp_lg_u64 vcc, 0")
    o(f"s_cselect_b32 s{S_MORE}, 1, 0")
    for i in range(8):
        o(f"v_mov_b32_dpp v{BS}, v4 row_newbcast:{i} row_mask:0xf bank_mask:0xf")
        o(f"v_add_u32_dpp v{BS+1+(i&1)}, v5, v6 row_newbcast:{i} row_mask:0xf bank_mask:0xf")
        o(f"v_cmp_lt_u32 {sr(MASK+4*i+2,2)}, v2, v{BS}")
        o(f"v_cmpx_lt_u32 {sr(MASK+4*i,2)}, v1, v{BS}")
        o(f"buffer_load_dwordx3 {vr(REC+8*i,3)}, v{BS+1+(i&1)}, s[12:15], s{SOFF+i} offen")
        o(f"s_mov_b64 exec, {sr(MASK+4*i+2,2)}")
        o(f"buffer_load_dwordx3 {vr(REC+8*i+4,3)}, v{BS+1+(i&1)}, s[12:15], s{SOFF+i} offen offset:192")
        o("s_mov_b64 exec, -1")
        if i < 7: o("s_nop 1")
    for i in range(7):
        if i < 6:
            o(f"s_add_u32 s85, s82, {8192*i}")
            o(f"buffer_load_dwordx4 {vr(DUM+4*i,4)}, v7, s[8:11], s85 offen")
        else:
            o(f"s_add_u32 s85, s82, {8192*i}")
            o("v_cmp_gt_u32 vcc, 53, v0")
            o("v_mov_b32 v1, 0x40000000")
            o("s_nop 0")
            o("v_cndmask_b32 v1, v1, v7, vcc")
            o(f"buffer_load_dwordx4 {vr(DUM+4*i,4)}, v1, s[8:11], s85 offen")
    o(f"s_cmp_eq_u32 s{S_FIRST}, 0")
    o("s_cbranch_scc1 L2_ranks")
    o(f"s_mov_b32 s{S_FIRST}, 0")
    o("s_waitcnt vmcnt(23) lgkmcnt(0)")
    o("s_barrier")
    o(f"v_lshlrev_b32 v1, 4, v{L}")
    o(f"v_add_u32 v1, {STG}, v1")
    o("s_and_b32 s86, s3, 1")
    o("s_bfe_u32 s87, s3, 0x10001")
    o("s_lshr_b32 s88, s3, 2")
    o("s_lshl_b32 s89, s86, 13")
    o("s_lshl_b32 s90, s88, 12")
    o("s_add_u32 s89, s89, s90")
    o("s_add_u32 s89, s89, 16384")
    o("v_add_u32 v2, s89, v1")
    for s in range(4):
        o(f"ds_read_b128 {vr(BS+4*s,4)}, v2 offset:{1024*s}")
    o("s_lshl_b32 s90, s87, 12")
    o(f"s_add_u32 s90, s90, {XT}")
    for s in range(4):
        o(f"v_add_u32 v3, s90, v{AAD+s}")
        o(f"ds_read_b128 {vr(A+4*s,4)}, v3")
    for f in range(7):
        o(f"ds_read_b128 {vr(WB+4*f,4)}, v1 offset:{1024*f}")
    o("s_waitcnt lgkmcnt(7)")
    for s in range(4):
        o(mfma16(CA, A + 4*s, BS + 4*s, None if s == 0 else CA))
    for f in range(7, 16):
        o(f"ds_read_b128 {vr(WB+4*f,4)}, v1 offset:{1024*f}")
    for s in range(4):
        o(f"v_add_u32 v{AAD+s}, s75, v{AAD+s}")
    o(f"v_lshrrev_b32 v2, 5, v{L}")
    o("v_lshlrev_b32 v2, 2, v2")
    o("s_lshl_b32 s90, s87, 5")
    o("v_add_u32 v2, s90, v2")
    o("s_nop 7")
    o("s_cmp_eq_u32 s86, 1")
    o("s_cbranch_scc1 L2_xu")
    o("s_lshl_b32 s90, s88, 9")
    o(f"v_lshl_add_u32 v2, v2, 10, v{V_LBP}")
    o("v_add_u32 v2, s90, v2")
    o(f"s_mov_b32 s91, {NEG_LOG2E:#x}")
    def pwrite(r):
        t = BS + 4 * (r & 3)
        for c in range(4):
            o(f"v_mul_f32 v{t+c}, s91, v{CA+r}")
        o(f"ds_write_b128 v2, {vr(t,4)} offset:{P4 + (8*(r>>2)+(r&3))*1024}")
    for r in range(8): pwrite(r)
    o("s_cmp_eq_u32 s87, 1")
    o("s_cselect_b32 exec_hi, 0, -1")
    for r in range(8, 10): pwrite(r)
    o("s_mov_b64 exec, -1")
    o("s_cbranch_scc1 L2_pdone")
    for r in range(10, 16): pwrite(r)
    o("s_branch L2_pdone")
    o.lab("L2_xu")
    o("s_lshl_b32 s90, s88, 7")
    o(f"v_lshrrev_b32 v3, 2, v{V_LBP}")
    o("v_lshl_add_u32 v2, v2, 8, v3")
    o("v_add_u32 v2, s90, v2")
    def uwrite(r):
        o(f"ds_write_b32 v2, v{CA+r} offset:{AGG + (8*(r>>2)+(r&3))*256}")
    for r in range(8): uwrite(r)
    o("s_cmp_eq_u32 s87, 1")
    o("s_cselect_b32 exec_hi, 0, -1")
    for r in range(8, 10): uwrite(r)
    o("s_mov_b64 exec, -1")
    o("s_cbranch_scc1 L2_pdone")
    for r in range(10, 16): uwrite(r)
    o.lab("L2_pdone")
    o("s_waitcnt lgkmcnt(0)")
    o.lab("L2_ranks")
    o("v_mov_b32 v1, 4")
    o(f"s_cmp_eq_u32 s{S_MORE}, 0")
    o("s_cbranch_scc1 L2_nomore")
    o(f"v_mov_b32 v2, {MORE}")
    o("ds_write_b32 v2, v1")
    o.lab("L2_nomore")
    o(f"v_mov_b32 v2, {CNT}")
    for i in range(16):
        o(f"s_waitcnt vmcnt({7+15-i})")
        o(f"s_mov_b64 exec, {sr(MASK+2*i,2)}")
        o(f"v_add_u32_sdwa v{CA+i}, v{REC+4*i+2}, v2 dst_sel:DWORD dst_unused:UNUSED_PAD src0_sel:BYTE_3 src1_sel:DWORD")
        o("s_nop 0")
        o(f"ds_add_rtn_u32 v{REC+4*i+3}, v{CA+i}, v1")
    o("s_mov_b64 exec, -1")
    o("s_waitcnt lgkmcnt(0)")
    o("s_barrier")
    o(f"v_lshl_add_u32 v1, v{L}, 2, v2")
    o("ds_read_b32 v3, v1")
    o(f"ds_read_b32 v4, v2 offset:256")
    o("s_waitcnt lgkmcnt(0)")
    o("v_add_u32 v5, 15, v3")
    o("v_and_b32 v5, -16, v5")
    o("v_mov_b32 v6, v5")
    o(f"v_readfirstlane_b32 s{S_MORE}, v4")
    o("s_nop 0")
    wave_scan(o, 6)
    o("s_nop 0")
    o(f"v_readlane_b32 s{S_TOT}, v6, 63")
    o("v_sub_u32 v6, v6, v5")
    o(f"s_cmp_gt_u32 s{S_TOT}, {(CAP-32)*4}")
    o("s_cbranch_scc0 L2_fits")
    o.c("window too large for LDS: clear the counters and redo with the small window")
    o("s_barrier")
    o("v_mov_b32 v3, 0")
    o("ds_write_b32 v1, v3")
    o("ds_write_b32 v2, v3 offset:256")
    o(f"s_mov_b32 s{S_W}, {WSMALL}")
    o("s_waitcnt vmcnt(0) lgkmcnt(0)")
    o("s_barrier")
    o("s_branch L2_pass")
    o.lab("L2_fits")
    for i in range(16):
        o(f"ds_bpermute_b32 v{BS+i}, v{CA+i}, v6")
    o(f"s_add_u32 s{S_NT}, s{S_TOT}, 127")
    o(f"s_lshr_b32 s{S_NT}, s{S_NT}, 7")
    o(f"s_mov_b32 s92, {EA}")
    o("s_waitcnt lgkmcnt(0)")
    for i in range(16):
        o(f"s_mov_b64 exec, {sr(MASK+2*i,2)}")
        o(f"v_add_u32 v{BS+i}, v{BS+i}, v{REC+4*i+3}")
        o(f"v_and_b32 v{REC+4*i+2}, 0xffffff, v{REC+4*i+2}")
        o(f"v_lshl_add_u32 v{REC+4*i+3}, v{BS+i}, 1, s92")
        o(f"ds_write_b32 v{BS+i}, v{REC+4*i+2} offset:{SRC}")
        o(f"ds_write_b64 v{REC+4*i+3}, {vr(REC+4*i,2)}")
    o("s_mov_b64 exec, -1")
    o(f"v_mov_b32 v{BS}, {OOBSRC:#x}")
    o(f"v_mov_b32 v{BS+2}, 0")
    o(f"v_mov_b32 v{BS+3}, 0")
    o("s_lshl_b32 s93, s3, 2")
    o("v_add_u32 v3, s93, v3")
    o("v_cmp_lt_u32 vcc, v3, v5")
    o("v_add_u32 v3, v3, v6")
    o("v_lshl_add_u32 v4, v3, 1, s92")
    o("s_and_saveexec_b64 s[94:95], vcc")
    o(f"ds_write_b32 v3, v{BS} offset:{SRC}")
    o(f"ds_write_b64 v4, {vr(BS+2,2)}")
    o("s_mov_b64 exec, -1")
    o(f"v_lshl_add_u32 v3, v{L}, 2, s{S_TOT}")
    o(f"s_lshl_b32 s93, s{S_NT}, 7")
    o("v_cmp_gt_u32 vcc, s93, v3")
    o("v_lshl_add_u32 v4, v3, 1, s92")
    o("s_and_saveexec_b64 s[94:95], vcc")
    o(f"ds_write_b32 v3, v{BS} offset:{SRC}")
    o(f"ds_write_b64 v4, {vr(BS+2,2)}")
    o("s_mov_b64 exec, -1")
    o(f"s_lshr_b32 s96, s{S_TOT}, 2")
    o(f"v_lshl_add_u32 v3, v{L}, 2, s96")
    o("s_lshr_b32 s93, s93, 2")
    o("v_cmp_gt_u32 vcc, s93, v3")
    o(f"v_add_u32 v3, {GN}, v3")
    o(f"v_mov_b32 v4, {49*1024}")
    o("s_and_saveexec_b64 s[94:95], vcc")
    o("ds_write_b32 v3, v4")
    o("s_mov_b64 exec, -1")
    o("v_lshrrev_b32 v5, 2, v5")
    o("v_lshrrev_b32 v6, 2, v6")
    o(f"v_add_u32 v6, {GN}, v6")
    o(f"v_lshlrev_b32 v4, 10, v{L}")
    o("s_lshl_b32 s93, s3, 2")
    o.lab("L2_gloop")
    o("v_cmp_lt_u32 vcc, s93, v5")
    o("v_add_u32 v3, s93, v6")
    o("s_and_saveexec_b64 s[94:95], vcc")
    o("s_cbranch_execz L2_gdone")
    o("ds_write_b32 v3, v4")
    o("s_mov_b64 exec, -1")
    o("s_add_u32 s93, s93, 32")
    o("s_branch L2_gloop")
    o.lab("L2_gdone")
    o("s_mov_b64 exec, -1")
    o("s_waitcnt lgkmcnt(0)")
    o("s_barrier")
    o("s_cmp_lg_u32 s3, 0")
    o("s_cbranch_scc1 L2_nz2")
    o("v_mov_b32 v3, 0")
    o("ds_write_b32 v1, v3")
    o("ds_write_b32 v2, v3 offset:256")
    o.lab("L2_nz2")
    o(f"s_mov_b32 s{S_T}, s3")
    o(f"s_cmp_ge_u32 s{S_T}, s{S_NT}")
    o("s_cbranch_scc1 L2_done")
    o(f"v_lshrrev_b32 v1, 3, v{L}")
    o("v_lshlrev_b32 v1, 4, v1")
    o("s_lshl_b32 s93, s3, 7")
    o(f"s_add_u32 s93, s93, {SRC}")
    o(f"v_add_u32 v{V_SRCA}, s93, v1")
    o(f"ds_read_b128 {vr(SV,4)}, v{V_SRCA}")
    o(f"v_lshrrev_b32 v1, 5, v{L}")
    o("s_lshl_b32 s93, s3, 5")
    o(f"s_add_u32 s93, s93, {GN}")
    o(f"v_lshl_add_u32 v{V_GNA}, v1, 2, s93")
    o(f"ds_read2_b32 {vr(GNR,2)}, v{V_GNA} offset0:0 offset1:2")
    o(f"ds_read2_b32 {vr(GNR+2,2)}, v{V_GNA} offset0:4 offset1:6")
    o("s_lshl_b32 s93, s3, 8")
    o(f"s_add_u32 s93, s93, {EA}")
    o(f"v_lshl_add_u32 v{V_EAA}, v{L}, 3, s93")
    o(f"v_mov_b32 v2, {ZERO8}")
    o(f"v_mov_b32 v{V_EAI}, 0x800")
    o(f"v_cmp_gt_u32 vcc, 32, v{L}")
    o("s_nop 1")
    o(f"v_cndmask_b32 v{V_EAA}, v2, v{V_EAA}, vcc")
    o(f"v_cndmask_b32 v{V_EAI}, 0, v{V_EAI}, vcc")
    o(f"ds_read_b64 {vr(EAR,2)}, v{V_EAA}")
    o("s_waitcnt lgkmcnt(3)")
    for j in range(4):
        o(f"v_add_u32 v{SV+j}, v{SV+j}, v{KJ+j}")
    dma_tile(o)
    o(f"ds_read_b128 {vr(SV,4)}, v{V_SRCA} offset:1024")
    o(f"v_add_u32 v{V_SRCA}, 0x800, v{V_SRCA}")
    o(f"v_add_u32 v{V_GNA}, 0x100, v{V_GNA}")
    o(f"v_add_u32 v{V_EAA}, v{V_EAI}, v{V_EAA}")
    o("s_waitcnt lgkmcnt(1)")
    for q in range(4):
        o(f"v_add_u32 v{ADP+q}, v{GNR+q}, v{V_LBP}")
    for q in range(4):
        o(f"ds_read_b128 {vr(G[0]+4*q,4)}, v{ADP+q} offset:{P4}")
    o("s_waitcnt vmcnt(0)")
    for s in range(4):
        o(f"ds_read_b128 {vr(A+4*s,4)}, v{AAD+s}")
    o("s_waitcnt lgkmcnt(0)")
    for j in range(4):
        o(f"v_add_u32 v{SV+j}, v{SV+j}, v{KJ+j}")
    o(f"s_add_u32 s27, s{S_T}, 8")
    o(f"s_cmp_ge_u32 s27, s{S_NT}")
    o("s_cbranch_scc1 L2_nodma0")
    dma_tile(o)
    o.lab("L2_nodma0")
    for k in range(4):
        o(mfma16(G[0], A + 4*k, WB + 4*k, G[0]))
    o(mfma8(G[0], EAR, WC))
    for k in range(4):
        o(mfma16(H[0], A + 4*k, WV + 4*k, None if k == 0 else H[0]))
    o("s_nop 7")
    o(".p2align 3")
    o.lab("L2_loop")
    stage(o, 0, cfg)
    stage(o, 1, cfg)
    o(f"s_add_u32 s{S_T}, s{S_T}, 8")
    o(f"s_cmp_lt_u32 s{S_T}, s{S_NT}")
    o("s_cbranch_scc1 L2_loop")
    o.lab("L2_done")
    o("s_waitcnt vmcnt(0) lgkmcnt(0)")
    o("s_barrier")
    o(f"s_cmp_eq_u32 s{S_MORE}, 0")
    o("s_cbranch_scc1 L2_out")
    o(f"s_add_u32 s{S_OFF}, s{S_OFF}, s{S_W}")
    o("s_nop 15")
    o("s_branch L2_pass")
    o.lab("L2_out")
    o("v_cmp_gt_u32 vcc, 392, v0")
    o("s_and_saveexec_b64 s[94:95], vcc")
    o("s_cbranch_execz L2_end")
    o("v_lshlrev_b32 v1, 5, v0")
    o(f"ds_read_b128 v[64:67], v1 offset:{AGG}")
    o(f"ds_read_b128 v[68:71], v1 offset:{AGG+16}")
    o("s_lshl_b32 s93, s78, 7")
    o("v_add_u32 v2, s93, v7")
    o("s_waitcnt lgkmcnt(0)")
    for r in range(8): o(f"v_mul_f32 v{72+r}, {NEG_LOG2E:#x}, v{64+r}")
    for r in range(8): o(f"v_exp_f32 v{72+r}, v{72+r}")
    for r in range(8): o(f"v_add_f32 v{72+r}, 1.0, v{72+r}")
    for r in range(8): o(f"v_rcp_f32 v{72+r}, v{72+r}")
    for r in range(8): o(f"v_mul_f32 v{64+r}, v{64+r}, v{72+r}")
    for r in range(4): o(f"v_cvt_pk_bf16_f32 v{72+r}, v{64+2*r}, v{65+2*r}")
    o("buffer_store_dwordx4 v[72:75], v2, s[16:19], 0 offen")
    o.lab("L2_end")
    o("s_endpgm")
    return o.text()

HEADER = """; Edge-gated MPNN layer: out = silu(x@U + sum over edges with dst=i of sigmoid(x[dst]@A + x[src]@B + e@C) * (x[src]@V))
; @launch kernel=bin_kernel grid=(256,1,1) block=(1024,1,1) lds={l1}
; @launch kernel=edge_kernel grid=(256,1,1) block=(512,1,1) lds={l2}
.amdgcn_target "amdgcn-amd-amdhsa--gfx950"
.text
"""
def kd(name, vg, sg):
    return f""".amdhsa_kernel {name}
  .amdhsa_next_free_vgpr {vg}
  .amdhsa_next_free_sgpr {sg}
  .amdhsa_accum_offset {(vg+3)//4*4}
  .amdhsa_group_segment_fixed_size 0
  .amdhsa_kernarg_size 80
  .amdhsa_user_sgpr_count 2
  .amdhsa_user_sgpr_kernarg_segment_ptr 1
  .amdhsa_system_sgpr_workgroup_id_x 1
  .amdhsa_float_denorm_mode_32 3
.end_amdhsa_kernel
"""
def build(cfg):
    s = HEADER.format(l1=K1_LDS, l2=K2_LDS)
    for name, fn in (("bin_kernel", kernel1), ("edge_kernel", kernel2)):
        s += f".globl {name}\n.p2align 8\n.type {name},@function\n" + fn(cfg)
    s += '.section .rodata,"a"\n.p2align 6\n' + kd("bin_kernel", 64, 64) + ".p2align 6\n" + kd("edge_kernel", 256, 100)
    return s

if __name__ == "__main__":
    cfg = {}
    out = sys.argv[1]
    for a in sys.argv[2:]:
        k, v = a.split("=")
        cfg[k] = int(v) if v.lstrip("-").isdigit() else v
    open(out, "w").write(build(cfg))
```

```python
import sys, struct

N = 12500; E = 800000; NB = 256; NPB = 49; CH = 3128; CHB = CH * 12
WS_DESC = 0x00A00000; WS_FRAG = 0x00A80000; WS_SIZE = 0x00C00000
XSHIFT = 4096
NEG_LOG2E = 0xBFB8AA3B
MAGIC49 = 21400
assert all(((d * MAGIC49) >> 20) == d // 49 for d in range(N))

class Asm:
    def __init__(self): self.l = []
    def __call__(self, s): self.l.append("    " + s)
    def lab(self, s): self.l.append(s + ":")
    def c(self, s): self.l.append("    ; " + s)
    def text(self): return "\n".join(self.l) + "\n"

STAMP_BASE = 0x00B00000
class Stamper:
    def __init__(self, o, on, vreg, region):
        self.o, self.on, self.v, self.n, self.region = o, on, vreg, 0, region
    def __call__(self, real=False):
        if not self.on: return
        self.o(f"{'s_memrealtime' if real else 's_memtime'} s[98:99]")
        self.o("s_waitcnt lgkmcnt(0)")
        self.o(f"v_writelane_b32 v{self.v}, s98, {self.n}")
        self.n += 1
    def dump(self, srd_, wave_s, vt, lane):
        if not self.on: return
        o = self.o
        o("s_mov_b64 exec, 0xffff")
        o(f"s_lshl_b32 s4, s2, 4")
        o(f"s_add_u32 s4, s4, s{wave_s}")
        o(f"s_lshl_b32 s4, s4, 6")
        o(f"s_add_u32 s4, s4, {STAMP_BASE + self.region * 0x40000}")
        o(f"v_lshl_add_u32 v{vt}, v{lane}, 2, s4")
        o(f"buffer_store_dword v{self.v}, v{vt}, s[{srd_}:{srd_+3}], 0 offen")

def vr(a, n=1): return f"v{a}" if n == 1 else f"v[{a}:{a+n-1}]"
def sr(a, n=1): return f"s{a}" if n == 1 else f"s[{a}:{a+n-1}]"

def srd(o, d, lo, size):
    o(f"s_mov_b32 s{d}, s{lo}")
    o(f"s_and_b32 s{d+1}, s{lo+1}, 0xffff")
    o(f"s_mov_b32 s{d+2}, {size}")
    o(f"s_mov_b32 s{d+3}, 0x00020000")

def wave_scan(o, v):
    for sh in (1, 2, 4, 8):
        o(f"v_add_u32_dpp v{v}, v{v}, v{v} row_shr:{sh} row_mask:0xf bank_mask:0xf bound_ctrl:0")
        o("s_nop 1")
    o(f"v_add_u32_dpp v{v}, v{v}, v{v} row_bcast:15 row_mask:0xa bank_mask:0xf")
    o("s_nop 1")
    o(f"v_add_u32_dpp v{v}, v{v}, v{v} row_bcast:31 row_mask:0xc bank_mask:0xf")

K1_HIST = 0; K1_BASE = 1024; K1_STAGE = 2048
K1_LDS = 83968
def kernel1(cfg):
    o = Asm()
    ST = cfg.get("st1", "sc0 sc1")
    T = Stamper(o, cfg.get("stamp", 0), 36, 0)
    o.lab("bin_kernel")
    o("s_cmp_ge_u32 s2, 256")
    o("s_cbranch_scc1 L1_end")
    T(True); T()
    o("s_load_dwordx4 s[36:39], s[0:1], 0")
    o("s_load_dwordx4 s[40:43], s[0:1], 16")
    o("s_load_dwordx4 s[44:47], s[0:1], 32")
    o("s_load_dwordx2 s[48:49], s[0:1], 48")
    o("s_load_dwordx2 s[50:51], s[0:1], 72")
    o("v_lshrrev_b32 v1, 6, v0")
    o("s_movk_i32 s4, 782")
    o("s_cmp_eq_u32 s2, 255")
    o("s_cselect_b32 s4, 590, s4")
    o("v_readfirstlane_b32 s3, v1")
    o("s_mul_i32 s5, s2, 12512")
    o("v_lshl_add_u32 v2, v0, 4, s5")
    o("v_lshlrev_b32 v3, 1, v2")
    o("v_cmp_gt_u32 s[52:53], s4, v0")
    o("s_waitcnt lgkmcnt(0)")
    srd(o, 8, 42, E * 4)
    srd(o, 12, 40, E * 4)
    srd(o, 16, 38, E * 8)
    srd(o, 20, 50, WS_SIZE)
    srd(o, 24, 36, N * 128)
    o("s_mov_b64 exec, s[52:53]")
    o("s_cbranch_execz L1_noload")
    o("buffer_load_dwordx4 v[4:7], v2, s[8:11], 0 offen")
    o("buffer_load_dwordx4 v[8:11], v2, s[12:15], 0 offen")
    o("buffer_load_dwordx4 v[12:15], v3, s[16:19], 0 offen")
    o("buffer_load_dwordx4 v[16:19], v3, s[16:19], 0 offen offset:16")
    o.lab("L1_noload")
    o("s_mov_b64 exec, -1")
    o("v_and_b32 v1, 63, v0")
    o("s_cmp_lt_u32 s3, 13")
    o("s_cbranch_scc1 L1_barA")
    o.c("spare waves: pull this workgroup's share of x through the cache hierarchy")
    o("s_mul_i32 s6, s2, 6272")
    o("v_subrev_u32 v20, 832, v0")
    o("v_lshl_add_u32 v20, v20, 4, s6")
    o("buffer_load_dwordx4 v[52:55], v20, s[24:27], 0 offen")
    o("buffer_load_dwordx4 v[56:59], v20, s[24:27], 0 offen offset:3072")
    o("s_cmp_eq_u32 s3, 13")
    o("s_cbranch_scc0 L1_not13")
    o("v_mov_b32 v32, 0")
    o("v_mov_b32 v33, 0")
    o("v_mov_b32 v34, 0")
    o("v_mov_b32 v35, 0")
    o("v_lshlrev_b32 v21, 4, v1")
    o(f"ds_write_b128 v21, v[32:35] offset:{K1_HIST}")
    o("v_add_u32 v20, 6144, v20")
    o("buffer_load_dwordx4 v[60:63], v20, s[24:27], 0 offen")
    o("s_waitcnt lgkmcnt(0)")
    o("s_branch L1_barA")
    o.lab("L1_not13")
    o("s_cmp_eq_u32 s3, 15")
    o("s_cbranch_scc0 L1_barA")
    o("s_cmp_ge_u32 s2, 33")
    o("s_cbranch_scc1 L1_barA")
    o.c("weight fragment preparation (wave 15 of workgroups 0..32)")
    o("s_lshr_b32 s6, s2, 3")
    o("s_mov_b32 s28, s48")
    o("s_mov_b32 s29, s49")
    o("s_cmp_eq_u32 s6, 1")
    o("s_cselect_b32 s28, s46, s28")
    o("s_cselect_b32 s29, s47, s29")
    o("s_cmp_eq_u32 s6, 3")
    o("s_cselect_b32 s28, s44, s28")
    o("s_cselect_b32 s29, s45, s29")
    o("s_and_b32 s29, s29, 0xffff")
    o("s_and_b32 s7, s6, 1")
    o("s_cmp_eq_u32 s7, 1")
    o("s_movk_i32 s30, 16896")
    o("s_cselect_b32 s30, 8192, s30")
    o("s_mov_b32 s31, 0x00020000")
    o("v_and_b32 v21, 31, v1")
    o("v_lshrrev_b32 v22, 5, v1")
    o("s_cmp_eq_u32 s6, 4")
    o("s_cbranch_scc1 L1_fragC")
    o("s_and_b32 s54, s2, 3")
    o("s_lshl_b32 s54, s54, 11")
    o("s_bfe_u32 s55, s2, 0x10002")
    o("s_lshl_b32 s55, s55, 6")
    o("s_add_u32 s54, s54, s55")
    o("s_cmp_eq_u32 s6, 0")
    o("s_cselect_b32 s55, 8192, 0")
    o("s_add_u32 s54, s54, s55")
    o("v_lshlrev_b32 v22, 10, v22")
    o("v_lshl_add_u32 v21, v21, 1, v22")
    o("v_add_u32 v21, s54, v21")
    for j in range(8):
        o(f"buffer_load_ushort v{40+j}, v21, s[28:31], 0 offen offset:{128*j}")
    o("s_branch L1_barA")
    o.lab("L1_fragC")
    o("v_lshlrev_b32 v21, 1, v21")
    o("v_add_u32 v21, 16384, v21")
    o("v_mov_b32 v23, 0x100000")
    o("v_cmp_eq_u32 vcc, 0, v22")
    o("s_nop 1")
    o("v_cndmask_b32 v21, v23, v21, vcc")
    for e in range(8):
        o(f"buffer_load_ushort v{40+e}, v21, s[28:31], 0 offen offset:{128*(e&3)+64*(e>>2)}")
    o.lab("L1_barA")
    T()
    o("s_barrier")
    o("s_cmp_eq_u32 s3, 15")
    o("s_cbranch_scc0 L1_hist")
    o("s_cmp_ge_u32 s2, 33")
    o("s_cbranch_scc1 L1_barB")
    o("s_and_b32 s7, s6, 3")
    o("s_cmp_eq_u32 s7, 0")
    o("s_mov_b32 s54, 1.0")
    o(f"s_cselect_b32 s54, {NEG_LOG2E:#x}, s54")
    o("s_waitcnt vmcnt(0)")
    for j in range(8):
        o(f"v_lshlrev_b32 v{40+j}, 16, v{40+j}")
    for j in range(8):
        o(f"v_mul_f32 v{40+j}, s54, v{40+j}")
    for j in range(4):
        o(f"v_cvt_pk_bf16_f32 v{48+j}, v{40+2*j}, v{41+2*j}")
    o("s_lshl_b32 s55, s2, 10")
    o(f"s_add_u32 s55, s55, {WS_FRAG}")
    o("v_lshl_add_u32 v21, v1, 4, s55")
    o(f"buffer_store_dwordx4 v[48:51], v21, s[20:23], 0 offen {ST}")
    o("s_branch L1_barB")
    o.lab("L1_hist")
    o("s_mov_b64 exec, s[52:53]")
    o("s_cbranch_execz L1_histdone")
    o(f"s_movk_i32 s56, {MAGIC49}")
    o("v_mov_b32 v20, 1")
    o("s_waitcnt vmcnt(3)")
    T()
    for i in range(4):
        o(f"v_mul_u32_u24 v{24+i}, s56, v{4+i}")
    for i in range(4):
        o(f"v_lshrrev_b32 v{24+i}, 20, v{24+i}")
    for i in range(4):
        o(f"v_lshlrev_b32 v{28+i}, 2, v{24+i}")
        o(f"ds_add_rtn_u32 v{32+i}, v{28+i}, v20 offset:{K1_HIST}")
    for i in range(4):
        o(f"v_mul_u32_u24 v{24+i}, 49, v{24+i}")
    for i in range(4):
        o(f"v_sub_u32 v{4+i}, v{4+i}, v{24+i}")
    for i in range(4):
        o(f"v_lshlrev_b32 v{4+i}, 26, v{4+i}")
    o("s_waitcnt lgkmcnt(0)")
    o.lab("L1_histdone")
    o("s_mov_b64 exec, -1")
    o.lab("L1_barB")
    T()
    o("s_barrier")
    o("s_cmp_eq_u32 s3, 14")
    o("s_cbranch_scc0 L1_barC")
    o.c("wave 14: exclusive scan of the 256 bucket counts")
    o("v_lshlrev_b32 v21, 4, v1")
    o(f"ds_read_b128 v[40:43], v21 offset:{K1_HIST}")
    o("s_waitcnt lgkmcnt(0)")
    o("v_add_u32 v45, v40, v41")
    o("v_add_u32 v46, v45, v42")
    o("v_add_u32 v47, v46, v43")
    o("v_mov_b32 v48, v47")
    o("s_nop 1")
    wave_scan(o, 48)
    o("v_sub_u32 v48, v48, v47")
    o("v_add_u32 v49, v48, v40")
    o("v_add_u32 v50, v48, v45")
    o("v_add_u32 v51, v48, v46")
    for j in range(4):
        o(f"v_mul_u32_u24 v{48+j}, 12, v{48+j}")
    for j in range(4):
        o(f"v_lshl_or_b32 v{40+j}, v{40+j}, 16, v{48+j}")
    for j in range(4):
        o(f"v_add_u32 v{48+j}, {K1_STAGE}, v{48+j}")
    o(f"ds_write_b128 v21, v[48:51] offset:{K1_BASE}")
    o("s_lshl_b32 s55, s2, 10")
    o(f"s_add_u32 s55, s55, {WS_DESC}")
    o("v_add_u32 v21, s55, v21")
    o(f"buffer_store_dwordx4 v[40:43], v21, s[20:23], 0 offen {ST}")
    o("s_waitcnt lgkmcnt(0)")
    o.lab("L1_barC")
    o("s_barrier")
    T()
    o("s_mov_b64 exec, s[52:53]")
    o("s_cbranch_execz L1_scatdone")
    for i in range(4):
        o(f"ds_read_b32 v{24+i}, v{28+i} offset:{K1_BASE}")
    o("s_waitcnt vmcnt(2)")
    for i in range(4):
        o(f"v_lshlrev_b32 v{8+i}, 7, v{8+i}")
    for i in range(4):
        o(f"v_add_u32 v{8+i}, {XSHIFT}, v{8+i}")
    for i in range(4):
        o(f"v_or_b32 v{8+i}, v{8+i}, v{4+i}")
    o("s_waitcnt lgkmcnt(0)")
    for i in range(4):
        o(f"v_mad_u32_u24 v{24+i}, v{32+i}, 12, v{24+i}")
    for i in range(4):
        o(f"ds_write_b32 v{24+i}, v{8+i} offset:8")
    o("s_waitcnt vmcnt(0)")
    T()
    for i in range(4):
        o(f"ds_write2_b32 v{24+i}, v{12+2*i}, v{13+2*i} offset0:0 offset1:1")
    o("s_waitcnt lgkmcnt(0)")
    o.lab("L1_scatdone")
    o("s_mov_b64 exec, -1")
    o("s_barrier")
    T()
    o("v_lshlrev_b32 v20, 4, v0")
    o(f"s_mul_i32 s55, s2, {CHB}")
    o(f"ds_read_b128 v[24:27], v20 offset:{K1_STAGE}")
    o(f"ds_read_b128 v[28:31], v20 offset:{K1_STAGE+16384}")
    o(f"ds_read_b128 v[32:35], v20 offset:{K1_STAGE+32768}")
    o("v_add_u32 v21, 16384, v20")
    o("v_add_u32 v22, 32768, v20")
    o("v_cmp_gt_u32 vcc, 298, v0")
    o("s_waitcnt lgkmcnt(2)")
    o(f"buffer_store_dwordx4 v[24:27], v20, s[20:23], s55 offen {ST}")
    o("s_waitcnt lgkmcnt(1)")
    o(f"buffer_store_dwordx4 v[28:31], v21, s[20:23], s55 offen {ST}")
    o("s_and_saveexec_b64 s[58:59], vcc")
    o("s_cbranch_execz L1_fin")
    o("s_waitcnt lgkmcnt(0)")
    o(f"buffer_store_dwordx4 v[32:35], v22, s[20:23], s55 offen {ST}")
    o.lab("L1_fin")
    if T.on:
        T(); o("s_waitcnt vmcnt(0)"); T(); T(True); T.dump(20, 3, 40, 1)
    o.lab("L1_end")
    o("s_endpgm")
    return o.text()

CAP = 3584
P4 = 0; AGG = 51200; SRC = 76800; EA = SRC + CAP * 4; GN = EA + CAP * 8; CNT = GN + CAP
MORE = CNT + 256; ZERO8 = MORE + 8; STG = 123904; K2_LDS = STG + 32768
M64 = 196
assert CNT % 256 == 0 and CNT + 320 <= STG
XT = SRC
assert ZERO8 + 8 <= STG and XT % 16 == 0 and EA % 8 == 0
WSMALL = (CAP - 3 * NPB - 31) // 256
OOBSRC = 0x40000000

WB = 128; WV = 160; WC = 192
G = [64, 96]; H = [80, 112]
A = 48; EAR = 46; M = 40; ADP = 36; ADA = 32; SV = 28; GNR = 24; KJ = 20; AAD = 16
V_SRCA = 15; V_EAA = 14; V_GNA = 13; V_LBP = 12; V_EAI = 11; V_LANE = 10; V_DESC = 9; V_LB = 8
REC = 64; CA = 196; BS = 212; DUM = 228
S_W = 20; S_OFF = 21; S_NT = 22; S_T = 23; S_FIRST = 24; S_MORE = 25; S_TOT = 26
MASK = 32; SOFF = 64

def mfma16(d, a, b, c):
    cs = "0" if c is None else vr(c, 16)
    return f"v_mfma_f32_32x32x16_bf16 {vr(d,16)}, {vr(a,4)}, {vr(b,4)}, {cs}"
def mfma8(d, a, b):
    return f"v_mfma_f32_32x32x8_bf16 {vr(d,16)}, {vr(a,2)}, {vr(b,2)}, {vr(d,16)}"

def dma_tile(o):
    for j in range(4):
        o(f"buffer_load_dwordx4 v{SV+j}, s[8:11], 0 offen offset:{1024*j} lds")

def stage(o, cur, cfg):
    nxt = 1 - cur
    hh = nxt
    g, h, gn_, hn = G[cur], H[cur], G[nxt], H[nxt]
    prio = cfg.get("prio", 1)
    for q in range(4):
        o(f"ds_read_b128 {vr(gn_+4*q,4)}, v{ADP+q} offset:{P4+512*hh}")
    if cur == 0:
        o(f"ds_read2_b32 {vr(GNR,2)}, v{V_GNA} offset0:0 offset1:2")
        o(f"ds_read2_b32 {vr(GNR+2,2)}, v{V_GNA} offset0:4 offset1:6")
        o(f"ds_read_b128 {vr(SV,4)}, v{V_SRCA}")
    if prio: o("s_setprio 1")
    k = 0
    for r in range(16):
        if r in (3, 6, 9, 12):
            if r == 3 and cur == 1:
                o("s_waitcnt lgkmcnt(9)")
            o(mfma16(hn, A + 4*k, WV + 16*hh + 4*k, None if k == 0 else hn))
            k += 1
            if r == 3 and cur == 1:
                o(f"s_add_u32 s27, s{S_T}, 16")
                o(f"s_cmp_ge_u32 s27, s{S_NT}")
                o("s_cbranch_scc1 L2_nodma")
                dma_tile(o)
                o.lab("L2_nodma")
        o(f"v_exp_f32 v{g+r}, v{g+r}")
    if prio: o("s_setprio 0")
    for r in range(16):
        o(f"v_add_f32 v{g+r}, 1.0, v{g+r}")
    o("s_waitcnt lgkmcnt(0)")
    if prio: o("s_setprio 1")
    k = 0
    for r in range(16):
        if r in (0, 3, 6, 9):
            o(mfma16(gn_, A + 4*k, WB + 16*hh + 4*k, gn_))
            k += 1
            if r == 9 and cur == 0:
                o("s_waitcnt vmcnt(0)")
                for s in range(4):
                    o(f"ds_read_b128 {vr(A+4*s,4)}, v{AAD+s}")
        if r == 12:
            o(mfma8(gn_, EAR, WC + 2*hh))
            if cur == 0:
                o(f"ds_read_b64 {vr(EAR,2)}, v{V_EAA}")
        o(f"v_rcp_f32 v{g+r}, v{g+r}")
    if prio: o("s_setprio 0")
    if cur == 0:
        for q in range(4):
            o(f"v_lshrrev_b32 v{ADA+q}, 1, v{ADP+q}")
    for j in range(4):
        for q in range(4):
            if j == 0: o(f"v_mul_f32 v{M+q}, v{g+4*q}, v{h+4*q}")
            else: o(f"v_fmac_f32 v{M+q}, v{g+4*q+j}, v{h+4*q+j}")
    for q in range(4):
        o(f"v_cvt_f64_f32 {vr(M64+2*q,2)}, v{M+q}")
    for q in range(4):
        o(f"ds_add_f64 v{ADA+q}, {vr(M64+2*q,2)} offset:{AGG+256*cur}")
    if cur == 0:
        for q in range(4):
            o(f"v_add_u32 v{ADP+q}, v{GNR+q}, v{V_LBP}")
        for j in range(4):
            o(f"v_add_u32 v{SV+j}, v{SV+j}, v{KJ+j}")
        o(f"v_add_u32 v{V_SRCA}, 0x400, v{V_SRCA}")
        o(f"v_add_u32 v{V_GNA}, 0x100, v{V_GNA}")
        o(f"v_add_u32 v{V_EAA}, v{V_EAI}, v{V_EAA}")

def kernel2(cfg):
    o = Asm()
    T = Stamper(o, cfg.get("stamp", 0), 44, 1)
    o.lab("edge_kernel")
    o("s_cmp_ge_u32 s2, 256")
    o("s_cbranch_scc1 L2_end")
    T(True); T()
    o("s_load_dwordx2 s[4:5], s[0:1], 0")
    o("s_load_dwordx2 s[6:7], s[0:1], 56")
    o("s_load_dwordx2 s[28:29], s[0:1], 72")
    o("v_lshrrev_b32 v1, 6, v0")
    o(f"v_and_b32 v{V_LANE}, 63, v0")
    o("s_and_b32 s30, s2, 7")
    o("s_lshl_b32 s30, s30, 5")
    o("s_lshr_b32 s31, s2, 3")
    o("v_readfirstlane_b32 s3, v1")
    o("s_add_u32 s30, s30, s31")
    for i in range(8):
        o(f"s_mov_b32 s{SOFF+i}, {i*CHB}")
    L = V_LANE
    o(f"v_lshrrev_b32 v2, 4, v{L}")
    o(f"v_and_b32 v3, 15, v{L}")
    o("v_and_b32 v4, 7, v3")
    o("v_lshl_add_u32 v4, v2, 3, v4")
    o("s_lshl_b32 s27, s3, 5")
    o("v_add_u32 v4, s27, v4")
    o("s_lshl_b32 s72, s30, 2")
    o(f"s_add_u32 s72, s72, {WS_DESC}")
    o("v_lshlrev_b32 v4, 10, v4")
    o("s_waitcnt lgkmcnt(0)")
    srd(o, 12, 28, WS_SIZE)
    o(f"buffer_load_dword v{V_DESC}, v4, s[12:15], s72 offen")
    o(f"s_sub_u32 s8, s4, {XSHIFT}")
    o("s_subb_u32 s9, s5, 0")
    o("s_and_b32 s9, s9, 0xffff")
    o(f"s_mov_b32 s10, {N*128+XSHIFT}")
    o("s_mov_b32 s11, 0x00020000")
    srd(o, 16, 6, N * 128)
    o(f"v_lshlrev_b32 v5, 4, v{L}")
    o(f"s_mov_b32 s73, {WS_FRAG+32*1024}")
    o(f"buffer_load_dwordx4 {vr(WC,4)}, v5, s[12:15], s73 offen")
    o("s_lshl_b32 s74, s3, 12")
    o(f"s_add_u32 s75, s74, {STG}")
    o("s_mov_b32 m0, s75")
    o(f"s_add_u32 s73, s74, {WS_FRAG}")
    for j in range(4):
        o(f"buffer_load_dwordx4 v5, s[12:15], s73 offen offset:{1024*j} lds")
    o(f"v_lshrrev_b32 v6, 3, v{L}")
    o(f"v_and_b32 v7, 7, v{L}")
    o(f"v_lshrrev_b32 v1, 5, v{L}")
    o("v_lshlrev_b32 v1, 2, v1")
    o("v_xor_b32 v7, v7, v1")
    for j in range(4):
        o(f"v_xor_b32 v{KJ+j}, {j}, v7")
        o(f"v_lshlrev_b32 v{KJ+j}, 4, v{KJ+j}")
    o("s_and_b32 s76, s3, 3")
    o("s_lshr_b32 s77, s3, 2")
    o("v_xor_b32 v1, s76, v7")
    o("v_lshlrev_b32 v1, 4, v1")
    o("s_mul_i32 s78, s30, 49")
    o("s_lshl_b32 s79, s77, 5")
    o("s_add_u32 s79, s79, s78")
    o("s_add_u32 s79, s79, s76")
    o("s_lshl_b32 s79, s79, 7")
    o(f"s_add_u32 s79, s79, {XSHIFT}")
    o("v_lshl_add_u32 v1, v6, 9, v1")
    o("s_lshl_b32 s80, s3, 10")
    o(f"s_add_u32 s80, s80, {XT}")
    o("s_mov_b32 m0, s80")
    o("v_add_u32 v1, s79, v1")
    o("buffer_load_dwordx4 v1, s[8:11], 0 offen lds")
    o("s_mov_b32 m0, s75")
    for j in range(1, 4):
        o(f"v_subrev_u32 v{KJ+j}, {1024*j}, v{KJ+j}")
    o(f"v_and_b32 v1, 3, v{L}")
    o(f"v_bfe_u32 v2, v{L}, 2, 3")
    o("v_lshl_add_u32 v2, v1, 3, v2")
    o("v_lshlrev_b32 v2, 7, v2")
    o(f"v_bfe_u32 v4, v{L}, 4, 1")
    o("v_lshl_or_b32 v1, v4, 2, v1")
    o(f"v_lshrrev_b32 v4, 5, v{L}")
    o("v_xor_b32 v1, v1, v4")
    for s in range(4):
        o(f"v_xor_b32 v{AAD+s}, {2*s}, v1")
        o(f"v_lshl_add_u32 v{AAD+s}, v{AAD+s}, 4, v2")
    o("s_cmp_lg_u32 s3, 0")
    o("s_cbranch_scc1 L2_nz")
    o("v_mov_b32 v1, 0")
    o(f"v_lshlrev_b32 v2, 2, v{L}")
    o(f"v_add_u32 v2, {CNT}, v2")
    o("ds_write_b32 v2, v1")
    o("ds_write_b32 v2, v1 offset:64")
    o.lab("L2_nz")
    o(f"v_lshrrev_b32 v1, 4, v{L}")
    o("v_lshlrev_b32 v1, 3, v1")
    o("v_add_u32 v1, s27, v1")
    o(f"s_mov_b32 s81, {CHB}")
    o(f"v_mul_lo_u32 v{V_LB}, v1, s81")
    o(f"v_mad_u32_u24 v{V_LB}, v3, 12, v{V_LB}")
    o(f"v_and_b32 v1, 31, v{L}")
    o(f"v_lshlrev_b32 v{V_LBP}, 4, v1")
    o(f"s_mov_b32 s{S_W}, 32")
    o(f"s_mov_b32 s{S_OFF}, 0")
    o(f"s_mov_b32 s{S_FIRST}, 1")
    o("s_mul_i32 s82, s31, 50000")
    o(f"s_add_u32 s82, s82, {XSHIFT}")
    o("v_lshlrev_b32 v7, 4, v0")
    T()
    o("s_waitcnt vmcnt(6)")
    T()
    o.lab("L2_pass")
    o(f"v_and_b32 v3, 15, v{L}")
    o(f"v_add_u32 v1, s{S_OFF}, v3")
    o("v_add_u32 v2, 16, v1")
    o(f"s_add_u32 s83, s{S_OFF}, s{S_W}")
    o(f"s_mul_i32 s84, s{S_OFF}, 12")
    o(f"v_add_u32 v6, s84, v{V_LB}")
    o(f"v_lshrrev_b32 v4, 16, v{V_DESC}")
    o("v_cmp_lt_u32 vcc, s83, v4")
    o("v_min_u32 v4, s83, v4")
    o(f"v_and_b32 v5, 0xffff, v{V_DESC}")
    o("s_cmp_lg_u64 vcc, 0")
    o(f"s_cselect_b32 s{S_MORE}, 1, 0")
    for i in range(8):
        o(f"v_mov_b32_dpp v{BS}, v4 row_newbcast:{i} row_mask:0xf bank_mask:0xf")
        o(f"v_add_u32_dpp v{BS+1+(i&1)}, v5, v6 row_newbcast:{i} row_mask:0xf bank_mask:0xf")
        o(f"v_cmp_lt_u32 {sr(MASK+4*i+2,2)}, v2, v{BS}")
        o(f"v_cmpx_lt_u32 {sr(MASK+4*i,2)}, v1, v{BS}")
        o(f"buffer_load_dwordx3 {vr(REC+8*i,3)}, v{BS+1+(i&1)}, s[12:15], s{SOFF+i} offen")
        o(f"s_mov_b64 exec, {sr(MASK+4*i+2,2)}")
        o(f"buffer_load_dwordx3 {vr(REC+8*i+4,3)}, v{BS+1+(i&1)}, s[12:15], s{SOFF+i} offen offset:192")
        o("s_mov_b64 exec, -1")
        if i < 7: o("s_nop 1")
    for i in range(7):
        if i < 6:
            o(f"s_add_u32 s85, s82, {8192*i}")
            o(f"buffer_load_dwordx4 {vr(DUM+4*i,4)}, v7, s[8:11], s85 offen")
        else:
            o(f"s_add_u32 s85, s82, {8192*i}")
            o("v_cmp_gt_u32 vcc, 53, v0")
            o("v_mov_b32 v1, 0x40000000")
            o("s_nop 0")
            o("v_cndmask_b32 v1, v1, v7, vcc")
            o(f"buffer_load_dwordx4 {vr(DUM+4*i,4)}, v1, s[8:11], s85 offen")
    o(f"s_cmp_eq_u32 s{S_FIRST}, 0")
    o("s_cbranch_scc1 L2_ranks")
    o(f"s_mov_b32 s{S_FIRST}, 0")
    T()
    o("s_waitcnt vmcnt(23) lgkmcnt(0)")
    o("s_barrier")
    T()
    o(f"v_lshlrev_b32 v1, 4, v{L}")
    o(f"v_add_u32 v1, {STG}, v1")
    o("s_and_b32 s86, s3, 1")
    o("s_bfe_u32 s87, s3, 0x10001")
    o("s_lshr_b32 s88, s3, 2")
    o("s_lshl_b32 s89, s86, 13")
    o("s_lshl_b32 s90, s88, 12")
    o("s_add_u32 s89, s89, s90")
    o("s_add_u32 s89, s89, 16384")
    o("v_add_u32 v2, s89, v1")
    for s in range(4):
        o(f"ds_read_b128 {vr(BS+4*s,4)}, v2 offset:{1024*s}")
    o("s_lshl_b32 s90, s87, 12")
    o(f"s_add_u32 s90, s90, {XT}")
    for s in range(4):
        o(f"v_add_u32 v3, s90, v{AAD+s}")
        o(f"ds_read_b128 {vr(A+4*s,4)}, v3")
    for f in range(7):
        o(f"ds_read_b128 {vr(WB+4*f,4)}, v1 offset:{1024*f}")
    o("s_waitcnt lgkmcnt(7)")
    for s in range(4):
        o(mfma16(CA, A + 4*s, BS + 4*s, None if s == 0 else CA))
    for f in range(7, 16):
        o(f"ds_read_b128 {vr(WB+4*f,4)}, v1 offset:{1024*f}")
    for s in range(4):
        o(f"v_add_u32 v{AAD+s}, s75, v{AAD+s}")
    o(f"v_lshrrev_b32 v2, 5, v{L}")
    o("v_lshlrev_b32 v2, 2, v2")
    o("s_lshl_b32 s90, s87, 5")
    o("v_add_u32 v2, s90, v2")
    o("s_nop 7")
    o("s_cmp_eq_u32 s86, 1")
    o("s_cbranch_scc1 L2_xu")
    o("s_lshl_b32 s90, s88, 9")
    o(f"v_lshl_add_u32 v2, v2, 10, v{V_LBP}")
    o("v_add_u32 v2, s90, v2")
    o(f"s_mov_b32 s91, {NEG_LOG2E:#x}")
    def pwrite(r):
        t = BS + 4 * (r & 3)
        for c in range(4):
            o(f"v_mul_f32 v{t+c}, s91, v{CA+r}")
        o(f"ds_write_b128 v2, {vr(t,4)} offset:{P4 + (8*(r>>2)+(r&3))*1024}")
    for r in range(8): pwrite(r)
    o("s_cmp_eq_u32 s87, 1")
    o("s_cselect_b32 exec_hi, 0, -1")
    for r in range(8, 10): pwrite(r)
    o("s_mov_b64 exec, -1")
    o("s_cbranch_scc1 L2_pdone")
    for r in range(10, 16): pwrite(r)
    o("s_branch L2_pdone")
    o.lab("L2_xu")
    o("s_lshl_b32 s90, s88, 8")
    o(f"v_lshrrev_b32 v3, 1, v{V_LBP}")
    o("v_lshl_add_u32 v2, v2, 9, v3")
    o("v_add_u32 v2, s90, v2")
    def uwrite(r):
        t = BS + 2 * (r & 7)
        o(f"v_cvt_f64_f32 {vr(t,2)}, v{CA+r}")
        o(f"ds_write_b64 v2, {vr(t,2)} offset:{AGG + (8*(r>>2)+(r&3))*512}")
    for r in range(8): uwrite(r)
    o("s_cmp_eq_u32 s87, 1")
    o("s_cselect_b32 exec_hi, 0, -1")
    for r in range(8, 10): uwrite(r)
    o("s_mov_b64 exec, -1")
    o("s_cbranch_scc1 L2_pdone")
    for r in range(10, 16): uwrite(r)
    o.lab("L2_pdone")
    o("s_waitcnt lgkmcnt(0)")
    o.lab("L2_ranks")
    T()
    o("v_mov_b32 v1, 4")
    o(f"s_cmp_eq_u32 s{S_MORE}, 0")
    o("s_cbranch_scc1 L2_nomore")
    o(f"v_mov_b32 v2, {MORE}")
    o("ds_write_b32 v2, v1")
    o.lab("L2_nomore")
    o(f"v_mov_b32 v2, {CNT}")
    for i in range(16):
        o(f"s_waitcnt vmcnt({7+15-i})")
        o(f"s_mov_b64 exec, {sr(MASK+2*i,2)}")
        o(f"v_add_u32_sdwa v{CA+i}, v{REC+4*i+2}, v2 dst_sel:DWORD dst_unused:UNUSED_PAD src0_sel:BYTE_3 src1_sel:DWORD")
        o("s_nop 0")
        o(f"ds_add_rtn_u32 v{REC+4*i+3}, v{CA+i}, v1")
    o("s_mov_b64 exec, -1")
    o("s_waitcnt lgkmcnt(0)")
    T()
    o("s_barrier")
    T()
    o(f"v_lshl_add_u32 v1, v{L}, 2, v2")
    o("ds_read_b32 v3, v1")
    o(f"ds_read_b32 v4, v2 offset:256")
    o("s_waitcnt lgkmcnt(0)")
    o("v_add_u32 v5, 15, v3")
    o("v_and_b32 v5, -16, v5")
    o("v_mov_b32 v6, v5")
    o(f"v_readfirstlane_b32 s{S_MORE}, v4")
    o("s_nop 0")
    wave_scan(o, 6)
    o("s_nop 0")
    o(f"v_readlane_b32 s{S_TOT}, v6, 63")
    o("v_sub_u32 v6, v6, v5")
    o(f"s_cmp_gt_u32 s{S_TOT}, {(CAP-32)*4}")
    o("s_cbranch_scc0 L2_fits")
    o.c("window too large for LDS: clear the counters and redo with the small window")
    o("s_barrier")
    o("v_mov_b32 v3, 0")
    o("ds_write_b32 v1, v3")
    o("ds_write_b32 v2, v3 offset:256")
    o(f"s_mov_b32 s{S_W}, {WSMALL}")
    o("s_waitcnt vmcnt(0) lgkmcnt(0)")
    o("s_barrier")
    o("s_branch L2_pass")
    o.lab("L2_fits")
    o(f"v_add_u32 v4, {SRC}, v6")
    for i in range(16):
        o(f"ds_bpermute_b32 v{BS+i}, v{CA+i}, v4")
    o(f"s_add_u32 s{S_NT}, s{S_TOT}, 127")
    o(f"s_lshr_b32 s{S_NT}, s{S_NT}, 7")
    o(f"s_mov_b32 s92, {EA-2*SRC}")
    o("s_waitcnt lgkmcnt(0)")
    for i in range(16):
        o(f"s_mov_b64 exec, {sr(MASK+2*i,2)}")
        o(f"v_add_u32 v{BS+i}, v{BS+i}, v{REC+4*i+3}")
        o(f"v_and_b32 v{REC+4*i+2}, 0xffffff, v{REC+4*i+2}")
        o(f"v_lshl_add_u32 v{REC+4*i+3}, v{BS+i}, 1, s92")
        o(f"ds_write_b32 v{BS+i}, v{REC+4*i+2}")
        o(f"ds_write_b64 v{REC+4*i+3}, {vr(REC+4*i,2)}")
    o("s_mov_b64 exec, -1")
    o(f"v_mov_b32 v{BS}, {OOBSRC:#x}")
    o(f"v_mov_b32 v{BS+2}, 0")
    o(f"v_mov_b32 v{BS+3}, 0")
    o("s_lshl_b32 s93, s3, 2")
    o("v_add_u32 v3, s93, v3")
    o("v_cmp_lt_u32 vcc, v3, v5")
    o("v_add_u32 v3, v3, v4")
    o("v_lshl_add_u32 v4, v3, 1, s92")
    o("s_and_saveexec_b64 s[94:95], vcc")
    o(f"ds_write_b32 v3, v{BS}")
    o(f"ds_write_b64 v4, {vr(BS+2,2)}")
    o("s_mov_b64 exec, -1")
    o(f"v_lshl_add_u32 v3, v{L}, 2, s{S_TOT}")
    o(f"s_lshl_b32 s93, s{S_NT}, 7")
    o("v_cmp_gt_u32 vcc, s93, v3")
    o(f"v_add_u32 v3, {SRC}, v3")
    o("v_lshl_add_u32 v4, v3, 1, s92")
    o("s_and_saveexec_b64 s[94:95], vcc")
    o(f"ds_write_b32 v3, v{BS}")
    o(f"ds_write_b64 v4, {vr(BS+2,2)}")
    o("s_mov_b64 exec, -1")
    o(f"s_lshr_b32 s96, s{S_TOT}, 2")
    o(f"v_lshl_add_u32 v3, v{L}, 2, s96")
    o("s_lshr_b32 s93, s93, 2")
    o("v_cmp_gt_u32 vcc, s93, v3")
    o(f"v_add_u32 v3, {GN}, v3")
    o(f"v_mov_b32 v4, {49*1024}")
    o("s_and_saveexec_b64 s[94:95], vcc")
    o("ds_write_b32 v3, v4")
    o("s_mov_b64 exec, -1")
    o("v_lshrrev_b32 v5, 2, v5")
    o("v_lshrrev_b32 v6, 2, v6")
    o(f"v_add_u32 v6, {GN}, v6")
    o(f"v_lshlrev_b32 v4, 10, v{L}")
    o("s_lshl_b32 s93, s3, 2")
    o.lab("L2_gloop")
    o("v_cmp_lt_u32 vcc, s93, v5")
    o("v_add_u32 v3, s93, v6")
    o("s_and_saveexec_b64 s[94:95], vcc")
    o("s_cbranch_execz L2_gdone")
    o("ds_write_b32 v3, v4")
    o("s_mov_b64 exec, -1")
    o("s_add_u32 s93, s93, 32")
    o("s_branch L2_gloop")
    o.lab("L2_gdone")
    o("s_mov_b64 exec, -1")
    o("s_waitcnt lgkmcnt(0)")
    T()
    o("s_barrier")
    T()
    o("s_cmp_lg_u32 s3, 0")
    o("s_cbranch_scc1 L2_nz2")
    o("v_mov_b32 v3, 0")
    o("ds_write_b32 v1, v3")
    o("ds_write_b32 v2, v3 offset:256")
    o.lab("L2_nz2")
    o(f"s_mov_b32 s{S_T}, s3")
    o(f"s_cmp_ge_u32 s{S_T}, s{S_NT}")
    o("s_cbranch_scc1 L2_done")
    o(f"v_lshrrev_b32 v1, 3, v{L}")
    o("v_lshlrev_b32 v1, 4, v1")
    o("s_lshl_b32 s93, s3, 7")
    o(f"s_add_u32 s93, s93, {SRC}")
    o(f"v_add_u32 v{V_SRCA}, s93, v1")
    o(f"ds_read_b128 {vr(SV,4)}, v{V_SRCA}")
    o(f"v_lshrrev_b32 v1, 5, v{L}")
    o("s_lshl_b32 s93, s3, 5")
    o(f"s_add_u32 s93, s93, {GN}")
    o(f"v_lshl_add_u32 v{V_GNA}, v1, 2, s93")
    o(f"ds_read2_b32 {vr(GNR,2)}, v{V_GNA} offset0:0 offset1:2")
    o(f"ds_read2_b32 {vr(GNR+2,2)}, v{V_GNA} offset0:4 offset1:6")
    o("s_lshl_b32 s93, s3, 8")
    o(f"s_add_u32 s93, s93, {EA}")
    o(f"v_lshl_add_u32 v{V_EAA}, v{L}, 3, s93")
    o(f"v_mov_b32 v2, {ZERO8}")
    o(f"v_mov_b32 v{V_EAI}, 0x800")
    o(f"v_cmp_gt_u32 vcc, 32, v{L}")
    o("s_nop 1")
    o(f"v_cndmask_b32 v{V_EAA}, v2, v{V_EAA}, vcc")
    o(f"v_cndmask_b32 v{V_EAI}, 0, v{V_EAI}, vcc")
    o(f"ds_read_b64 {vr(EAR,2)}, v{V_EAA}")
    o("s_waitcnt lgkmcnt(3)")
    for j in range(4):
        o(f"v_add_u32 v{SV+j}, v{SV+j}, v{KJ+j}")
    dma_tile(o)
    o(f"ds_read_b128 {vr(SV,4)}, v{V_SRCA} offset:1024")
    o(f"v_add_u32 v{V_SRCA}, 0x800, v{V_SRCA}")
    o(f"v_add_u32 v{V_GNA}, 0x100, v{V_GNA}")
    o(f"v_add_u32 v{V_EAA}, v{V_EAI}, v{V_EAA}")
    o("s_waitcnt lgkmcnt(1)")
    for q in range(4):
        o(f"v_add_u32 v{ADP+q}, v{GNR+q}, v{V_LBP}")
    for q in range(4):
        o(f"ds_read_b128 {vr(G[0]+4*q,4)}, v{ADP+q} offset:{P4}")
    o("s_waitcnt vmcnt(0)")
    for s in range(4):
        o(f"ds_read_b128 {vr(A+4*s,4)}, v{AAD+s}")
    o("s_waitcnt lgkmcnt(0)")
    for j in range(4):
        o(f"v_add_u32 v{SV+j}, v{SV+j}, v{KJ+j}")
    o(f"s_add_u32 s27, s{S_T}, 8")
    o(f"s_cmp_ge_u32 s27, s{S_NT}")
    o("s_cbranch_scc1 L2_nodma0")
    dma_tile(o)
    o.lab("L2_nodma0")
    for k in range(4):
        o(mfma16(G[0], A + 4*k, WB + 4*k, G[0]))
    o(mfma8(G[0], EAR, WC))
    for k in range(4):
        o(mfma16(H[0], A + 4*k, WV + 4*k, None if k == 0 else H[0]))
    o("s_nop 7")
    T()
    o(".p2align 3")
    o.lab("L2_loop")
    stage(o, 0, cfg)
    stage(o, 1, cfg)
    o(f"s_add_u32 s{S_T}, s{S_T}, 8")
    o(f"s_cmp_lt_u32 s{S_T}, s{S_NT}")
    o("s_cbranch_scc1 L2_loop")
    o.lab("L2_done")
    o("s_waitcnt vmcnt(0) lgkmcnt(0)")
    T()
    o("s_barrier")
    T()
    o(f"s_cmp_eq_u32 s{S_MORE}, 0")
    o("s_cbranch_scc1 L2_out")
    o(f"s_add_u32 s{S_OFF}, s{S_OFF}, s{S_W}")
    o("s_nop 15")
    o("s_branch L2_pass")
    o.lab("L2_out")
    o("v_cmp_gt_u32 vcc, 392, v0")
    o("s_and_saveexec_b64 s[94:95], vcc")
    o("s_cbranch_execz L2_fin")
    o("v_lshlrev_b32 v1, 6, v0")
    for c in range(4):
        o(f"ds_read_b128 {vr(80+4*c,4)}, v1 offset:{AGG+16*c}")
    o("s_lshl_b32 s93, s78, 7")
    o("v_add_u32 v2, s93, v7")
    o("s_waitcnt lgkmcnt(0)")
    for r in range(8): o(f"v_cvt_f32_f64 v{64+r}, {vr(80+2*r,2)}")
    for r in range(8): o(f"v_mul_f32 v{72+r}, {NEG_LOG2E:#x}, v{64+r}")
    for r in range(8): o(f"v_exp_f32 v{72+r}, v{72+r}")
    for r in range(8): o(f"v_add_f32 v{72+r}, 1.0, v{72+r}")
    for r in range(8): o(f"v_rcp_f32 v{72+r}, v{72+r}")
    for r in range(8): o(f"v_mul_f32 v{64+r}, v{64+r}, v{72+r}")
    for r in range(4): o(f"v_cvt_pk_bf16_f32 v{72+r}, v{64+2*r}, v{65+2*r}")
    o("buffer_store_dwordx4 v[72:75], v2, s[16:19], 0 offen")
    o.lab("L2_fin")
    if T.on:
        o("s_waitcnt vmcnt(0)"); T(); T(True); T.dump(12, 3, 1, V_LANE)
    o.lab("L2_end")
    o("s_endpgm")
    return o.text()

HEADER = """; Edge-gated MPNN layer: out = silu(x@U + sum over edges with dst=i of sigmoid(x[dst]@A + x[src]@B + e@C) * (x[src]@V))
; @launch kernel=bin_kernel grid=(256,1,1) block=(1024,1,1) lds={l1}
; @launch kernel=edge_kernel grid=(256,1,1) block=(512,1,1) lds={l2}
.amdgcn_target "amdgcn-amd-amdhsa--gfx950"
.text
"""
def kd(name, vg, sg):
    return f""".amdhsa_kernel {name}
  .amdhsa_next_free_vgpr {vg}
  .amdhsa_next_free_sgpr {sg}
  .amdhsa_accum_offset {(vg+3)//4*4}
  .amdhsa_group_segment_fixed_size 0
  .amdhsa_kernarg_size 80
  .amdhsa_user_sgpr_count 2
  .amdhsa_user_sgpr_kernarg_segment_ptr 1
  .amdhsa_system_sgpr_workgroup_id_x 1
  .amdhsa_float_denorm_mode_32 3
.end_amdhsa_kernel
"""
def build(cfg):
    s = HEADER.format(l1=K1_LDS, l2=K2_LDS)
    for name, fn in (("bin_kernel", kernel1), ("edge_kernel", kernel2)):
        s += f".globl {name}\n.p2align 8\n.type {name},@function\n" + fn(cfg)
    s += '.section .rodata,"a"\n.p2align 6\n' + kd("bin_kernel", 64, 100) + ".p2align 6\n" + kd("edge_kernel", 256, 100)
    return s

if __name__ == "__main__":
    cfg = {}
    out = sys.argv[1]
    for a in sys.argv[2:]:
        k, v = a.split("=")
        cfg[k] = int(v) if v.lstrip("-").isdigit() else v
    open(out, "w").write(build(cfg))
```

```python
import sys, struct

N = 12500; E = 800000; NB = 256; NPB = 49; CH = 3128; CHB = CH * 12
WS_DESC = 0x00A00000; WS_FRAG = 0x00A80000; WS_SIZE = 0x00C00000
XSHIFT = 4096
NEG_LOG2E = 0xBFB8AA3B
MAGIC49 = 21400
assert all(((d * MAGIC49) >> 20) == d // 49 for d in range(N))

class Asm:
    def __init__(self): self.l = []
    def __call__(self, s): self.l.append("    " + s)
    def lab(self, s): self.l.append(s + ":")
    def c(self, s): self.l.append("    ; " + s)
    def text(self): return "\n".join(self.l) + "\n"

STAMP_BASE = 0x00B00000
class Stamper:
    def __init__(self, o, on, vreg, region):
        self.o, self.on, self.v, self.n, self.region = o, on, vreg, 0, region
    def __call__(self, real=False):
        if not self.on: return
        self.o(f"{'s_memrealtime' if real else 's_memtime'} s[98:99]")
        self.o("s_waitcnt lgkmcnt(0)")
        self.o(f"v_writelane_b32 v{self.v}, s98, {self.n}")
        self.n += 1
    def dump(self, srd_, wave_s, vt, lane):
        if not self.on: return
        o = self.o
        o("s_mov_b64 exec, 0xffff")
        o(f"s_lshl_b32 s4, s2, 4")
        o(f"s_add_u32 s4, s4, s{wave_s}")
        o(f"s_lshl_b32 s4, s4, 6")
        o(f"s_add_u32 s4, s4, {STAMP_BASE + self.region * 0x40000}")
        o(f"v_lshl_add_u32 v{vt}, v{lane}, 2, s4")
        o(f"buffer_store_dword v{self.v}, v{vt}, s[{srd_}:{srd_+3}], 0 offen")

def vr(a, n=1): return f"v{a}" if n == 1 else f"v[{a}:{a+n-1}]"
def sr(a, n=1): return f"s{a}" if n == 1 else f"s[{a}:{a+n-1}]"

def srd(o, d, lo, size):
    o(f"s_mov_b32 s{d}, s{lo}")
    o(f"s_and_b32 s{d+1}, s{lo+1}, 0xffff")
    o(f"s_mov_b32 s{d+2}, {size}")
    o(f"s_mov_b32 s{d+3}, 0x00020000")

def wave_scan(o, v):
    for sh in (1, 2, 4, 8):
        o(f"v_add_u32_dpp v{v}, v{v}, v{v} row_shr:{sh} row_mask:0xf bank_mask:0xf bound_ctrl:0")
        o("s_nop 1")
    o(f"v_add_u32_dpp v{v}, v{v}, v{v} row_bcast:15 row_mask:0xa bank_mask:0xf")
    o("s_nop 1")
    o(f"v_add_u32_dpp v{v}, v{v}, v{v} row_bcast:31 row_mask:0xc bank_mask:0xf")

K1_HIST = 0; K1_BASE = 1024; K1_STAGE = 2048
K1_LDS = 83968
def kernel1(cfg):
    o = Asm()
    ST = cfg.get("st1", "sc0 sc1")
    T = Stamper(o, cfg.get("stamp", 0), 36, 0)
    o.lab("bin_kernel")
    o("s_cmp_ge_u32 s2, 256")
    o("s_cbranch_scc1 L1_end")
    T(True); T()
    o("s_load_dwordx4 s[36:39], s[0:1], 0")
    o("s_load_dwordx4 s[40:43], s[0:1], 16")
    o("s_load_dwordx4 s[44:47], s[0:1], 32")
    o("s_load_dwordx2 s[48:49], s[0:1], 48")
    o("s_load_dwordx2 s[50:51], s[0:1], 72")
    o("v_lshrrev_b32 v1, 6, v0")
    o("s_movk_i32 s4, 782")
    o("s_cmp_eq_u32 s2, 255")
    o("s_cselect_b32 s4, 590, s4")
    o("v_readfirstlane_b32 s3, v1")
    o("s_mul_i32 s5, s2, 12512")
    o("v_lshl_add_u32 v2, v0, 4, s5")
    o("v_lshlrev_b32 v3, 1, v2")
    o("v_cmp_gt_u32 s[52:53], s4, v0")
    o("s_waitcnt lgkmcnt(0)")
    srd(o, 8, 42, E * 4)
    srd(o, 12, 40, E * 4)
    srd(o, 16, 38, E * 8)
    srd(o, 20, 50, WS_SIZE)
    srd(o, 24, 36, N * 128)
    o("s_mov_b64 exec, s[52:53]")
    o("s_cbranch_execz L1_noload")
    o("buffer_load_dwordx4 v[4:7], v2, s[8:11], 0 offen")
    o("buffer_load_dwordx4 v[8:11], v2, s[12:15], 0 offen")
    o("buffer_load_dwordx4 v[12:15], v3, s[16:19], 0 offen")
    o("buffer_load_dwordx4 v[16:19], v3, s[16:19], 0 offen offset:16")
    o.lab("L1_noload")
    o("s_mov_b64 exec, -1")
    o("v_and_b32 v1, 63, v0")
    o("s_cmp_lt_u32 s3, 13")
    o("s_cbranch_scc1 L1_barA")
    o.c("spare waves: pull this workgroup's share of x through the cache hierarchy")
    o("s_mul_i32 s6, s2, 6272")
    o("v_subrev_u32 v20, 832, v0")
    o("v_lshl_add_u32 v20, v20, 4, s6")
    o("buffer_load_dwordx4 v[52:55], v20, s[24:27], 0 offen")
    o("buffer_load_dwordx4 v[56:59], v20, s[24:27], 0 offen offset:3072")
    o("s_cmp_eq_u32 s3, 13")
    o("s_cbranch_scc0 L1_not13")
    o("v_mov_b32 v32, 0")
    o("v_mov_b32 v33, 0")
    o("v_mov_b32 v34, 0")
    o("v_mov_b32 v35, 0")
    o("v_lshlrev_b32 v21, 4, v1")
    o(f"ds_write_b128 v21, v[32:35] offset:{K1_HIST}")
    o("v_add_u32 v20, 6144, v20")
    o("buffer_load_dwordx4 v[60:63], v20, s[24:27], 0 offen")
    o("s_waitcnt lgkmcnt(0)")
    o("s_branch L1_barA")
    o.lab("L1_not13")
    o("s_cmp_eq_u32 s3, 15")
    o("s_cbranch_scc0 L1_barA")
    o("s_cmp_ge_u32 s2, 33")
    o("s_cbranch_scc1 L1_barA")
    o.c("weight fragment preparation (wave 15 of workgroups 0..32)")
    o("s_lshr_b32 s6, s2, 3")
    o("s_mov_b32 s28, s48")
    o("s_mov_b32 s29, s49")
    o("s_cmp_eq_u32 s6, 1")
    o("s_cselect_b32 s28, s46, s28")
    o("s_cselect_b32 s29, s47, s29")
    o("s_cmp_eq_u32 s6, 3")
    o("s_cselect_b32 s28, s44, s28")
    o("s_cselect_b32 s29, s45, s29")
    o("s_and_b32 s29, s29, 0xffff")
    o("s_and_b32 s7, s6, 1")
    o("s_cmp_eq_u32 s7, 1")
    o("s_movk_i32 s30, 16896")
    o("s_cselect_b32 s30, 8192, s30")
    o("s_mov_b32 s31, 0x00020000")
    o("v_and_b32 v21, 31, v1")
    o("v_lshrrev_b32 v22, 5, v1")
    o("s_cmp_eq_u32 s6, 4")
    o("s_cbranch_scc1 L1_fragC")
    o("s_and_b32 s54, s2, 3")
    o("s_lshl_b32 s54, s54, 11")
    o("s_bfe_u32 s55, s2, 0x10002")
    o("s_lshl_b32 s55, s55, 6")
    o("s_add_u32 s54, s54, s55")
    o("s_cmp_eq_u32 s6, 0")
    o("s_cselect_b32 s55, 8192, 0")
    o("s_add_u32 s54, s54, s55")
    o("v_lshlrev_b32 v22, 10, v22")
    o("v_lshl_add_u32 v21, v21, 1, v22")
    o("v_add_u32 v21, s54, v21")
    for j in range(8):
        o(f"buffer_load_ushort v{40+j}, v21, s[28:31], 0 offen offset:{128*j}")
    o("s_branch L1_barA")
    o.lab("L1_fragC")
    o("v_lshlrev_b32 v21, 1, v21")
    o("v_add_u32 v21, 16384, v21")
    o("v_mov_b32 v23, 0x100000")
    o("v_cmp_eq_u32 vcc, 0, v22")
    o("s_nop 1")
    o("v_cndmask_b32 v21, v23, v21, vcc")
    for e in range(8):
        o(f"buffer_load_ushort v{40+e}, v21, s[28:31], 0 offen offset:{128*(e&3)+64*(e>>2)}")
    o.lab("L1_barA")
    T()
    o("s_barrier")
    o("s_cmp_eq_u32 s3, 15")
    o("s_cbranch_scc0 L1_hist")
    o("s_cmp_ge_u32 s2, 33")
    o("s_cbranch_scc1 L1_barB")
    o("s_and_b32 s7, s6, 3")
    o("s_cmp_eq_u32 s7, 0")
    o("s_mov_b32 s54, 1.0")
    o(f"s_cselect_b32 s54, {NEG_LOG2E:#x}, s54")
    o("s_waitcnt vmcnt(0)")
    for j in range(8):
        o(f"v_lshlrev_b32 v{40+j}, 16, v{40+j}")
    for j in range(8):
        o(f"v_mul_f32 v{40+j}, s54, v{40+j}")
    for j in range(4):
        o(f"v_cvt_pk_bf16_f32 v{48+j}, v{40+2*j}, v{41+2*j}")
    o("s_lshl_b32 s55, s2, 10")
    o(f"s_add_u32 s55, s55, {WS_FRAG}")
    o("v_lshl_add_u32 v21, v1, 4, s55")
    o(f"buffer_store_dwordx4 v[48:51], v21, s[20:23], 0 offen {ST}")
    o("s_branch L1_barB")
    o.lab("L1_hist")
    o("s_mov_b64 exec, s[52:53]")
    o("s_cbranch_execz L1_histdone")
    o(f"s_movk_i32 s56, {MAGIC49}")
    o("v_mov_b32 v20, 1")
    o("s_waitcnt vmcnt(3)")
    T()
    for i in range(4):
        o(f"v_mul_u32_u24 v{24+i}, s56, v{4+i}")
    for i in range(4):
        o(f"v_lshrrev_b32 v{24+i}, 20, v{24+i}")
    for i in range(4):
        o(f"v_lshlrev_b32 v{28+i}, 2, v{24+i}")
        o(f"ds_add_rtn_u32 v{32+i}, v{28+i}, v20 offset:{K1_HIST}")
    for i in range(4):
        o(f"v_mul_u32_u24 v{24+i}, 49, v{24+i}")
    for i in range(4):
        o(f"v_sub_u32 v{4+i}, v{4+i}, v{24+i}")
    for i in range(4):
        o(f"v_lshlrev_b32 v{4+i}, 26, v{4+i}")
    o("s_waitcnt lgkmcnt(0)")
    o.lab("L1_histdone")
    o("s_mov_b64 exec, -1")
    o.lab("L1_barB")
    T()
    o("s_barrier")
    o("s_cmp_eq_u32 s3, 14")
    o("s_cbranch_scc0 L1_barC")
    o.c("wave 14: exclusive scan of the 256 bucket counts")
    o("v_lshlrev_b32 v21, 4, v1")
    o(f"ds_read_b128 v[40:43], v21 offset:{K1_HIST}")
    o("s_waitcnt lgkmcnt(0)")
    o("v_add_u32 v45, v40, v41")
    o("v_add_u32 v46, v45, v42")
    o("v_add_u32 v47, v46, v43")
    o("v_mov_b32 v48, v47")
    o("s_nop 1")
    wave_scan(o, 48)
    o("v_sub_u32 v48, v48, v47")
    o("v_add_u32 v49, v48, v40")
    o("v_add_u32 v50, v48, v45")
    o("v_add_u32 v51, v48, v46")
    for j in range(4):
        o(f"v_mul_u32_u24 v{48+j}, 12, v{48+j}")
    for j in range(4):
        o(f"v_lshl_or_b32 v{40+j}, v{40+j}, 16, v{48+j}")
    for j in range(4):
        o(f"v_add_u32 v{48+j}, {K1_STAGE}, v{48+j}")
    o(f"ds_write_b128 v21, v[48:51] offset:{K1_BASE}")
    o("s_lshl_b32 s55, s2, 10")
    o(f"s_add_u32 s55, s55, {WS_DESC}")
    o("v_add_u32 v21, s55, v21")
    o(f"buffer_store_dwordx4 v[40:43], v21, s[20:23], 0 offen {ST}")
    o("s_waitcnt lgkmcnt(0)")
    o.lab("L1_barC")
    o("s_barrier")
    T()
    o("s_mov_b64 exec, s[52:53]")
    o("s_cbranch_execz L1_scatdone")
    for i in range(4):
        o(f"ds_read_b32 v{24+i}, v{28+i} offset:{K1_BASE}")
    o("s_waitcnt vmcnt(2)")
    for i in range(4):
        o(f"v_lshlrev_b32 v{8+i}, 7, v{8+i}")
    for i in range(4):
        o(f"v_add_u32 v{8+i}, {XSHIFT}, v{8+i}")
    for i in range(4):
        o(f"v_or_b32 v{8+i}, v{8+i}, v{4+i}")
    o("s_waitcnt lgkmcnt(0)")
    for i in range(4):
        o(f"v_mad_u32_u24 v{24+i}, v{32+i}, 12, v{24+i}")
    for i in range(4):
        o(f"ds_write_b32 v{24+i}, v{8+i} offset:8")
    o("s_waitcnt vmcnt(0)")
    T()
    for i in range(4):
        o(f"ds_write2_b32 v{24+i}, v{12+2*i}, v{13+2*i} offset0:0 offset1:1")
    o("s_waitcnt lgkmcnt(0)")
    o.lab("L1_scatdone")
    o("s_mov_b64 exec, -1")
    o("s_barrier")
    T()
    o("v_lshlrev_b32 v20, 4, v0")
    o(f"s_mul_i32 s55, s2, {CHB}")
    o(f"ds_read_b128 v[24:27], v20 offset:{K1_STAGE}")
    o(f"ds_read_b128 v[28:31], v20 offset:{K1_STAGE+16384}")
    o(f"ds_read_b128 v[32:35], v20 offset:{K1_STAGE+32768}")
    o("v_add_u32 v21, 16384, v20")
    o("v_add_u32 v22, 32768, v20")
    o("v_cmp_gt_u32 vcc, 298, v0")
    o("s_waitcnt lgkmcnt(2)")
    o(f"buffer_store_dwordx4 v[24:27], v20, s[20:23], s55 offen {ST}")
    o("s_waitcnt lgkmcnt(1)")
    o(f"buffer_store_dwordx4 v[28:31], v21, s[20:23], s55 offen {ST}")
    o("s_and_saveexec_b64 s[58:59], vcc")
    o("s_cbranch_execz L1_fin")
    o("s_waitcnt lgkmcnt(0)")
    o(f"buffer_store_dwordx4 v[32:35], v22, s[20:23], s55 offen {ST}")
    o.lab("L1_fin")
    if T.on:
        T(); o("s_waitcnt vmcnt(0)"); T(); T(True); T.dump(20, 3, 40, 1)
    o.lab("L1_end")
    o("s_endpgm")
    return o.text()

CAP = 3584
P4 = 0; AGG = 51200; SRC = 76800; EA = SRC + CAP * 4; GN = EA + CAP * 8; CNT = GN + CAP
MORE = CNT + 256; ZERO8 = MORE + 8; STG = 123904; K2_LDS = STG + 32768
M64 = 196
assert CNT % 256 == 0 and CNT + 320 <= STG
XT = SRC
assert ZERO8 + 8 <= STG and XT % 16 == 0 and EA % 8 == 0
WSMALL = (CAP - 3 * NPB - 31) // 256
OOBSRC = 0x40000000

WB = 128; WV = 160; WC = 192
G = [64, 96]; H = [80, 112]
A = 48; EAR = 46; M = 40; ADP = 36; ADA = 32; SV = 28; GNR = 24; KJ = 20; AAD = 16
V_SRCA = 15; V_EAA = 14; V_GNA = 13; V_LBP = 12; V_EAI = 11; V_LANE = 10; V_DESC = 9; V_LB = 8
REC = 64; CA = 196; BS = 212; DUM = 228
S_W = 20; S_OFF = 21; S_NT = 22; S_T = 23; S_FIRST = 24; S_MORE = 25; S_TOT = 26
MASK = 32; SOFF = 64

def mfma16(d, a, b, c):
    cs = "0" if c is None else vr(c, 16)
    return f"v_mfma_f32_32x32x16_bf16 {vr(d,16)}, {vr(a,4)}, {vr(b,4)}, {cs}"
def mfma8(d, a, b):
    return f"v_mfma_f32_32x32x8_bf16 {vr(d,16)}, {vr(a,2)}, {vr(b,2)}, {vr(d,16)}"

def dma_tile(o):
    for j in range(4):
        o(f"buffer_load_dwordx4 v{SV+j}, s[8:11], 0 offen offset:{1024*j} lds")

def stage(o, cur, cfg):
    nxt = 1 - cur
    hh = nxt
    g, h, gn_, hn = G[cur], H[cur], G[nxt], H[nxt]
    prio = cfg.get("prio", 1)
    for q in range(4):
        o(f"ds_read_b128 {vr(gn_+4*q,4)}, v{ADP+q} offset:{P4+512*hh}")
    if cur == 0:
        o(f"ds_read2_b32 {vr(GNR,2)}, v{V_GNA} offset0:0 offset1:2")
        o(f"ds_read2_b32 {vr(GNR+2,2)}, v{V_GNA} offset0:4 offset1:6")
        o(f"ds_read_b128 {vr(SV,4)}, v{V_SRCA}")
    if prio: o("s_setprio 1")
    k = 0
    for r in range(16):
        if r in (3, 6, 9, 12):
            if r == 3 and cur == 1:
                o("s_waitcnt lgkmcnt(9)")
            o(mfma16(hn, A + 4*k, WV + 16*hh + 4*k, None if k == 0 else hn))
            k += 1
            if r == 3 and cur == 1:
                o(f"s_add_u32 s27, s{S_T}, 16")
                o(f"s_cmp_ge_u32 s27, s{S_NT}")
                o("s_cbranch_scc1 L2_nodma")
                dma_tile(o)
                o.lab("L2_nodma")
        o(f"v_exp_f32 v{g+r}, v{g+r}")
    if prio: o("s_setprio 0")
    for r in range(16):
        o(f"v_add_f32 v{g+r}, 1.0, v{g+r}")
    o("s_waitcnt lgkmcnt(0)")
    if prio: o("s_setprio 1")
    k = 0
    for r in range(16):
        if r in (0, 3, 6, 9):
            o(mfma16(gn_, A + 4*k, WB + 16*hh + 4*k, gn_))
            k += 1
            if r == 9 and cur == 0:
                o("s_waitcnt vmcnt(0)")
                for s in range(4):
                    o(f"ds_read_b128 {vr(A+4*s,4)}, v{AAD+s}")
        if r == 12:
            o(mfma8(gn_, EAR, WC + 2*hh))
            if cur == 0:
                o(f"ds_read_b64 {vr(EAR,2)}, v{V_EAA}")
        o(f"v_rcp_f32 v{g+r}, v{g+r}")
    if prio: o("s_setprio 0")
    if cur == 0:
        for q in range(4):
            o(f"v_lshrrev_b32 v{ADA+q}, 1, v{ADP+q}")
    for j in range(4):
        for q in range(4):
            if j == 0: o(f"v_mul_f32 v{M+q}, v{g+4*q}, v{h+4*q}")
            else: o(f"v_fmac_f32 v{M+q}, v{g+4*q+j}, v{h+4*q+j}")
    for q in range(4):
        o(f"v_cvt_f64_f32 {vr(M64+2*q,2)}, v{M+q}")
    for q in range(4):
        o(f"ds_add_f64 v{ADA+q}, {vr(M64+2*q,2)} offset:{AGG+256*cur}")
    if cur == 0:
        for q in range(4):
            o(f"v_add_u32 v{ADP+q}, v{GNR+q}, v{V_LBP}")
        for j in range(4):
            o(f"v_add_u32 v{SV+j}, v{SV+j}, v{KJ+j}")
        o(f"v_add_u32 v{V_SRCA}, 0x400, v{V_SRCA}")
        o(f"v_add_u32 v{V_GNA}, 0x100, v{V_GNA}")
        o(f"v_add_u32 v{V_EAA}, v{V_EAI}, v{V_EAA}")

def kernel2(cfg):
    o = Asm()
    T = Stamper(o, cfg.get("stamp", 0), 44, 1)
    o.lab("edge_kernel")
    o("s_cmp_ge_u32 s2, 256")
    o("s_cbranch_scc1 L2_end")
    T(True); T()
    o("s_load_dwordx2 s[4:5], s[0:1], 0")
    o("s_load_dwordx2 s[6:7], s[0:1], 56")
    o("s_load_dwordx2 s[28:29], s[0:1], 72")
    o("v_lshrrev_b32 v1, 6, v0")
    o(f"v_and_b32 v{V_LANE}, 63, v0")
    o("s_and_b32 s30, s2, 7")
    o("s_lshl_b32 s30, s30, 5")
    o("s_lshr_b32 s31, s2, 3")
    o("v_readfirstlane_b32 s3, v1")
    o("s_add_u32 s30, s30, s31")
    for i in range(8):
        o(f"s_mov_b32 s{SOFF+i}, {i*CHB}")
    L = V_LANE
    o(f"v_lshrrev_b32 v2, 4, v{L}")
    o(f"v_and_b32 v3, 15, v{L}")
    o("v_and_b32 v4, 7, v3")
    o("v_lshl_add_u32 v4, v2, 3, v4")
    o("s_lshl_b32 s27, s3, 5")
    o("v_add_u32 v4, s27, v4")
    o("s_lshl_b32 s72, s30, 2")
    o(f"s_add_u32 s72, s72, {WS_DESC}")
    o("v_lshlrev_b32 v4, 10, v4")
    o("s_waitcnt lgkmcnt(0)")
    srd(o, 12, 28, WS_SIZE)
    o(f"buffer_load_dword v{V_DESC}, v4, s[12:15], s72 offen")
    o(f"s_sub_u32 s8, s4, {XSHIFT}")
    o("s_subb_u32 s9, s5, 0")
    o("s_and_b32 s9, s9, 0xffff")
    o(f"s_mov_b32 s10, {N*128+XSHIFT}")
    o("s_mov_b32 s11, 0x00020000")
    srd(o, 16, 6, N * 128)
    o(f"v_lshlrev_b32 v5, 4, v{L}")
    o(f"s_mov_b32 s73, {WS_FRAG+32*1024}")
    o(f"buffer_load_dwordx4 {vr(WC,4)}, v5, s[12:15], s73 offen")
    o("s_lshl_b32 s74, s3, 12")
    o(f"s_add_u32 s75, s74, {STG}")
    o("s_mov_b32 m0, s75")
    o(f"s_add_u32 s73, s74, {WS_FRAG}")
    for j in range(4):
        o(f"buffer_load_dwordx4 v5, s[12:15], s73 offen offset:{1024*j} lds")
    o(f"v_lshrrev_b32 v6, 3, v{L}")
    o(f"v_and_b32 v7, 7, v{L}")
    o(f"v_lshrrev_b32 v1, 5, v{L}")
    o("v_lshlrev_b32 v1, 2, v1")
    o("v_xor_b32 v7, v7, v1")
    for j in range(4):
        o(f"v_xor_b32 v{KJ+j}, {j}, v7")
        o(f"v_lshlrev_b32 v{KJ+j}, 4, v{KJ+j}")
    o("s_and_b32 s76, s3, 3")
    o("s_lshr_b32 s77, s3, 2")
    o("v_xor_b32 v1, s76, v7")
    o("v_lshlrev_b32 v1, 4, v1")
    o("s_mul_i32 s78, s30, 49")
    o("s_lshl_b32 s79, s77, 5")
    o("s_add_u32 s79, s79, s78")
    o("s_add_u32 s79, s79, s76")
    o("s_lshl_b32 s79, s79, 7")
    o(f"s_add_u32 s79, s79, {XSHIFT}")
    o("v_lshl_add_u32 v1, v6, 9, v1")
    o("s_lshl_b32 s80, s3, 10")
    o(f"s_add_u32 s80, s80, {XT}")
    o("s_mov_b32 m0, s80")
    o("v_add_u32 v1, s79, v1")
    o("buffer_load_dwordx4 v1, s[8:11], 0 offen lds")
    o("s_mov_b32 m0, s75")
    for j in range(1, 4):
        o(f"v_subrev_u32 v{KJ+j}, {1024*j}, v{KJ+j}")
    o(f"v_and_b32 v1, 3, v{L}")
    o(f"v_bfe_u32 v2, v{L}, 2, 3")
    o("v_lshl_add_u32 v2, v1, 3, v2")
    o("v_lshlrev_b32 v2, 7, v2")
    o(f"v_bfe_u32 v4, v{L}, 4, 1")
    o("v_lshl_or_b32 v1, v4, 2, v1")
    o(f"v_lshrrev_b32 v4, 5, v{L}")
    o("v_xor_b32 v1, v1, v4")
    for s in range(4):
        o(f"v_xor_b32 v{AAD+s}, {2*s}, v1")
        o(f"v_lshl_add_u32 v{AAD+s}, v{AAD+s}, 4, v2")
    o("s_cmp_lg_u32 s3, 0")
    o("s_cbranch_scc1 L2_nz")
    o("v_mov_b32 v1, 0")
    o(f"v_lshlrev_b32 v2, 2, v{L}")
    o(f"v_add_u32 v2, {CNT}, v2")
    o("ds_write_b32 v2, v1")
    o("ds_write_b32 v2, v1 offset:64")
    o.lab("L2_nz")
    o(f"v_lshrrev_b32 v1, 4, v{L}")
    o("v_lshlrev_b32 v1, 3, v1")
    o("v_add_u32 v1, s27, v1")
    o(f"s_mov_b32 s81, {CHB}")
    o(f"v_mul_lo_u32 v{V_LB}, v1, s81")
    o(f"v_mad_u32_u24 v{V_LB}, v3, 12, v{V_LB}")
    o(f"v_and_b32 v1, 31, v{L}")
    o(f"v_lshlrev_b32 v{V_LBP}, 4, v1")
    o(f"s_mov_b32 s{S_W}, 32")
    o(f"s_mov_b32 s{S_OFF}, 0")
    o(f"s_mov_b32 s{S_FIRST}, 1")
    o("s_mul_i32 s82, s31, 50000")
    o(f"s_add_u32 s82, s82, {XSHIFT}")
    o("v_lshlrev_b32 v7, 4, v0")
    T()
    o("s_waitcnt vmcnt(6)")
    T()
    o.lab("L2_pass")
    o(f"v_and_b32 v3, 15, v{L}")
    o(f"v_add_u32 v1, s{S_OFF}, v3")
    o("v_add_u32 v2, 16, v1")
    o(f"s_add_u32 s83, s{S_OFF}, s{S_W}")
    o(f"s_mul_i32 s84, s{S_OFF}, 12")
    o(f"v_add_u32 v6, s84, v{V_LB}")
    o(f"v_lshrrev_b32 v4, 16, v{V_DESC}")
    o("v_cmp_lt_u32 vcc, s83, v4")
    o("v_min_u32 v4, s83, v4")
    o(f"v_and_b32 v5, 0xffff, v{V_DESC}")
    o("s_cmp_lg_u64 vcc, 0")
    o(f"s_cselect_b32 s{S_MORE}, 1, 0")
    for i in range(8):
        o(f"v_mov_b32_dpp v{BS}, v4 row_newbcast:{i} row_mask:0xf bank_mask:0xf")
        o(f"v_add_u32_dpp v{BS+1+(i&1)}, v5, v6 row_newbcast:{i} row_mask:0xf bank_mask:0xf")
        o(f"v_cmp_lt_u32 {sr(MASK+4*i+2,2)}, v2, v{BS}")
        o(f"v_cmpx_lt_u32 {sr(MASK+4*i,2)}, v1, v{BS}")
        o(f"buffer_load_dwordx3 {vr(REC+8*i,3)}, v{BS+1+(i&1)}, s[12:15], s{SOFF+i} offen")
        o(f"s_mov_b64 exec, {sr(MASK+4*i+2,2)}")
        o(f"buffer_load_dwordx3 {vr(REC+8*i+4,3)}, v{BS+1+(i&1)}, s[12:15], s{SOFF+i} offen offset:192")
        o("s_mov_b64 exec, -1")
        if i < 7: o("s_nop 1")
    for i in range(7):
        if i < 6:
            o(f"s_add_u32 s85, s82, {8192*i}")
            o(f"buffer_load_dwordx4 {vr(DUM+4*i,4)}, v7, s[8:11], s85 offen")
        else:
            o(f"s_add_u32 s85, s82, {8192*i}")
            o("v_cmp_gt_u32 vcc, 53, v0")
            o("v_mov_b32 v1, 0x40000000")
            o("s_nop 0")
            o("v_cndmask_b32 v1, v1, v7, vcc")
            o(f"buffer_load_dwordx4 {vr(DUM+4*i,4)}, v1, s[8:11], s85 offen")
    o(f"s_cmp_eq_u32 s{S_FIRST}, 0")
    o("s_cbranch_scc1 L2_ranks")
    o(f"s_mov_b32 s{S_FIRST}, 0")
    T()
    o("s_waitcnt vmcnt(23) lgkmcnt(0)")
    o("s_barrier")
    T()
    o(f"v_lshlrev_b32 v1, 4, v{L}")
    o(f"v_add_u32 v1, {STG}, v1")
    o("s_and_b32 s86, s3, 1")
    o("s_bfe_u32 s87, s3, 0x10001")
    o("s_lshr_b32 s88, s3, 2")
    o("s_lshl_b32 s89, s86, 13")
    o("s_lshl_b32 s90, s88, 12")
    o("s_add_u32 s89, s89, s90")
    o("s_add_u32 s89, s89, 16384")
    o("v_add_u32 v2, s89, v1")
    for s in range(4):
        o(f"ds_read_b128 {vr(BS+4*s,4)}, v2 offset:{1024*s}")
    o("s_lshl_b32 s90, s87, 12")
    o(f"s_add_u32 s90, s90, {XT}")
    for s in range(4):
        o(f"v_add_u32 v3, s90, v{AAD+s}")
        o(f"ds_read_b128 {vr(A+4*s,4)}, v3")
    for f in range(7):
        o(f"ds_read_b128 {vr(WB+4*f,4)}, v1 offset:{1024*f}")
    o("s_waitcnt lgkmcnt(7)")
    for s in range(4):
        o(mfma16(CA, A + 4*s, BS + 4*s, None if s == 0 else CA))
    for f in range(7, 16):
        o(f"ds_read_b128 {vr(WB+4*f,4)}, v1 offset:{1024*f}")
    for s in range(4):
        o(f"v_add_u32 v{AAD+s}, s75, v{AAD+s}")
    o(f"v_lshrrev_b32 v2, 5, v{L}")
    o("v_lshlrev_b32 v2, 2, v2")
    o("s_lshl_b32 s90, s87, 5")
    o("v_add_u32 v2, s90, v2")
    o("s_nop 7")
    o("s_cmp_eq_u32 s86, 1")
    o("s_cbranch_scc1 L2_xu")
    o("s_lshl_b32 s90, s88, 9")
    o(f"v_lshl_add_u32 v2, v2, 10, v{V_LBP}")
    o("v_add_u32 v2, s90, v2")
    o(f"s_mov_b32 s91, {NEG_LOG2E:#x}")
    def pwrite(r):
        t = BS + 4 * (r & 3)
        for c in range(4):
            o(f"v_mul_f32 v{t+c}, s91, v{CA+r}")
        o(f"ds_write_b128 v2, {vr(t,4)} offset:{P4 + (8*(r>>2)+(r&3))*1024}")
    for r in range(8): pwrite(r)
    o("s_cmp_eq_u32 s87, 1")
    o("s_cselect_b32 exec_hi, 0, -1")
    for r in range(8, 10): pwrite(r)
    o("s_mov_b64 exec, -1")
    o("s_cbranch_scc1 L2_pdone")
    for r in range(10, 16): pwrite(r)
    o("s_branch L2_pdone")
    o.lab("L2_xu")
    o("s_lshl_b32 s90, s88, 8")
    o(f"v_lshrrev_b32 v3, 1, v{V_LBP}")
    o("v_lshl_add_u32 v2, v2, 9, v3")
    o("v_add_u32 v2, s90, v2")
    def uwrite(r):
        t = BS + 2 * (r & 7)
        o(f"v_cvt_f64_f32 {vr(t,2)}, v{CA+r}")
        o(f"ds_write_b64 v2, {vr(t,2)} offset:{AGG + (8*(r>>2)+(r&3))*512}")
    for r in range(8): uwrite(r)
    o("s_cmp_eq_u32 s87, 1")
    o("s_cselect_b32 exec_hi, 0, -1")
    for r in range(8, 10): uwrite(r)
    o("s_mov_b64 exec, -1")
    o("s_cbranch_scc1 L2_pdone")
    for r in range(10, 16): uwrite(r)
    o.lab("L2_pdone")
    o("s_waitcnt lgkmcnt(0)")
    o.lab("L2_ranks")
    T()
    o("v_mov_b32 v1, 4")
    o(f"s_cmp_eq_u32 s{S_MORE}, 0")
    o("s_cbranch_scc1 L2_nomore")
    o(f"v_mov_b32 v2, {MORE}")
    o("ds_write_b32 v2, v1")
    o.lab("L2_nomore")
    o(f"v_mov_b32 v2, {CNT}")
    for i in range(16):
        o(f"s_waitcnt vmcnt({7+15-i})")
        o(f"s_mov_b64 exec, {sr(MASK+2*i,2)}")
        o(f"v_add_u32_sdwa v{CA+i}, v{REC+4*i+2}, v2 dst_sel:DWORD dst_unused:UNUSED_PAD src0_sel:BYTE_3 src1_sel:DWORD")
        o("s_nop 0")
        o(f"ds_add_rtn_u32 v{REC+4*i+3}, v{CA+i}, v1")
    o("s_mov_b64 exec, -1")
    o("s_waitcnt lgkmcnt(0)")
    T()
    o("s_barrier")
    T()
    o(f"v_lshl_add_u32 v1, v{L}, 2, v2")
    o("ds_read_b32 v3, v1")
    o(f"ds_read_b32 v4, v2 offset:256")
    o("s_waitcnt lgkmcnt(0)")
    o("v_add_u32 v5, 15, v3")
    o("v_and_b32 v5, -16, v5")
    o("v_mov_b32 v6, v5")
    o(f"v_readfirstlane_b32 s{S_MORE}, v4")
    o("s_nop 0")
    wave_scan(o, 6)
    o("s_nop 0")
    o(f"v_readlane_b32 s{S_TOT}, v6, 63")
    o("v_sub_u32 v6, v6, v5")
    o(f"s_cmp_gt_u32 s{S_TOT}, {(CAP-32)*4}")
    o("s_cbranch_scc0 L2_fits")
    o.c("window too large for LDS: clear the counters and redo with the small window")
    o("s_barrier")
    o("v_mov_b32 v3, 0")
    o("ds_write_b32 v1, v3")
    o("ds_write_b32 v2, v3 offset:256")
    o(f"s_mov_b32 s{S_W}, {WSMALL}")
    o("s_waitcnt vmcnt(0) lgkmcnt(0)")
    o("s_barrier")
    o("s_branch L2_pass")
    o.lab("L2_fits")
    o(f"v_add_u32 v4, {SRC}, v6")
    for i in range(16):
        o(f"ds_bpermute_b32 v{BS+i}, v{CA+i}, v4")
    o(f"s_add_u32 s{S_NT}, s{S_TOT}, 127")
    o(f"s_lshr_b32 s{S_NT}, s{S_NT}, 7")
    o(f"s_mov_b32 s92, {EA-2*SRC}")
    o("s_waitcnt lgkmcnt(0)")
    for i in range(16):
        o(f"s_mov_b64 exec, {sr(MASK+2*i,2)}")
        o(f"v_add_u32 v{BS+i}, v{BS+i}, v{REC+4*i+3}")
        o(f"v_and_b32 v{REC+4*i+2}, 0xffffff, v{REC+4*i+2}")
        o(f"v_lshl_add_u32 v{REC+4*i+3}, v{BS+i}, 1, s92")
        o(f"ds_write_b32 v{BS+i}, v{REC+4*i+2}")
        o(f"ds_write_b64 v{REC+4*i+3}, {vr(REC+4*i,2)}")
    o("s_mov_b64 exec, -1")
    o(f"v_mov_b32 v{BS}, {OOBSRC:#x}")
    o(f"v_mov_b32 v{BS+2}, 0")
    o(f"v_mov_b32 v{BS+3}, 0")
    o("s_lshl_b32 s93, s3, 2")
    o("v_add_u32 v3, s93, v3")
    o("v_cmp_lt_u32 vcc, v3, v5")
    o("v_add_u32 v3, v3, v4")
    o("v_lshl_add_u32 v4, v3, 1, s92")
    o("s_and_saveexec_b64 s[94:95], vcc")
    o(f"ds_write_b32 v3, v{BS}")
    o(f"ds_write_b64 v4, {vr(BS+2,2)}")
    o("s_mov_b64 exec, -1")
    o(f"v_lshl_add_u32 v3, v{L}, 2, s{S_TOT}")
    o(f"s_lshl_b32 s93, s{S_NT}, 7")
    o("v_cmp_gt_u32 vcc, s93, v3")
    o(f"v_add_u32 v3, {SRC}, v3")
    o("v_lshl_add_u32 v4, v3, 1, s92")
    o("s_and_saveexec_b64 s[94:95], vcc")
    o(f"ds_write_b32 v3, v{BS}")
    o(f"ds_write_b64 v4, {vr(BS+2,2)}")
    o("s_mov_b64 exec, -1")
    o(f"s_lshr_b32 s96, s{S_TOT}, 2")
    o(f"v_lshl_add_u32 v3, v{L}, 2, s96")
    o("s_lshr_b32 s93, s93, 2")
    o("v_cmp_gt_u32 vcc, s93, v3")
    o(f"v_add_u32 v3, {GN}, v3")
    o(f"v_mov_b32 v4, {49*1024}")
    o("s_and_saveexec_b64 s[94:95], vcc")
    o("ds_write_b32 v3, v4")
    o("s_mov_b64 exec, -1")
    o("v_lshrrev_b32 v5, 2, v5")
    o("v_lshrrev_b32 v6, 2, v6")
    o(f"v_add_u32 v6, {GN}, v6")
    o(f"v_lshlrev_b32 v4, 10, v{L}")
    o("s_lshl_b32 s93, s3, 2")
    o.lab("L2_gloop")
    o("v_cmp_lt_u32 vcc, s93, v5")
    o("v_add_u32 v3, s93, v6")
    o("s_and_saveexec_b64 s[94:95], vcc")
    o("s_cbranch_execz L2_gdone")
    o("ds_write_b32 v3, v4")
    o("s_mov_b64 exec, -1")
    o("s_add_u32 s93, s93, 32")
    o("s_branch L2_gloop")
    o.lab("L2_gdone")
    o("s_mov_b64 exec, -1")
    o("s_waitcnt lgkmcnt(0)")
    T()
    o("s_barrier")
    T()
    o("s_cmp_lg_u32 s3, 0")
    o("s_cbranch_scc1 L2_nz2")
    o("v_mov_b32 v3, 0")
    o("ds_write_b32 v1, v3")
    o("ds_write_b32 v2, v3 offset:256")
    o.lab("L2_nz2")
    o(f"s_mov_b32 s{S_T}, s3")
    o(f"s_cmp_ge_u32 s{S_T}, s{S_NT}")
    o("s_cbranch_scc1 L2_done")
    o(f"v_lshrrev_b32 v1, 3, v{L}")
    o("v_lshlrev_b32 v1, 4, v1")
    o("s_lshl_b32 s93, s3, 7")
    o(f"s_add_u32 s93, s93, {SRC}")
    o(f"v_add_u32 v{V_SRCA}, s93, v1")
    o(f"ds_read_b128 {vr(SV,4)}, v{V_SRCA}")
    o(f"v_lshrrev_b32 v1, 5, v{L}")
    o("s_lshl_b32 s93, s3, 5")
    o(f"s_add_u32 s93, s93, {GN}")
    o(f"v_lshl_add_u32 v{V_GNA}, v1, 2, s93")
    o(f"ds_read2_b32 {vr(GNR,2)}, v{V_GNA} offset0:0 offset1:2")
    o(f"ds_read2_b32 {vr(GNR+2,2)}, v{V_GNA} offset0:4 offset1:6")
    o("s_lshl_b32 s93, s3, 8")
    o(f"s_add_u32 s93, s93, {EA}")
    o(f"v_lshl_add_u32 v{V_EAA}, v{L}, 3, s93")
    o(f"v_mov_b32 v2, {ZERO8}")
    o(f"v_mov_b32 v{V_EAI}, 0x800")
    o(f"v_cmp_gt_u32 vcc, 32, v{L}")
    o("s_nop 1")
    o(f"v_cndmask_b32 v{V_EAA}, v2, v{V_EAA}, vcc")
    o(f"v_cndmask_b32 v{V_EAI}, 0, v{V_EAI}, vcc")
    o(f"ds_read_b64 {vr(EAR,2)}, v{V_EAA}")
    o("s_waitcnt lgkmcnt(3)")
    for j in range(4):
        o(f"v_add_u32 v{SV+j}, v{SV+j}, v{KJ+j}")
    dma_tile(o)
    o(f"ds_read_b128 {vr(SV,4)}, v{V_SRCA} offset:1024")
    o(f"v_add_u32 v{V_SRCA}, 0x800, v{V_SRCA}")
    o(f"v_add_u32 v{V_GNA}, 0x100, v{V_GNA}")
    o(f"v_add_u32 v{V_EAA}, v{V_EAI}, v{V_EAA}")
    o("s_waitcnt lgkmcnt(1)")
    for q in range(4):
        o(f"v_add_u32 v{ADP+q}, v{GNR+q}, v{V_LBP}")
    for q in range(4):
        o(f"ds_read_b128 {vr(G[0]+4*q,4)}, v{ADP+q} offset:{P4}")
    o("s_waitcnt vmcnt(0)")
    for s in range(4):
        o(f"ds_read_b128 {vr(A+4*s,4)}, v{AAD+s}")
    o("s_waitcnt lgkmcnt(0)")
    for j in range(4):
        o(f"v_add_u32 v{SV+j}, v{SV+j}, v{KJ+j}")
    o(f"s_add_u32 s27, s{S_T}, 8")
    o(f"s_cmp_ge_u32 s27, s{S_NT}")
    o("s_cbranch_scc1 L2_nodma0")
    dma_tile(o)
    o.lab("L2_nodma0")
    for k in range(4):
        o(mfma16(G[0], A + 4*k, WB + 4*k, G[0]))
    o(mfma8(G[0], EAR, WC))
    for k in range(4):
        o(mfma16(H[0], A + 4*k, WV + 4*k, None if k == 0 else H[0]))
    o("s_nop 7")
    T()
    o(".p2align 3")
    o.lab("L2_loop")
    stage(o, 0, cfg)
    stage(o, 1, cfg)
    o(f"s_add_u32 s{S_T}, s{S_T}, 8")
    o(f"s_cmp_lt_u32 s{S_T}, s{S_NT}")
    o("s_cbranch_scc1 L2_loop")
    o.lab("L2_done")
    o("s_waitcnt vmcnt(0) lgkmcnt(0)")
    T()
    o("s_barrier")
    T()
    o(f"s_cmp_eq_u32 s{S_MORE}, 0")
    o("s_cbranch_scc1 L2_out")
    o(f"s_add_u32 s{S_OFF}, s{S_OFF}, s{S_W}")
    o("s_nop 15")
    o("s_branch L2_pass")
    o.lab("L2_out")
    o("v_cmp_gt_u32 vcc, 392, v0")
    o("s_and_saveexec_b64 s[94:95], vcc")
    o("s_cbranch_execz L2_fin")
    o("v_lshlrev_b32 v1, 6, v0")
    for c in range(4):
        o(f"ds_read_b128 {vr(80+4*c,4)}, v1 offset:{AGG+16*c}")
    o("s_lshl_b32 s93, s78, 7")
    o("v_add_u32 v2, s93, v7")
    o("s_waitcnt lgkmcnt(0)")
    for r in range(8): o(f"v_cvt_f32_f64 v{64+r}, {vr(80+2*r,2)}")
    for r in range(8): o(f"v_mul_f32 v{72+r}, {NEG_LOG2E:#x}, v{64+r}")
    for r in range(8): o(f"v_exp_f32 v{72+r}, v{72+r}")
    for r in range(8): o(f"v_add_f32 v{72+r}, 1.0, v{72+r}")
    for r in range(8): o(f"v_rcp_f32 v{72+r}, v{72+r}")
    for r in range(8): o(f"v_mul_f32 v{64+r}, v{64+r}, v{72+r}")
    for r in range(4): o(f"v_cvt_pk_bf16_f32 v{72+r}, v{64+2*r}, v{65+2*r}")
    o("buffer_store_dwordx4 v[72:75], v2, s[16:19], 0 offen")
    o.lab("L2_fin")
    if T.on:
        o("s_waitcnt vmcnt(0)"); T(); T(True); T.dump(12, 3, 1, V_LANE)
    o.lab("L2_end")
    o("s_endpgm")
    return o.text()

HEADER = """; Edge-gated MPNN layer: out = silu(x@U + sum over edges with dst=i of sigmoid(x[dst]@A + x[src]@B + e@C) * (x[src]@V))
; @launch kernel=bin_kernel grid=(256,1,1) block=(1024,1,1) lds={l1}
; @launch kernel=edge_kernel grid=(256,1,1) block=(512,1,1) lds={l2}
.amdgcn_target "amdgcn-amd-amdhsa--gfx950"
.text
"""
def kd(name, vg, sg):
    return f""".amdhsa_kernel {name}
  .amdhsa_next_free_vgpr {vg}
  .amdhsa_next_free_sgpr {sg}
  .amdhsa_accum_offset {(vg+3)//4*4}
  .amdhsa_group_segment_fixed_size 0
  .amdhsa_kernarg_size 80
  .amdhsa_user_sgpr_count 2
  .amdhsa_user_sgpr_kernarg_segment_ptr 1
  .amdhsa_system_sgpr_workgroup_id_x 1
  .amdhsa_float_denorm_mode_32 3
.end_amdhsa_kernel
"""
def build(cfg):
    s = HEADER.format(l1=K1_LDS, l2=K2_LDS)
    nn = cfg.get("nops", 0)
    if nn:
        line = "; @launch kernel=nop_kernel grid=(1,1,1) block=(64,1,1) lds=0\n"
        if cfg.get("nopfirst", 0): s = s.replace("; @launch kernel=bin_kernel", line * nn + "; @launch kernel=bin_kernel")
        else: s = s.replace(".amdgcn_target", line * nn + ".amdgcn_target")
        s += ".globl nop_kernel\n.p2align 8\n.type nop_kernel,@function\nnop_kernel:\n    s_endpgm\n"
    for name, fn in (("bin_kernel", kernel1), ("edge_kernel", kernel2)):
        s += f".globl {name}\n.p2align 8\n.type {name},@function\n" + fn(cfg)
    s += '.section .rodata,"a"\n.p2align 6\n' + kd("bin_kernel", 64, 100) + ".p2align 6\n" + kd("edge_kernel", 256, 100)
    if nn: s += ".p2align 6\n" + kd("nop_kernel", 8, 16)
    return s

if __name__ == "__main__":
    cfg = {}
    out = sys.argv[1]
    for a in sys.argv[2:]:
        k, v = a.split("=")
        cfg[k] = int(v) if v.lstrip("-").isdigit() else v
    open(out, "w").write(build(cfg))
```

```python
import sys, struct

N = 12500; E = 800000; NB = 256; NPB = 49; CH = 3128; CHB = CH * 12
WS_DESC = 0x00A00000; WS_FRAG = 0x00A80000; WS_SIZE = 0x00C00000
XSHIFT = 4096
NEG_LOG2E = 0xBFB8AA3B
MAGIC49 = 21400
assert all(((d * MAGIC49) >> 20) == d // 49 for d in range(N))

class Asm:
    def __init__(self): self.l = []
    def __call__(self, s): self.l.append("    " + s)
    def lab(self, s): self.l.append(s + ":")
    def c(self, s): self.l.append("    ; " + s)
    def text(self): return "\n".join(self.l) + "\n"

STAMP_BASE = 0x00B00000
class Stamper:
    def __init__(self, o, on, vreg, region):
        self.o, self.on, self.v, self.n, self.region = o, on, vreg, 0, region
        self.dbgwg = None; self.dbgback = 0
    def __call__(self, real=False):
        if not self.on: return
        self.o(f"{'s_memrealtime' if real else 's_memtime'} s[98:99]")
        self.o("s_waitcnt lgkmcnt(0)")
        self.o(f"v_writelane_b32 v{self.v}, s98, {self.n}")
        self.n += 1
    def dump(self, srd_, wave_s, vt, lane):
        if not self.on: return
        o = self.o
        o("s_mov_b64 exec, 0xffff")
        o(f"s_lshl_b32 s4, s2, 4")
        o(f"s_add_u32 s4, s4, s{wave_s}")
        o(f"s_lshl_b32 s4, s4, 6")
        o(f"s_add_u32 s4, s4, {STAMP_BASE + self.region * 0x40000}")
        o(f"v_lshl_add_u32 v{vt}, v{lane}, 2, s4")
        o(f"buffer_store_dword v{self.v}, v{vt}, s[{srd_}:{srd_+3}], 0 offen")
        if self.dbgwg is not None:
            o(f"s_cmp_lg_u32 s2, {self.dbgwg}")
            o("s_cbranch_scc1 Ldbg%d" % self.region)
            o(f"s_cmp_lg_u32 s{wave_s}, 1")
            o("s_cbranch_scc1 Ldbg%d" % self.region)
            o("s_load_dwordx2 s[4:5], s[0:1], 64")
            o("s_waitcnt lgkmcnt(0)")
            o(f"s_sub_u32 s4, s4, {self.dbgback}")
            o("s_subb_u32 s5, s5, 0")
            o("s_mov_b32 s6, 256")
            o("s_mov_b32 s7, 0x00020000")
            o(f"v_lshlrev_b32 v{vt}, 2, v{lane}")
            o(f"buffer_store_dword v{self.v}, v{vt}, s[4:7], 0 offen")
            o.lab("Ldbg%d" % self.region)

def vr(a, n=1): return f"v{a}" if n == 1 else f"v[{a}:{a+n-1}]"
def sr(a, n=1): return f"s{a}" if n == 1 else f"s[{a}:{a+n-1}]"

def srd(o, d, lo, size):
    o(f"s_mov_b32 s{d}, s{lo}")
    o(f"s_and_b32 s{d+1}, s{lo+1}, 0xffff")
    o(f"s_mov_b32 s{d+2}, {size}")
    o(f"s_mov_b32 s{d+3}, 0x00020000")

def wave_scan(o, v):
    for sh in (1, 2, 4, 8):
        o(f"v_add_u32_dpp v{v}, v{v}, v{v} row_shr:{sh} row_mask:0xf bank_mask:0xf bound_ctrl:0")
        o("s_nop 1")
    o(f"v_add_u32_dpp v{v}, v{v}, v{v} row_bcast:15 row_mask:0xa bank_mask:0xf")
    o("s_nop 1")
    o(f"v_add_u32_dpp v{v}, v{v}, v{v} row_bcast:31 row_mask:0xc bank_mask:0xf")

K1_HIST = 0; K1_BASE = 1024; K1_STAGE = 2048
K1_LDS = 83968
def kernel1(cfg):
    o = Asm()
    ST = cfg.get("st1", "sc0 sc1")
    T = Stamper(o, cfg.get("stamp", 0), 36, 0)
    if cfg.get("dbg", -1) == 0: T.dbgwg = cfg.get("dbgwg", 100)
    o.lab("bin_kernel")
    o("s_cmp_ge_u32 s2, 256")
    o("s_cbranch_scc1 L1_end")
    T(True); T()
    o("s_load_dwordx4 s[36:39], s[0:1], 0")
    o("s_load_dwordx4 s[40:43], s[0:1], 16")
    o("s_load_dwordx4 s[44:47], s[0:1], 32")
    o("s_load_dwordx2 s[48:49], s[0:1], 48")
    o("s_load_dwordx2 s[50:51], s[0:1], 72")
    o("v_lshrrev_b32 v1, 6, v0")
    o("s_movk_i32 s4, 782")
    o("s_cmp_eq_u32 s2, 255")
    o("s_cselect_b32 s4, 590, s4")
    o("v_readfirstlane_b32 s3, v1")
    o("s_mul_i32 s5, s2, 12512")
    o("v_lshl_add_u32 v2, v0, 4, s5")
    o("v_lshlrev_b32 v3, 1, v2")
    o("v_cmp_gt_u32 s[52:53], s4, v0")
    o("s_waitcnt lgkmcnt(0)")
    srd(o, 8, 42, E * 4)
    srd(o, 12, 40, E * 4)
    srd(o, 16, 38, E * 8)
    srd(o, 20, 50, WS_SIZE)
    srd(o, 24, 36, N * 128)
    o("s_mov_b64 exec, s[52:53]")
    o("s_cbranch_execz L1_noload")
    o("buffer_load_dwordx4 v[4:7], v2, s[8:11], 0 offen")
    o("buffer_load_dwordx4 v[8:11], v2, s[12:15], 0 offen")
    o("buffer_load_dwordx4 v[12:15], v3, s[16:19], 0 offen")
    o("buffer_load_dwordx4 v[16:19], v3, s[16:19], 0 offen offset:16")
    o.lab("L1_noload")
    o("s_mov_b64 exec, -1")
    o("v_and_b32 v1, 63, v0")
    o("s_cmp_lt_u32 s3, 13")
    o("s_cbranch_scc1 L1_barA")
    o.c("spare waves: pull this workgroup's share of x through the cache hierarchy")
    o("s_mul_i32 s6, s2, 6272")
    o("v_subrev_u32 v20, 832, v0")
    o("v_lshl_add_u32 v20, v20, 4, s6")
    o("buffer_load_dwordx4 v[52:55], v20, s[24:27], 0 offen")
    o("buffer_load_dwordx4 v[56:59], v20, s[24:27], 0 offen offset:3072")
    o("s_cmp_eq_u32 s3, 13")
    o("s_cbranch_scc0 L1_not13")
    o("v_mov_b32 v32, 0")
    o("v_mov_b32 v33, 0")
    o("v_mov_b32 v34, 0")
    o("v_mov_b32 v35, 0")
    o("v_lshlrev_b32 v21, 4, v1")
    o(f"ds_write_b128 v21, v[32:35] offset:{K1_HIST}")
    o("v_add_u32 v20, 6144, v20")
    o("buffer_load_dwordx4 v[60:63], v20, s[24:27], 0 offen")
    o("s_waitcnt lgkmcnt(0)")
    o("s_branch L1_barA")
    o.lab("L1_not13")
    o("s_cmp_eq_u32 s3, 15")
    o("s_cbranch_scc0 L1_barA")
    o("s_cmp_ge_u32 s2, 33")
    o("s_cbranch_scc1 L1_barA")
    o.c("weight fragment preparation (wave 15 of workgroups 0..32)")
    o("s_lshr_b32 s6, s2, 3")
    o("s_mov_b32 s28, s48")
    o("s_mov_b32 s29, s49")
    o("s_cmp_eq_u32 s6, 1")
    o("s_cselect_b32 s28, s46, s28")
    o("s_cselect_b32 s29, s47, s29")
    o("s_cmp_eq_u32 s6, 3")
    o("s_cselect_b32 s28, s44, s28")
    o("s_cselect_b32 s29, s45, s29")
    o("s_and_b32 s29, s29, 0xffff")
    o("s_and_b32 s7, s6, 1")
    o("s_cmp_eq_u32 s7, 1")
    o("s_movk_i32 s30, 16896")
    o("s_cselect_b32 s30, 8192, s30")
    o("s_mov_b32 s31, 0x00020000")
    o("v_and_b32 v21, 31, v1")
    o("v_lshrrev_b32 v22, 5, v1")
    o("s_cmp_eq_u32 s6, 4")
    o("s_cbranch_scc1 L1_fragC")
    o("s_and_b32 s54, s2, 3")
    o("s_lshl_b32 s54, s54, 11")
    o("s_bfe_u32 s55, s2, 0x10002")
    o("s_lshl_b32 s55, s55, 6")
    o("s_add_u32 s54, s54, s55")
    o("s_cmp_eq_u32 s6, 0")
    o("s_cselect_b32 s55, 8192, 0")
    o("s_add_u32 s54, s54, s55")
    o("v_lshlrev_b32 v22, 10, v22")
    o("v_lshl_add_u32 v21, v21, 1, v22")
    o("v_add_u32 v21, s54, v21")
    for j in range(8):
        o(f"buffer_load_ushort v{40+j}, v21, s[28:31], 0 offen offset:{128*j}")
    o("s_branch L1_barA")
    o.lab("L1_fragC")
    o("v_lshlrev_b32 v21, 1, v21")
    o("v_add_u32 v21, 16384, v21")
    o("v_mov_b32 v23, 0x100000")
    o("v_cmp_eq_u32 vcc, 0, v22")
    o("s_nop 1")
    o("v_cndmask_b32 v21, v23, v21, vcc")
    for e in range(8):
        o(f"buffer_load_ushort v{40+e}, v21, s[28:31], 0 offen offset:{128*(e&3)+64*(e>>2)}")
    o.lab("L1_barA")
    T()
    o("s_barrier")
    o("s_cmp_eq_u32 s3, 15")
    o("s_cbranch_scc0 L1_hist")
    o("s_cmp_ge_u32 s2, 33")
    o("s_cbranch_scc1 L1_barB")
    o("s_and_b32 s7, s6, 3")
    o("s_cmp_eq_u32 s7, 0")
    o("s_mov_b32 s54, 1.0")
    o(f"s_cselect_b32 s54, {NEG_LOG2E:#x}, s54")
    o("s_waitcnt vmcnt(0)")
    for j in range(8):
        o(f"v_lshlrev_b32 v{40+j}, 16, v{40+j}")
    for j in range(8):
        o(f"v_mul_f32 v{40+j}, s54, v{40+j}")
    for j in range(4):
        o(f"v_cvt_pk_bf16_f32 v{48+j}, v{40+2*j}, v{41+2*j}")
    o("s_lshl_b32 s55, s2, 10")
    o(f"s_add_u32 s55, s55, {WS_FRAG}")
    o("v_lshl_add_u32 v21, v1, 4, s55")
    o(f"buffer_store_dwordx4 v[48:51], v21, s[20:23], 0 offen {ST}")
    o("s_branch L1_barB")
    o.lab("L1_hist")
    o("s_mov_b64 exec, s[52:53]")
    o("s_cbranch_execz L1_histdone")
    o(f"s_movk_i32 s56, {MAGIC49}")
    o("v_mov_b32 v20, 1")
    o("s_waitcnt vmcnt(3)")
    T()
    for i in range(4):
        o(f"v_mul_u32_u24 v{24+i}, s56, v{4+i}")
    for i in range(4):
        o(f"v_lshrrev_b32 v{24+i}, 20, v{24+i}")
    for i in range(4):
        o(f"v_lshlrev_b32 v{28+i}, 2, v{24+i}")
        o(f"ds_add_rtn_u32 v{32+i}, v{28+i}, v20 offset:{K1_HIST}")
    for i in range(4):
        o(f"v_mul_u32_u24 v{24+i}, 49, v{24+i}")
    for i in range(4):
        o(f"v_sub_u32 v{4+i}, v{4+i}, v{24+i}")
    for i in range(4):
        o(f"v_lshlrev_b32 v{4+i}, 26, v{4+i}")
    o("s_waitcnt lgkmcnt(0)")
    o.lab("L1_histdone")
    o("s_mov_b64 exec, -1")
    o.lab("L1_barB")
    T()
    o("s_barrier")
    o("s_cmp_eq_u32 s3, 14")
    o("s_cbranch_scc0 L1_barC")
    o.c("wave 14: exclusive scan of the 256 bucket counts")
    o("v_lshlrev_b32 v21, 4, v1")
    o(f"ds_read_b128 v[40:43], v21 offset:{K1_HIST}")
    o("s_waitcnt lgkmcnt(0)")
    o("v_add_u32 v45, v40, v41")
    o("v_add_u32 v46, v45, v42")
    o("v_add_u32 v47, v46, v43")
    o("v_mov_b32 v48, v47")
    o("s_nop 1")
    wave_scan(o, 48)
    o("v_sub_u32 v48, v48, v47")
    o("v_add_u32 v49, v48, v40")
    o("v_add_u32 v50, v48, v45")
    o("v_add_u32 v51, v48, v46")
    for j in range(4):
        o(f"v_mul_u32_u24 v{48+j}, 12, v{48+j}")
    for j in range(4):
        o(f"v_lshl_or_b32 v{40+j}, v{40+j}, 16, v{48+j}")
    for j in range(4):
        o(f"v_add_u32 v{48+j}, {K1_STAGE}, v{48+j}")
    o(f"ds_write_b128 v21, v[48:51] offset:{K1_BASE}")
    o("s_lshl_b32 s55, s2, 10")
    o(f"s_add_u32 s55, s55, {WS_DESC}")
    o("v_add_u32 v21, s55, v21")
    o(f"buffer_store_dwordx4 v[40:43], v21, s[20:23], 0 offen {ST}")
    o("s_waitcnt lgkmcnt(0)")
    o.lab("L1_barC")
    o("s_barrier")
    T()
    o("s_mov_b64 exec, s[52:53]")
    o("s_cbranch_execz L1_scatdone")
    for i in range(4):
        o(f"ds_read_b32 v{24+i}, v{28+i} offset:{K1_BASE}")
    o("s_waitcnt vmcnt(2)")
    for i in range(4):
        o(f"v_lshlrev_b32 v{8+i}, 7, v{8+i}")
    for i in range(4):
        o(f"v_add_u32 v{8+i}, {XSHIFT}, v{8+i}")
    for i in range(4):
        o(f"v_or_b32 v{8+i}, v{8+i}, v{4+i}")
    o("s_waitcnt lgkmcnt(0)")
    for i in range(4):
        o(f"v_mad_u32_u24 v{24+i}, v{32+i}, 12, v{24+i}")
    for i in range(4):
        o(f"ds_write_b32 v{24+i}, v{8+i} offset:8")
    o("s_waitcnt vmcnt(0)")
    T()
    for i in range(4):
        o(f"ds_write2_b32 v{24+i}, v{12+2*i}, v{13+2*i} offset0:0 offset1:1")
    o("s_waitcnt lgkmcnt(0)")
    o.lab("L1_scatdone")
    o("s_mov_b64 exec, -1")
    o("s_barrier")
    T()
    o("v_lshlrev_b32 v20, 4, v0")
    o(f"s_mul_i32 s55, s2, {CHB}")
    o(f"ds_read_b128 v[24:27], v20 offset:{K1_STAGE}")
    o(f"ds_read_b128 v[28:31], v20 offset:{K1_STAGE+16384}")
    o(f"ds_read_b128 v[32:35], v20 offset:{K1_STAGE+32768}")
    o("v_add_u32 v21, 16384, v20")
    o("v_add_u32 v22, 32768, v20")
    o("v_cmp_gt_u32 vcc, 298, v0")
    o("s_waitcnt lgkmcnt(2)")
    o(f"buffer_store_dwordx4 v[24:27], v20, s[20:23], s55 offen {ST}")
    o("s_waitcnt lgkmcnt(1)")
    o(f"buffer_store_dwordx4 v[28:31], v21, s[20:23], s55 offen {ST}")
    o("s_and_saveexec_b64 s[58:59], vcc")
    o("s_cbranch_execz L1_fin")
    o("s_waitcnt lgkmcnt(0)")
    o(f"buffer_store_dwordx4 v[32:35], v22, s[20:23], s55 offen {ST}")
    o.lab("L1_fin")
    if T.on:
        T(); o("s_waitcnt vmcnt(0)"); T(); T(True); T.dump(20, 3, 40, 1)
    o.lab("L1_end")
    o("s_endpgm")
    return o.text()

CAP = 3584
P4 = 0; AGG = 51200; SRC = 76800; EA = SRC + CAP * 4; GN = EA + CAP * 8; CNT = GN + CAP
MORE = CNT + 256; ZERO8 = MORE + 8; STG = 123904; K2_LDS = STG + 32768
M64 = 196
assert CNT % 256 == 0 and CNT + 320 <= STG
XT = SRC
assert ZERO8 + 8 <= STG and XT % 16 == 0 and EA % 8 == 0
WSMALL = (CAP - 3 * NPB - 31) // 256
OOBSRC = 0x40000000

WB = 128; WV = 160; WC = 192
G = [64, 96]; H = [80, 112]
A = 48; EAR = 46; M = 40; ADP = 36; ADA = 32; SV = 28; GNR = 24; KJ = 20; AAD = 16
V_SRCA = 15; V_EAA = 14; V_GNA = 13; V_LBP = 12; V_EAI = 11; V_LANE = 10; V_DESC = 9; V_LB = 8
REC = 64; CA = 196; BS = 212; DUM = 228
S_W = 20; S_OFF = 21; S_NT = 22; S_T = 23; S_FIRST = 24; S_MORE = 25; S_TOT = 26
MASK = 32; SOFF = 64

def mfma16(d, a, b, c):
    cs = "0" if c is None else vr(c, 16)
    return f"v_mfma_f32_32x32x16_bf16 {vr(d,16)}, {vr(a,4)}, {vr(b,4)}, {cs}"
def mfma8(d, a, b):
    return f"v_mfma_f32_32x32x8_bf16 {vr(d,16)}, {vr(a,2)}, {vr(b,2)}, {vr(d,16)}"

def dma_tile(o):
    for j in range(4):
        o(f"buffer_load_dwordx4 v{SV+j}, s[8:11], 0 offen offset:{1024*j} lds")

def stage(o, cur, cfg):
    nxt = 1 - cur
    hh = nxt
    g, h, gn_, hn = G[cur], H[cur], G[nxt], H[nxt]
    prio = cfg.get("prio", 1)
    o_real = o
    drop = cfg.get("drop", "")
    class F:
        def __call__(self, t):
            if "m" in drop and t.startswith("v_mfma"): return
            if "h" in drop and t.startswith("v_mfma") and (f"v[{WV}" in t or any(f"v[{WV+4*i}:" in t for i in range(8))): return
            if "t" in drop and (t.startswith("v_exp") or t.startswith("v_rcp")): return
            if "a" in drop and t.startswith("ds_add"): return
            if "d" in drop and t.endswith("lds"): return
            o_real(t)
        def lab(self, t): o_real.lab(t)
    o = F()
    for q in range(4):
        o(f"ds_read_b128 {vr(gn_+4*q,4)}, v{ADP+q} offset:{P4+512*hh}")
    if cur == 0:
        o(f"ds_read2_b32 {vr(GNR,2)}, v{V_GNA} offset0:0 offset1:2")
        o(f"ds_read2_b32 {vr(GNR+2,2)}, v{V_GNA} offset0:4 offset1:6")
        o(f"ds_read_b128 {vr(SV,4)}, v{V_SRCA}")
    if prio: o("s_setprio 1")
    k = 0
    for r in range(16):
        if r in (3, 6, 9, 12):
            if r == 3 and cur == 1:
                o("s_waitcnt lgkmcnt(9)")
            o(mfma16(hn, A + 4*k, WV + 16*hh + 4*k, None if k == 0 else hn))
            k += 1
            if r == 3 and cur == 1:
                o(f"s_add_u32 s27, s{S_T}, 16")
                o(f"s_cmp_ge_u32 s27, s{S_NT}")
                o("s_cbranch_scc1 L2_nodma")
                dma_tile(o)
                o.lab("L2_nodma")
        o(f"v_exp_f32 v{g+r}, v{g+r}")
    if prio: o("s_setprio 0")
    for r in range(16):
        o(f"v_add_f32 v{g+r}, 1.0, v{g+r}")
    o("s_waitcnt lgkmcnt(0)")
    if prio: o("s_setprio 1")
    k = 0
    for r in range(16):
        if r in (0, 3, 6, 9):
            o(mfma16(gn_, A + 4*k, WB + 16*hh + 4*k, gn_))
            k += 1
            if r == 9 and cur == 0:
                o("s_waitcnt vmcnt(0)")
                for s in range(4):
                    o(f"ds_read_b128 {vr(A+4*s,4)}, v{AAD+s}")
        if r == 12:
            o(mfma8(gn_, EAR, WC + 2*hh))
            if cur == 0:
                o(f"ds_read_b64 {vr(EAR,2)}, v{V_EAA}")
        o(f"v_rcp_f32 v{g+r}, v{g+r}")
    if prio: o("s_setprio 0")
    if cur == 0:
        for q in range(4):
            o(f"v_lshrrev_b32 v{ADA+q}, 1, v{ADP+q}")
    for j in range(4):
        for q in range(4):
            if j == 0: o(f"v_mul_f32 v{M+q}, v{g+4*q}, v{h+4*q}")
            else: o(f"v_fmac_f32 v{M+q}, v{g+4*q+j}, v{h+4*q+j}")
    for q in range(4):
        o(f"v_cvt_f64_f32 {vr(M64+2*q,2)}, v{M+q}")
    for q in range(4):
        o(f"ds_add_f64 v{ADA+q}, {vr(M64+2*q,2)} offset:{AGG+256*cur}")
    if cur == 0:
        for q in range(4):
            o(f"v_add_u32 v{ADP+q}, v{GNR+q}, v{V_LBP}")
        for j in range(4):
            o(f"v_add_u32 v{SV+j}, v{SV+j}, v{KJ+j}")
        o(f"v_add_u32 v{V_SRCA}, 0x400, v{V_SRCA}")
        o(f"v_add_u32 v{V_GNA}, 0x100, v{V_GNA}")
        o(f"v_add_u32 v{V_EAA}, v{V_EAI}, v{V_EAA}")

def kernel2(cfg):
    o = Asm()
    T = Stamper(o, cfg.get("stamp", 0), 44, 1)
    if cfg.get("dbg", -1) == 1: T.dbgwg = cfg.get("dbgwg", 100); T.dbgback = 512
    o.lab("edge_kernel")
    o("s_cmp_ge_u32 s2, 256")
    o("s_cbranch_scc1 L2_end")
    T(True); T()
    o("s_load_dwordx2 s[4:5], s[0:1], 0")
    o("s_load_dwordx2 s[6:7], s[0:1], 56")
    o("s_load_dwordx2 s[28:29], s[0:1], 72")
    o("v_lshrrev_b32 v1, 6, v0")
    o(f"v_and_b32 v{V_LANE}, 63, v0")
    o("s_and_b32 s30, s2, 7")
    o("s_lshl_b32 s30, s30, 5")
    o("s_lshr_b32 s31, s2, 3")
    o("v_readfirstlane_b32 s3, v1")
    o("s_add_u32 s30, s30, s31")
    for i in range(8):
        o(f"s_mov_b32 s{SOFF+i}, {i*CHB}")
    L = V_LANE
    o(f"v_lshrrev_b32 v2, 4, v{L}")
    o(f"v_and_b32 v3, 15, v{L}")
    o("v_and_b32 v4, 7, v3")
    o("v_lshl_add_u32 v4, v2, 3, v4")
    o("s_lshl_b32 s27, s3, 5")
    o("v_add_u32 v4, s27, v4")
    o("s_lshl_b32 s72, s30, 2")
    o(f"s_add_u32 s72, s72, {WS_DESC}")
    o("v_lshlrev_b32 v4, 10, v4")
    o("s_waitcnt lgkmcnt(0)")
    srd(o, 12, 28, WS_SIZE)
    o(f"buffer_load_dword v{V_DESC}, v4, s[12:15], s72 offen")
    o(f"s_sub_u32 s8, s4, {XSHIFT}")
    o("s_subb_u32 s9, s5, 0")
    o("s_and_b32 s9, s9, 0xffff")
    o(f"s_mov_b32 s10, {N*128+XSHIFT}")
    o("s_mov_b32 s11, 0x00020000")
    srd(o, 16, 6, N * 128)
    o(f"v_lshlrev_b32 v5, 4, v{L}")
    o(f"s_mov_b32 s73, {WS_FRAG+32*1024}")
    o(f"buffer_load_dwordx4 {vr(WC,4)}, v5, s[12:15], s73 offen")
    o("s_lshl_b32 s74, s3, 12")
    o(f"s_add_u32 s75, s74, {STG}")
    o("s_mov_b32 m0, s75")
    o(f"s_add_u32 s73, s74, {WS_FRAG}")
    for j in range(4):
        o(f"buffer_load_dwordx4 v5, s[12:15], s73 offen offset:{1024*j} lds")
    o(f"v_lshrrev_b32 v6, 3, v{L}")
    o(f"v_and_b32 v7, 7, v{L}")
    o(f"v_lshrrev_b32 v1, 5, v{L}")
    o("v_lshlrev_b32 v1, 2, v1")
    o("v_xor_b32 v7, v7, v1")
    for j in range(4):
        o(f"v_xor_b32 v{KJ+j}, {j}, v7")
        o(f"v_lshlrev_b32 v{KJ+j}, 4, v{KJ+j}")
    o("s_and_b32 s76, s3, 3")
    o("s_lshr_b32 s77, s3, 2")
    o("v_xor_b32 v1, s76, v7")
    o("v_lshlrev_b32 v1, 4, v1")
    o("s_mul_i32 s78, s30, 49")
    o("s_lshl_b32 s79, s77, 5")
    o("s_add_u32 s79, s79, s78")
    o("s_add_u32 s79, s79, s76")
    o("s_lshl_b32 s79, s79, 7")
    o(f"s_add_u32 s79, s79, {XSHIFT}")
    o("v_lshl_add_u32 v1, v6, 9, v1")
    o("s_lshl_b32 s80, s3, 10")
    o(f"s_add_u32 s80, s80, {XT}")
    o("s_mov_b32 m0, s80")
    o("v_add_u32 v1, s79, v1")
    o("buffer_load_dwordx4 v1, s[8:11], 0 offen lds")
    o("s_mov_b32 m0, s75")
    for j in range(1, 4):
        o(f"v_subrev_u32 v{KJ+j}, {1024*j}, v{KJ+j}")
    o(f"v_and_b32 v1, 3, v{L}")
    o(f"v_bfe_u32 v2, v{L}, 2, 3")
    o("v_lshl_add_u32 v2, v1, 3, v2")
    o("v_lshlrev_b32 v2, 7, v2")
    o(f"v_bfe_u32 v4, v{L}, 4, 1")
    o("v_lshl_or_b32 v1, v4, 2, v1")
    o(f"v_lshrrev_b32 v4, 5, v{L}")
    o("v_xor_b32 v1, v1, v4")
    for s in range(4):
        o(f"v_xor_b32 v{AAD+s}, {2*s}, v1")
        o(f"v_lshl_add_u32 v{AAD+s}, v{AAD+s}, 4, v2")
    o("s_cmp_lg_u32 s3, 0")
    o("s_cbranch_scc1 L2_nz")
    o("v_mov_b32 v1, 0")
    o(f"v_lshlrev_b32 v2, 2, v{L}")
    o(f"v_add_u32 v2, {CNT}, v2")
    o("ds_write_b32 v2, v1")
    o("ds_write_b32 v2, v1 offset:64")
    o.lab("L2_nz")
    o(f"v_lshrrev_b32 v1, 4, v{L}")
    o("v_lshlrev_b32 v1, 3, v1")
    o("v_add_u32 v1, s27, v1")
    o(f"s_mov_b32 s81, {CHB}")
    o(f"v_mul_lo_u32 v{V_LB}, v1, s81")
    o(f"v_mad_u32_u24 v{V_LB}, v3, 12, v{V_LB}")
    o(f"v_and_b32 v1, 31, v{L}")
    o(f"v_lshlrev_b32 v{V_LBP}, 4, v1")
    o(f"s_mov_b32 s{S_W}, 32")
    o(f"s_mov_b32 s{S_OFF}, 0")
    o(f"s_mov_b32 s{S_FIRST}, 1")
    o("s_mul_i32 s82, s31, 50000")
    o(f"s_add_u32 s82, s82, {XSHIFT}")
    o("v_lshlrev_b32 v7, 4, v0")
    o("s_waitcnt vmcnt(6)")
    T()
    o.lab("L2_pass")
    o(f"v_and_b32 v3, 15, v{L}")
    o(f"v_add_u32 v1, s{S_OFF}, v3")
    o("v_add_u32 v2, 16, v1")
    o(f"s_add_u32 s83, s{S_OFF}, s{S_W}")
    o(f"s_mul_i32 s84, s{S_OFF}, 12")
    o(f"v_add_u32 v6, s84, v{V_LB}")
    o(f"v_lshrrev_b32 v4, 16, v{V_DESC}")
    o("v_cmp_lt_u32 vcc, s83, v4")
    o("v_min_u32 v4, s83, v4")
    o(f"v_and_b32 v5, 0xffff, v{V_DESC}")
    o("s_cmp_lg_u64 vcc, 0")
    o(f"s_cselect_b32 s{S_MORE}, 1, 0")
    for i in range(8):
        o(f"v_mov_b32_dpp v{BS}, v4 row_newbcast:{i} row_mask:0xf bank_mask:0xf")
        o(f"v_add_u32_dpp v{BS+1+(i&1)}, v5, v6 row_newbcast:{i} row_mask:0xf bank_mask:0xf")
        o(f"v_cmp_lt_u32 {sr(MASK+4*i+2,2)}, v2, v{BS}")
        o(f"v_cmpx_lt_u32 {sr(MASK+4*i,2)}, v1, v{BS}")
        o(f"buffer_load_dwordx3 {vr(REC+8*i,3)}, v{BS+1+(i&1)}, s[12:15], s{SOFF+i} offen")
        o(f"s_mov_b64 exec, {sr(MASK+4*i+2,2)}")
        o(f"buffer_load_dwordx3 {vr(REC+8*i+4,3)}, v{BS+1+(i&1)}, s[12:15], s{SOFF+i} offen offset:192")
        o("s_mov_b64 exec, -1")
        if i < 7: o("s_nop 1")
    for i in range(7):
        if i < 6:
            o(f"s_add_u32 s85, s82, {8192*i}")
            o(f"buffer_load_dwordx4 {vr(DUM+4*i,4)}, v7, s[8:11], s85 offen")
        else:
            o(f"s_add_u32 s85, s82, {8192*i}")
            o("v_cmp_gt_u32 vcc, 53, v0")
            o("v_mov_b32 v1, 0x40000000")
            o("s_nop 0")
            o("v_cndmask_b32 v1, v1, v7, vcc")
            o(f"buffer_load_dwordx4 {vr(DUM+4*i,4)}, v1, s[8:11], s85 offen")
    o(f"s_cmp_eq_u32 s{S_FIRST}, 0")
    o("s_cbranch_scc1 L2_ranks")
    o(f"s_mov_b32 s{S_FIRST}, 0")
    T()
    o("s_waitcnt vmcnt(23) lgkmcnt(0)")
    o("s_barrier")
    T()
    o(f"v_lshlrev_b32 v1, 4, v{L}")
    o(f"v_add_u32 v1, {STG}, v1")
    o("s_and_b32 s86, s3, 1")
    o("s_bfe_u32 s87, s3, 0x10001")
    o("s_lshr_b32 s88, s3, 2")
    o("s_lshl_b32 s89, s86, 13")
    o("s_lshl_b32 s90, s88, 12")
    o("s_add_u32 s89, s89, s90")
    o("s_add_u32 s89, s89, 16384")
    o("v_add_u32 v2, s89, v1")
    for s in range(4):
        o(f"ds_read_b128 {vr(BS+4*s,4)}, v2 offset:{1024*s}")
    o("s_lshl_b32 s90, s87, 12")
    o(f"s_add_u32 s90, s90, {XT}")
    for s in range(4):
        o(f"v_add_u32 v3, s90, v{AAD+s}")
        o(f"ds_read_b128 {vr(A+4*s,4)}, v3")
    for f in range(7):
        o(f"ds_read_b128 {vr(WB+4*f,4)}, v1 offset:{1024*f}")
    o("s_waitcnt lgkmcnt(7)")
    for s in range(4):
        o(mfma16(CA, A + 4*s, BS + 4*s, None if s == 0 else CA))
    for f in range(7, 16):
        o(f"ds_read_b128 {vr(WB+4*f,4)}, v1 offset:{1024*f}")
    for s in range(4):
        o(f"v_add_u32 v{AAD+s}, s75, v{AAD+s}")
    o(f"v_lshrrev_b32 v2, 5, v{L}")
    o("v_lshlrev_b32 v2, 2, v2")
    o("s_lshl_b32 s90, s87, 5")
    o("v_add_u32 v2, s90, v2")
    o("s_nop 7")
    o("s_cmp_eq_u32 s86, 1")
    o("s_cbranch_scc1 L2_xu")
    o("s_lshl_b32 s90, s88, 9")
    o(f"v_lshl_add_u32 v2, v2, 10, v{V_LBP}")
    o("v_add_u32 v2, s90, v2")
    o(f"s_mov_b32 s91, {NEG_LOG2E:#x}")
    def pwrite(r):
        t = BS + 4 * (r & 3)
        for c in range(4):
            o(f"v_mul_f32 v{t+c}, s91, v{CA+r}")
        o(f"ds_write_b128 v2, {vr(t,4)} offset:{P4 + (8*(r>>2)+(r&3))*1024}")
    for r in range(8): pwrite(r)
    o("s_cmp_eq_u32 s87, 1")
    o("s_cselect_b32 exec_hi, 0, -1")
    for r in range(8, 10): pwrite(r)
    o("s_mov_b64 exec, -1")
    o("s_cbranch_scc1 L2_pdone")
    for r in range(10, 16): pwrite(r)
    o("s_branch L2_pdone")
    o.lab("L2_xu")
    o("s_lshl_b32 s90, s88, 8")
    o(f"v_lshrrev_b32 v3, 1, v{V_LBP}")
    o("v_lshl_add_u32 v2, v2, 9, v3")
    o("v_add_u32 v2, s90, v2")
    def uwrite(r):
        t = BS + 2 * (r & 7)
        o(f"v_cvt_f64_f32 {vr(t,2)}, v{CA+r}")
        o(f"ds_write_b64 v2, {vr(t,2)} offset:{AGG + (8*(r>>2)+(r&3))*512}")
    for r in range(8): uwrite(r)
    o("s_cmp_eq_u32 s87, 1")
    o("s_cselect_b32 exec_hi, 0, -1")
    for r in range(8, 10): uwrite(r)
    o("s_mov_b64 exec, -1")
    o("s_cbranch_scc1 L2_pdone")
    for r in range(10, 16): uwrite(r)
    o.lab("L2_pdone")
    o("s_waitcnt lgkmcnt(0)")
    o.lab("L2_ranks")
    T()
    o("v_mov_b32 v1, 4")
    o(f"s_cmp_eq_u32 s{S_MORE}, 0")
    o("s_cbranch_scc1 L2_nomore")
    o(f"v_mov_b32 v2, {MORE}")
    o("ds_write_b32 v2, v1")
    o.lab("L2_nomore")
    o(f"v_mov_b32 v2, {CNT}")
    for i in range(16):
        o(f"s_waitcnt vmcnt({7+15-i})")
        o(f"s_mov_b64 exec, {sr(MASK+2*i,2)}")
        o(f"v_add_u32_sdwa v{CA+i}, v{REC+4*i+2}, v2 dst_sel:DWORD dst_unused:UNUSED_PAD src0_sel:BYTE_3 src1_sel:DWORD")
        o("s_nop 0")
        o(f"ds_add_rtn_u32 v{REC+4*i+3}, v{CA+i}, v1")
    o("s_mov_b64 exec, -1")
    o("s_waitcnt lgkmcnt(0)")
    T()
    o("s_barrier")
    T()
    o(f"v_lshl_add_u32 v1, v{L}, 2, v2")
    o("ds_read_b32 v3, v1")
    o(f"ds_read_b32 v4, v2 offset:256")
    o("s_waitcnt lgkmcnt(0)")
    o("v_add_u32 v5, 15, v3")
    o("v_and_b32 v5, -16, v5")
    o("v_mov_b32 v6, v5")
    o(f"v_readfirstlane_b32 s{S_MORE}, v4")
    o("s_nop 0")
    wave_scan(o, 6)
    o("s_nop 0")
    o(f"v_readlane_b32 s{S_TOT}, v6, 63")
    o("v_sub_u32 v6, v6, v5")
    o(f"s_cmp_gt_u32 s{S_TOT}, {(CAP-32)*4}")
    o("s_cbranch_scc0 L2_fits")
    o.c("window too large for LDS: clear the counters and redo with the small window")
    o("s_barrier")
    o("v_mov_b32 v3, 0")
    o("ds_write_b32 v1, v3")
    o("ds_write_b32 v2, v3 offset:256")
    o(f"s_mov_b32 s{S_W}, {WSMALL}")
    o("s_waitcnt vmcnt(0) lgkmcnt(0)")
    o("s_barrier")
    o("s_branch L2_pass")
    o.lab("L2_fits")
    o(f"v_add_u32 v4, {SRC}, v6")
    for i in range(16):
        o(f"ds_bpermute_b32 v{BS+i}, v{CA+i}, v4")
    o(f"s_add_u32 s{S_NT}, s{S_TOT}, 127")
    o(f"s_lshr_b32 s{S_NT}, s{S_NT}, 7")
    o(f"s_mov_b32 s92, {EA-2*SRC}")
    o("s_waitcnt lgkmcnt(0)")
    for i in range(16):
        o(f"s_mov_b64 exec, {sr(MASK+2*i,2)}")
        o(f"v_add_u32 v{BS+i}, v{BS+i}, v{REC+4*i+3}")
        o(f"v_and_b32 v{REC+4*i+2}, 0xffffff, v{REC+4*i+2}")
        o(f"v_lshl_add_u32 v{REC+4*i+3}, v{BS+i}, 1, s92")
        o(f"ds_write_b32 v{BS+i}, v{REC+4*i+2}")
        o(f"ds_write_b64 v{REC+4*i+3}, {vr(REC+4*i,2)}")
    o("s_mov_b64 exec, -1")
    o(f"v_mov_b32 v{BS}, {OOBSRC:#x}")
    o(f"v_mov_b32 v{BS+2}, 0")
    o(f"v_mov_b32 v{BS+3}, 0")
    o("s_lshl_b32 s93, s3, 2")
    o("v_add_u32 v3, s93, v3")
    o("v_cmp_lt_u32 vcc, v3, v5")
    o("v_add_u32 v3, v3, v4")
    o("v_lshl_add_u32 v4, v3, 1, s92")
    o("s_and_saveexec_b64 s[94:95], vcc")
    o(f"ds_write_b32 v3, v{BS}")
    o(f"ds_write_b64 v4, {vr(BS+2,2)}")
    o("s_mov_b64 exec, -1")
    o(f"v_lshl_add_u32 v3, v{L}, 2, s{S_TOT}")
    o(f"s_lshl_b32 s93, s{S_NT}, 7")
    o("v_cmp_gt_u32 vcc, s93, v3")
    o(f"v_add_u32 v3, {SRC}, v3")
    o("v_lshl_add_u32 v4, v3, 1, s92")
    o("s_and_saveexec_b64 s[94:95], vcc")
    o(f"ds_write_b32 v3, v{BS}")
    o(f"ds_write_b64 v4, {vr(BS+2,2)}")
    o("s_mov_b64 exec, -1")
    o(f"s_lshr_b32 s96, s{S_TOT}, 2")
    o(f"v_lshl_add_u32 v3, v{L}, 2, s96")
    o("s_lshr_b32 s93, s93, 2")
    o("v_cmp_gt_u32 vcc, s93, v3")
    o(f"v_add_u32 v3, {GN}, v3")
    o(f"v_mov_b32 v4, {49*1024}")
    o("s_and_saveexec_b64 s[94:95], vcc")
    o("ds_write_b32 v3, v4")
    o("s_mov_b64 exec, -1")
    o("v_lshrrev_b32 v5, 2, v5")
    o("v_lshrrev_b32 v6, 2, v6")
    o(f"v_add_u32 v6, {GN}, v6")
    o(f"v_lshlrev_b32 v4, 10, v{L}")
    o("s_lshl_b32 s93, s3, 2")
    o.lab("L2_gloop")
    o("v_cmp_lt_u32 vcc, s93, v5")
    o("v_add_u32 v3, s93, v6")
    o("s_and_saveexec_b64 s[94:95], vcc")
    o("s_cbranch_execz L2_gdone")
    o("ds_write_b32 v3, v4")
    o("s_mov_b64 exec, -1")
    o("s_add_u32 s93, s93, 32")
    o("s_branch L2_gloop")
    o.lab("L2_gdone")
    o("s_mov_b64 exec, -1")
    o("s_waitcnt lgkmcnt(0)")
    T()
    o("s_barrier")
    T()
    o("s_cmp_lg_u32 s3, 0")
    o("s_cbranch_scc1 L2_nz2")
    o("v_mov_b32 v3, 0")
    o("ds_write_b32 v1, v3")
    o("ds_write_b32 v2, v3 offset:256")
    o.lab("L2_nz2")
    o(f"s_mov_b32 s{S_T}, s3")
    o(f"s_cmp_ge_u32 s{S_T}, s{S_NT}")
    o("s_cbranch_scc1 L2_done")
    o(f"v_lshrrev_b32 v1, 3, v{L}")
    o("v_lshlrev_b32 v1, 4, v1")
    o("s_lshl_b32 s93, s3, 7")
    o(f"s_add_u32 s93, s93, {SRC}")
    o(f"v_add_u32 v{V_SRCA}, s93, v1")
    o(f"ds_read_b128 {vr(SV,4)}, v{V_SRCA}")
    o(f"v_lshrrev_b32 v1, 5, v{L}")
    o("s_lshl_b32 s93, s3, 5")
    o(f"s_add_u32 s93, s93, {GN}")
    o(f"v_lshl_add_u32 v{V_GNA}, v1, 2, s93")
    o(f"ds_read2_b32 {vr(GNR,2)}, v{V_GNA} offset0:0 offset1:2")
    o(f"ds_read2_b32 {vr(GNR+2,2)}, v{V_GNA} offset0:4 offset1:6")
    o("s_lshl_b32 s93, s3, 8")
    o(f"s_add_u32 s93, s93, {EA}")
    o(f"v_lshl_add_u32 v{V_EAA}, v{L}, 3, s93")
    o(f"v_mov_b32 v2, {ZERO8}")
    o(f"v_mov_b32 v{V_EAI}, 0x800")
    o(f"v_cmp_gt_u32 vcc, 32, v{L}")
    o("s_nop 1")
    o(f"v_cndmask_b32 v{V_EAA}, v2, v{V_EAA}, vcc")
    o(f"v_cndmask_b32 v{V_EAI}, 0, v{V_EAI}, vcc")
    o(f"ds_read_b64 {vr(EAR,2)}, v{V_EAA}")
    o("s_waitcnt lgkmcnt(3)")
    for j in range(4):
        o(f"v_add_u32 v{SV+j}, v{SV+j}, v{KJ+j}")
    dma_tile(o)
    o(f"ds_read_b128 {vr(SV,4)}, v{V_SRCA} offset:1024")
    o(f"v_add_u32 v{V_SRCA}, 0x800, v{V_SRCA}")
    o(f"v_add_u32 v{V_GNA}, 0x100, v{V_GNA}")
    o(f"v_add_u32 v{V_EAA}, v{V_EAI}, v{V_EAA}")
    o("s_waitcnt lgkmcnt(1)")
    for q in range(4):
        o(f"v_add_u32 v{ADP+q}, v{GNR+q}, v{V_LBP}")
    for q in range(4):
        o(f"ds_read_b128 {vr(G[0]+4*q,4)}, v{ADP+q} offset:{P4}")
    o("s_waitcnt vmcnt(0)")
    for s in range(4):
        o(f"ds_read_b128 {vr(A+4*s,4)}, v{AAD+s}")
    o("s_waitcnt lgkmcnt(0)")
    for j in range(4):
        o(f"v_add_u32 v{SV+j}, v{SV+j}, v{KJ+j}")
    o(f"s_add_u32 s27, s{S_T}, 8")
    o(f"s_cmp_ge_u32 s27, s{S_NT}")
    o("s_cbranch_scc1 L2_nodma0")
    dma_tile(o)
    o.lab("L2_nodma0")
    for k in range(4):
        o(mfma16(G[0], A + 4*k, WB + 4*k, G[0]))
    o(mfma8(G[0], EAR, WC))
    for k in range(4):
        o(mfma16(H[0], A + 4*k, WV + 4*k, None if k == 0 else H[0]))
    o("s_nop 7")
    T(); T(True)
    o(".p2align 3")
    o.lab("L2_loop")
    stage(o, 0, cfg)
    stage(o, 1, cfg)
    o(f"s_add_u32 s{S_T}, s{S_T}, 8")
    o(f"s_cmp_lt_u32 s{S_T}, s{S_NT}")
    o("s_cbranch_scc1 L2_loop")
    o.lab("L2_done")
    o("s_waitcnt vmcnt(0) lgkmcnt(0)")
    T(); T(True)
    o("s_barrier")
    o(f"s_cmp_eq_u32 s{S_MORE}, 0")
    o("s_cbranch_scc1 L2_out")
    o(f"s_add_u32 s{S_OFF}, s{S_OFF}, s{S_W}")
    o("s_nop 15")
    o("s_branch L2_pass")
    o.lab("L2_out")
    o("v_cmp_gt_u32 vcc, 392, v0")
    o("s_and_saveexec_b64 s[94:95], vcc")
    o("s_cbranch_execz L2_fin")
    o("v_lshlrev_b32 v1, 6, v0")
    for c in range(4):
        o(f"ds_read_b128 {vr(80+4*c,4)}, v1 offset:{AGG+16*c}")
    o("s_lshl_b32 s93, s78, 7")
    o("v_add_u32 v2, s93, v7")
    o("s_waitcnt lgkmcnt(0)")
    for r in range(8): o(f"v_cvt_f32_f64 v{64+r}, {vr(80+2*r,2)}")
    for r in range(8): o(f"v_mul_f32 v{72+r}, {NEG_LOG2E:#x}, v{64+r}")
    for r in range(8): o(f"v_exp_f32 v{72+r}, v{72+r}")
    for r in range(8): o(f"v_add_f32 v{72+r}, 1.0, v{72+r}")
    for r in range(8): o(f"v_rcp_f32 v{72+r}, v{72+r}")
    for r in range(8): o(f"v_mul_f32 v{64+r}, v{64+r}, v{72+r}")
    for r in range(4): o(f"v_cvt_pk_bf16_f32 v{72+r}, v{64+2*r}, v{65+2*r}")
    o("buffer_store_dwordx4 v[72:75], v2, s[16:19], 0 offen")
    o.lab("L2_fin")
    if T.on:
        o("s_waitcnt vmcnt(0)"); T(); T(True); T.dump(12, 3, 1, V_LANE)
    o.lab("L2_end")
    o("s_endpgm")
    return o.text()

HEADER = """; Edge-gated MPNN layer: out = silu(x@U + sum over edges with dst=i of sigmoid(x[dst]@A + x[src]@B + e@C) * (x[src]@V))
; @launch kernel=bin_kernel grid=(256,1,1) block=(1024,1,1) lds={l1}
; @launch kernel=edge_kernel grid=(256,1,1) block=(512,1,1) lds={l2}
.amdgcn_target "amdgcn-amd-amdhsa--gfx950"
.text
"""
def kd(name, vg, sg):
    return f""".amdhsa_kernel {name}
  .amdhsa_next_free_vgpr {vg}
  .amdhsa_next_free_sgpr {sg}
  .amdhsa_accum_offset {(vg+3)//4*4}
  .amdhsa_group_segment_fixed_size 0
  .amdhsa_kernarg_size 80
  .amdhsa_user_sgpr_count 2
  .amdhsa_user_sgpr_kernarg_segment_ptr 1
  .amdhsa_system_sgpr_workgroup_id_x 1
  .amdhsa_float_denorm_mode_32 3
.end_amdhsa_kernel
"""
def build(cfg):
    s = HEADER.format(l1=K1_LDS, l2=K2_LDS)
    nn = cfg.get("nops", 0)
    if nn:
        line = "; @launch kernel=nop_kernel grid=(1,1,1) block=(64,1,1) lds=0\n"
        if cfg.get("nopfirst", 0): s = s.replace("; @launch kernel=bin_kernel", line * nn + "; @launch kernel=bin_kernel")
        else: s = s.replace(".amdgcn_target", line * nn + ".amdgcn_target")
        s += ".globl nop_kernel\n.p2align 8\n.type nop_kernel,@function\nnop_kernel:\n    s_endpgm\n"
    for name, fn in (("bin_kernel", kernel1), ("edge_kernel", kernel2)):
        s += f".globl {name}\n.p2align 8\n.type {name},@function\n" + fn(cfg)
    s += '.section .rodata,"a"\n.p2align 6\n' + kd("bin_kernel", 64, 100) + ".p2align 6\n" + kd("edge_kernel", 256, 100)
    if nn: s += ".p2align 6\n" + kd("nop_kernel", 8, 16)
    return s

if __name__ == "__main__":
    cfg = {}
    out = sys.argv[1]
    for a in sys.argv[2:]:
        k, v = a.split("=")
        cfg[k] = int(v) if v.lstrip("-").isdigit() else v
    open(out, "w").write(build(cfg))
```

```python
import sys, struct

N = 12500; E = 800000; NB = 256; NPB = 49; CH = 3128; CHB = CH * 12
WS_DESC = 0x00A00000; WS_FRAG = 0x00A80000; WS_SIZE = 0x00C00000
XSHIFT = 4096
NEG_LOG2E = 0xBFB8AA3B
MAGIC49 = 21400
assert all(((d * MAGIC49) >> 20) == d // 49 for d in range(N))

class Asm:
    def __init__(self): self.l = []
    def __call__(self, s): self.l.append("    " + s)
    def lab(self, s): self.l.append(s + ":")
    def c(self, s): self.l.append("    ; " + s)
    def text(self): return "\n".join(self.l) + "\n"

STAMP_BASE = 0x00B00000
class Stamper:
    def __init__(self, o, on, vreg, region):
        self.o, self.on, self.v, self.n, self.region = o, on, vreg, 0, region
        self.dbgwg = None; self.dbgback = 0
    def __call__(self, real=False):
        if not self.on: return
        self.o(f"{'s_memrealtime' if real else 's_memtime'} s[98:99]")
        self.o("s_waitcnt lgkmcnt(0)")
        self.o(f"v_writelane_b32 v{self.v}, s98, {self.n}")
        self.n += 1
    def dump(self, srd_, wave_s, vt, lane):
        if not self.on: return
        o = self.o
        o("s_mov_b64 exec, 0xffff")
        o(f"s_lshl_b32 s4, s2, 4")
        o(f"s_add_u32 s4, s4, s{wave_s}")
        o(f"s_lshl_b32 s4, s4, 6")
        o(f"s_add_u32 s4, s4, {STAMP_BASE + self.region * 0x40000}")
        o(f"v_lshl_add_u32 v{vt}, v{lane}, 2, s4")
        o(f"buffer_store_dword v{self.v}, v{vt}, s[{srd_}:{srd_+3}], 0 offen")
        if self.dbgwg is not None:
            o(f"s_cmp_lg_u32 s2, {self.dbgwg}")
            o("s_cbranch_scc1 Ldbg%d" % self.region)
            o(f"s_cmp_lg_u32 s{wave_s}, 1")
            o("s_cbranch_scc1 Ldbg%d" % self.region)
            o("s_load_dwordx2 s[4:5], s[0:1], 64")
            o("s_waitcnt lgkmcnt(0)")
            o(f"s_add_u32 s4, s4, {-self.dbgback}")
            o("s_addc_u32 s5, s5, 0")
            o("s_mov_b32 s6, 256")
            o("s_mov_b32 s7, 0x00020000")
            o(f"v_lshlrev_b32 v{vt}, 2, v{lane}")
            o(f"buffer_store_dword v{self.v}, v{vt}, s[4:7], 0 offen")
            o.lab("Ldbg%d" % self.region)

def vr(a, n=1): return f"v{a}" if n == 1 else f"v[{a}:{a+n-1}]"
def sr(a, n=1): return f"s{a}" if n == 1 else f"s[{a}:{a+n-1}]"

def srd(o, d, lo, size):
    o(f"s_mov_b32 s{d}, s{lo}")
    o(f"s_and_b32 s{d+1}, s{lo+1}, 0xffff")
    o(f"s_mov_b32 s{d+2}, {size}")
    o(f"s_mov_b32 s{d+3}, 0x00020000")

def wave_scan(o, v):
    for sh in (1, 2, 4, 8):
        o(f"v_add_u32_dpp v{v}, v{v}, v{v} row_shr:{sh} row_mask:0xf bank_mask:0xf bound_ctrl:0")
        o("s_nop 1")
    o(f"v_add_u32_dpp v{v}, v{v}, v{v} row_bcast:15 row_mask:0xa bank_mask:0xf")
    o("s_nop 1")
    o(f"v_add_u32_dpp v{v}, v{v}, v{v} row_bcast:31 row_mask:0xc bank_mask:0xf")

K1_HIST = 0; K1_BASE = 1024; K1_STAGE = 2048
K1_LDS = 83968
def kernel1(cfg):
    o = Asm()
    ST = cfg.get("st1", "sc0 sc1")
    T = Stamper(o, cfg.get("stamp", 0), 36, 0)
    if cfg.get("dbg", -1) == 0: T.dbgwg = cfg.get("dbgwg", 100); T.dbgback = -512
    o.lab("bin_kernel")
    o("s_cmp_ge_u32 s2, 256")
    o("s_cbranch_scc1 L1_end")
    T(True); T()
    o("s_load_dwordx4 s[36:39], s[0:1], 0")
    o("s_load_dwordx4 s[40:43], s[0:1], 16")
    o("s_load_dwordx4 s[44:47], s[0:1], 32")
    o("s_load_dwordx2 s[48:49], s[0:1], 48")
    o("s_load_dwordx2 s[50:51], s[0:1], 72")
    o("v_lshrrev_b32 v1, 6, v0")
    o("s_movk_i32 s4, 782")
    o("s_cmp_eq_u32 s2, 255")
    o("s_cselect_b32 s4, 590, s4")
    o("v_readfirstlane_b32 s3, v1")
    o("s_mul_i32 s5, s2, 12512")
    o("v_lshl_add_u32 v2, v0, 4, s5")
    o("v_lshlrev_b32 v3, 1, v2")
    o("v_cmp_gt_u32 s[52:53], s4, v0")
    o("s_waitcnt lgkmcnt(0)")
    srd(o, 8, 42, E * 4)
    srd(o, 12, 40, E * 4)
    srd(o, 16, 38, E * 8)
    srd(o, 20, 50, WS_SIZE)
    srd(o, 24, 36, N * 128)
    o("s_mov_b64 exec, s[52:53]")
    o("s_cbranch_execz L1_noload")
    o("buffer_load_dwordx4 v[4:7], v2, s[8:11], 0 offen")
    o("buffer_load_dwordx4 v[8:11], v2, s[12:15], 0 offen")
    o("buffer_load_dwordx4 v[12:15], v3, s[16:19], 0 offen")
    o("buffer_load_dwordx4 v[16:19], v3, s[16:19], 0 offen offset:16")
    o.lab("L1_noload")
    o("s_mov_b64 exec, -1")
    o("v_and_b32 v1, 63, v0")
    o("s_cmp_lt_u32 s3, 13")
    o("s_cbranch_scc1 L1_barA")
    o.c("spare waves: pull this workgroup's share of x through the cache hierarchy")
    o("s_mul_i32 s6, s2, 6272")
    o("v_subrev_u32 v20, 832, v0")
    o("v_lshl_add_u32 v20, v20, 4, s6")
    o("buffer_load_dwordx4 v[52:55], v20, s[24:27], 0 offen")
    o("buffer_load_dwordx4 v[56:59], v20, s[24:27], 0 offen offset:3072")
    o("s_cmp_eq_u32 s3, 13")
    o("s_cbranch_scc0 L1_not13")
    o("v_mov_b32 v32, 0")
    o("v_mov_b32 v33, 0")
    o("v_mov_b32 v34, 0")
    o("v_mov_b32 v35, 0")
    o("v_lshlrev_b32 v21, 4, v1")
    o(f"ds_write_b128 v21, v[32:35] offset:{K1_HIST}")
    o("v_add_u32 v20, 6144, v20")
    o("buffer_load_dwordx4 v[60:63], v20, s[24:27], 0 offen")
    o("s_waitcnt lgkmcnt(0)")
    o("s_branch L1_barA")
    o.lab("L1_not13")
    o("s_cmp_eq_u32 s3, 15")
    o("s_cbranch_scc0 L1_barA")
    o("s_cmp_ge_u32 s2, 33")
    o("s_cbranch_scc1 L1_barA")
    o.c("weight fragment preparation (wave 15 of workgroups 0..32)")
    o("s_lshr_b32 s6, s2, 3")
    o("s_mov_b32 s28, s48")
    o("s_mov_b32 s29, s49")
    o("s_cmp_eq_u32 s6, 1")
    o("s_cselect_b32 s28, s46, s28")
    o("s_cselect_b32 s29, s47, s29")
    o("s_cmp_eq_u32 s6, 3")
    o("s_cselect_b32 s28, s44, s28")
    o("s_cselect_b32 s29, s45, s29")
    o("s_and_b32 s29, s29, 0xffff")
    o("s_and_b32 s7, s6, 1")
    o("s_cmp_eq_u32 s7, 1")
    o("s_movk_i32 s30, 16896")
    o("s_cselect_b32 s30, 8192, s30")
    o("s_mov_b32 s31, 0x00020000")
    o("v_and_b32 v21, 31, v1")
    o("v_lshrrev_b32 v22, 5, v1")
    o("s_cmp_eq_u32 s6, 4")
    o("s_cbranch_scc1 L1_fragC")
    o("s_and_b32 s54, s2, 3")
    o("s_lshl_b32 s54, s54, 11")
    o("s_bfe_u32 s55, s2, 0x10002")
    o("s_lshl_b32 s55, s55, 6")
    o("s_add_u32 s54, s54, s55")
    o("s_cmp_eq_u32 s6, 0")
    o("s_cselect_b32 s55, 8192, 0")
    o("s_add_u32 s54, s54, s55")
    o("v_lshlrev_b32 v22, 10, v22")
    o("v_lshl_add_u32 v21, v21, 1, v22")
    o("v_add_u32 v21, s54, v21")
    for j in range(8):
        o(f"buffer_load_ushort v{40+j}, v21, s[28:31], 0 offen offset:{128*j}")
    o("s_branch L1_barA")
    o.lab("L1_fragC")
    o("v_lshlrev_b32 v21, 1, v21")
    o("v_add_u32 v21, 16384, v21")
    o("v_mov_b32 v23, 0x100000")
    o("v_cmp_eq_u32 vcc, 0, v22")
    o("s_nop 1")
    o("v_cndmask_b32 v21, v23, v21, vcc")
    for e in range(8):
        o(f"buffer_load_ushort v{40+e}, v21, s[28:31], 0 offen offset:{128*(e&3)+64*(e>>2)}")
    o.lab("L1_barA")
    T()
    o("s_barrier")
    o("s_cmp_eq_u32 s3, 15")
    o("s_cbranch_scc0 L1_hist")
    o("s_cmp_ge_u32 s2, 33")
    o("s_cbranch_scc1 L1_barB")
    o("s_and_b32 s7, s6, 3")
    o("s_cmp_eq_u32 s7, 0")
    o("s_mov_b32 s54, 1.0")
    o(f"s_cselect_b32 s54, {NEG_LOG2E:#x}, s54")
    o("s_waitcnt vmcnt(0)")
    for j in range(8):
        o(f"v_lshlrev_b32 v{40+j}, 16, v{40+j}")
    for j in range(8):
        o(f"v_mul_f32 v{40+j}, s54, v{40+j}")
    for j in range(4):
        o(f"v_cvt_pk_bf16_f32 v{48+j}, v{40+2*j}, v{41+2*j}")
    o("s_lshl_b32 s55, s2, 10")
    o(f"s_add_u32 s55, s55, {WS_FRAG}")
    o("v_lshl_add_u32 v21, v1, 4, s55")
    o(f"buffer_store_dwordx4 v[48:51], v21, s[20:23], 0 offen {ST}")
    o("s_branch L1_barB")
    o.lab("L1_hist")
    o("s_mov_b64 exec, s[52:53]")
    o("s_cbranch_execz L1_histdone")
    o(f"s_movk_i32 s56, {MAGIC49}")
    o("v_mov_b32 v20, 1")
    o("s_waitcnt vmcnt(3)")
    T()
    for i in range(4):
        o(f"v_mul_u32_u24 v{24+i}, s56, v{4+i}")
    for i in range(4):
        o(f"v_lshrrev_b32 v{24+i}, 20, v{24+i}")
    for i in range(4):
        o(f"v_lshlrev_b32 v{28+i}, 2, v{24+i}")
        o(f"ds_add_rtn_u32 v{32+i}, v{28+i}, v20 offset:{K1_HIST}")
    for i in range(4):
        o(f"v_mul_u32_u24 v{24+i}, 49, v{24+i}")
    for i in range(4):
        o(f"v_sub_u32 v{4+i}, v{4+i}, v{24+i}")
    for i in range(4):
        o(f"v_lshlrev_b32 v{4+i}, 26, v{4+i}")
    o("s_waitcnt lgkmcnt(0)")
    o.lab("L1_histdone")
    o("s_mov_b64 exec, -1")
    o.lab("L1_barB")
    T()
    o("s_barrier")
    o("s_cmp_eq_u32 s3, 14")
    o("s_cbranch_scc0 L1_barC")
    o.c("wave 14: exclusive scan of the 256 bucket counts")
    o("v_lshlrev_b32 v21, 4, v1")
    o(f"ds_read_b128 v[40:43], v21 offset:{K1_HIST}")
    o("s_waitcnt lgkmcnt(0)")
    o("v_add_u32 v45, v40, v41")
    o("v_add_u32 v46, v45, v42")
    o("v_add_u32 v47, v46, v43")
    o("v_mov_b32 v48, v47")
    o("s_nop 1")
    wave_scan(o, 48)
    o("v_sub_u32 v48, v48, v47")
    o("v_add_u32 v49, v48, v40")
    o("v_add_u32 v50, v48, v45")
    o("v_add_u32 v51, v48, v46")
    for j in range(4):
        o(f"v_mul_u32_u24 v{48+j}, 12, v{48+j}")
    for j in range(4):
        o(f"v_lshl_or_b32 v{40+j}, v{40+j}, 16, v{48+j}")
    for j in range(4):
        o(f"v_add_u32 v{48+j}, {K1_STAGE}, v{48+j}")
    o(f"ds_write_b128 v21, v[48:51] offset:{K1_BASE}")
    o("s_lshl_b32 s55, s2, 10")
    o(f"s_add_u32 s55, s55, {WS_DESC}")
    o("v_add_u32 v21, s55, v21")
    o(f"buffer_store_dwordx4 v[40:43], v21, s[20:23], 0 offen {ST}")
    o("s_waitcnt lgkmcnt(0)")
    o.lab("L1_barC")
    o("s_barrier")
    T()
    o("s_mov_b64 exec, s[52:53]")
    o("s_cbranch_execz L1_scatdone")
    for i in range(4):
        o(f"ds_read_b32 v{24+i}, v{28+i} offset:{K1_BASE}")
    o("s_waitcnt vmcnt(2)")
    for i in range(4):
        o(f"v_lshlrev_b32 v{8+i}, 7, v{8+i}")
    for i in range(4):
        o(f"v_add_u32 v{8+i}, {XSHIFT}, v{8+i}")
    for i in range(4):
        o(f"v_or_b32 v{8+i}, v{8+i}, v{4+i}")
    o("s_waitcnt lgkmcnt(0)")
    for i in range(4):
        o(f"v_mad_u32_u24 v{24+i}, v{32+i}, 12, v{24+i}")
    for i in range(4):
        o(f"ds_write_b32 v{24+i}, v{8+i} offset:8")
    o("s_waitcnt vmcnt(0)")
    T()
    for i in range(4):
        o(f"ds_write2_b32 v{24+i}, v{12+2*i}, v{13+2*i} offset0:0 offset1:1")
    o("s_waitcnt lgkmcnt(0)")
    o.lab("L1_scatdone")
    o("s_mov_b64 exec, -1")
    o("s_barrier")
    T()
    o("v_lshlrev_b32 v20, 4, v0")
    o(f"s_mul_i32 s55, s2, {CHB}")
    o(f"ds_read_b128 v[24:27], v20 offset:{K1_STAGE}")
    o(f"ds_read_b128 v[28:31], v20 offset:{K1_STAGE+16384}")
    o(f"ds_read_b128 v[32:35], v20 offset:{K1_STAGE+32768}")
    o("v_add_u32 v21, 16384, v20")
    o("v_add_u32 v22, 32768, v20")
    o("v_cmp_gt_u32 vcc, 298, v0")
    o("s_waitcnt lgkmcnt(2)")
    o(f"buffer_store_dwordx4 v[24:27], v20, s[20:23], s55 offen {ST}")
    o("s_waitcnt lgkmcnt(1)")
    o(f"buffer_store_dwordx4 v[28:31], v21, s[20:23], s55 offen {ST}")
    o("s_and_saveexec_b64 s[58:59], vcc")
    o("s_cbranch_execz L1_fin")
    o("s_waitcnt lgkmcnt(0)")
    o(f"buffer_store_dwordx4 v[32:35], v22, s[20:23], s55 offen {ST}")
    o.lab("L1_fin")
    if T.on:
        T(); o("s_waitcnt vmcnt(0)"); T(); T(True); T.dump(20, 3, 40, 1)
    o.lab("L1_end")
    o("s_endpgm")
    return o.text()

CAP = 3584
P4 = 0; AGG = 51200; SRC = 76800; EA = SRC + CAP * 4; GN = EA + CAP * 8; CNT = GN + CAP
MORE = CNT + 256; ZERO8 = MORE + 8; STG = 123904; K2_LDS = STG + 32768
M64 = 196
assert CNT % 256 == 0 and CNT + 320 <= STG
XT = SRC
assert ZERO8 + 8 <= STG and XT % 16 == 0 and EA % 8 == 0
WSMALL = (CAP - 3 * NPB - 31) // 256
OOBSRC = 0x40000000

WB = 128; WV = 160; WC = 192
G = [64, 96]; H = [80, 112]
A = 48; EAR = 46; M = 40; ADP = 36; ADA = 32; SV = 28; GNR = 24; KJ = 20; AAD = 16
V_SRCA = 15; V_EAA = 14; V_GNA = 13; V_LBP = 12; V_EAI = 11; V_LANE = 10; V_DESC = 9; V_LB = 8
REC = 64; CA = 196; BS = 212; DUM = 228
S_W = 20; S_OFF = 21; S_NT = 22; S_T = 23; S_FIRST = 24; S_MORE = 25; S_TOT = 26
MASK = 32; SOFF = 64

def mfma16(d, a, b, c):
    cs = "0" if c is None else vr(c, 16)
    return f"v_mfma_f32_32x32x16_bf16 {vr(d,16)}, {vr(a,4)}, {vr(b,4)}, {cs}"
def mfma8(d, a, b):
    return f"v_mfma_f32_32x32x8_bf16 {vr(d,16)}, {vr(a,2)}, {vr(b,2)}, {vr(d,16)}"

def dma_tile(o):
    for j in range(4):
        o(f"buffer_load_dwordx4 v{SV+j}, s[8:11], 0 offen offset:{1024*j} lds")

def stage(o, cur, cfg):
    nxt = 1 - cur
    hh = nxt
    g, h, gn_, hn = G[cur], H[cur], G[nxt], H[nxt]
    prio = cfg.get("prio", 1)
    o_real = o
    drop = cfg.get("drop", "")
    class F:
        def __call__(self, t):
            if "m" in drop and t.startswith("v_mfma"): return
            if "h" in drop and t.startswith("v_mfma") and (f"v[{WV}" in t or any(f"v[{WV+4*i}:" in t for i in range(8))): return
            if "t" in drop and (t.startswith("v_exp") or t.startswith("v_rcp")): return
            if "a" in drop and t.startswith("ds_add"): return
            if "d" in drop and t.endswith("lds"): return
            o_real(t)
        def lab(self, t): o_real.lab(t)
    o = F()
    for q in range(4):
        o(f"ds_read_b128 {vr(gn_+4*q,4)}, v{ADP+q} offset:{P4+512*hh}")
    if cur == 0:
        o(f"ds_read2_b32 {vr(GNR,2)}, v{V_GNA} offset0:0 offset1:2")
        o(f"ds_read2_b32 {vr(GNR+2,2)}, v{V_GNA} offset0:4 offset1:6")
        o(f"ds_read_b128 {vr(SV,4)}, v{V_SRCA}")
    if prio: o("s_setprio 1")
    k = 0
    for r in range(16):
        if r in (3, 6, 9, 12):
            if r == 3 and cur == 1:
                o("s_waitcnt lgkmcnt(9)")
            o(mfma16(hn, A + 4*k, WV + 16*hh + 4*k, None if k == 0 else hn))
            k += 1
            if r == 3 and cur == 1:
                o(f"s_add_u32 s27, s{S_T}, 16")
                o(f"s_cmp_ge_u32 s27, s{S_NT}")
                o("s_cbranch_scc1 L2_nodma")
                dma_tile(o)
                o.lab("L2_nodma")
        o(f"v_exp_f32 v{g+r}, v{g+r}")
    if prio: o("s_setprio 0")
    for r in range(16):
        o(f"v_add_f32 v{g+r}, 1.0, v{g+r}")
    o("s_waitcnt lgkmcnt(0)")
    if prio: o("s_setprio 1")
    k = 0
    for r in range(16):
        if r in (0, 3, 6, 9):
            o(mfma16(gn_, A + 4*k, WB + 16*hh + 4*k, gn_))
            k += 1
            if r == 9 and cur == 0:
                o("s_waitcnt vmcnt(0)")
                for s in range(4):
                    o(f"ds_read_b128 {vr(A+4*s,4)}, v{AAD+s}")
        if r == 12:
            o(mfma8(gn_, EAR, WC + 2*hh))
            if cur == 0:
                o(f"ds_read_b64 {vr(EAR,2)}, v{V_EAA}")
        o(f"v_rcp_f32 v{g+r}, v{g+r}")
    if prio: o("s_setprio 0")
    if cur == 0:
        for q in range(4):
            o(f"v_lshrrev_b32 v{ADA+q}, 1, v{ADP+q}")
    for j in range(4):
        for q in range(4):
            if j == 0: o(f"v_mul_f32 v{M+q}, v{g+4*q}, v{h+4*q}")
            else: o(f"v_fmac_f32 v{M+q}, v{g+4*q+j}, v{h+4*q+j}")
    for q in range(4):
        o(f"v_cvt_f64_f32 {vr(M64+2*q,2)}, v{M+q}")
    for q in range(4):
        o(f"ds_add_f64 v{ADA+q}, {vr(M64+2*q,2)} offset:{AGG+256*cur}")
    if cur == 0:
        for q in range(4):
            o(f"v_add_u32 v{ADP+q}, v{GNR+q}, v{V_LBP}")
        for j in range(4):
            o(f"v_add_u32 v{SV+j}, v{SV+j}, v{KJ+j}")
        o(f"v_add_u32 v{V_SRCA}, 0x400, v{V_SRCA}")
        o(f"v_add_u32 v{V_GNA}, 0x100, v{V_GNA}")
        o(f"v_add_u32 v{V_EAA}, v{V_EAI}, v{V_EAA}")

def kernel2(cfg):
    o = Asm()
    T = Stamper(o, cfg.get("stamp", 0), 44, 1)
    if cfg.get("dbg", -1) == 1: T.dbgwg = cfg.get("dbgwg", 100); T.dbgback = 0
    o.lab("edge_kernel")
    o("s_cmp_ge_u32 s2, 256")
    o("s_cbranch_scc1 L2_end")
    T(True); T()
    o("s_load_dwordx2 s[4:5], s[0:1], 0")
    o("s_load_dwordx2 s[6:7], s[0:1], 56")
    o("s_load_dwordx2 s[28:29], s[0:1], 72")
    o("v_lshrrev_b32 v1, 6, v0")
    o(f"v_and_b32 v{V_LANE}, 63, v0")
    o("s_and_b32 s30, s2, 7")
    o("s_lshl_b32 s30, s30, 5")
    o("s_lshr_b32 s31, s2, 3")
    o("v_readfirstlane_b32 s3, v1")
    o("s_add_u32 s30, s30, s31")
    for i in range(8):
        o(f"s_mov_b32 s{SOFF+i}, {i*CHB}")
    L = V_LANE
    o(f"v_lshrrev_b32 v2, 4, v{L}")
    o(f"v_and_b32 v3, 15, v{L}")
    o("v_and_b32 v4, 7, v3")
    o("v_lshl_add_u32 v4, v2, 3, v4")
    o("s_lshl_b32 s27, s3, 5")
    o("v_add_u32 v4, s27, v4")
    o("s_lshl_b32 s72, s30, 2")
    o(f"s_add_u32 s72, s72, {WS_DESC}")
    o("v_lshlrev_b32 v4, 10, v4")
    o("s_waitcnt lgkmcnt(0)")
    srd(o, 12, 28, WS_SIZE)
    o(f"buffer_load_dword v{V_DESC}, v4, s[12:15], s72 offen")
    o(f"s_sub_u32 s8, s4, {XSHIFT}")
    o("s_subb_u32 s9, s5, 0")
    o("s_and_b32 s9, s9, 0xffff")
    o(f"s_mov_b32 s10, {N*128+XSHIFT}")
    o("s_mov_b32 s11, 0x00020000")
    srd(o, 16, 6, N * 128)
    o(f"v_lshlrev_b32 v5, 4, v{L}")
    o(f"s_mov_b32 s73, {WS_FRAG+32*1024}")
    o(f"buffer_load_dwordx4 {vr(WC,4)}, v5, s[12:15], s73 offen")
    o("s_lshl_b32 s74, s3, 12")
    o(f"s_add_u32 s75, s74, {STG}")
    o("s_mov_b32 m0, s75")
    o(f"s_add_u32 s73, s74, {WS_FRAG}")
    for j in range(4):
        o(f"buffer_load_dwordx4 v5, s[12:15], s73 offen offset:{1024*j} lds")
    o(f"v_lshrrev_b32 v6, 3, v{L}")
    o(f"v_and_b32 v7, 7, v{L}")
    o(f"v_lshrrev_b32 v1, 5, v{L}")
    o("v_lshlrev_b32 v1, 2, v1")
    o("v_xor_b32 v7, v7, v1")
    for j in range(4):
        o(f"v_xor_b32 v{KJ+j}, {j}, v7")
        o(f"v_lshlrev_b32 v{KJ+j}, 4, v{KJ+j}")
    o("s_and_b32 s76, s3, 3")
    o("s_lshr_b32 s77, s3, 2")
    o("v_xor_b32 v1, s76, v7")
    o("v_lshlrev_b32 v1, 4, v1")
    o("s_mul_i32 s78, s30, 49")
    o("s_lshl_b32 s79, s77, 5")
    o("s_add_u32 s79, s79, s78")
    o("s_add_u32 s79, s79, s76")
    o("s_lshl_b32 s79, s79, 7")
    o(f"s_add_u32 s79, s79, {XSHIFT}")
    o("v_lshl_add_u32 v1, v6, 9, v1")
    o("s_lshl_b32 s80, s3, 10")
    o(f"s_add_u32 s80, s80, {XT}")
    o("s_mov_b32 m0, s80")
    o("v_add_u32 v1, s79, v1")
    o("buffer_load_dwordx4 v1, s[8:11], 0 offen lds")
    o("s_mov_b32 m0, s75")
    for j in range(1, 4):
        o(f"v_subrev_u32 v{KJ+j}, {1024*j}, v{KJ+j}")
    o(f"v_and_b32 v1, 3, v{L}")
    o(f"v_bfe_u32 v2, v{L}, 2, 3")
    o("v_lshl_add_u32 v2, v1, 3, v2")
    o("v_lshlrev_b32 v2, 7, v2")
    o(f"v_bfe_u32 v4, v{L}, 4, 1")
    o("v_lshl_or_b32 v1, v4, 2, v1")
    o(f"v_lshrrev_b32 v4, 5, v{L}")
    o("v_xor_b32 v1, v1, v4")
    for s in range(4):
        o(f"v_xor_b32 v{AAD+s}, {2*s}, v1")
        o(f"v_lshl_add_u32 v{AAD+s}, v{AAD+s}, 4, v2")
    o("s_cmp_lg_u32 s3, 0")
    o("s_cbranch_scc1 L2_nz")
    o("v_mov_b32 v1, 0")
    o(f"v_lshlrev_b32 v2, 2, v{L}")
    o(f"v_add_u32 v2, {CNT}, v2")
    o("ds_write_b32 v2, v1")
    o("ds_write_b32 v2, v1 offset:64")
    o.lab("L2_nz")
    o(f"v_lshrrev_b32 v1, 4, v{L}")
    o("v_lshlrev_b32 v1, 3, v1")
    o("v_add_u32 v1, s27, v1")
    o(f"s_mov_b32 s81, {CHB}")
    o(f"v_mul_lo_u32 v{V_LB}, v1, s81")
    o(f"v_mad_u32_u24 v{V_LB}, v3, 12, v{V_LB}")
    o(f"v_and_b32 v1, 31, v{L}")
    o(f"v_lshlrev_b32 v{V_LBP}, 4, v1")
    o(f"s_mov_b32 s{S_W}, 32")
    o(f"s_mov_b32 s{S_OFF}, 0")
    o(f"s_mov_b32 s{S_FIRST}, 1")
    o("s_mul_i32 s82, s31, 50000")
    o(f"s_add_u32 s82, s82, {XSHIFT}")
    o("v_lshlrev_b32 v7, 4, v0")
    o("s_waitcnt vmcnt(6)")
    T()
    o.lab("L2_pass")
    o(f"v_and_b32 v3, 15, v{L}")
    o(f"v_add_u32 v1, s{S_OFF}, v3")
    o("v_add_u32 v2, 16, v1")
    o(f"s_add_u32 s83, s{S_OFF}, s{S_W}")
    o(f"s_mul_i32 s84, s{S_OFF}, 12")
    o(f"v_add_u32 v6, s84, v{V_LB}")
    o(f"v_lshrrev_b32 v4, 16, v{V_DESC}")
    o("v_cmp_lt_u32 vcc, s83, v4")
    o("v_min_u32 v4, s83, v4")
    o(f"v_and_b32 v5, 0xffff, v{V_DESC}")
    o("s_cmp_lg_u64 vcc, 0")
    o(f"s_cselect_b32 s{S_MORE}, 1, 0")
    for i in range(8):
        o(f"v_mov_b32_dpp v{BS}, v4 row_newbcast:{i} row_mask:0xf bank_mask:0xf")
        o(f"v_add_u32_dpp v{BS+1+(i&1)}, v5, v6 row_newbcast:{i} row_mask:0xf bank_mask:0xf")
        o(f"v_cmp_lt_u32 {sr(MASK+4*i+2,2)}, v2, v{BS}")
        o(f"v_cmpx_lt_u32 {sr(MASK+4*i,2)}, v1, v{BS}")
        o(f"buffer_load_dwordx3 {vr(REC+8*i,3)}, v{BS+1+(i&1)}, s[12:15], s{SOFF+i} offen")
        o(f"s_mov_b64 exec, {sr(MASK+4*i+2,2)}")
        o(f"buffer_load_dwordx3 {vr(REC+8*i+4,3)}, v{BS+1+(i&1)}, s[12:15], s{SOFF+i} offen offset:192")
        o("s_mov_b64 exec, -1")
        if i < 7: o("s_nop 1")
    for i in range(7):
        if i < 6:
            o(f"s_add_u32 s85, s82, {8192*i}")
            o(f"buffer_load_dwordx4 {vr(DUM+4*i,4)}, v7, s[8:11], s85 offen")
        else:
            o(f"s_add_u32 s85, s82, {8192*i}")
            o("v_cmp_gt_u32 vcc, 53, v0")
            o("v_mov_b32 v1, 0x40000000")
            o("s_nop 0")
            o("v_cndmask_b32 v1, v1, v7, vcc")
            o(f"buffer_load_dwordx4 {vr(DUM+4*i,4)}, v1, s[8:11], s85 offen")
    o(f"s_cmp_eq_u32 s{S_FIRST}, 0")
    o("s_cbranch_scc1 L2_ranks")
    o(f"s_mov_b32 s{S_FIRST}, 0")
    T()
    o("s_waitcnt vmcnt(23) lgkmcnt(0)")
    o("s_barrier")
    T()
    o(f"v_lshlrev_b32 v1, 4, v{L}")
    o(f"v_add_u32 v1, {STG}, v1")
    o("s_and_b32 s86, s3, 1")
    o("s_bfe_u32 s87, s3, 0x10001")
    o("s_lshr_b32 s88, s3, 2")
    o("s_lshl_b32 s89, s86, 13")
    o("s_lshl_b32 s90, s88, 12")
    o("s_add_u32 s89, s89, s90")
    o("s_add_u32 s89, s89, 16384")
    o("v_add_u32 v2, s89, v1")
    for s in range(4):
        o(f"ds_read_b128 {vr(BS+4*s,4)}, v2 offset:{1024*s}")
    o("s_lshl_b32 s90, s87, 12")
    o(f"s_add_u32 s90, s90, {XT}")
    for s in range(4):
        o(f"v_add_u32 v3, s90, v{AAD+s}")
        o(f"ds_read_b128 {vr(A+4*s,4)}, v3")
    for f in range(7):
        o(f"ds_read_b128 {vr(WB+4*f,4)}, v1 offset:{1024*f}")
    o("s_waitcnt lgkmcnt(7)")
    for s in range(4):
        o(mfma16(CA, A + 4*s, BS + 4*s, None if s == 0 else CA))
    for f in range(7, 16):
        o(f"ds_read_b128 {vr(WB+4*f,4)}, v1 offset:{1024*f}")
    for s in range(4):
        o(f"v_add_u32 v{AAD+s}, s75, v{AAD+s}")
    o(f"v_lshrrev_b32 v2, 5, v{L}")
    o("v_lshlrev_b32 v2, 2, v2")
    o("s_lshl_b32 s90, s87, 5")
    o("v_add_u32 v2, s90, v2")
    o("s_nop 7")
    o("s_cmp_eq_u32 s86, 1")
    o("s_cbranch_scc1 L2_xu")
    o("s_lshl_b32 s90, s88, 9")
    o(f"v_lshl_add_u32 v2, v2, 10, v{V_LBP}")
    o("v_add_u32 v2, s90, v2")
    o(f"s_mov_b32 s91, {NEG_LOG2E:#x}")
    def pwrite(r):
        t = BS + 4 * (r & 3)
        for c in range(4):
            o(f"v_mul_f32 v{t+c}, s91, v{CA+r}")
        o(f"ds_write_b128 v2, {vr(t,4)} offset:{P4 + (8*(r>>2)+(r&3))*1024}")
    for r in range(8): pwrite(r)
    o("s_cmp_eq_u32 s87, 1")
    o("s_cselect_b32 exec_hi, 0, -1")
    for r in range(8, 10): pwrite(r)
    o("s_mov_b64 exec, -1")
    o("s_cbranch_scc1 L2_pdone")
    for r in range(10, 16): pwrite(r)
    o("s_branch L2_pdone")
    o.lab("L2_xu")
    o("s_lshl_b32 s90, s88, 8")
    o(f"v_lshrrev_b32 v3, 1, v{V_LBP}")
    o("v_lshl_add_u32 v2, v2, 9, v3")
    o("v_add_u32 v2, s90, v2")
    def uwrite(r):
        t = BS + 2 * (r & 7)
        o(f"v_cvt_f64_f32 {vr(t,2)}, v{CA+r}")
        o(f"ds_write_b64 v2, {vr(t,2)} offset:{AGG + (8*(r>>2)+(r&3))*512}")
    for r in range(8): uwrite(r)
    o("s_cmp_eq_u32 s87, 1")
    o("s_cselect_b32 exec_hi, 0, -1")
    for r in range(8, 10): uwrite(r)
    o("s_mov_b64 exec, -1")
    o("s_cbranch_scc1 L2_pdone")
    for r in range(10, 16): uwrite(r)
    o.lab("L2_pdone")
    o("s_waitcnt lgkmcnt(0)")
    o.lab("L2_ranks")
    T()
    o("v_mov_b32 v1, 4")
    o(f"s_cmp_eq_u32 s{S_MORE}, 0")
    o("s_cbranch_scc1 L2_nomore")
    o(f"v_mov_b32 v2, {MORE}")
    o("ds_write_b32 v2, v1")
    o.lab("L2_nomore")
    o(f"v_mov_b32 v2, {CNT}")
    for i in range(16):
        o(f"s_waitcnt vmcnt({7+15-i})")
        o(f"s_mov_b64 exec, {sr(MASK+2*i,2)}")
        o(f"v_add_u32_sdwa v{CA+i}, v{REC+4*i+2}, v2 dst_sel:DWORD dst_unused:UNUSED_PAD src0_sel:BYTE_3 src1_sel:DWORD")
        o("s_nop 0")
        o(f"ds_add_rtn_u32 v{REC+4*i+3}, v{CA+i}, v1")
    o("s_mov_b64 exec, -1")
    o("s_waitcnt lgkmcnt(0)")
    T()
    o("s_barrier")
    T()
    o(f"v_lshl_add_u32 v1, v{L}, 2, v2")
    o("ds_read_b32 v3, v1")
    o(f"ds_read_b32 v4, v2 offset:256")
    o("s_waitcnt lgkmcnt(0)")
    o("v_add_u32 v5, 15, v3")
    o("v_and_b32 v5, -16, v5")
    o("v_mov_b32 v6, v5")
    o(f"v_readfirstlane_b32 s{S_MORE}, v4")
    o("s_nop 0")
    wave_scan(o, 6)
    o("s_nop 0")
    o(f"v_readlane_b32 s{S_TOT}, v6, 63")
    o("v_sub_u32 v6, v6, v5")
    o(f"s_cmp_gt_u32 s{S_TOT}, {(CAP-32)*4}")
    o("s_cbranch_scc0 L2_fits")
    o.c("window too large for LDS: clear the counters and redo with the small window")
    o("s_barrier")
    o("v_mov_b32 v3, 0")
    o("ds_write_b32 v1, v3")
    o("ds_write_b32 v2, v3 offset:256")
    o(f"s_mov_b32 s{S_W}, {WSMALL}")
    o("s_waitcnt vmcnt(0) lgkmcnt(0)")
    o("s_barrier")
    o("s_branch L2_pass")
    o.lab("L2_fits")
    o(f"v_add_u32 v4, {SRC}, v6")
    for i in range(16):
        o(f"ds_bpermute_b32 v{BS+i}, v{CA+i}, v4")
    o(f"s_add_u32 s{S_NT}, s{S_TOT}, 127")
    o(f"s_lshr_b32 s{S_NT}, s{S_NT}, 7")
    o(f"s_mov_b32 s92, {EA-2*SRC}")
    o("s_waitcnt lgkmcnt(0)")
    for i in range(16):
        o(f"s_mov_b64 exec, {sr(MASK+2*i,2)}")
        o(f"v_add_u32 v{BS+i}, v{BS+i}, v{REC+4*i+3}")
        o(f"v_and_b32 v{REC+4*i+2}, 0xffffff, v{REC+4*i+2}")
        o(f"v_lshl_add_u32 v{REC+4*i+3}, v{BS+i}, 1, s92")
        o(f"ds_write_b32 v{BS+i}, v{REC+4*i+2}")
        o(f"ds_write_b64 v{REC+4*i+3}, {vr(REC+4*i,2)}")
    o("s_mov_b64 exec, -1")
    o(f"v_mov_b32 v{BS}, {OOBSRC:#x}")
    o(f"v_mov_b32 v{BS+2}, 0")
    o(f"v_mov_b32 v{BS+3}, 0")
    o("s_lshl_b32 s93, s3, 2")
    o("v_add_u32 v3, s93, v3")
    o("v_cmp_lt_u32 vcc, v3, v5")
    o("v_add_u32 v3, v3, v4")
    o("v_lshl_add_u32 v4, v3, 1, s92")
    o("s_and_saveexec_b64 s[94:95], vcc")
    o(f"ds_write_b32 v3, v{BS}")
    o(f"ds_write_b64 v4, {vr(BS+2,2)}")
    o("s_mov_b64 exec, -1")
    o(f"v_lshl_add_u32 v3, v{L}, 2, s{S_TOT}")
    o(f"s_lshl_b32 s93, s{S_NT}, 7")
    o("v_cmp_gt_u32 vcc, s93, v3")
    o(f"v_add_u32 v3, {SRC}, v3")
    o("v_lshl_add_u32 v4, v3, 1, s92")
    o("s_and_saveexec_b64 s[94:95], vcc")
    o(f"ds_write_b32 v3, v{BS}")
    o(f"ds_write_b64 v4, {vr(BS+2,2)}")
    o("s_mov_b64 exec, -1")
    o(f"s_lshr_b32 s96, s{S_TOT}, 2")
    o(f"v_lshl_add_u32 v3, v{L}, 2, s96")
    o("s_lshr_b32 s93, s93, 2")
    o("v_cmp_gt_u32 vcc, s93, v3")
    o(f"v_add_u32 v3, {GN}, v3")
    o(f"v_mov_b32 v4, {49*1024}")
    o("s_and_saveexec_b64 s[94:95], vcc")
    o("ds_write_b32 v3, v4")
    o("s_mov_b64 exec, -1")
    o("v_lshrrev_b32 v5, 2, v5")
    o("v_lshrrev_b32 v6, 2, v6")
    o(f"v_add_u32 v6, {GN}, v6")
    o(f"v_lshlrev_b32 v4, 10, v{L}")
    o("s_lshl_b32 s93, s3, 2")
    o.lab("L2_gloop")
    o("v_cmp_lt_u32 vcc, s93, v5")
    o("v_add_u32 v3, s93, v6")
    o("s_and_saveexec_b64 s[94:95], vcc")
    o("s_cbranch_execz L2_gdone")
    o("ds_write_b32 v3, v4")
    o("s_mov_b64 exec, -1")
    o("s_add_u32 s93, s93, 32")
    o("s_branch L2_gloop")
    o.lab("L2_gdone")
    o("s_mov_b64 exec, -1")
    o("s_waitcnt lgkmcnt(0)")
    T()
    o("s_barrier")
    T()
    o("s_cmp_lg_u32 s3, 0")
    o("s_cbranch_scc1 L2_nz2")
    o("v_mov_b32 v3, 0")
    o("ds_write_b32 v1, v3")
    o("ds_write_b32 v2, v3 offset:256")
    o.lab("L2_nz2")
    o(f"s_mov_b32 s{S_T}, s3")
    o(f"s_cmp_ge_u32 s{S_T}, s{S_NT}")
    o("s_cbranch_scc1 L2_done")
    o(f"v_lshrrev_b32 v1, 3, v{L}")
    o("v_lshlrev_b32 v1, 4, v1")
    o("s_lshl_b32 s93, s3, 7")
    o(f"s_add_u32 s93, s93, {SRC}")
    o(f"v_add_u32 v{V_SRCA}, s93, v1")
    o(f"ds_read_b128 {vr(SV,4)}, v{V_SRCA}")
    o(f"v_lshrrev_b32 v1, 5, v{L}")
    o("s_lshl_b32 s93, s3, 5")
    o(f"s_add_u32 s93, s93, {GN}")
    o(f"v_lshl_add_u32 v{V_GNA}, v1, 2, s93")
    o(f"ds_read2_b32 {vr(GNR,2)}, v{V_GNA} offset0:0 offset1:2")
    o(f"ds_read2_b32 {vr(GNR+2,2)}, v{V_GNA} offset0:4 offset1:6")
    o("s_lshl_b32 s93, s3, 8")
    o(f"s_add_u32 s93, s93, {EA}")
    o(f"v_lshl_add_u32 v{V_EAA}, v{L}, 3, s93")
    o(f"v_mov_b32 v2, {ZERO8}")
    o(f"v_mov_b32 v{V_EAI}, 0x800")
    o(f"v_cmp_gt_u32 vcc, 32, v{L}")
    o("s_nop 1")
    o(f"v_cndmask_b32 v{V_EAA}, v2, v{V_EAA}, vcc")
    o(f"v_cndmask_b32 v{V_EAI}, 0, v{V_EAI}, vcc")
    o(f"ds_read_b64 {vr(EAR,2)}, v{V_EAA}")
    o("s_waitcnt lgkmcnt(3)")
    for j in range(4):
        o(f"v_add_u32 v{SV+j}, v{SV+j}, v{KJ+j}")
    dma_tile(o)
    o(f"ds_read_b128 {vr(SV,4)}, v{V_SRCA} offset:1024")
    o(f"v_add_u32 v{V_SRCA}, 0x800, v{V_SRCA}")
    o(f"v_add_u32 v{V_GNA}, 0x100, v{V_GNA}")
    o(f"v_add_u32 v{V_EAA}, v{V_EAI}, v{V_EAA}")
    o("s_waitcnt lgkmcnt(1)")
    for q in range(4):
        o(f"v_add_u32 v{ADP+q}, v{GNR+q}, v{V_LBP}")
    for q in range(4):
        o(f"ds_read_b128 {vr(G[0]+4*q,4)}, v{ADP+q} offset:{P4}")
    o("s_waitcnt vmcnt(0)")
    for s in range(4):
        o(f"ds_read_b128 {vr(A+4*s,4)}, v{AAD+s}")
    o("s_waitcnt lgkmcnt(0)")
    for j in range(4):
        o(f"v_add_u32 v{SV+j}, v{SV+j}, v{KJ+j}")
    o(f"s_add_u32 s27, s{S_T}, 8")
    o(f"s_cmp_ge_u32 s27, s{S_NT}")
    o("s_cbranch_scc1 L2_nodma0")
    dma_tile(o)
    o.lab("L2_nodma0")
    for k in range(4):
        o(mfma16(G[0], A + 4*k, WB + 4*k, G[0]))
    o(mfma8(G[0], EAR, WC))
    for k in range(4):
        o(mfma16(H[0], A + 4*k, WV + 4*k, None if k == 0 else H[0]))
    o("s_nop 7")
    T(); T(True)
    o(".p2align 3")
    o.lab("L2_loop")
    stage(o, 0, cfg)
    stage(o, 1, cfg)
    o(f"s_add_u32 s{S_T}, s{S_T}, 8")
    o(f"s_cmp_lt_u32 s{S_T}, s{S_NT}")
    o("s_cbranch_scc1 L2_loop")
    o.lab("L2_done")
    o("s_waitcnt vmcnt(0) lgkmcnt(0)")
    T(); T(True)
    o("s_barrier")
    o(f"s_cmp_eq_u32 s{S_MORE}, 0")
    o("s_cbranch_scc1 L2_out")
    o(f"s_add_u32 s{S_OFF}, s{S_OFF}, s{S_W}")
    o("s_nop 15")
    o("s_branch L2_pass")
    o.lab("L2_out")
    o("v_cmp_gt_u32 vcc, 392, v0")
    o("s_and_saveexec_b64 s[94:95], vcc")
    o("s_cbranch_execz L2_fin")
    o("v_lshlrev_b32 v1, 6, v0")
    for c in range(4):
        o(f"ds_read_b128 {vr(80+4*c,4)}, v1 offset:{AGG+16*c}")
    o("s_lshl_b32 s93, s78, 7")
    o("v_add_u32 v2, s93, v7")
    o("s_waitcnt lgkmcnt(0)")
    for r in range(8): o(f"v_cvt_f32_f64 v{64+r}, {vr(80+2*r,2)}")
    for r in range(8): o(f"v_mul_f32 v{72+r}, {NEG_LOG2E:#x}, v{64+r}")
    for r in range(8): o(f"v_exp_f32 v{72+r}, v{72+r}")
    for r in range(8): o(f"v_add_f32 v{72+r}, 1.0, v{72+r}")
    for r in range(8): o(f"v_rcp_f32 v{72+r}, v{72+r}")
    for r in range(8): o(f"v_mul_f32 v{64+r}, v{64+r}, v{72+r}")
    for r in range(4): o(f"v_cvt_pk_bf16_f32 v{72+r}, v{64+2*r}, v{65+2*r}")
    o("buffer_store_dwordx4 v[72:75], v2, s[16:19], 0 offen")
    o.lab("L2_fin")
    if T.on:
        o("s_waitcnt vmcnt(0)"); T(); T(True); T.dump(12, 3, 1, V_LANE)
    o.lab("L2_end")
    o("s_endpgm")
    return o.text()

HEADER = """; Edge-gated MPNN layer: out = silu(x@U + sum over edges with dst=i of sigmoid(x[dst]@A + x[src]@B + e@C) * (x[src]@V))
; @launch kernel=bin_kernel grid=(256,1,1) block=(1024,1,1) lds={l1}
; @launch kernel=edge_kernel grid=(256,1,1) block=(512,1,1) lds={l2}
.amdgcn_target "amdgcn-amd-amdhsa--gfx950"
.text
"""
def kd(name, vg, sg):
    return f""".amdhsa_kernel {name}
  .amdhsa_next_free_vgpr {vg}
  .amdhsa_next_free_sgpr {sg}
  .amdhsa_accum_offset {(vg+3)//4*4}
  .amdhsa_group_segment_fixed_size 0
  .amdhsa_kernarg_size 80
  .amdhsa_user_sgpr_count 2
  .amdhsa_user_sgpr_kernarg_segment_ptr 1
  .amdhsa_system_sgpr_workgroup_id_x 1
  .amdhsa_float_denorm_mode_32 3
.end_amdhsa_kernel
"""
def build(cfg):
    s = HEADER.format(l1=K1_LDS, l2=K2_LDS)
    nn = cfg.get("nops", 0)
    if nn:
        line = "; @launch kernel=nop_kernel grid=(1,1,1) block=(64,1,1) lds=0\n"
        if cfg.get("nopfirst", 0): s = s.replace("; @launch kernel=bin_kernel", line * nn + "; @launch kernel=bin_kernel")
        else: s = s.replace(".amdgcn_target", line * nn + ".amdgcn_target")
        s += ".globl nop_kernel\n.p2align 8\n.type nop_kernel,@function\nnop_kernel:\n    s_endpgm\n"
    for name, fn in (("bin_kernel", kernel1), ("edge_kernel", kernel2)):
        s += f".globl {name}\n.p2align 8\n.type {name},@function\n" + fn(cfg)
    s += '.section .rodata,"a"\n.p2align 6\n' + kd("bin_kernel", 64, 100) + ".p2align 6\n" + kd("edge_kernel", 256, 100)
    if nn: s += ".p2align 6\n" + kd("nop_kernel", 8, 16)
    return s

if __name__ == "__main__":
    cfg = {}
    out = sys.argv[1]
    for a in sys.argv[2:]:
        k, v = a.split("=")
        cfg[k] = int(v) if v.lstrip("-").isdigit() else v
    open(out, "w").write(build(cfg))
```

```python
import sys, struct

N = 12500; E = 800000; NB = 256; NPB = 49; CH = 3128; CHB = CH * 12
WS_DESC = 0x00A00000; WS_FRAG = 0x00A80000; WS_SIZE = 0x00C00000
XSHIFT = 4096
NEG_LOG2E = 0xBFB8AA3B
MAGIC49 = 21400
assert all(((d * MAGIC49) >> 20) == d // 49 for d in range(N))

class Asm:
    def __init__(self): self.l = []
    def __call__(self, s): self.l.append("    " + s)
    def lab(self, s): self.l.append(s + ":")
    def c(self, s): self.l.append("    ; " + s)
    def text(self): return "\n".join(self.l) + "\n"

STAMP_BASE = 0x00B00000
class Stamper:
    def __init__(self, o, on, vreg, region):
        self.o, self.on, self.v, self.n, self.region = o, on, vreg, 0, region
        self.dbgwg = None; self.dbgback = 0
    def __call__(self, real=False):
        if not self.on: return
        self.o(f"{'s_memrealtime' if real else 's_memtime'} s[98:99]")
        self.o("s_waitcnt lgkmcnt(0)")
        self.o(f"v_writelane_b32 v{self.v}, s98, {self.n}")
        self.n += 1
    def dump(self, srd_, wave_s, vt, lane):
        if not self.on: return
        o = self.o
        o("s_mov_b64 exec, 0xffff")
        o(f"s_lshl_b32 s4, s2, 4")
        o(f"s_add_u32 s4, s4, s{wave_s}")
        o(f"s_lshl_b32 s4, s4, 6")
        o(f"s_add_u32 s4, s4, {STAMP_BASE + self.region * 0x40000}")
        o(f"v_lshl_add_u32 v{vt}, v{lane}, 2, s4")
        o(f"buffer_store_dword v{self.v}, v{vt}, s[{srd_}:{srd_+3}], 0 offen")
        if self.dbgwg is not None:
            o(f"s_cmp_lg_u32 s2, {self.dbgwg}")
            o("s_cbranch_scc1 Ldbg%d" % self.region)
            o(f"s_cmp_lg_u32 s{wave_s}, 1")
            o("s_cbranch_scc1 Ldbg%d" % self.region)
            o("s_load_dwordx2 s[4:5], s[0:1], 64")
            o("s_waitcnt lgkmcnt(0)")
            o(f"s_add_u32 s4, s4, {-self.dbgback}")
            o("s_addc_u32 s5, s5, 0")
            o("s_mov_b32 s6, 256")
            o("s_mov_b32 s7, 0x00020000")
            o(f"v_lshlrev_b32 v{vt}, 2, v{lane}")
            o(f"buffer_store_dword v{self.v}, v{vt}, s[4:7], 0 offen")
            o.lab("Ldbg%d" % self.region)

def vr(a, n=1): return f"v{a}" if n == 1 else f"v[{a}:{a+n-1}]"
def sr(a, n=1): return f"s{a}" if n == 1 else f"s[{a}:{a+n-1}]"

def srd(o, d, lo, size):
    o(f"s_mov_b32 s{d}, s{lo}")
    o(f"s_and_b32 s{d+1}, s{lo+1}, 0xffff")
    o(f"s_mov_b32 s{d+2}, {size}")
    o(f"s_mov_b32 s{d+3}, 0x00020000")

def wave_scan(o, v):
    for sh in (1, 2, 4, 8):
        o(f"v_add_u32_dpp v{v}, v{v}, v{v} row_shr:{sh} row_mask:0xf bank_mask:0xf bound_ctrl:0")
        o("s_nop 1")
    o(f"v_add_u32_dpp v{v}, v{v}, v{v} row_bcast:15 row_mask:0xa bank_mask:0xf")
    o("s_nop 1")
    o(f"v_add_u32_dpp v{v}, v{v}, v{v} row_bcast:31 row_mask:0xc bank_mask:0xf")

K1_HIST = 0; K1_BASE = 1024; K1_STAGE = 2048
K1_LDS = 83968
def kernel1(cfg):
    o = Asm()
    ST = cfg.get("st1", "sc0 sc1")
    T = Stamper(o, cfg.get("stamp", 0), 36, 0)
    if cfg.get("dbg", -1) == 0: T.dbgwg = cfg.get("dbgwg", 100); T.dbgback = -512
    o.lab("bin_kernel")
    o("s_cmp_ge_u32 s2, 256")
    o("s_cbranch_scc1 L1_end")
    T(True); T()
    o("s_load_dwordx4 s[36:39], s[0:1], 0")
    o("s_load_dwordx4 s[40:43], s[0:1], 16")
    o("s_load_dwordx4 s[44:47], s[0:1], 32")
    o("s_load_dwordx2 s[48:49], s[0:1], 48")
    o("s_load_dwordx2 s[50:51], s[0:1], 72")
    o("v_lshrrev_b32 v1, 6, v0")
    o("s_movk_i32 s4, 782")
    o("s_cmp_eq_u32 s2, 255")
    o("s_cselect_b32 s4, 590, s4")
    o("v_readfirstlane_b32 s3, v1")
    o("s_mul_i32 s5, s2, 12512")
    o("v_lshl_add_u32 v2, v0, 4, s5")
    o("v_lshlrev_b32 v3, 1, v2")
    o("v_cmp_gt_u32 s[52:53], s4, v0")
    o("s_waitcnt lgkmcnt(0)")
    srd(o, 8, 42, E * 4)
    srd(o, 12, 40, E * 4)
    srd(o, 16, 38, E * 8)
    srd(o, 20, 50, WS_SIZE)
    srd(o, 24, 36, N * 128)
    o("s_mov_b64 exec, s[52:53]")
    o("s_cbranch_execz L1_noload")
    LD = cfg.get("ld1", "")
    o(f"buffer_load_dwordx4 v[4:7], v2, s[8:11], 0 offen {LD}")
    o(f"buffer_load_dwordx4 v[8:11], v2, s[12:15], 0 offen {LD}")
    o(f"buffer_load_dwordx4 v[12:15], v3, s[16:19], 0 offen {LD}")
    o(f"buffer_load_dwordx4 v[16:19], v3, s[16:19], 0 offen offset:16 {LD}")
    if cfg.get("waitall", 0):
        T(); o("s_waitcnt vmcnt(3)"); T(); o("s_waitcnt vmcnt(2)"); T(); o("s_waitcnt vmcnt(0)"); T()
    o.lab("L1_noload")
    o("s_mov_b64 exec, -1")
    o("v_and_b32 v1, 63, v0")
    o("s_cmp_lt_u32 s3, 13")
    o("s_cbranch_scc1 L1_barA")
    o.c("spare waves: pull this workgroup's share of x through the cache hierarchy")
    o("s_mul_i32 s6, s2, 6272")
    o("v_subrev_u32 v20, 832, v0")
    o("v_lshl_add_u32 v20, v20, 4, s6")
    o("buffer_load_dwordx4 v[52:55], v20, s[24:27], 0 offen")
    o("buffer_load_dwordx4 v[56:59], v20, s[24:27], 0 offen offset:3072")
    o("s_cmp_eq_u32 s3, 13")
    o("s_cbranch_scc0 L1_not13")
    o("v_mov_b32 v32, 0")
    o("v_mov_b32 v33, 0")
    o("v_mov_b32 v34, 0")
    o("v_mov_b32 v35, 0")
    o("v_lshlrev_b32 v21, 4, v1")
    o(f"ds_write_b128 v21, v[32:35] offset:{K1_HIST}")
    o("v_add_u32 v20, 6144, v20")
    o("buffer_load_dwordx4 v[60:63], v20, s[24:27], 0 offen")
    o("s_waitcnt lgkmcnt(0)")
    o("s_branch L1_barA")
    o.lab("L1_not13")
    o("s_cmp_eq_u32 s3, 15")
    o("s_cbranch_scc0 L1_barA")
    o("s_cmp_ge_u32 s2, 33")
    o("s_cbranch_scc1 L1_barA")
    o.c("weight fragment preparation (wave 15 of workgroups 0..32)")
    o("s_lshr_b32 s6, s2, 3")
    o("s_mov_b32 s28, s48")
    o("s_mov_b32 s29, s49")
    o("s_cmp_eq_u32 s6, 1")
    o("s_cselect_b32 s28, s46, s28")
    o("s_cselect_b32 s29, s47, s29")
    o("s_cmp_eq_u32 s6, 3")
    o("s_cselect_b32 s28, s44, s28")
    o("s_cselect_b32 s29, s45, s29")
    o("s_and_b32 s29, s29, 0xffff")
    o("s_and_b32 s7, s6, 1")
    o("s_cmp_eq_u32 s7, 1")
    o("s_movk_i32 s30, 16896")
    o("s_cselect_b32 s30, 8192, s30")
    o("s_mov_b32 s31, 0x00020000")
    o("v_and_b32 v21, 31, v1")
    o("v_lshrrev_b32 v22, 5, v1")
    o("s_cmp_eq_u32 s6, 4")
    o("s_cbranch_scc1 L1_fragC")
    o("s_and_b32 s54, s2, 3")
    o("s_lshl_b32 s54, s54, 11")
    o("s_bfe_u32 s55, s2, 0x10002")
    o("s_lshl_b32 s55, s55, 6")
    o("s_add_u32 s54, s54, s55")
    o("s_cmp_eq_u32 s6, 0")
    o("s_cselect_b32 s55, 8192, 0")
    o("s_add_u32 s54, s54, s55")
    o("v_lshlrev_b32 v22, 10, v22")
    o("v_lshl_add_u32 v21, v21, 1, v22")
    o("v_add_u32 v21, s54, v21")
    for j in range(8):
        o(f"buffer_load_ushort v{40+j}, v21, s[28:31], 0 offen offset:{128*j}")
    o("s_branch L1_barA")
    o.lab("L1_fragC")
    o("v_lshlrev_b32 v21, 1, v21")
    o("v_add_u32 v21, 16384, v21")
    o("v_mov_b32 v23, 0x100000")
    o("v_cmp_eq_u32 vcc, 0, v22")
    o("s_nop 1")
    o("v_cndmask_b32 v21, v23, v21, vcc")
    for e in range(8):
        o(f"buffer_load_ushort v{40+e}, v21, s[28:31], 0 offen offset:{128*(e&3)+64*(e>>2)}")
    o.lab("L1_barA")
    T()
    o("s_barrier")
    o("s_cmp_eq_u32 s3, 15")
    o("s_cbranch_scc0 L1_hist")
    o("s_cmp_ge_u32 s2, 33")
    o("s_cbranch_scc1 L1_barB")
    o("s_and_b32 s7, s6, 3")
    o("s_cmp_eq_u32 s7, 0")
    o("s_mov_b32 s54, 1.0")
    o(f"s_cselect_b32 s54, {NEG_LOG2E:#x}, s54")
    o("s_waitcnt vmcnt(0)")
    for j in range(8):
        o(f"v_lshlrev_b32 v{40+j}, 16, v{40+j}")
    for j in range(8):
        o(f"v_mul_f32 v{40+j}, s54, v{40+j}")
    for j in range(4):
        o(f"v_cvt_pk_bf16_f32 v{48+j}, v{40+2*j}, v{41+2*j}")
    o("s_lshl_b32 s55, s2, 10")
    o(f"s_add_u32 s55, s55, {WS_FRAG}")
    o("v_lshl_add_u32 v21, v1, 4, s55")
    o(f"buffer_store_dwordx4 v[48:51], v21, s[20:23], 0 offen {ST}")
    o("s_branch L1_barB")
    o.lab("L1_hist")
    o("s_mov_b64 exec, s[52:53]")
    o("s_cbranch_execz L1_histdone")
    o(f"s_movk_i32 s56, {MAGIC49}")
    o("v_mov_b32 v20, 1")
    o("s_waitcnt vmcnt(3)")
    T()
    for i in range(4):
        o(f"v_mul_u32_u24 v{24+i}, s56, v{4+i}")
    for i in range(4):
        o(f"v_lshrrev_b32 v{24+i}, 20, v{24+i}")
    for i in range(4):
        o(f"v_lshlrev_b32 v{28+i}, 2, v{24+i}")
        o(f"ds_add_rtn_u32 v{32+i}, v{28+i}, v20 offset:{K1_HIST}")
    for i in range(4):
        o(f"v_mul_u32_u24 v{24+i}, 49, v{24+i}")
    for i in range(4):
        o(f"v_sub_u32 v{4+i}, v{4+i}, v{24+i}")
    for i in range(4):
        o(f"v_lshlrev_b32 v{4+i}, 26, v{4+i}")
    o("s_waitcnt lgkmcnt(0)")
    o.lab("L1_histdone")
    o("s_mov_b64 exec, -1")
    o.lab("L1_barB")
    T()
    o("s_barrier")
    o("s_cmp_eq_u32 s3, 14")
    o("s_cbranch_scc0 L1_barC")
    o.c("wave 14: exclusive scan of the 256 bucket counts")
    o("v_lshlrev_b32 v21, 4, v1")
    o(f"ds_read_b128 v[40:43], v21 offset:{K1_HIST}")
    o("s_waitcnt lgkmcnt(0)")
    o("v_add_u32 v45, v40, v41")
    o("v_add_u32 v46, v45, v42")
    o("v_add_u32 v47, v46, v43")
    o("v_mov_b32 v48, v47")
    o("s_nop 1")
    wave_scan(o, 48)
    o("v_sub_u32 v48, v48, v47")
    o("v_add_u32 v49, v48, v40")
    o("v_add_u32 v50, v48, v45")
    o("v_add_u32 v51, v48, v46")
    for j in range(4):
        o(f"v_mul_u32_u24 v{48+j}, 12, v{48+j}")
    for j in range(4):
        o(f"v_lshl_or_b32 v{40+j}, v{40+j}, 16, v{48+j}")
    for j in range(4):
        o(f"v_add_u32 v{48+j}, {K1_STAGE}, v{48+j}")
    o(f"ds_write_b128 v21, v[48:51] offset:{K1_BASE}")
    o("s_lshl_b32 s55, s2, 10")
    o(f"s_add_u32 s55, s55, {WS_DESC}")
    o("v_add_u32 v21, s55, v21")
    o(f"buffer_store_dwordx4 v[40:43], v21, s[20:23], 0 offen {ST}")
    o("s_waitcnt lgkmcnt(0)")
    o.lab("L1_barC")
    o("s_barrier")
    T()
    o("s_mov_b64 exec, s[52:53]")
    o("s_cbranch_execz L1_scatdone")
    for i in range(4):
        o(f"ds_read_b32 v{24+i}, v{28+i} offset:{K1_BASE}")
    o("s_waitcnt vmcnt(2)")
    for i in range(4):
        o(f"v_lshlrev_b32 v{8+i}, 7, v{8+i}")
    for i in range(4):
        o(f"v_add_u32 v{8+i}, {XSHIFT}, v{8+i}")
    for i in range(4):
        o(f"v_or_b32 v{8+i}, v{8+i}, v{4+i}")
    o("s_waitcnt lgkmcnt(0)")
    for i in range(4):
        o(f"v_mad_u32_u24 v{24+i}, v{32+i}, 12, v{24+i}")
    for i in range(4):
        o(f"ds_write_b32 v{24+i}, v{8+i} offset:8")
    o("s_waitcnt vmcnt(0)")
    T()
    for i in range(4):
        o(f"ds_write2_b32 v{24+i}, v{12+2*i}, v{13+2*i} offset0:0 offset1:1")
    o("s_waitcnt lgkmcnt(0)")
    o.lab("L1_scatdone")
    o("s_mov_b64 exec, -1")
    o("s_barrier")
    T()
    o("v_lshlrev_b32 v20, 4, v0")
    o(f"s_mul_i32 s55, s2, {CHB}")
    o(f"ds_read_b128 v[24:27], v20 offset:{K1_STAGE}")
    o(f"ds_read_b128 v[28:31], v20 offset:{K1_STAGE+16384}")
    o(f"ds_read_b128 v[32:35], v20 offset:{K1_STAGE+32768}")
    o("v_add_u32 v21, 16384, v20")
    o("v_add_u32 v22, 32768, v20")
    o("v_cmp_gt_u32 vcc, 298, v0")
    o("s_waitcnt lgkmcnt(2)")
    o(f"buffer_store_dwordx4 v[24:27], v20, s[20:23], s55 offen {ST}")
    o("s_waitcnt lgkmcnt(1)")
    o(f"buffer_store_dwordx4 v[28:31], v21, s[20:23], s55 offen {ST}")
    o("s_and_saveexec_b64 s[58:59], vcc")
    o("s_cbranch_execz L1_fin")
    o("s_waitcnt lgkmcnt(0)")
    o(f"buffer_store_dwordx4 v[32:35], v22, s[20:23], s55 offen {ST}")
    o.lab("L1_fin")
    if T.on:
        T(); o("s_waitcnt vmcnt(0)"); T(); T(True); T.dump(20, 3, 40, 1)
    o.lab("L1_end")
    o("s_endpgm")
    return o.text()

CAP = 3584
P4 = 0; AGG = 51200; SRC = 76800; EA = SRC + CAP * 4; GN = EA + CAP * 8; CNT = GN + CAP
MORE = CNT + 256; ZERO8 = MORE + 8; STG = 123904; K2_LDS = STG + 32768
M64 = 196
assert CNT % 256 == 0 and CNT + 320 <= STG
XT = SRC
assert ZERO8 + 8 <= STG and XT % 16 == 0 and EA % 8 == 0
WSMALL = (CAP - 3 * NPB - 31) // 256
OOBSRC = 0x40000000

WB = 128; WV = 160; WC = 192
G = [64, 96]; H = [80, 112]
A = 48; EAR = 46; M = 40; ADP = 36; ADA = 32; SV = 28; GNR = 24; KJ = 20; AAD = 16
V_SRCA = 15; V_EAA = 14; V_GNA = 13; V_LBP = 12; V_EAI = 11; V_LANE = 10; V_DESC = 9; V_LB = 8
REC = 64; CA = 196; BS = 212; DUM = 228
S_W = 20; S_OFF = 21; S_NT = 22; S_T = 23; S_FIRST = 24; S_MORE = 25; S_TOT = 26
MASK = 32; SOFF = 64

def mfma16(d, a, b, c):
    cs = "0" if c is None else vr(c, 16)
    return f"v_mfma_f32_32x32x16_bf16 {vr(d,16)}, {vr(a,4)}, {vr(b,4)}, {cs}"
def mfma8(d, a, b):
    return f"v_mfma_f32_32x32x8_bf16 {vr(d,16)}, {vr(a,2)}, {vr(b,2)}, {vr(d,16)}"

def dma_tile(o):
    for j in range(4):
        o(f"buffer_load_dwordx4 v{SV+j}, s[8:11], 0 offen offset:{1024*j} lds")

def stage(o, cur, cfg):
    nxt = 1 - cur
    hh = nxt
    g, h, gn_, hn = G[cur], H[cur], G[nxt], H[nxt]
    prio = cfg.get("prio", 1)
    o_real = o
    drop = cfg.get("drop", "")
    class F:
        def __call__(self, t):
            if "m" in drop and t.startswith("v_mfma"): return
            if "h" in drop and t.startswith("v_mfma") and (f"v[{WV}" in t or any(f"v[{WV+4*i}:" in t for i in range(8))): return
            if "t" in drop and (t.startswith("v_exp") or t.startswith("v_rcp")): return
            if "a" in drop and t.startswith("ds_add"): return
            if "d" in drop and t.endswith("lds"): return
            o_real(t)
        def lab(self, t): o_real.lab(t)
    o = F()
    for q in range(4):
        o(f"ds_read_b128 {vr(gn_+4*q,4)}, v{ADP+q} offset:{P4+512*hh}")
    if cur == 0:
        o(f"ds_read2_b32 {vr(GNR,2)}, v{V_GNA} offset0:0 offset1:2")
        o(f"ds_read2_b32 {vr(GNR+2,2)}, v{V_GNA} offset0:4 offset1:6")
        o(f"ds_read_b128 {vr(SV,4)}, v{V_SRCA}")
    if prio: o("s_setprio 1")
    k = 0
    for r in range(16):
        if r in (3, 6, 9, 12):
            if r == 3 and cur == 1:
                o("s_waitcnt lgkmcnt(9)")
            o(mfma16(hn, A + 4*k, WV + 16*hh + 4*k, None if k == 0 else hn))
            k += 1
            if r == 3 and cur == 1:
                o(f"s_add_u32 s27, s{S_T}, 16")
                o(f"s_cmp_ge_u32 s27, s{S_NT}")
                o("s_cbranch_scc1 L2_nodma")
                dma_tile(o)
                o.lab("L2_nodma")
        o(f"v_exp_f32 v{g+r}, v{g+r}")
    if prio: o("s_setprio 0")
    for r in range(16):
        o(f"v_add_f32 v{g+r}, 1.0, v{g+r}")
    o("s_waitcnt lgkmcnt(0)")
    if prio: o("s_setprio 1")
    k = 0
    for r in range(16):
        if r in (0, 3, 6, 9):
            o(mfma16(gn_, A + 4*k, WB + 16*hh + 4*k, gn_))
            k += 1
            if r == 9 and cur == 0:
                o("s_waitcnt vmcnt(0)")
                for s in range(4):
                    o(f"ds_read_b128 {vr(A+4*s,4)}, v{AAD+s}")
        if r == 12:
            o(mfma8(gn_, EAR, WC + 2*hh))
            if cur == 0:
                o(f"ds_read_b64 {vr(EAR,2)}, v{V_EAA}")
        o(f"v_rcp_f32 v{g+r}, v{g+r}")
    if prio: o("s_setprio 0")
    if cur == 0:
        for q in range(4):
            o(f"v_lshrrev_b32 v{ADA+q}, 1, v{ADP+q}")
    for j in range(4):
        for q in range(4):
            if j == 0: o(f"v_mul_f32 v{M+q}, v{g+4*q}, v{h+4*q}")
            else: o(f"v_fmac_f32 v{M+q}, v{g+4*q+j}, v{h+4*q+j}")
    for q in range(4):
        o(f"v_cvt_f64_f32 {vr(M64+2*q,2)}, v{M+q}")
    for q in range(4):
        o(f"ds_add_f64 v{ADA+q}, {vr(M64+2*q,2)} offset:{AGG+256*cur}")
    if cur == 0:
        for q in range(4):
            o(f"v_add_u32 v{ADP+q}, v{GNR+q}, v{V_LBP}")
        for j in range(4):
            o(f"v_add_u32 v{SV+j}, v{SV+j}, v{KJ+j}")
        o(f"v_add_u32 v{V_SRCA}, 0x400, v{V_SRCA}")
        o(f"v_add_u32 v{V_GNA}, 0x100, v{V_GNA}")
        o(f"v_add_u32 v{V_EAA}, v{V_EAI}, v{V_EAA}")

def kernel2(cfg):
    o = Asm()
    T = Stamper(o, cfg.get("stamp", 0), 44, 1)
    if cfg.get("dbg", -1) == 1: T.dbgwg = cfg.get("dbgwg", 100); T.dbgback = 0
    o.lab("edge_kernel")
    o("s_cmp_ge_u32 s2, 256")
    o("s_cbranch_scc1 L2_end")
    T(True); T()
    o("s_load_dwordx2 s[4:5], s[0:1], 0")
    o("s_load_dwordx2 s[6:7], s[0:1], 56")
    o("s_load_dwordx2 s[28:29], s[0:1], 72")
    o("v_lshrrev_b32 v1, 6, v0")
    o(f"v_and_b32 v{V_LANE}, 63, v0")
    o("s_and_b32 s30, s2, 7")
    o("s_lshl_b32 s30, s30, 5")
    o("s_lshr_b32 s31, s2, 3")
    o("v_readfirstlane_b32 s3, v1")
    o("s_add_u32 s30, s30, s31")
    for i in range(8):
        o(f"s_mov_b32 s{SOFF+i}, {i*CHB}")
    L = V_LANE
    o(f"v_lshrrev_b32 v2, 4, v{L}")
    o(f"v_and_b32 v3, 15, v{L}")
    o("v_and_b32 v4, 7, v3")
    o("v_lshl_add_u32 v4, v2, 3, v4")
    o("s_lshl_b32 s27, s3, 5")
    o("v_add_u32 v4, s27, v4")
    o("s_lshl_b32 s72, s30, 2")
    o(f"s_add_u32 s72, s72, {WS_DESC}")
    o("v_lshlrev_b32 v4, 10, v4")
    o("s_waitcnt lgkmcnt(0)")
    srd(o, 12, 28, WS_SIZE)
    o(f"buffer_load_dword v{V_DESC}, v4, s[12:15], s72 offen")
    o(f"s_sub_u32 s8, s4, {XSHIFT}")
    o("s_subb_u32 s9, s5, 0")
    o("s_and_b32 s9, s9, 0xffff")
    o(f"s_mov_b32 s10, {N*128+XSHIFT}")
    o("s_mov_b32 s11, 0x00020000")
    srd(o, 16, 6, N * 128)
    o(f"v_lshlrev_b32 v5, 4, v{L}")
    o(f"s_mov_b32 s73, {WS_FRAG+32*1024}")
    o(f"buffer_load_dwordx4 {vr(WC,4)}, v5, s[12:15], s73 offen")
    o("s_lshl_b32 s74, s3, 12")
    o(f"s_add_u32 s75, s74, {STG}")
    o("s_mov_b32 m0, s75")
    o(f"s_add_u32 s73, s74, {WS_FRAG}")
    for j in range(4):
        o(f"buffer_load_dwordx4 v5, s[12:15], s73 offen offset:{1024*j} lds")
    o(f"v_lshrrev_b32 v6, 3, v{L}")
    o(f"v_and_b32 v7, 7, v{L}")
    o(f"v_lshrrev_b32 v1, 5, v{L}")
    o("v_lshlrev_b32 v1, 2, v1")
    o("v_xor_b32 v7, v7, v1")
    for j in range(4):
        o(f"v_xor_b32 v{KJ+j}, {j}, v7")
        o(f"v_lshlrev_b32 v{KJ+j}, 4, v{KJ+j}")
    o("s_and_b32 s76, s3, 3")
    o("s_lshr_b32 s77, s3, 2")
    o("v_xor_b32 v1, s76, v7")
    o("v_lshlrev_b32 v1, 4, v1")
    o("s_mul_i32 s78, s30, 49")
    o("s_lshl_b32 s79, s77, 5")
    o("s_add_u32 s79, s79, s78")
    o("s_add_u32 s79, s79, s76")
    o("s_lshl_b32 s79, s79, 7")
    o(f"s_add_u32 s79, s79, {XSHIFT}")
    o("v_lshl_add_u32 v1, v6, 9, v1")
    o("s_lshl_b32 s80, s3, 10")
    o(f"s_add_u32 s80, s80, {XT}")
    o("s_mov_b32 m0, s80")
    o("v_add_u32 v1, s79, v1")
    o("buffer_load_dwordx4 v1, s[8:11], 0 offen lds")
    o("s_mov_b32 m0, s75")
    for j in range(1, 4):
        o(f"v_subrev_u32 v{KJ+j}, {1024*j}, v{KJ+j}")
    o(f"v_and_b32 v1, 3, v{L}")
    o(f"v_bfe_u32 v2, v{L}, 2, 3")
    o("v_lshl_add_u32 v2, v1, 3, v2")
    o("v_lshlrev_b32 v2, 7, v2")
    o(f"v_bfe_u32 v4, v{L}, 4, 1")
    o("v_lshl_or_b32 v1, v4, 2, v1")
    o(f"v_lshrrev_b32 v4, 5, v{L}")
    o("v_xor_b32 v1, v1, v4")
    for s in range(4):
        o(f"v_xor_b32 v{AAD+s}, {2*s}, v1")
        o(f"v_lshl_add_u32 v{AAD+s}, v{AAD+s}, 4, v2")
    o("s_cmp_lg_u32 s3, 0")
    o("s_cbranch_scc1 L2_nz")
    o("v_mov_b32 v1, 0")
    o(f"v_lshlrev_b32 v2, 2, v{L}")
    o(f"v_add_u32 v2, {CNT}, v2")
    o("ds_write_b32 v2, v1")
    o("ds_write_b32 v2, v1 offset:64")
    o.lab("L2_nz")
    o(f"v_lshrrev_b32 v1, 4, v{L}")
    o("v_lshlrev_b32 v1, 3, v1")
    o("v_add_u32 v1, s27, v1")
    o(f"s_mov_b32 s81, {CHB}")
    o(f"v_mul_lo_u32 v{V_LB}, v1, s81")
    o(f"v_mad_u32_u24 v{V_LB}, v3, 12, v{V_LB}")
    o(f"v_and_b32 v1, 31, v{L}")
    o(f"v_lshlrev_b32 v{V_LBP}, 4, v1")
    o(f"s_mov_b32 s{S_W}, 32")
    o(f"s_mov_b32 s{S_OFF}, 0")
    o(f"s_mov_b32 s{S_FIRST}, 1")
    o("s_mul_i32 s82, s31, 50000")
    o(f"s_add_u32 s82, s82, {XSHIFT}")
    o("v_lshlrev_b32 v7, 4, v0")
    o("s_waitcnt vmcnt(6)")
    T()
    o.lab("L2_pass")
    o(f"v_and_b32 v3, 15, v{L}")
    o(f"v_add_u32 v1, s{S_OFF}, v3")
    o("v_add_u32 v2, 16, v1")
    o(f"s_add_u32 s83, s{S_OFF}, s{S_W}")
    o(f"s_mul_i32 s84, s{S_OFF}, 12")
    o(f"v_add_u32 v6, s84, v{V_LB}")
    o(f"v_lshrrev_b32 v4, 16, v{V_DESC}")
    o("v_cmp_lt_u32 vcc, s83, v4")
    o("v_min_u32 v4, s83, v4")
    o(f"v_and_b32 v5, 0xffff, v{V_DESC}")
    o("s_cmp_lg_u64 vcc, 0")
    o(f"s_cselect_b32 s{S_MORE}, 1, 0")
    for i in range(8):
        o(f"v_mov_b32_dpp v{BS}, v4 row_newbcast:{i} row_mask:0xf bank_mask:0xf")
        o(f"v_add_u32_dpp v{BS+1+(i&1)}, v5, v6 row_newbcast:{i} row_mask:0xf bank_mask:0xf")
        o(f"v_cmp_lt_u32 {sr(MASK+4*i+2,2)}, v2, v{BS}")
        o(f"v_cmpx_lt_u32 {sr(MASK+4*i,2)}, v1, v{BS}")
        o(f"buffer_load_dwordx3 {vr(REC+8*i,3)}, v{BS+1+(i&1)}, s[12:15], s{SOFF+i} offen")
        o(f"s_mov_b64 exec, {sr(MASK+4*i+2,2)}")
        o(f"buffer_load_dwordx3 {vr(REC+8*i+4,3)}, v{BS+1+(i&1)}, s[12:15], s{SOFF+i} offen offset:192")
        o("s_mov_b64 exec, -1")
        if i < 7: o("s_nop 1")
    for i in range(7):
        if i < 6:
            o(f"s_add_u32 s85, s82, {8192*i}")
            o(f"buffer_load_dwordx4 {vr(DUM+4*i,4)}, v7, s[8:11], s85 offen")
        else:
            o(f"s_add_u32 s85, s82, {8192*i}")
            o("v_cmp_gt_u32 vcc, 53, v0")
            o("v_mov_b32 v1, 0x40000000")
            o("s_nop 0")
            o("v_cndmask_b32 v1, v1, v7, vcc")
            o(f"buffer_load_dwordx4 {vr(DUM+4*i,4)}, v1, s[8:11], s85 offen")
    o(f"s_cmp_eq_u32 s{S_FIRST}, 0")
    o("s_cbranch_scc1 L2_ranks")
    o(f"s_mov_b32 s{S_FIRST}, 0")
    T()
    o("s_waitcnt vmcnt(23) lgkmcnt(0)")
    o("s_barrier")
    T()
    o(f"v_lshlrev_b32 v1, 4, v{L}")
    o(f"v_add_u32 v1, {STG}, v1")
    o("s_and_b32 s86, s3, 1")
    o("s_bfe_u32 s87, s3, 0x10001")
    o("s_lshr_b32 s88, s3, 2")
    o("s_lshl_b32 s89, s86, 13")
    o("s_lshl_b32 s90, s88, 12")
    o("s_add_u32 s89, s89, s90")
    o("s_add_u32 s89, s89, 16384")
    o("v_add_u32 v2, s89, v1")
    for s in range(4):
        o(f"ds_read_b128 {vr(BS+4*s,4)}, v2 offset:{1024*s}")
    o("s_lshl_b32 s90, s87, 12")
    o(f"s_add_u32 s90, s90, {XT}")
    for s in range(4):
        o(f"v_add_u32 v3, s90, v{AAD+s}")
        o(f"ds_read_b128 {vr(A+4*s,4)}, v3")
    for f in range(7):
        o(f"ds_read_b128 {vr(WB+4*f,4)}, v1 offset:{1024*f}")
    o("s_waitcnt lgkmcnt(7)")
    for s in range(4):
        o(mfma16(CA, A + 4*s, BS + 4*s, None if s == 0 else CA))
    for f in range(7, 16):
        o(f"ds_read_b128 {vr(WB+4*f,4)}, v1 offset:{1024*f}")
    for s in range(4):
        o(f"v_add_u32 v{AAD+s}, s75, v{AAD+s}")
    o(f"v_lshrrev_b32 v2, 5, v{L}")
    o("v_lshlrev_b32 v2, 2, v2")
    o("s_lshl_b32 s90, s87, 5")
    o("v_add_u32 v2, s90, v2")
    o("s_nop 7")
    o("s_cmp_eq_u32 s86, 1")
    o("s_cbranch_scc1 L2_xu")
    o("s_lshl_b32 s90, s88, 9")
    o(f"v_lshl_add_u32 v2, v2, 10, v{V_LBP}")
    o("v_add_u32 v2, s90, v2")
    o(f"s_mov_b32 s91, {NEG_LOG2E:#x}")
    def pwrite(r):
        t = BS + 4 * (r & 3)
        for c in range(4):
            o(f"v_mul_f32 v{t+c}, s91, v{CA+r}")
        o(f"ds_write_b128 v2, {vr(t,4)} offset:{P4 + (8*(r>>2)+(r&3))*1024}")
    for r in range(8): pwrite(r)
    o("s_cmp_eq_u32 s87, 1")
    o("s_cselect_b32 exec_hi, 0, -1")
    for r in range(8, 10): pwrite(r)
    o("s_mov_b64 exec, -1")
    o("s_cbranch_scc1 L2_pdone")
    for r in range(10, 16): pwrite(r)
    o("s_branch L2_pdone")
    o.lab("L2_xu")
    o("s_lshl_b32 s90, s88, 8")
    o(f"v_lshrrev_b32 v3, 1, v{V_LBP}")
    o("v_lshl_add_u32 v2, v2, 9, v3")
    o("v_add_u32 v2, s90, v2")
    def uwrite(r):
        t = BS + 2 * (r & 7)
        o(f"v_cvt_f64_f32 {vr(t,2)}, v{CA+r}")
        o(f"ds_write_b64 v2, {vr(t,2)} offset:{AGG + (8*(r>>2)+(r&3))*512}")
    for r in range(8): uwrite(r)
    o("s_cmp_eq_u32 s87, 1")
    o("s_cselect_b32 exec_hi, 0, -1")
    for r in range(8, 10): uwrite(r)
    o("s_mov_b64 exec, -1")
    o("s_cbranch_scc1 L2_pdone")
    for r in range(10, 16): uwrite(r)
    o.lab("L2_pdone")
    o("s_waitcnt lgkmcnt(0)")
    o.lab("L2_ranks")
    T()
    o("v_mov_b32 v1, 4")
    o(f"s_cmp_eq_u32 s{S_MORE}, 0")
    o("s_cbranch_scc1 L2_nomore")
    o(f"v_mov_b32 v2, {MORE}")
    o("ds_write_b32 v2, v1")
    o.lab("L2_nomore")
    o(f"v_mov_b32 v2, {CNT}")
    for i in range(16):
        o(f"s_waitcnt vmcnt({7+15-i})")
        o(f"s_mov_b64 exec, {sr(MASK+2*i,2)}")
        o(f"v_add_u32_sdwa v{CA+i}, v{REC+4*i+2}, v2 dst_sel:DWORD dst_unused:UNUSED_PAD src0_sel:BYTE_3 src1_sel:DWORD")
        o("s_nop 0")
        o(f"ds_add_rtn_u32 v{REC+4*i+3}, v{CA+i}, v1")
    o("s_mov_b64 exec, -1")
    o("s_waitcnt lgkmcnt(0)")
    T()
    o("s_barrier")
    T()
    o(f"v_lshl_add_u32 v1, v{L}, 2, v2")
    o("ds_read_b32 v3, v1")
    o(f"ds_read_b32 v4, v2 offset:256")
    o("s_waitcnt lgkmcnt(0)")
    o("v_add_u32 v5, 15, v3")
    o("v_and_b32 v5, -16, v5")
    o("v_mov_b32 v6, v5")
    o(f"v_readfirstlane_b32 s{S_MORE}, v4")
    o("s_nop 0")
    wave_scan(o, 6)
    o("s_nop 0")
    o(f"v_readlane_b32 s{S_TOT}, v6, 63")
    o("v_sub_u32 v6, v6, v5")
    o(f"s_cmp_gt_u32 s{S_TOT}, {(CAP-32)*4}")
    o("s_cbranch_scc0 L2_fits")
    o.c("window too large for LDS: clear the counters and redo with the small window")
    o("s_barrier")
    o("v_mov_b32 v3, 0")
    o("ds_write_b32 v1, v3")
    o("ds_write_b32 v2, v3 offset:256")
    o(f"s_mov_b32 s{S_W}, {WSMALL}")
    o("s_waitcnt vmcnt(0) lgkmcnt(0)")
    o("s_barrier")
    o("s_branch L2_pass")
    o.lab("L2_fits")
    o(f"v_add_u32 v4, {SRC}, v6")
    for i in range(16):
        o(f"ds_bpermute_b32 v{BS+i}, v{CA+i}, v4")
    o(f"s_add_u32 s{S_NT}, s{S_TOT}, 127")
    o(f"s_lshr_b32 s{S_NT}, s{S_NT}, 7")
    o(f"s_mov_b32 s92, {EA-2*SRC}")
    o("s_waitcnt lgkmcnt(0)")
    for i in range(16):
        o(f"s_mov_b64 exec, {sr(MASK+2*i,2)}")
        o(f"v_add_u32 v{BS+i}, v{BS+i}, v{REC+4*i+3}")
        o(f"v_and_b32 v{REC+4*i+2}, 0xffffff, v{REC+4*i+2}")
        o(f"v_lshl_add_u32 v{REC+4*i+3}, v{BS+i}, 1, s92")
        o(f"ds_write_b32 v{BS+i}, v{REC+4*i+2}")
        o(f"ds_write_b64 v{REC+4*i+3}, {vr(REC+4*i,2)}")
    o("s_mov_b64 exec, -1")
    o(f"v_mov_b32 v{BS}, {OOBSRC:#x}")
    o(f"v_mov_b32 v{BS+2}, 0")
    o(f"v_mov_b32 v{BS+3}, 0")
    o("s_lshl_b32 s93, s3, 2")
    o("v_add_u32 v3, s93, v3")
    o("v_cmp_lt_u32 vcc, v3, v5")
    o("v_add_u32 v3, v3, v4")
    o("v_lshl_add_u32 v4, v3, 1, s92")
    o("s_and_saveexec_b64 s[94:95], vcc")
    o(f"ds_write_b32 v3, v{BS}")
    o(f"ds_write_b64 v4, {vr(BS+2,2)}")
    o("s_mov_b64 exec, -1")
    o(f"v_lshl_add_u32 v3, v{L}, 2, s{S_TOT}")
    o(f"s_lshl_b32 s93, s{S_NT}, 7")
    o("v_cmp_gt_u32 vcc, s93, v3")
    o(f"v_add_u32 v3, {SRC}, v3")
    o("v_lshl_add_u32 v4, v3, 1, s92")
    o("s_and_saveexec_b64 s[94:95], vcc")
    o(f"ds_write_b32 v3, v{BS}")
    o(f"ds_write_b64 v4, {vr(BS+2,2)}")
    o("s_mov_b64 exec, -1")
    o(f"s_lshr_b32 s96, s{S_TOT}, 2")
    o(f"v_lshl_add_u32 v3, v{L}, 2, s96")
    o("s_lshr_b32 s93, s93, 2")
    o("v_cmp_gt_u32 vcc, s93, v3")
    o(f"v_add_u32 v3, {GN}, v3")
    o(f"v_mov_b32 v4, {49*1024}")
    o("s_and_saveexec_b64 s[94:95], vcc")
    o("ds_write_b32 v3, v4")
    o("s_mov_b64 exec, -1")
    o("v_lshrrev_b32 v5, 2, v5")
    o("v_lshrrev_b32 v6, 2, v6")
    o(f"v_add_u32 v6, {GN}, v6")
    o(f"v_lshlrev_b32 v4, 10, v{L}")
    o("s_lshl_b32 s93, s3, 2")
    o.lab("L2_gloop")
    o("v_cmp_lt_u32 vcc, s93, v5")
    o("v_add_u32 v3, s93, v6")
    o("s_and_saveexec_b64 s[94:95], vcc")
    o("s_cbranch_execz L2_gdone")
    o("ds_write_b32 v3, v4")
    o("s_mov_b64 exec, -1")
    o("s_add_u32 s93, s93, 32")
    o("s_branch L2_gloop")
    o.lab("L2_gdone")
    o("s_mov_b64 exec, -1")
    o("s_waitcnt lgkmcnt(0)")
    T()
    o("s_barrier")
    T()
    o("s_cmp_lg_u32 s3, 0")
    o("s_cbranch_scc1 L2_nz2")
    o("v_mov_b32 v3, 0")
    o("ds_write_b32 v1, v3")
    o("ds_write_b32 v2, v3 offset:256")
    o.lab("L2_nz2")
    o(f"s_mov_b32 s{S_T}, s3")
    o(f"s_cmp_ge_u32 s{S_T}, s{S_NT}")
    o("s_cbranch_scc1 L2_done")
    o(f"v_lshrrev_b32 v1, 3, v{L}")
    o("v_lshlrev_b32 v1, 4, v1")
    o("s_lshl_b32 s93, s3, 7")
    o(f"s_add_u32 s93, s93, {SRC}")
    o(f"v_add_u32 v{V_SRCA}, s93, v1")
    o(f"ds_read_b128 {vr(SV,4)}, v{V_SRCA}")
    o(f"v_lshrrev_b32 v1, 5, v{L}")
    o("s_lshl_b32 s93, s3, 5")
    o(f"s_add_u32 s93, s93, {GN}")
    o(f"v_lshl_add_u32 v{V_GNA}, v1, 2, s93")
    o(f"ds_read2_b32 {vr(GNR,2)}, v{V_GNA} offset0:0 offset1:2")
    o(f"ds_read2_b32 {vr(GNR+2,2)}, v{V_GNA} offset0:4 offset1:6")
    o("s_lshl_b32 s93, s3, 8")
    o(f"s_add_u32 s93, s93, {EA}")
    o(f"v_lshl_add_u32 v{V_EAA}, v{L}, 3, s93")
    o(f"v_mov_b32 v2, {ZERO8}")
    o(f"v_mov_b32 v{V_EAI}, 0x800")
    o(f"v_cmp_gt_u32 vcc, 32, v{L}")
    o("s_nop 1")
    o(f"v_cndmask_b32 v{V_EAA}, v2, v{V_EAA}, vcc")
    o(f"v_cndmask_b32 v{V_EAI}, 0, v{V_EAI}, vcc")
    o(f"ds_read_b64 {vr(EAR,2)}, v{V_EAA}")
    o("s_waitcnt lgkmcnt(3)")
    for j in range(4):
        o(f"v_add_u32 v{SV+j}, v{SV+j}, v{KJ+j}")
    dma_tile(o)
    o(f"ds_read_b128 {vr(SV,4)}, v{V_SRCA} offset:1024")
    o(f"v_add_u32 v{V_SRCA}, 0x800, v{V_SRCA}")
    o(f"v_add_u32 v{V_GNA}, 0x100, v{V_GNA}")
    o(f"v_add_u32 v{V_EAA}, v{V_EAI}, v{V_EAA}")
    o("s_waitcnt lgkmcnt(1)")
    for q in range(4):
        o(f"v_add_u32 v{ADP+q}, v{GNR+q}, v{V_LBP}")
    for q in range(4):
        o(f"ds_read_b128 {vr(G[0]+4*q,4)}, v{ADP+q} offset:{P4}")
    o("s_waitcnt vmcnt(0)")
    for s in range(4):
        o(f"ds_read_b128 {vr(A+4*s,4)}, v{AAD+s}")
    o("s_waitcnt lgkmcnt(0)")
    for j in range(4):
        o(f"v_add_u32 v{SV+j}, v{SV+j}, v{KJ+j}")
    o(f"s_add_u32 s27, s{S_T}, 8")
    o(f"s_cmp_ge_u32 s27, s{S_NT}")
    o("s_cbranch_scc1 L2_nodma0")
    dma_tile(o)
    o.lab("L2_nodma0")
    for k in range(4):
        o(mfma16(G[0], A + 4*k, WB + 4*k, G[0]))
    o(mfma8(G[0], EAR, WC))
    for k in range(4):
        o(mfma16(H[0], A + 4*k, WV + 4*k, None if k == 0 else H[0]))
    o("s_nop 7")
    T(); T(True)
    o(".p2align 3")
    o.lab("L2_loop")
    stage(o, 0, cfg)
    stage(o, 1, cfg)
    o(f"s_add_u32 s{S_T}, s{S_T}, 8")
    o(f"s_cmp_lt_u32 s{S_T}, s{S_NT}")
    o("s_cbranch_scc1 L2_loop")
    o.lab("L2_done")
    o("s_waitcnt vmcnt(0) lgkmcnt(0)")
    T(); T(True)
    o("s_barrier")
    o(f"s_cmp_eq_u32 s{S_MORE}, 0")
    o("s_cbranch_scc1 L2_out")
    o(f"s_add_u32 s{S_OFF}, s{S_OFF}, s{S_W}")
    o("s_nop 15")
    o("s_branch L2_pass")
    o.lab("L2_out")
    o("v_cmp_gt_u32 vcc, 392, v0")
    o("s_and_saveexec_b64 s[94:95], vcc")
    o("s_cbranch_execz L2_fin")
    o("v_lshlrev_b32 v1, 6, v0")
    for c in range(4):
        o(f"ds_read_b128 {vr(80+4*c,4)}, v1 offset:{AGG+16*c}")
    o("s_lshl_b32 s93, s78, 7")
    o("v_add_u32 v2, s93, v7")
    o("s_waitcnt lgkmcnt(0)")
    for r in range(8): o(f"v_cvt_f32_f64 v{64+r}, {vr(80+2*r,2)}")
    for r in range(8): o(f"v_mul_f32 v{72+r}, {NEG_LOG2E:#x}, v{64+r}")
    for r in range(8): o(f"v_exp_f32 v{72+r}, v{72+r}")
    for r in range(8): o(f"v_add_f32 v{72+r}, 1.0, v{72+r}")
    for r in range(8): o(f"v_rcp_f32 v{72+r}, v{72+r}")
    for r in range(8): o(f"v_mul_f32 v{64+r}, v{64+r}, v{72+r}")
    for r in range(4): o(f"v_cvt_pk_bf16_f32 v{72+r}, v{64+2*r}, v{65+2*r}")
    o("buffer_store_dwordx4 v[72:75], v2, s[16:19], 0 offen")
    o.lab("L2_fin")
    if T.on:
        o("s_waitcnt vmcnt(0)"); T(); T(True); T.dump(12, 3, 1, V_LANE)
    o.lab("L2_end")
    o("s_endpgm")
    return o.text()

HEADER = """; Edge-gated MPNN layer: out = silu(x@U + sum over edges with dst=i of sigmoid(x[dst]@A + x[src]@B + e@C) * (x[src]@V))
; @launch kernel=bin_kernel grid=(256,1,1) block=(1024,1,1) lds={l1}
; @launch kernel=edge_kernel grid=(256,1,1) block=(512,1,1) lds={l2}
.amdgcn_target "amdgcn-amd-amdhsa--gfx950"
.text
"""
def kd(name, vg, sg):
    return f""".amdhsa_kernel {name}
  .amdhsa_next_free_vgpr {vg}
  .amdhsa_next_free_sgpr {sg}
  .amdhsa_accum_offset {(vg+3)//4*4}
  .amdhsa_group_segment_fixed_size 0
  .amdhsa_kernarg_size 80
  .amdhsa_user_sgpr_count 2
  .amdhsa_user_sgpr_kernarg_segment_ptr 1
  .amdhsa_system_sgpr_workgroup_id_x 1
  .amdhsa_float_denorm_mode_32 3
.end_amdhsa_kernel
"""
def build(cfg):
    s = HEADER.format(l1=K1_LDS, l2=K2_LDS)
    nn = cfg.get("nops", 0)
    if nn:
        line = "; @launch kernel=nop_kernel grid=(1,1,1) block=(64,1,1) lds=0\n"
        if cfg.get("nopfirst", 0): s = s.replace("; @launch kernel=bin_kernel", line * nn + "; @launch kernel=bin_kernel")
        else: s = s.replace(".amdgcn_target", line * nn + ".amdgcn_target")
        s += ".globl nop_kernel\n.p2align 8\n.type nop_kernel,@function\nnop_kernel:\n    s_endpgm\n"
    for name, fn in (("bin_kernel", kernel1), ("edge_kernel", kernel2)):
        s += f".globl {name}\n.p2align 8\n.type {name},@function\n" + fn(cfg)
    s += '.section .rodata,"a"\n.p2align 6\n' + kd("bin_kernel", 64, 100) + ".p2align 6\n" + kd("edge_kernel", 256, 100)
    if nn: s += ".p2align 6\n" + kd("nop_kernel", 8, 16)
    return s

if __name__ == "__main__":
    cfg = {}
    out = sys.argv[1]
    for a in sys.argv[2:]:
        k, v = a.split("=")
        cfg[k] = int(v) if v.lstrip("-").isdigit() else v
    open(out, "w").write(build(cfg))
```

```python
import sys
from gen import Asm, Stamper, vr, sr, srd, wave_scan, kd, mfma16

N = 12500; E = 800000; NPB = 49; CH = 3128; CHB = CH * 12
WS_DESC = 0x00A00000; WS_FRAG = 0x00A80000; WS_SIZE = 0x00C00000
WS_T = 0x00C00000; T_BYTES = 256 * NPB * 256
NULLROW = N * 256
XSHIFT = 4096
NEG_LOG2E = 0xBFB8AA3B
MAGIC49 = 21400

def swz_consts(o, L, kj, t0, t1):
    o(f"v_lshrrev_b32 v{t0}, 3, v{L}")
    o(f"v_and_b32 v{t1}, 7, v{L}")
    o(f"v_lshrrev_b32 v{kj}, 5, v{L}")
    o(f"v_lshlrev_b32 v{kj}, 2, v{kj}")
    o(f"v_xor_b32 v{t1}, v{t1}, v{kj}")
def aread_addrs(o, L, aad, t0, t1, t2):
    o(f"v_and_b32 v{t0}, 3, v{L}")
    o(f"v_bfe_u32 v{t1}, v{L}, 2, 3")
    o(f"v_lshl_add_u32 v{t1}, v{t0}, 3, v{t1}")
    o(f"v_lshlrev_b32 v{t1}, 7, v{t1}")
    o(f"v_bfe_u32 v{t2}, v{L}, 4, 1")
    o(f"v_lshl_or_b32 v{t0}, v{t2}, 2, v{t0}")
    o(f"v_lshrrev_b32 v{t2}, 5, v{L}")
    o(f"v_xor_b32 v{t0}, v{t0}, v{t2}")
    for s in range(4):
        o(f"v_xor_b32 v{aad+s}, {2*s}, v{t0}")
        o(f"v_lshl_add_u32 v{aad+s}, v{aad+s}, 4, v{t1}")

K1_HIST = 0; K1_STAGE = 1024; K1_TST = 38912; K1_PB = K1_TST + 16384; K1_TW = K1_PB + 14 * 1024
K1_LDS = K1_TW + 32768
assert K1_STAGE + CHB <= K1_TST
def kernel1(cfg):
    o = Asm()
    ST = cfg.get("st1", "sc0 sc1"); LD = cfg.get("ld1", "nt")
    T = Stamper(o, cfg.get("stamp", 0), 36, 0)
    if cfg.get("dbg", -1) == 0: T.dbgwg = cfg.get("dbgwg", 100); T.dbgback = -512
    o.lab("bin_kernel")
    o("s_cmp_ge_u32 s2, 256")
    o("s_cbranch_scc1 L1_end")
    T(True); T()
    o("s_load_dwordx4 s[40:43], s[0:1], 16")
    o("s_load_dwordx4 s[36:39], s[0:1], 0")
    o("s_load_dwordx4 s[44:47], s[0:1], 32")
    o("s_load_dwordx2 s[48:49], s[0:1], 48")
    o("s_load_dwordx2 s[50:51], s[0:1], 72")
    o("v_lshrrev_b32 v1, 6, v0")
    o("s_movk_i32 s4, 782")
    o("s_cmp_eq_u32 s2, 255")
    o("s_cselect_b32 s4, 590, s4")
    o("v_readfirstlane_b32 s3, v1")
    o("s_mul_i32 s5, s2, 12512")
    o("v_subrev_u32 v4, 192, v0")
    o("v_lshl_add_u32 v2, v4, 4, s5")
    o("v_lshlrev_b32 v3, 1, v2")
    o("v_cmp_gt_u32 s[52:53], s4, v4")
    o("v_and_b32 v1, 63, v0")
    o(f"s_mov_b32 s10, {E*4}"); o("s_mov_b32 s11, 0x00020000")
    o(f"s_mov_b32 s14, {E*4}"); o("s_mov_b32 s15, 0x00020000")
    o(f"s_mov_b32 s18, {E*8}"); o("s_mov_b32 s19, 0x00020000")
    o(f"s_mov_b32 s22, {WS_T+T_BYTES}"); o("s_mov_b32 s23, 0x00020000")
    o("s_waitcnt lgkmcnt(0)")
    for d, p in ((8, 42), (12, 40), (16, 38), (20, 50)):
        o(f"s_mov_b32 s{d}, s{p}"); o(f"s_and_b32 s{d+1}, s{p+1}, 0xffff")
    o("s_mov_b64 exec, s[52:53]")
    o("s_cbranch_execz L1_noload")
    o(f"buffer_load_dwordx4 v[4:7], v2, s[8:11], 0 offen {LD}")
    o(f"buffer_load_dwordx4 v[8:11], v2, s[12:15], 0 offen {LD}")
    o(f"buffer_load_dwordx4 v[12:15], v3, s[16:19], 0 offen {LD}")
    o(f"buffer_load_dwordx4 v[16:19], v3, s[16:19], 0 offen offset:16 {LD}")
    o.lab("L1_noload")
    o("s_mov_b64 exec, -1")
    o("s_cmp_gt_u32 s3, 2")
    o("s_cbranch_scc1 L1_barA")
    o("s_cmp_eq_u32 s3, 2")
    o("s_cbranch_scc1 L1_w13")
    o.c("table waves: LDS-DMA of 64 x rows and one channel half of B and V")
    o(f"s_sub_u32 s24, s36, {XSHIFT}"); o("s_subb_u32 s25, s37, 0"); o("s_and_b32 s25, s25, 0xffff")
    o(f"s_mov_b32 s26, {N*128+XSHIFT}"); o("s_mov_b32 s27, 0x00020000")
    srd(o, 28, 48, 132 * 128)
    srd(o, 32, 46, 64 * 128)
    o("s_mov_b32 s6, s3")
    o("s_lshl_b32 s7, s6, 14")
    o(f"s_add_u32 s7, s7, {K1_TW}")
    swz_consts(o, 1, 20, 24, 25)
    o("s_mul_i32 s54, s2, 49")
    o("s_lshl_b32 s54, s54, 7")
    o(f"s_add_u32 s54, s54, {XSHIFT}")
    o("v_lshl_add_u32 v24, v24, 9, s54")
    for j in range(4):
        o(f"v_xor_b32 v{20+j}, {j}, v25")
        o(f"v_lshl_add_u32 v{20+j}, v{20+j}, 4, v24")
        if j: o(f"v_subrev_u32 v{20+j}, {896*j}, v{20+j}")
    o("s_mov_b32 m0, s7")
    o("s_add_u32 s55, s7, 4096")
    for j in range(4):
        o(f"buffer_load_dwordx4 v{20+j}, s[24:27], 0 offen offset:{1024*j} {cfg.get('ldx', 'nt')} lds")
    for j in range(4):
        o(f"v_add_u32 v{20+j}, 0x1000, v{20+j}")
    o("s_mov_b32 m0, s55")
    o("s_add_u32 s55, s7, 8192")
    for j in range(4):
        o(f"buffer_load_dwordx4 v{20+j}, s[24:27], 0 offen offset:{1024*j} {cfg.get('ldx', 'nt')} lds")
    o("v_lshrrev_b32 v24, 2, v1")
    o("v_and_b32 v25, 3, v1")
    o("v_lshlrev_b32 v24, 7, v24")
    o("v_lshl_add_u32 v24, v25, 4, v24")
    o("s_lshl_b32 s54, s6, 6")
    o("v_add_u32 v24, s54, v24")
    o("s_mov_b32 m0, s55")
    o("s_add_u32 s55, s7, 12288")
    for i in range(4):
        o(f"s_movk_i32 s54, {8192+1024*i}")
        o(f"buffer_load_dwordx4 v24, s[28:31], s54 offen offset:{1024*i} {cfg.get('ldw', 'nt')} lds")
    o("s_mov_b32 m0, s55")
    for i in range(4):
        o(f"s_movk_i32 s54, {1024*i}")
        o(f"buffer_load_dwordx4 v24, s[32:35], s54 offen offset:{1024*i} {cfg.get('ldw', 'nt')} lds")
    aread_addrs(o, 1, 20, 24, 25, 26)
    for s in range(4):
        o(f"v_add_u32 v{20+s}, s7, v{20+s}")
    o("v_and_b32 v24, 31, v1")
    o("v_lshrrev_b32 v25, 5, v1")
    o("v_lshlrev_b32 v26, 9, v25")
    o("v_lshl_add_u32 v26, v24, 1, v26")
    o("v_add_u32 v26, s7, v26")
    o("v_lshlrev_b32 v27, 10, v25")
    o("v_lshl_add_u32 v27, v24, 2, v27")
    o("s_lshl_b32 s54, s6, 7")
    o("v_add_u32 v27, s54, v27")
    o("s_barrier")
    o("s_waitcnt vmcnt(0)")
    T()
    for m in range(2):
        for s in range(4):
            for j in range(8):
                op = "ds_read_u16_d16_hi" if j & 1 else "ds_read_u16"
                o(f"{op} v{64+32*(j&1)+16*m+4*s+(j>>1)}, v26 offset:{8192+4096*m+1024*s+64*j}")
    for s in range(4):
        o(f"ds_read_b128 {vr(40+4*s,4)}, v{20+s}")
    o("s_mov_b32 s54, 0xffff0000")
    o("s_waitcnt lgkmcnt(0)")
    for i in range(32):
        o(f"v_and_or_b32 v{64+i}, v{96+i}, s54, v{64+i}")
    T()
    o("s_setprio 2")
    o(f"s_mov_b32 s54, {NEG_LOG2E:#x}")
    o("s_mov_b32 s55, 0x7fff0000")
    o("s_brev_b32 s56, 1")
    for rt in range(2):
        for s in range(4):
            o(mfma16(96, 40+4*s, 64+4*s, None if s == 0 else 96))
        for s in range(4):
            o(mfma16(112, 40+4*s, 80+4*s, None if s == 0 else 112))
        if rt == 0:
            for s in range(4):
                o(f"ds_read_b128 {vr(40+4*s,4)}, v{20+s} offset:4096")
            o("s_nop 3")
        else:
            o("s_nop 7")
        for r in range(16):
            o(f"v_mul_f32 v{96+r}, s54, v{96+r}")
        for r in range(0, 16, 2):
            o(f"v_cvt_pk_bf16_f32 v{96+r}, v{96+r}, v{97+r}")
            o(f"v_lshrrev_b32 v{97+r}, 16, v{96+r}")
            o(f"v_and_b32 v{96+r}, 0xffff, v{96+r}")
        for r in range(16):
            t = 56 + (r & 3)
            o(f"v_and_b32 v{t}, 0x7fffffff, v{112+r}")
            o(f"v_sub_u32 v{t}, v{t}, v{96+r}")
            o(f"v_add_u32 v{t}, 0x8000, v{t}")
            o(f"v_max_i32 v{t}, 0, v{t}")
            o(f"v_and_or_b32 v{t}, v{t}, s55, v{96+r}")
            o(f"v_and_or_b32 v{t}, v{112+r}, s56, v{t}")
            o(f"ds_write_b32 v27, v{t} offset:{K1_TST + (32*rt + 8*(r>>2) + (r&3))*256}")
        o("s_waitcnt lgkmcnt(0)")
    T()
    o("s_setprio 0")
    o("s_barrier")
    o("s_branch L1_barD")
    o.lab("L1_w13")
    if cfg.get("touch", 1):
        o.c("touch the workspace pages this workgroup stores to later (address translation only, data unused)")
        o(f"s_mul_i32 s54, s2, {CHB}")
        o(f"s_mul_i32 s55, s2, {NPB*256}")
        o(f"s_add_u32 s55, s55, {WS_T}")
        o(f"s_mov_b32 s56, {WS_DESC}")
        o("v_mov_b32 v60, 0")
        for sreg in (54, 55, 56):
            o(f"buffer_load_dword v61, v60, s[20:23], s{sreg} offen")
        o(f"s_add_u32 s54, s54, {CHB-4}")
        o("buffer_load_dword v61, v60, s[20:23], s54 offen")
    for i in range(4): o(f"v_mov_b32 v{32+i}, 0")
    o("v_lshlrev_b32 v21, 4, v1")
    o(f"ds_write_b128 v21, v[32:35] offset:{K1_HIST}")
    o("s_cmp_ge_u32 s2, 17")
    o("s_cbranch_scc1 L1_w13a")
    o("s_cmp_lt_u32 s2, 8")
    o("s_cselect_b32 s28, s48, s44")
    o("s_cselect_b32 s29, s49, s45")
    o("s_cmp_eq_u32 s2, 16")
    o("s_cselect_b32 s28, s48, s28")
    o("s_cselect_b32 s29, s49, s29")
    o("s_and_b32 s29, s29, 0xffff")
    o("s_bitcmp1_b32 s2, 3")
    o("s_movk_i32 s30, 16896")
    o("s_cselect_b32 s30, 8192, s30")
    o("s_mov_b32 s31, 0x00020000")
    o("s_cmp_eq_u32 s2, 16")
    o("s_cbranch_scc1 L1_fragC")
    o("s_and_b32 s54, s2, 3")
    o("s_lshl_b32 s54, s54, 11")
    o("s_bfe_u32 s55, s2, 0x10002")
    o("s_lshl_b32 s55, s55, 6")
    o("s_add_u32 s54, s54, s55")
    o("v_and_b32 v22, 31, v1")
    o("v_lshrrev_b32 v23, 5, v1")
    o("v_lshlrev_b32 v23, 10, v23")
    o("v_lshl_add_u32 v22, v22, 1, v23")
    o("v_add_u32 v22, s54, v22")
    for j in range(8):
        o(f"buffer_load_ushort v{40+4*(j&1)+(j>>1)}, v22, s[28:31], 0 offen offset:{128*j}")
    o("s_lshl_b32 s55, s2, 10")
    o(f"s_add_u32 s55, s55, {WS_FRAG}")
    o("s_waitcnt lgkmcnt(0)")
    o("s_barrier")
    o("s_waitcnt vmcnt(0)")
    for j in range(4): o(f"v_lshl_or_b32 v{40+j}, v{44+j}, 16, v{40+j}")
    o(f"buffer_store_dwordx4 v[40:43], v21, s[20:23], s55 offen {ST}")
    o("s_branch L1_barB")
    o.lab("L1_fragC")
    o("v_lshlrev_b32 v22, 1, v1")
    o("v_add_u32 v22, 0x4000, v22")
    for j in range(4):
        o(f"buffer_load_ushort v{40+j}, v22, s[28:31], 0 offen offset:{128*j}")
    o(f"s_mov_b32 s55, {WS_FRAG+16*1024}")
    o("v_lshlrev_b32 v22, 3, v1")
    o("s_waitcnt lgkmcnt(0)")
    o("s_barrier")
    o("s_waitcnt vmcnt(0)")
    for j in range(4): o(f"v_lshlrev_b32 v{40+j}, 16, v{40+j}")
    for j in range(4): o(f"v_mul_f32 v{40+j}, {NEG_LOG2E:#x}, v{40+j}")
    o("v_cvt_pk_bf16_f32 v40, v40, v41")
    o("v_cvt_pk_bf16_f32 v41, v42, v43")
    o(f"buffer_store_dwordx2 v[40:41], v22, s[20:23], s55 offen {ST}")
    o("s_branch L1_barB")
    o.lab("L1_w13a")
    o("s_waitcnt lgkmcnt(0)")
    o.lab("L1_barA")
    T()
    o("s_barrier")
    o("s_mov_b64 exec, s[52:53]")
    o("s_cbranch_execz L1_histdone")
    o(f"s_movk_i32 s56, {MAGIC49}")
    o("v_mov_b32 v20, 1")
    o("s_waitcnt vmcnt(3)")
    T()
    for i in range(4): o(f"v_mul_u32_u24 v{24+i}, s56, v{4+i}")
    for i in range(4): o(f"v_lshrrev_b32 v{24+i}, 20, v{24+i}")
    for i in range(4):
        o(f"v_lshlrev_b32 v{28+i}, 2, v{24+i}")
        o(f"ds_add_rtn_u32 v{32+i}, v{28+i}, v20 offset:{K1_HIST}")
    for i in range(4): o(f"v_mul_u32_u24 v{24+i}, 49, v{24+i}")
    for i in range(4): o(f"v_sub_u32 v{4+i}, v{4+i}, v{24+i}")
    for i in range(4): o(f"v_lshlrev_b32 v{4+i}, 26, v{4+i}")
    o("s_waitcnt vmcnt(2)")
    for i in range(4): o(f"v_lshl_or_b32 v{8+i}, v{8+i}, 8, v{4+i}")
    o("s_waitcnt lgkmcnt(0)")
    o.lab("L1_histdone")
    o("s_mov_b64 exec, -1")
    o.lab("L1_barB")
    T()
    o("s_barrier")
    T()
    o.c("every wave scans the 256 bucket counts for itself")
    o("v_lshlrev_b32 v21, 4, v1")
    o(f"ds_read_b128 v[40:43], v21 offset:{K1_HIST}")
    o("s_sub_u32 s57, s3, 2")
    o("s_lshl_b32 s57, s57, 10")
    o("v_add_u32 v22, s57, v21")
    for i in range(4): o(f"v_add_u32 v{28+i}, s57, v{28+i}")
    o("s_waitcnt lgkmcnt(0)")
    o("v_add_u32 v45, v40, v41")
    o("v_add_u32 v46, v45, v42")
    o("v_add_u32 v47, v46, v43")
    o("v_mov_b32 v48, v47")
    o("s_nop 1")
    wave_scan(o, 48)
    o("v_sub_u32 v48, v48, v47")
    o("v_add_u32 v49, v48, v40")
    o("v_add_u32 v50, v48, v45")
    o("v_add_u32 v51, v48, v46")
    for j in range(4): o(f"v_mul_u32_u24 v{48+j}, 12, v{48+j}")
    o(f"ds_write_b128 v22, v[48:51] offset:{K1_PB}")
    o("s_cmp_lg_u32 s3, 2")
    o("s_cbranch_scc1 L1_scat")
    for j in range(4): o(f"v_lshl_or_b32 v{40+j}, v{40+j}, 16, v{48+j}")
    o("s_lshl_b32 s55, s2, 10")
    o(f"s_add_u32 s55, s55, {WS_DESC}")
    o(f"buffer_store_dwordx4 v[40:43], v21, s[20:23], s55 offen {ST}")
    o.lab("L1_scat")
    o("s_mov_b64 exec, s[52:53]")
    o("s_cbranch_execz L1_scatdone")
    for i in range(4): o(f"ds_read_b32 v{24+i}, v{28+i} offset:{K1_PB}")
    o("s_waitcnt lgkmcnt(0)")
    for i in range(4): o(f"v_mad_u32_u24 v{24+i}, v{32+i}, 12, v{24+i}")
    for i in range(4): o(f"ds_write_b32 v{24+i}, v{8+i} offset:{K1_STAGE+8}")
    for i in range(4): o(f"v_add_u32 v{24+i}, {K1_STAGE}, v{24+i}")
    o("s_waitcnt vmcnt(0)")
    T()
    for i in range(4): o(f"ds_write2_b32 v{24+i}, v{12+2*i}, v{13+2*i} offset0:0 offset1:1")
    o.lab("L1_scatdone")
    o("s_mov_b64 exec, -1")
    o("s_waitcnt lgkmcnt(0)")
    o.lab("L1_barD")
    o("s_barrier")
    T()
    o("v_lshlrev_b32 v20, 4, v0")
    o(f"s_mul_i32 s55, s2, {CHB}")
    o(f"s_mul_i32 s56, s2, {NPB*256}")
    o(f"s_add_u32 s56, s56, {WS_T}")
    o(f"ds_read_b128 v[24:27], v20 offset:{K1_STAGE}")
    o(f"ds_read_b128 v[28:31], v20 offset:{K1_STAGE+16384}")
    o(f"ds_read_b128 v[40:43], v20 offset:{K1_TST}")
    o(f"ds_read_b128 v[32:35], v20 offset:{K1_STAGE+32768}")
    o("v_add_u32 v21, 16384, v20")
    o("v_add_u32 v22, 32768, v20")
    o("v_cmp_gt_u32 vcc, 784, v0")
    o("s_movk_i32 s57, 298")
    o("v_cmp_gt_u32 s[60:61], s57, v0")
    o("s_waitcnt lgkmcnt(3)")
    o(f"buffer_store_dwordx4 v[24:27], v20, s[20:23], s55 offen {ST}")
    o("s_waitcnt lgkmcnt(2)")
    o(f"buffer_store_dwordx4 v[28:31], v21, s[20:23], s55 offen {ST}")
    o("s_mov_b64 exec, vcc")
    o("s_cbranch_execz L1_fin")
    o("s_waitcnt lgkmcnt(1)")
    o(f"buffer_store_dwordx4 v[40:43], v20, s[20:23], s56 offen {ST}")
    o("s_mov_b64 exec, s[60:61]")
    o("s_cbranch_execz L1_fin")
    o("s_waitcnt lgkmcnt(0)")
    o(f"buffer_store_dwordx4 v[32:35], v22, s[20:23], s55 offen {ST}")
    o.lab("L1_fin")
    if T.on:
        T(); o("s_waitcnt vmcnt(0)"); T(); T(True); T.dump(20, 3, 40, 1)
    o.lab("L1_end")
    o("s_endpgm")
    return o.text()

CAP = 4096
PT = 0; AGG = 13312; SRC = 38912; EA = SRC + CAP * 4 + 256; CNT = EA + CAP * 8 + 512
MORE = CNT + 256; FR = 90112; XT = FR + 16384; K2_LDS = XT + 8192
assert CNT % 256 == 0 and CNT + 320 <= FR and EA % 8 == 0
WSMALL = (CAP - 4 * NPB - 15) // 256

R = [64, 80, 96, 112]; G = [32, 48]
EAR = 30; CW = 28; SELA = 26; SELB = 24; PC = 20; PN = 19; ACC = 18; F64 = 16
V_SA = 15; V_EAA = 14; V_PA = 13; V_FA = 12; V_LANE = 10; V_DESC = 9; V_LB = 8; V_T16 = 7
REC = 64; CA = 96; BS = 104; DUM = 112; AAD = 20; PA_ = 32; PB_ = 48; PD = 96
S_W = 20; S_OFF = 21; S_REM = 22; S_FIRST = 24; S_MORE = 25; S_TOT = 26; MK = 76
MASK = 32; SOFF = 64

def m4(d, a, b, c, extra=""):
    return f"v_mfma_f32_4x4x4_16b_bf16 {vr(d,4)}, {vr(a,2)}, {vr(b,2)}, {vr(c,4)}{extra}"

def pswitch(o, lab, back):
    o.lab(lab)
    o("s_waitcnt lgkmcnt(0)")
    for c in range(4): o(f"v_mov_b32 v{PC+c}, v{PN}")
    o(f"v_add_u32 v{V_PA}, 0x100, v{V_PA}")
    o(f"ds_read_b32 v{PN}, v{V_PA} offset:{PT}")
    o(f"s_branch {back}")

def flush(o):
    o(f"v_cvt_f64_f32 {vr(F64,2)}, v{ACC}")
    o(f"ds_add_f64 v{V_FA}, {vr(F64,2)} offset:{AGG}")

def stage(o, tail, u, cfg):
    gc, gn = G[u & 1], G[(u + 1) & 1]
    rc, rn, rl = R[u], R[(u + 1) & 3], R[(u + 3) & 3]
    un = (u + 1) & 3
    prio = cfg.get("prio", 1)
    for q in range(4):
        o(f"ds_read_b128 {vr(rl+4*q,4)}, v{V_SA} offset:{SRC + (u+3)*64 + 16*q}")
    o(f"s_cmp_gt_u32 s{S_REM}, 2")
    o(f"s_cbranch_scc0 L2_tw{u}")
    o.lab(f"L2_tb{u}")
    tail.lab(f"L2_tw{u}")
    tail("s_waitcnt vmcnt(0)")
    tail(f"s_branch L2_tb{u}")
    o(f"s_and_b32 s27, s{MK}, 0xf0")
    if prio: o("s_setprio 1")
    o(f"s_cbranch_scc1 L2_se{u}")
    tail.lab(f"L2_se{u}")
    late = Asm()
    for oo in (o, tail):
        for r in range(8):
            if r in (0, 2, 4, 6):
                g = r >> 1
                if oo is tail:
                    oo(f"s_bitcmp1_b32 s{MK}, {4+g}")
                    oo(f"s_cbranch_scc1 L2_ps{u}_{g}")
                    oo.lab(f"L2_pb{u}_{g}")
                    pswitch(late, f"L2_ps{u}_{g}", f"L2_pb{u}_{g}")
                oo(m4(gn+4*g, EAR, CW, PC, f" cbsz:4 abid:{4*un+g}"))
            oo(f"v_exp_f32 v{gc+r}, v{gc+r}")
    tail(f"s_branch L2_eb{u}")
    tail.l += late.l
    o.lab(f"L2_eb{u}")
    if u == 2:
        o(f"ds_read_b64 {vr(EAR,2)}, v{V_EAA} offset:{EA+512}")
    o("s_waitcnt vmcnt(16)")
    for r in range(8, 16):
        if r in (8, 10, 12, 14):
            g = (r - 8) >> 1
            o(m4(gn+4*g, SELA, rn+4*g, gn+4*g))
        o(f"v_exp_f32 v{gc+r}, v{gc+r}")
    if prio: o("s_setprio 0")
    for r in range(16):
        o(f"v_add_f32 v{gc+r}, 1.0, v{gc+r}")
    if prio: o("s_setprio 1")
    lp = cfg.get("lp", "end")
    def ld(oo, r):
        if not cfg.get("noload", 0):
            oo(f"buffer_load_dword v{rl+r}, v{V_SA if cfg.get('sameload', 0) else rl+r}, s[8:11], 0 offen {cfg.get('ldt', '')}")
    if lp == "rcp":
        o(f"s_cmp_gt_u32 s{S_REM}, 3")
        o("s_waitcnt lgkmcnt(0)")
        o(f"s_cbranch_scc0 L2_nr{u}")
        tail.lab(f"L2_nr{u}")
    for oo in ((o, tail) if lp == "rcp" else (o,)):
        for r in range(16):
            if r in (0, 2, 4, 6):
                g = r >> 1
                oo(m4(gn+4*g, SELB, rn+4*g+2, gn+4*g))
            oo(f"v_rcp_f32 v{gc+r}, v{gc+r}")
            if lp == "rcp" and oo is o: ld(o, r)
            if r == 14: oo(f"s_and_b32 s27, s{MK}, 15")
    if lp == "rcp":
        tail(f"s_branch L2_rb{u}")
        o.lab(f"L2_rb{u}")
    if prio: o("s_setprio 0")
    o(f"s_cbranch_scc1 L2_sf{u}")
    for r in range(16):
        o(f"v_fmac_f32 v{ACC}, v{gc+r}, v{rc+r}")
    o.lab(f"L2_fb{u}")
    tail.lab(f"L2_sf{u}")
    for g in range(4):
        tail(f"s_bitcmp1_b32 s{MK}, {g}")
        tail(f"s_cbranch_scc0 L2_sk{u}_{g}")
        flush(tail)
        tail(f"v_add_u32 v{V_FA}, 0x200, v{V_FA}")
        tail(f"v_mov_b32 v{ACC}, 0")
        tail.lab(f"L2_sk{u}_{g}")
        for r in range(4*g, 4*g+4):
            tail(f"v_fmac_f32 v{ACC}, v{gc+r}, v{rc+r}")
    tail(f"s_branch L2_fb{u}")
    if u == 3:
        o(f"v_add_u32 v{V_SA}, 0x100, v{V_SA}")
        o(f"v_add_u32 v{V_EAA}, 0x200, v{V_EAA}")
    if lp == "end":
        o(f"s_cmp_gt_u32 s{S_REM}, 3")
        o(f"s_cbranch_scc0 L2_nl{u}")
        o("s_waitcnt lgkmcnt(0)")
        for r in range(16): ld(o, r)
        o.lab(f"L2_nl{u}")
    o(f"s_lshr_b64 {sr(MK,2)}, {sr(MK,2)}, 4")
    o(f"s_sub_u32 s{S_REM}, s{S_REM}, 1")
    o(f"s_cmp_lg_u32 s{S_REM}, 0")
    if u == 2: o("s_waitcnt lgkmcnt(0)")
    if u < 3: o("s_cbranch_scc0 L2_last")
    else: o("s_cbranch_scc1 L2_loop")

def kernel2(cfg):
    o = Asm(); tail = Asm()
    WE = cfg.get("we", 0); WL = cfg.get("wl", 0); LDR = cfg.get("ld2", "")
    T = Stamper(o, cfg.get("stamp", 0), 11, 1)
    if cfg.get("dbg", -1) == 1: T.dbgwg = cfg.get("dbgwg", 100); T.dbgback = 0
    L = V_LANE
    o.lab("edge_kernel")
    o("s_cmp_ge_u32 s2, 256")
    o("s_cbranch_scc1 L2_end")
    T(True); T()
    o("s_load_dwordx2 s[28:29], s[0:1], 72")
    o("s_load_dwordx2 s[4:5], s[0:1], 0")
    o("s_load_dwordx2 s[6:7], s[0:1], 56")
    o("v_lshrrev_b32 v1, 6, v0")
    o(f"v_and_b32 v{L}, 63, v0")
    o("s_and_b32 s30, s2, 7")
    o("s_lshl_b32 s30, s30, 5")
    o("s_lshr_b32 s31, s2, 3")
    o("v_readfirstlane_b32 s3, v1")
    o("s_add_u32 s30, s30, s31")
    o(f"v_lshrrev_b32 v2, 4, v{L}")
    o(f"v_and_b32 v3, 15, v{L}")
    o("v_and_b32 v4, 3, v3")
    o("s_lshl_b32 s27, s3, 4")
    o("v_lshl_add_u32 v2, v2, 2, s27")
    o("v_add_u32 v4, v2, v4")
    o("s_lshl_b32 s72, s30, 2")
    o(f"s_add_u32 s72, s72, {WS_DESC}")
    o("v_lshlrev_b32 v4, 10, v4")
    o(f"s_mov_b32 s14, {WS_T+T_BYTES}"); o("s_mov_b32 s15, 0x00020000")
    o("s_waitcnt lgkmcnt(0)")
    o("s_mov_b32 s12, s28"); o("s_and_b32 s13, s29, 0xffff")
    o(f"buffer_load_dword v{V_DESC}, v4, s[12:15], s72 offen")
    o(f"v_lshlrev_b32 v5, 3, v{L}")
    o(f"s_mov_b32 s73, {WS_FRAG+16*1024}")
    o(f"buffer_load_dwordx2 {vr(CW,2)}, v5, s[12:15], s73 offen")
    o(f"v_lshlrev_b32 v5, 4, v{L}")
    o("s_lshl_b32 s74, s3, 10")
    o(f"s_add_u32 s75, s74, {FR}")
    o("s_mov_b32 m0, s75")
    o(f"s_add_u32 s73, s74, {WS_FRAG}")
    o("buffer_load_dwordx4 v5, s[12:15], s73 offen lds")
    srd(o, 16, 4, N * 128)
    swz_consts(o, L, 1, 6, 5)
    o("s_and_b32 s76, s3, 3")
    o("s_bfe_u32 s77, s3, 0x10002")
    o("v_xor_b32 v1, s76, v5")
    o("v_lshlrev_b32 v1, 4, v1")
    o("s_mul_i32 s78, s30, 49")
    o("s_lshl_b32 s79, s77, 5")
    o("s_add_u32 s79, s79, s78")
    o("s_add_u32 s79, s79, s76")
    o("s_lshl_b32 s79, s79, 7")
    o("v_lshl_add_u32 v1, v6, 9, v1")
    o("s_and_b32 s80, s74, 0x1fff")
    o(f"s_add_u32 s80, s80, {XT}")
    o("s_mov_b32 m0, s80")
    o("v_add_u32 v1, s79, v1")
    o("buffer_load_dwordx4 v1, s[16:19], 0 offen lds")
    o(f"s_add_u32 s8, s28, {WS_T}"); o("s_addc_u32 s9, s29, 0")
    o("s_and_b32 s9, s9, 0xffff"); o("s_or_b32 s9, s9, 0x40000")
    o(f"s_mov_b32 s10, {T_BYTES}"); o("s_mov_b32 s11, 0x00800000")
    o(f"v_lshlrev_b32 v{V_T16}, 4, v0")
    o("s_mul_i32 s82, s31, 100000")
    o(f"s_add_u32 s82, s82, {WS_T}")
    for i in range(WE):
        o(f"buffer_load_dwordx4 {vr(DUM,4)}, v{V_T16}, s[12:15], s82 offen")
        o("s_add_u32 s82, s82, 16384")
    for i in range(4):
        o(f"s_mov_b32 s{SOFF+i}, {i*CHB}")
    o("s_cmp_lg_u32 s3, 15")
    o("s_cbranch_scc1 L2_nz")
    o("v_mov_b32 v1, 0")
    o(f"v_lshlrev_b32 v4, 2, v{L}")
    o(f"v_add_u32 v4, {CNT}, v4")
    o("ds_write_b32 v4, v1")
    o("ds_write_b32 v4, v1 offset:64")
    o.lab("L2_nz")
    o(f"s_mov_b32 s81, {CHB}")
    o(f"v_mul_lo_u32 v{V_LB}, v2, s81")
    o(f"v_mad_u32_u24 v{V_LB}, v3, 12, v{V_LB}")
    o(f"s_mov_b32 s{S_W}, 32")
    o(f"s_mov_b32 s{S_OFF}, 0")
    o(f"s_mov_b32 s{S_FIRST}, 1")
    o(f"s_waitcnt vmcnt({3+WE})")
    T()
    o.lab("L2_pass")
    o(f"v_and_b32 v3, 15, v{L}")
    o(f"v_add_u32 v1, s{S_OFF}, v3")
    o("v_add_u32 v2, 16, v1")
    o(f"s_add_u32 s83, s{S_OFF}, s{S_W}")
    o(f"s_mul_i32 s84, s{S_OFF}, 12")
    o(f"v_add_u32 v6, s84, v{V_LB}")
    o(f"v_lshrrev_b32 v4, 16, v{V_DESC}")
    o("v_cmp_lt_u32 vcc, s83, v4")
    o("v_min_u32 v4, s83, v4")
    o(f"v_and_b32 v5, 0xffff, v{V_DESC}")
    o("s_cmp_lg_u64 vcc, 0")
    o(f"s_cselect_b32 s{S_MORE}, 1, 0")
    for i in range(4):
        o(f"v_mov_b32_dpp v{BS}, v4 row_newbcast:{i} row_mask:0xf bank_mask:0xf")
        o(f"v_add_u32_dpp v{BS+1+i}, v5, v6 row_newbcast:{i} row_mask:0xf bank_mask:0xf")
        o(f"v_cmp_lt_u32 {sr(MASK+2*i,2)}, v1, v{BS}")
        o(f"v_cmp_lt_u32 {sr(MASK+8+2*i,2)}, v2, v{BS}")
    for i in range(4):
        o(f"s_mov_b64 exec, {sr(MASK+8+2*i,2)}")
        o(f"s_cbranch_execz L2_r2_{i}")
        o(f"buffer_load_dwordx3 {vr(REC+16+4*i,3)}, v{BS+1+i}, s[12:15], s{SOFF+i} offen offset:192 {LDR}")
        o.lab(f"L2_r2_{i}")
    for i in range(4):
        o(f"s_mov_b64 exec, {sr(MASK+2*i,2)}")
        o(f"buffer_load_dwordx3 {vr(REC+4*i,3)}, v{BS+1+i}, s[12:15], s{SOFF+i} offen {LDR}")
    o("s_mov_b64 exec, -1")
    o("s_mov_b32 s85, s82")
    for i in range(WL):
        o(f"buffer_load_dwordx4 {vr(DUM,4)}, v{V_T16}, s[12:15], s85 offen")
        o("s_add_u32 s85, s85, 16384")
    o(f"s_cmp_eq_u32 s{S_FIRST}, 0")
    o("s_cbranch_scc1 L2_ranks")
    o(f"s_mov_b32 s{S_FIRST}, 0")
    aread_addrs(o, L, AAD, 1, 2, 3)
    srd(o, 16, 6, N * 128)
    if cfg.get("touch", 1):
        o("s_cmp_lg_u32 s3, 15")
        o("s_cbranch_scc1 L2_nt")
        o("s_lshl_b32 s93, s78, 7")
        o("v_mov_b32 v1, s93")
        o(f"buffer_load_dword v{DUM}, v1, s[16:19], 0 offen")
        o("s_waitcnt vmcnt(0)")
        o.lab("L2_nt")
    T()
    o(f"s_waitcnt vmcnt({4+WL}) lgkmcnt(0)")
    o("s_barrier")
    T()
    o("s_cmp_ge_u32 s3, 8")
    o("s_cbranch_scc1 L2_pdone")
    o("s_and_b32 s86, s3, 1")
    o("s_bfe_u32 s87, s3, 0x10001")
    o("s_lshr_b32 s88, s3, 2")
    o("s_lshl_b32 s89, s86, 13")
    o("s_lshl_b32 s90, s88, 12")
    o("s_add_u32 s89, s89, s90")
    o(f"s_add_u32 s89, s89, {FR}")
    o(f"v_lshl_add_u32 v2, v{L}, 4, s89")
    for s in range(4):
        o(f"ds_read_b128 {vr(PB_+4*s,4)}, v2 offset:{1024*s}")
    o("s_lshl_b32 s90, s87, 12")
    o(f"s_add_u32 s90, s90, {XT}")
    for s in range(4):
        o(f"v_add_u32 v3, s90, v{AAD+s}")
        o(f"ds_read_b128 {vr(PA_+4*s,4)}, v3")
    o(f"v_lshrrev_b32 v2, 5, v{L}")
    o("v_lshlrev_b32 v2, 2, v2")
    o("s_lshl_b32 s90, s87, 5")
    o("v_add_u32 v2, s90, v2")
    o(f"v_and_b32 v3, 31, v{L}")
    o("s_lshl_b32 s90, s88, 5")
    o("v_add_u32 v3, s90, v3")
    o("v_lshl_add_u32 v2, v2, 6, v3")
    o("s_waitcnt lgkmcnt(0)")
    for s in range(4):
        o(mfma16(PD, PA_ + 4*s, PB_ + 4*s, None if s == 0 else PD))
    o("s_cmp_eq_u32 s86, 1")
    o("s_cbranch_scc1 L2_xu")
    o("v_lshlrev_b32 v2, 2, v2")
    o("s_nop 9")
    def pwrite(r):
        o(f"v_mul_f32 v{PD+r}, {NEG_LOG2E:#x}, v{PD+r}")
        o(f"ds_write_b32 v2, v{PD+r} offset:{PT + (8*(r>>2)+(r&3))*256}")
    for r in range(8): pwrite(r)
    o("s_cmp_eq_u32 s87, 1")
    o("s_cselect_b32 exec_hi, 0, -1")
    for r in range(8, 10): pwrite(r)
    o("s_mov_b64 exec, -1")
    o("s_cbranch_scc1 L2_pdone")
    for r in range(10, 16): pwrite(r)
    o("s_branch L2_pdone")
    o.lab("L2_xu")
    o("v_lshlrev_b32 v2, 3, v2")
    o("s_nop 9")
    def uwrite(r):
        t = PA_ + 2 * (r & 7)
        o(f"v_cvt_f64_f32 {vr(t,2)}, v{PD+r}")
        o(f"ds_write_b64 v2, {vr(t,2)} offset:{AGG + (8*(r>>2)+(r&3))*512}")
    for r in range(8): uwrite(r)
    o("s_cmp_eq_u32 s87, 1")
    o("s_cselect_b32 exec_hi, 0, -1")
    for r in range(8, 10): uwrite(r)
    o("s_mov_b64 exec, -1")
    o("s_cbranch_scc1 L2_pdone")
    for r in range(10, 16): uwrite(r)
    o.lab("L2_pdone")
    o.c("selector operands of the 4x4x4 MFMAs that add the gathered gate term")
    o(f"v_and_b32 v1, 3, v{L}")
    o("v_mov_b32 v2, 0x3f80")
    for idx, reg in enumerate((SELA, SELA+1, SELB, SELB+1)):
        o(f"v_cmp_eq_u32 vcc, {idx}, v1")
        o("s_nop 1")
        o(f"v_cndmask_b32 v{reg}, 0, v2, vcc")
    o.lab("L2_ranks")
    T()
    o("v_mov_b32 v1, 4")
    o(f"v_mov_b32 v2, {CNT}")
    o(f"s_cmp_eq_u32 s{S_MORE}, 0")
    o("s_cbranch_scc1 L2_nomore")
    o("ds_write_b32 v2, v1 offset:256")
    o.lab("L2_nomore")
    def rank(i):
        o(f"v_add_u32_sdwa v{CA+i}, v{REC+4*i+2}, v2 dst_sel:DWORD dst_unused:UNUSED_PAD src0_sel:BYTE_3 src1_sel:DWORD")
        o(f"ds_add_rtn_u32 v{REC+4*i+3}, v{CA+i}, v1")
    for i in range(4):
        o(f"s_waitcnt vmcnt({WL+3-i})")
        o(f"s_mov_b64 exec, {sr(MASK+2*i,2)}")
        rank(i)
    for i in range(4, 8):
        o(f"s_mov_b64 exec, {sr(MASK+2*i,2)}")
        o(f"s_cbranch_execz L2_rk{i}")
        rank(i)
        o.lab(f"L2_rk{i}")
    o("s_mov_b64 exec, -1")
    o("s_waitcnt lgkmcnt(0)")
    T()
    o("s_barrier")
    T()
    o(f"v_lshl_add_u32 v1, v{L}, 2, v2")
    o("ds_read_b32 v3, v1")
    o("ds_read_b32 v4, v2 offset:256")
    o(f"v_cmp_gt_u32 vcc, 49, v{L}")
    o("v_mov_b32 v6, 16")
    o("s_mov_b64 s[92:93], vcc")
    o("v_cndmask_b32 v6, 0, v6, vcc")
    o("s_waitcnt lgkmcnt(0)")
    o("v_add_u32 v5, 15, v3")
    o("v_and_b32 v5, -16, v5")
    o("v_max_u32 v5, v5, v6")
    o("v_mov_b32 v6, v5")
    o(f"v_readfirstlane_b32 s{S_MORE}, v4")
    o("s_nop 0")
    wave_scan(o, 6)
    o("s_nop 0")
    o(f"v_readlane_b32 s{S_TOT}, v6, 63")
    o("v_sub_u32 v6, v6, v5")
    o(f"s_cmp_gt_u32 s{S_TOT}, {CAP*4}")
    o("s_cbranch_scc0 L2_fits")
    o.c("window too large for LDS: clear the counters and redo with the small window")
    o("s_barrier")
    o("v_mov_b32 v3, 0")
    o("ds_write_b32 v1, v3")
    o("ds_write_b32 v2, v3 offset:256")
    o(f"s_mov_b32 s{S_W}, {WSMALL}")
    o("s_waitcnt vmcnt(0) lgkmcnt(0)")
    o("s_barrier")
    o("s_branch L2_pass")
    o.lab("L2_fits")
    for i in range(4):
        o(f"ds_bpermute_b32 v{BS+i}, v{CA+i}, v6")
    for i in range(4, 8):
        o(f"s_cmp_eq_u64 {sr(MASK+2*i,2)}, 0")
        o(f"s_cbranch_scc1 L2_bp{i}")
        o(f"ds_bpermute_b32 v{BS+i}, v{CA+i}, v6")
        o.lab(f"L2_bp{i}")
    o(f"s_add_u32 s86, s{S_TOT}, 63")
    o("s_lshr_b32 s86, s86, 6")
    o("s_mul_i32 s87, s86, s3")
    o("s_add_u32 s88, s87, s86")
    o("s_lshr_b32 s87, s87, 4")
    o("s_lshr_b32 s88, s88, 4")
    o(f"s_sub_u32 s{S_REM}, s88, s87")
    o("s_lshl_b32 s89, s87, 6")
    o("s_lshl_b32 s90, s88, 6")
    o("s_waitcnt lgkmcnt(0)")
    def scat(i):
        o(f"v_add_u32 v{BS+i}, v{BS+i}, v{REC+4*i+3}")
        o(f"v_and_b32 v{REC+4*i+2}, 0xffffff, v{REC+4*i+2}")
        o(f"v_add_u32 v{REC+4*i+3}, v{BS+i}, v{BS+i}")
        o(f"ds_write_b32 v{BS+i}, v{REC+4*i+2} offset:{SRC}")
        o(f"ds_write_b64 v{REC+4*i+3}, {vr(REC+4*i,2)} offset:{EA}")
    for i in range(4):
        o(f"s_mov_b64 exec, {sr(MASK+2*i,2)}")
        scat(i)
    for i in range(4, 8):
        o(f"s_mov_b64 exec, {sr(MASK+2*i,2)}")
        o(f"s_cbranch_execz L2_sc{i}")
        scat(i)
        o.lab(f"L2_sc{i}")
    o("s_mov_b64 exec, -1")
    o("s_cmp_gt_u32 s3, 4")
    o("s_cbranch_scc1 L2_nopad")
    o(f"v_mov_b32 v{BS}, {NULLROW}")
    o(f"v_mov_b32 v{BS+2}, 0")
    o(f"v_mov_b32 v{BS+3}, 0")
    o("s_lshl_b32 s91, s3, 2")
    o("v_add_u32 v3, s91, v3")
    o("v_cmp_lt_u32 vcc, v3, v5")
    o("v_add_u32 v3, v3, v6")
    o("s_cmp_lg_u32 s3, 4")
    o("s_cbranch_scc1 L2_padw")
    o(f"v_lshl_add_u32 v3, v{L}, 2, s{S_TOT}")
    o("s_lshl_b32 s91, s86, 6")
    o("v_cmp_gt_u32 vcc, s91, v3")
    o.lab("L2_padw")
    o("v_add_u32 v4, v3, v3")
    o("s_mov_b64 exec, vcc")
    o(f"ds_write_b32 v3, v{BS} offset:{SRC}")
    o(f"ds_write_b64 v4, {vr(BS+2,2)} offset:{EA}")
    o("s_mov_b64 exec, -1")
    o.lab("L2_nopad")
    o("v_cmp_ge_u32 vcc, s89, v6")
    o("s_and_b64 s[94:95], vcc, s[92:93]")
    o("s_bcnt1_i32_b64 s91, s[94:95]")
    o("s_sub_u32 s91, s91, 1")
    o("v_cmp_gt_u32 vcc, s90, v6")
    o("s_andn2_b64 s[94:95], vcc, s[94:95]")
    o("s_and_b64 s[94:95], s[94:95], s[92:93]")
    o(f"s_mov_b64 {sr(MK,2)}, 0")
    o("v_subrev_u32 v6, s89, v6")
    o("v_lshrrev_b32 v6, 4, v6")
    o.lab("L2_mloop")
    o("s_cmp_eq_u64 s[94:95], 0")
    o("s_cbranch_scc1 L2_mdone")
    o("s_ff1_i32_b64 s96, s[94:95]")
    o("s_bitset0_b64 s[94:95], s96")
    o("v_readlane_b32 s97, v6, s96")
    o("s_nop 0")
    o(f"s_bitset1_b64 {sr(MK,2)}, s97")
    o("s_branch L2_mloop")
    o.lab("L2_mdone")
    if cfg.get("nomask", 0): o(f"s_mov_b64 {sr(MK,2)}, 0")
    o(f"v_mov_b32 v{V_SA}, s89")
    o("s_lshl_b32 s96, s89, 1")
    o(f"v_lshl_add_u32 v{V_EAA}, v{L}, 3, s96")
    o("s_lshl_b32 s96, s91, 8")
    o(f"v_lshl_add_u32 v{V_PA}, v{L}, 2, s96")
    o(f"v_add_u32 v{V_FA}, v{V_PA}, v{V_PA}")
    o(f"v_mov_b32 v{ACC}, 0")
    o("s_waitcnt lgkmcnt(0)")
    T()
    o("s_barrier")
    T()
    o("s_cmp_lg_u32 s3, 15")
    o("s_cbranch_scc1 L2_nz2")
    o("v_mov_b32 v3, 0")
    o("ds_write_b32 v1, v3")
    o("ds_write_b32 v2, v3 offset:256")
    o.lab("L2_nz2")
    o(f"s_cmp_eq_u32 s{S_REM}, 0")
    o("s_cbranch_scc1 L2_idle" if cfg.get("fillbar", 0) else "s_cbranch_scc1 L2_done")
    if cfg.get("fillbar", 0):
        tail.lab("L2_idle"); tail("s_barrier"); tail("s_branch L2_done")
    if cfg.get("fillprio", 0): o("s_setprio 3")
    for b in range(3):
        for q in range(4):
            o(f"ds_read_b128 {vr(R[b]+4*q,4)}, v{V_SA} offset:{SRC + b*64 + 16*q}")
        if b == 0:
            o(f"ds_read_b32 v{PC}, v{V_PA} offset:{PT}")
            o(f"ds_read_b32 v{PN}, v{V_PA} offset:{PT+256}")
            o(f"ds_read_b64 {vr(EAR,2)}, v{V_EAA} offset:{EA}")
    o("s_waitcnt lgkmcnt(11)")
    for r in range(16):
        o(f"buffer_load_dword v{R[0]+r}, v{R[0]+r}, s[8:11], 0 offen")
    o("s_waitcnt lgkmcnt(0)")
    for b in (1, 2):
        o(f"s_cmp_gt_u32 s{S_REM}, {b}")
        o("s_cbranch_scc0 L2_pre")
        for r in range(16):
            o(f"buffer_load_dword v{R[b]+r}, v{R[b]+r}, s[8:11], 0 offen")
    o.lab("L2_pre")
    for c in range(1, 4): o(f"v_mov_b32 v{PC+c}, v{PC}")
    o(f"v_add_u32 v{V_PA}, 0x100, v{V_PA}")
    o("s_nop 0")
    for g in range(4):
        if g:
            o(f"s_bitcmp1_b32 s{MK}, {g}")
            o(f"s_cbranch_scc1 L2_psp_{g}")
            o.lab(f"L2_pbp_{g}")
            pswitch(tail, f"L2_psp_{g}", f"L2_pbp_{g}")
        o(m4(G[0]+4*g, EAR, CW, PC, f" cbsz:4 abid:{g}"))
        o("s_nop 0")
    o("s_waitcnt vmcnt(32)")
    o(f"s_cmp_gt_u32 s{S_REM}, 2")
    o("s_cbranch_scc1 L2_pw")
    o("s_waitcnt vmcnt(0)")
    o.lab("L2_pw")
    for g in range(4): o(m4(G[0]+4*g, SELA, R[0]+4*g, G[0]+4*g))
    for g in range(4): o(m4(G[0]+4*g, SELB, R[0]+4*g+2, G[0]+4*g))
    o("s_nop 1")
    if cfg.get("fillbar", 0): o("s_barrier")
    T(); T(True)
    o(".p2align 3")
    o.lab("L2_loop")
    for u in range(4): stage(o, tail, u, cfg)
    o.lab("L2_last")
    flush(o)
    o.lab("L2_done")
    o("s_waitcnt vmcnt(0) lgkmcnt(0)")
    T(); T(True)
    o("s_barrier")
    o(f"s_cmp_eq_u32 s{S_MORE}, 0")
    o("s_cbranch_scc1 L2_out")
    o(f"s_add_u32 s{S_OFF}, s{S_OFF}, s{S_W}")
    o("s_branch L2_pass")
    o.lab("L2_out")
    o("v_cmp_gt_u32 vcc, 392, v0")
    o("s_and_saveexec_b64 s[94:95], vcc")
    o("s_cbranch_execz L2_fin")
    o("v_lshlrev_b32 v1, 6, v0")
    for c in range(4):
        o(f"ds_read_b128 {vr(80+4*c,4)}, v1 offset:{AGG+16*c}")
    o("s_lshl_b32 s93, s78, 7")
    o(f"v_add_u32 v2, s93, v{V_T16}")
    o("s_waitcnt lgkmcnt(0)")
    for r in range(8): o(f"v_cvt_f32_f64 v{64+r}, {vr(80+2*r,2)}")
    for r in range(8): o(f"v_mul_f32 v{72+r}, {NEG_LOG2E:#x}, v{64+r}")
    for r in range(8): o(f"v_exp_f32 v{72+r}, v{72+r}")
    for r in range(8): o(f"v_add_f32 v{72+r}, 1.0, v{72+r}")
    for r in range(8): o(f"v_rcp_f32 v{72+r}, v{72+r}")
    for r in range(8): o(f"v_mul_f32 v{64+r}, v{64+r}, v{72+r}")
    for r in range(4): o(f"v_cvt_pk_bf16_f32 v{72+r}, v{64+2*r}, v{65+2*r}")
    o("buffer_store_dwordx4 v[72:75], v2, s[16:19], 0 offen")
    o.lab("L2_fin")
    if T.on:
        o("s_waitcnt vmcnt(0)"); T(); T(True); T.dump(12, 3, 1, V_LANE)
    o.lab("L2_end")
    o("s_endpgm")
    return o.text() + tail.text()

HEADER = """; Edge-gated MPNN layer: out = silu(x@U + sum over edges with dst=i of sigmoid(x[dst]@A + x[src]@B + e@C) * (x[src]@V))
; @launch kernel=bin_kernel grid=(256,1,1) block=(1024,1,1) lds={l1}
; @launch kernel=edge_kernel grid=(256,1,1) block=(1024,1,1) lds={l2}
.amdgcn_target "amdgcn-amd-amdhsa--gfx950"
.text
"""
def build(cfg):
    s = HEADER.format(l1=K1_LDS, l2=K2_LDS)
    for name, fn in (("bin_kernel", kernel1), ("edge_kernel", kernel2)):
        s += f".globl {name}\n.p2align 8\n.type {name},@function\n" + fn(cfg)
    s += '.section .rodata,"a"\n.p2align 6\n' + kd("bin_kernel", 128, 100) + ".p2align 6\n" + kd("edge_kernel", 128, 100)
    return s

if __name__ == "__main__":
    cfg = {}
    for a in sys.argv[2:]:
        k, v = a.split("=")
        cfg[k] = int(v) if v.lstrip("-").isdigit() else v
    open(sys.argv[1], "w").write(build(cfg))
```

```python
import sys, struct

N = 12500; E = 800000; NB = 256; NPB = 49; CH = 3128; CHB = CH * 12
WS_DESC = 0x00A00000; WS_FRAG = 0x00A80000; WS_SIZE = 0x00C00000
XSHIFT = 4096
NEG_LOG2E = 0xBFB8AA3B
MAGIC49 = 21400
assert all(((d * MAGIC49) >> 20) == d // 49 for d in range(N))

class Asm:
    def __init__(self): self.l = []
    def __call__(self, s): self.l.append("    " + s)
    def lab(self, s): self.l.append(s + ":")
    def c(self, s): self.l.append("    ; " + s)
    def text(self): return "\n".join(self.l) + "\n"

STAMP_BASE = 0x00B00000
class Stamper:
    def __init__(self, o, on, vreg, region):
        self.o, self.on, self.v, self.n, self.region = o, on, vreg, 0, region
        self.dbgwg = None; self.dbgback = 0; self.wide = False
    def __call__(self, real=False):
        if not self.on: return
        self.o(f"{'s_memrealtime' if real else 's_memtime'} s[100:101]")
        self.o("s_waitcnt lgkmcnt(0)")
        self.o(f"v_writelane_b32 v{self.v}, s100, {self.n}")
        self.n += 1
    def dump(self, srd_, wave_s, vt, lane):
        if not self.on: return
        o = self.o
        o("s_mov_b32 exec_hi, 0")
        o("s_mov_b32 exec_lo, -1" if self.wide else "s_mov_b32 exec_lo, 0xffff")
        o(f"s_lshl_b32 s4, s2, 4")
        o(f"s_add_u32 s4, s4, s{wave_s}")
        o(f"s_lshl_b32 s4, s4, {7 if self.wide else 6}")
        o(f"s_add_u32 s4, s4, {STAMP_BASE + (0 if self.wide else self.region * 0x40000)}")
        o(f"v_lshl_add_u32 v{vt}, v{lane}, 2, s4")
        o(f"buffer_store_dword v{self.v}, v{vt}, s[{srd_}:{srd_+3}], 0 offen")
        if self.dbgwg is not None:
            o(f"s_cmp_lg_u32 s2, {self.dbgwg}")
            o("s_cbranch_scc1 Ldbg%d" % self.region)
            o(f"s_cmp_lg_u32 s{wave_s}, {getattr(self, 'dbgwave', 1)}")
            o("s_cbranch_scc1 Ldbg%d" % self.region)
            o("s_load_dwordx2 s[4:5], s[0:1], 64")
            o("s_waitcnt lgkmcnt(0)")
            o(f"s_add_u32 s4, s4, {-self.dbgback}")
            o("s_addc_u32 s5, s5, 0")
            o("s_mov_b32 s6, 256")
            o("s_mov_b32 s7, 0x00020000")
            o(f"v_subrev_u32 v{vt}, {getattr(self, 'dbgshift', 0)}, v{lane}")
            o(f"v_lshlrev_b32 v{vt}, 2, v{vt}")
            o(f"buffer_store_dword v{self.v}, v{vt}, s[4:7], 0 offen")
            o.lab("Ldbg%d" % self.region)

def vr(a, n=1): return f"v{a}" if n == 1 else f"v[{a}:{a+n-1}]"
def sr(a, n=1): return f"s{a}" if n == 1 else f"s[{a}:{a+n-1}]"

def srd(o, d, lo, size):
    o(f"s_mov_b32 s{d}, s{lo}")
    o(f"s_and_b32 s{d+1}, s{lo+1}, 0xffff")
    o(f"s_mov_b32 s{d+2}, {size}")
    o(f"s_mov_b32 s{d+3}, 0x00020000")

def wave_scan(o, v):
    for sh in (1, 2, 4, 8):
        o(f"v_add_u32_dpp v{v}, v{v}, v{v} row_shr:{sh} row_mask:0xf bank_mask:0xf bound_ctrl:0")
        o("s_nop 1")
    o(f"v_add_u32_dpp v{v}, v{v}, v{v} row_bcast:15 row_mask:0xa bank_mask:0xf")
    o("s_nop 1")
    o(f"v_add_u32_dpp v{v}, v{v}, v{v} row_bcast:31 row_mask:0xc bank_mask:0xf")

K1_HIST = 0; K1_BASE = 1024; K1_STAGE = 2048
K1_LDS = 83968
def kernel1(cfg):
    o = Asm()
    ST = cfg.get("st1", "sc0 sc1")
    T = Stamper(o, cfg.get("stamp", 0), 36, 0)
    if cfg.get("dbg", -1) == 0: T.dbgwg = cfg.get("dbgwg", 100); T.dbgback = -512
    o.lab("bin_kernel")
    o("s_cmp_ge_u32 s2, 256")
    o("s_cbranch_scc1 L1_end")
    T(True); T()
    o("s_load_dwordx4 s[36:39], s[0:1], 0")
    o("s_load_dwordx4 s[40:43], s[0:1], 16")
    o("s_load_dwordx4 s[44:47], s[0:1], 32")
    o("s_load_dwordx2 s[48:49], s[0:1], 48")
    o("s_load_dwordx2 s[50:51], s[0:1], 72")
    o("v_lshrrev_b32 v1, 6, v0")
    o("s_movk_i32 s4, 782")
    o("s_cmp_eq_u32 s2, 255")
    o("s_cselect_b32 s4, 590, s4")
    o("v_readfirstlane_b32 s3, v1")
    o("s_mul_i32 s5, s2, 12512")
    o("v_lshl_add_u32 v2, v0, 4, s5")
    o("v_lshlrev_b32 v3, 1, v2")
    o("v_cmp_gt_u32 s[52:53], s4, v0")
    o("s_waitcnt lgkmcnt(0)")
    srd(o, 8, 42, E * 4)
    srd(o, 12, 40, E * 4)
    srd(o, 16, 38, E * 8)
    srd(o, 20, 50, WS_SIZE)
    srd(o, 24, 36, N * 128)
    o("s_mov_b64 exec, s[52:53]")
    o("s_cbranch_execz L1_noload")
    LD = cfg.get("ld1", "")
    o(f"buffer_load_dwordx4 v[4:7], v2, s[8:11], 0 offen {LD}")
    o(f"buffer_load_dwordx4 v[8:11], v2, s[12:15], 0 offen {LD}")
    o(f"buffer_load_dwordx4 v[12:15], v3, s[16:19], 0 offen {LD}")
    o(f"buffer_load_dwordx4 v[16:19], v3, s[16:19], 0 offen offset:16 {LD}")
    if cfg.get("waitall", 0):
        T(); o("s_waitcnt vmcnt(3)"); T(); o("s_waitcnt vmcnt(2)"); T(); o("s_waitcnt vmcnt(0)"); T()
    o.lab("L1_noload")
    o("s_mov_b64 exec, -1")
    o("v_and_b32 v1, 63, v0")
    o("s_cmp_lt_u32 s3, 13")
    o("s_cbranch_scc1 L1_barA")
    o.c("spare waves: pull this workgroup's share of x through the cache hierarchy")
    o("s_mul_i32 s6, s2, 6272")
    o("v_subrev_u32 v20, 832, v0")
    o("v_lshl_add_u32 v20, v20, 4, s6")
    o("buffer_load_dwordx4 v[52:55], v20, s[24:27], 0 offen")
    o("buffer_load_dwordx4 v[56:59], v20, s[24:27], 0 offen offset:3072")
    o("s_cmp_eq_u32 s3, 13")
    o("s_cbranch_scc0 L1_not13")
    o("v_mov_b32 v32, 0")
    o("v_mov_b32 v33, 0")
    o("v_mov_b32 v34, 0")
    o("v_mov_b32 v35, 0")
    o("v_lshlrev_b32 v21, 4, v1")
    o(f"ds_write_b128 v21, v[32:35] offset:{K1_HIST}")
    o("v_add_u32 v20, 6144, v20")
    o("buffer_load_dwordx4 v[60:63], v20, s[24:27], 0 offen")
    o("s_waitcnt lgkmcnt(0)")
    o("s_branch L1_barA")
    o.lab("L1_not13")
    o("s_cmp_eq_u32 s3, 15")
    o("s_cbranch_scc0 L1_barA")
    o("s_cmp_ge_u32 s2, 33")
    o("s_cbranch_scc1 L1_barA")
    o.c("weight fragment preparation (wave 15 of workgroups 0..32)")
    o("s_lshr_b32 s6, s2, 3")
    o("s_mov_b32 s28, s48")
    o("s_mov_b32 s29, s49")
    o("s_cmp_eq_u32 s6, 1")
    o("s_cselect_b32 s28, s46, s28")
    o("s_cselect_b32 s29, s47, s29")
    o("s_cmp_eq_u32 s6, 3")
    o("s_cselect_b32 s28, s44, s28")
    o("s_cselect_b32 s29, s45, s29")
    o("s_and_b32 s29, s29, 0xffff")
    o("s_and_b32 s7, s6, 1")
    o("s_cmp_eq_u32 s7, 1")
    o("s_movk_i32 s30, 16896")
    o("s_cselect_b32 s30, 8192, s30")
    o("s_mov_b32 s31, 0x00020000")
    o("v_and_b32 v21, 31, v1")
    o("v_lshrrev_b32 v22, 5, v1")
    o("s_cmp_eq_u32 s6, 4")
    o("s_cbranch_scc1 L1_fragC")
    o("s_and_b32 s54, s2, 3")
    o("s_lshl_b32 s54, s54, 11")
    o("s_bfe_u32 s55, s2, 0x10002")
    o("s_lshl_b32 s55, s55, 6")
    o("s_add_u32 s54, s54, s55")
    o("s_cmp_eq_u32 s6, 0")
    o("s_cselect_b32 s55, 8192, 0")
    o("s_add_u32 s54, s54, s55")
    o("v_lshlrev_b32 v22, 10, v22")
    o("v_lshl_add_u32 v21, v21, 1, v22")
    o("v_add_u32 v21, s54, v21")
    for j in range(8):
        o(f"buffer_load_ushort v{40+j}, v21, s[28:31], 0 offen offset:{128*j}")
    o("s_branch L1_barA")
    o.lab("L1_fragC")
    o("v_lshlrev_b32 v21, 1, v21")
    o("v_add_u32 v21, 16384, v21")
    o("v_mov_b32 v23, 0x100000")
    o("v_cmp_eq_u32 vcc, 0, v22")
    o("s_nop 1")
    o("v_cndmask_b32 v21, v23, v21, vcc")
    for e in range(8):
        o(f"buffer_load_ushort v{40+e}, v21, s[28:31], 0 offen offset:{128*(e&3)+64*(e>>2)}")
    o.lab("L1_barA")
    T()
    o("s_barrier")
    o("s_cmp_eq_u32 s3, 15")
    o("s_cbranch_scc0 L1_hist")
    o("s_cmp_ge_u32 s2, 33")
    o("s_cbranch_scc1 L1_barB")
    o("s_and_b32 s7, s6, 3")
    o("s_cmp_eq_u32 s7, 0")
    o("s_mov_b32 s54, 1.0")
    o(f"s_cselect_b32 s54, {NEG_LOG2E:#x}, s54")
    o("s_waitcnt vmcnt(0)")
    for j in range(8):
        o(f"v_lshlrev_b32 v{40+j}, 16, v{40+j}")
    for j in range(8):
        o(f"v_mul_f32 v{40+j}, s54, v{40+j}")
    for j in range(4):
        o(f"v_cvt_pk_bf16_f32 v{48+j}, v{40+2*j}, v{41+2*j}")
    o("s_lshl_b32 s55, s2, 10")
    o(f"s_add_u32 s55, s55, {WS_FRAG}")
    o("v_lshl_add_u32 v21, v1, 4, s55")
    o(f"buffer_store_dwordx4 v[48:51], v21, s[20:23], 0 offen {ST}")
    o("s_branch L1_barB")
    o.lab("L1_hist")
    o("s_mov_b64 exec, s[52:53]")
    o("s_cbranch_execz L1_histdone")
    o(f"s_movk_i32 s56, {MAGIC49}")
    o("v_mov_b32 v20, 1")
    o("s_waitcnt vmcnt(3)")
    T()
    for i in range(4):
        o(f"v_mul_u32_u24 v{24+i}, s56, v{4+i}")
    for i in range(4):
        o(f"v_lshrrev_b32 v{24+i}, 20, v{24+i}")
    for i in range(4):
        o(f"v_lshlrev_b32 v{28+i}, 2, v{24+i}")
        o(f"ds_add_rtn_u32 v{32+i}, v{28+i}, v20 offset:{K1_HIST}")
    for i in range(4):
        o(f"v_mul_u32_u24 v{24+i}, 49, v{24+i}")
    for i in range(4):
        o(f"v_sub_u32 v{4+i}, v{4+i}, v{24+i}")
    for i in range(4):
        o(f"v_lshlrev_b32 v{4+i}, 26, v{4+i}")
    o("s_waitcnt lgkmcnt(0)")
    o.lab("L1_histdone")
    o("s_mov_b64 exec, -1")
    o.lab("L1_barB")
    T()
    o("s_barrier")
    o("s_cmp_eq_u32 s3, 14")
    o("s_cbranch_scc0 L1_barC")
    o.c("wave 14: exclusive scan of the 256 bucket counts")
    o("v_lshlrev_b32 v21, 4, v1")
    o(f"ds_read_b128 v[40:43], v21 offset:{K1_HIST}")
    o("s_waitcnt lgkmcnt(0)")
    o("v_add_u32 v45, v40, v41")
    o("v_add_u32 v46, v45, v42")
    o("v_add_u32 v47, v46, v43")
    o("v_mov_b32 v48, v47")
    o("s_nop 1")
    wave_scan(o, 48)
    o("v_sub_u32 v48, v48, v47")
    o("v_add_u32 v49, v48, v40")
    o("v_add_u32 v50, v48, v45")
    o("v_add_u32 v51, v48, v46")
    for j in range(4):
        o(f"v_mul_u32_u24 v{48+j}, 12, v{48+j}")
    for j in range(4):
        o(f"v_lshl_or_b32 v{40+j}, v{40+j}, 16, v{48+j}")
    for j in range(4):
        o(f"v_add_u32 v{48+j}, {K1_STAGE}, v{48+j}")
    o(f"ds_write_b128 v21, v[48:51] offset:{K1_BASE}")
    o("s_lshl_b32 s55, s2, 10")
    o(f"s_add_u32 s55, s55, {WS_DESC}")
    o("v_add_u32 v21, s55, v21")
    o(f"buffer_store_dwordx4 v[40:43], v21, s[20:23], 0 offen {ST}")
    o("s_waitcnt lgkmcnt(0)")
    o.lab("L1_barC")
    o("s_barrier")
    T()
    o("s_mov_b64 exec, s[52:53]")
    o("s_cbranch_execz L1_scatdone")
    for i in range(4):
        o(f"ds_read_b32 v{24+i}, v{28+i} offset:{K1_BASE}")
    o("s_waitcnt vmcnt(2)")
    for i in range(4):
        o(f"v_lshlrev_b32 v{8+i}, 7, v{8+i}")
    for i in range(4):
        o(f"v_add_u32 v{8+i}, {XSHIFT}, v{8+i}")
    for i in range(4):
        o(f"v_or_b32 v{8+i}, v{8+i}, v{4+i}")
    o("s_waitcnt lgkmcnt(0)")
    for i in range(4):
        o(f"v_mad_u32_u24 v{24+i}, v{32+i}, 12, v{24+i}")
    for i in range(4):
        o(f"ds_write_b32 v{24+i}, v{8+i} offset:8")
    o("s_waitcnt vmcnt(0)")
    T()
    for i in range(4):
        o(f"ds_write2_b32 v{24+i}, v{12+2*i}, v{13+2*i} offset0:0 offset1:1")
    o("s_waitcnt lgkmcnt(0)")
    o.lab("L1_scatdone")
    o("s_mov_b64 exec, -1")
    o("s_barrier")
    T()
    o("v_lshlrev_b32 v20, 4, v0")
    o(f"s_mul_i32 s55, s2, {CHB}")
    o(f"ds_read_b128 v[24:27], v20 offset:{K1_STAGE}")
    o(f"ds_read_b128 v[28:31], v20 offset:{K1_STAGE+16384}")
    o(f"ds_read_b128 v[32:35], v20 offset:{K1_STAGE+32768}")
    o("v_add_u32 v21, 16384, v20")
    o("v_add_u32 v22, 32768, v20")
    o("v_cmp_gt_u32 vcc, 298, v0")
    o("s_waitcnt lgkmcnt(2)")
    o(f"buffer_store_dwordx4 v[24:27], v20, s[20:23], s55 offen {ST}")
    o("s_waitcnt lgkmcnt(1)")
    o(f"buffer_store_dwordx4 v[28:31], v21, s[20:23], s55 offen {ST}")
    o("s_and_saveexec_b64 s[58:59], vcc")
    o("s_cbranch_execz L1_fin")
    o("s_waitcnt lgkmcnt(0)")
    o(f"buffer_store_dwordx4 v[32:35], v22, s[20:23], s55 offen {ST}")
    o.lab("L1_fin")
    if T.on:
        T(); o("s_waitcnt vmcnt(0)"); T(); T(True); T.dump(20, 3, 40, 1)
    o.lab("L1_end")
    o("s_endpgm")
    return o.text()

CAP = 3584
P4 = 0; AGG = 51200; SRC = 76800; EA = SRC + CAP * 4; GN = EA + CAP * 8; CNT = GN + CAP
MORE = CNT + 256; ZERO8 = MORE + 8; STG = 123904; K2_LDS = STG + 32768
M64 = 196
assert CNT % 256 == 0 and CNT + 320 <= STG
XT = SRC
assert ZERO8 + 8 <= STG and XT % 16 == 0 and EA % 8 == 0
WSMALL = (CAP - 3 * NPB - 31) // 256
OOBSRC = 0x40000000

WB = 128; WV = 160; WC = 192
G = [64, 96]; H = [80, 112]
A = 48; EAR = 46; M = 40; ADP = 36; ADA = 32; SV = 28; GNR = 24; KJ = 20; AAD = 16
V_SRCA = 15; V_EAA = 14; V_GNA = 13; V_LBP = 12; V_EAI = 11; V_LANE = 10; V_DESC = 9; V_LB = 8
REC = 64; CA = 196; BS = 212; DUM = 228
S_W = 20; S_OFF = 21; S_NT = 22; S_T = 23; S_FIRST = 24; S_MORE = 25; S_TOT = 26
MASK = 32; SOFF = 64

def mfma16(d, a, b, c):
    cs = "0" if c is None else vr(c, 16)
    return f"v_mfma_f32_32x32x16_bf16 {vr(d,16)}, {vr(a,4)}, {vr(b,4)}, {cs}"
def mfma8(d, a, b):
    return f"v_mfma_f32_32x32x8_bf16 {vr(d,16)}, {vr(a,2)}, {vr(b,2)}, {vr(d,16)}"

def dma_tile(o):
    for j in range(4):
        o(f"buffer_load_dwordx4 v{SV+j}, s[8:11], 0 offen offset:{1024*j} lds")

def stage(o, cur, cfg):
    nxt = 1 - cur
    hh = nxt
    g, h, gn_, hn = G[cur], H[cur], G[nxt], H[nxt]
    prio = cfg.get("prio", 1)
    o_real = o
    drop = cfg.get("drop", "")
    class F:
        def __call__(self, t):
            if "m" in drop and t.startswith("v_mfma"): return
            if "h" in drop and t.startswith("v_mfma") and (f"v[{WV}" in t or any(f"v[{WV+4*i}:" in t for i in range(8))): return
            if "t" in drop and (t.startswith("v_exp") or t.startswith("v_rcp")): return
            if "a" in drop and t.startswith("ds_add"): return
            if "d" in drop and t.endswith("lds"): return
            o_real(t)
        def lab(self, t): o_real.lab(t)
    o = F()
    for q in range(4):
        o(f"ds_read_b128 {vr(gn_+4*q,4)}, v{ADP+q} offset:{P4+512*hh}")
    if cur == 0:
        o(f"ds_read2_b32 {vr(GNR,2)}, v{V_GNA} offset0:0 offset1:2")
        o(f"ds_read2_b32 {vr(GNR+2,2)}, v{V_GNA} offset0:4 offset1:6")
        o(f"ds_read_b128 {vr(SV,4)}, v{V_SRCA}")
    if prio: o("s_setprio 1")
    k = 0
    for r in range(16):
        if r in (3, 6, 9, 12):
            if r == 3 and cur == 1:
                o("s_waitcnt lgkmcnt(9)")
            o(mfma16(hn, A + 4*k, WV + 16*hh + 4*k, None if k == 0 else hn))
            k += 1
            if r == 3 and cur == 1:
                o(f"s_add_u32 s27, s{S_T}, 16")
                o(f"s_cmp_ge_u32 s27, s{S_NT}")
                o("s_cbranch_scc1 L2_nodma")
                dma_tile(o)
                o.lab("L2_nodma")
        o(f"v_exp_f32 v{g+r}, v{g+r}")
    if prio: o("s_setprio 0")
    for r in range(16):
        o(f"v_add_f32 v{g+r}, 1.0, v{g+r}")
    o("s_waitcnt lgkmcnt(0)")
    if prio: o("s_setprio 1")
    k = 0
    for r in range(16):
        if r in (0, 3, 6, 9):
            o(mfma16(gn_, A + 4*k, WB + 16*hh + 4*k, gn_))
            k += 1
            if r == 9 and cur == 0:
                o("s_waitcnt vmcnt(0)")
                for s in range(4):
                    o(f"ds_read_b128 {vr(A+4*s,4)}, v{AAD+s}")
        if r == 12:
            o(mfma8(gn_, EAR, WC + 2*hh))
            if cur == 0:
                o(f"ds_read_b64 {vr(EAR,2)}, v{V_EAA}")
        o(f"v_rcp_f32 v{g+r}, v{g+r}")
    if prio: o("s_setprio 0")
    if cur == 0:
        for q in range(4):
            o(f"v_lshrrev_b32 v{ADA+q}, 1, v{ADP+q}")
    for j in range(4):
        for q in range(4):
            if j == 0: o(f"v_mul_f32 v{M+q}, v{g+4*q}, v{h+4*q}")
            else: o(f"v_fmac_f32 v{M+q}, v{g+4*q+j}, v{h+4*q+j}")
    for q in range(4):
        o(f"v_cvt_f64_f32 {vr(M64+2*q,2)}, v{M+q}")
    for q in range(4):
        o(f"ds_add_f64 v{ADA+q}, {vr(M64+2*q,2)} offset:{AGG+256*cur}")
    if cur == 0:
        for q in range(4):
            o(f"v_add_u32 v{ADP+q}, v{GNR+q}, v{V_LBP}")
        for j in range(4):
            o(f"v_add_u32 v{SV+j}, v{SV+j}, v{KJ+j}")
        o(f"v_add_u32 v{V_SRCA}, 0x400, v{V_SRCA}")
        o(f"v_add_u32 v{V_GNA}, 0x100, v{V_GNA}")
        o(f"v_add_u32 v{V_EAA}, v{V_EAI}, v{V_EAA}")

def kernel2(cfg):
    o = Asm()
    T = Stamper(o, cfg.get("stamp", 0), 44, 1)
    if cfg.get("dbg", -1) == 1: T.dbgwg = cfg.get("dbgwg", 100); T.dbgback = 0
    o.lab("edge_kernel")
    o("s_cmp_ge_u32 s2, 256")
    o("s_cbranch_scc1 L2_end")
    T(True); T()
    o("s_load_dwordx2 s[4:5], s[0:1], 0")
    o("s_load_dwordx2 s[6:7], s[0:1], 56")
    o("s_load_dwordx2 s[28:29], s[0:1], 72")
    o("v_lshrrev_b32 v1, 6, v0")
    o(f"v_and_b32 v{V_LANE}, 63, v0")
    o("s_and_b32 s30, s2, 7")
    o("s_lshl_b32 s30, s30, 5")
    o("s_lshr_b32 s31, s2, 3")
    o("v_readfirstlane_b32 s3, v1")
    o("s_add_u32 s30, s30, s31")
    for i in range(8):
        o(f"s_mov_b32 s{SOFF+i}, {i*CHB}")
    L = V_LANE
    o(f"v_lshrrev_b32 v2, 4, v{L}")
    o(f"v_and_b32 v3, 15, v{L}")
    o("v_and_b32 v4, 7, v3")
    o("v_lshl_add_u32 v4, v2, 3, v4")
    o("s_lshl_b32 s27, s3, 5")
    o("v_add_u32 v4, s27, v4")
    o("s_lshl_b32 s72, s30, 2")
    o(f"s_add_u32 s72, s72, {WS_DESC}")
    o("v_lshlrev_b32 v4, 10, v4")
    o("s_waitcnt lgkmcnt(0)")
    srd(o, 12, 28, WS_SIZE)
    o(f"buffer_load_dword v{V_DESC}, v4, s[12:15], s72 offen")
    o(f"s_sub_u32 s8, s4, {XSHIFT}")
    o("s_subb_u32 s9, s5, 0")
    o("s_and_b32 s9, s9, 0xffff")
    o(f"s_mov_b32 s10, {N*128+XSHIFT}")
    o("s_mov_b32 s11, 0x00020000")
    srd(o, 16, 6, N * 128)
    o(f"v_lshlrev_b32 v5, 4, v{L}")
    o(f"s_mov_b32 s73, {WS_FRAG+32*1024}")
    o(f"buffer_load_dwordx4 {vr(WC,4)}, v5, s[12:15], s73 offen")
    o("s_lshl_b32 s74, s3, 12")
    o(f"s_add_u32 s75, s74, {STG}")
    o("s_mov_b32 m0, s75")
    o(f"s_add_u32 s73, s74, {WS_FRAG}")
    for j in range(4):
        o(f"buffer_load_dwordx4 v5, s[12:15], s73 offen offset:{1024*j} lds")
    o(f"v_lshrrev_b32 v6, 3, v{L}")
    o(f"v_and_b32 v7, 7, v{L}")
    o(f"v_lshrrev_b32 v1, 5, v{L}")
    o("v_lshlrev_b32 v1, 2, v1")
    o("v_xor_b32 v7, v7, v1")
    for j in range(4):
        o(f"v_xor_b32 v{KJ+j}, {j}, v7")
        o(f"v_lshlrev_b32 v{KJ+j}, 4, v{KJ+j}")
    o("s_and_b32 s76, s3, 3")
    o("s_lshr_b32 s77, s3, 2")
    o("v_xor_b32 v1, s76, v7")
    o("v_lshlrev_b32 v1, 4, v1")
    o("s_mul_i32 s78, s30, 49")
    o("s_lshl_b32 s79, s77, 5")
    o("s_add_u32 s79, s79, s78")
    o("s_add_u32 s79, s79, s76")
    o("s_lshl_b32 s79, s79, 7")
    o(f"s_add_u32 s79, s79, {XSHIFT}")
    o("v_lshl_add_u32 v1, v6, 9, v1")
    o("s_lshl_b32 s80, s3, 10")
    o(f"s_add_u32 s80, s80, {XT}")
    o("s_mov_b32 m0, s80")
    o("v_add_u32 v1, s79, v1")
    o("buffer_load_dwordx4 v1, s[8:11], 0 offen lds")
    o("s_mov_b32 m0, s75")
    for j in range(1, 4):
        o(f"v_subrev_u32 v{KJ+j}, {1024*j}, v{KJ+j}")
    o(f"v_and_b32 v1, 3, v{L}")
    o(f"v_bfe_u32 v2, v{L}, 2, 3")
    o("v_lshl_add_u32 v2, v1, 3, v2")
    o("v_lshlrev_b32 v2, 7, v2")
    o(f"v_bfe_u32 v4, v{L}, 4, 1")
    o("v_lshl_or_b32 v1, v4, 2, v1")
    o(f"v_lshrrev_b32 v4, 5, v{L}")
    o("v_xor_b32 v1, v1, v4")
    for s in range(4):
        o(f"v_xor_b32 v{AAD+s}, {2*s}, v1")
        o(f"v_lshl_add_u32 v{AAD+s}, v{AAD+s}, 4, v2")
    o("s_cmp_lg_u32 s3, 0")
    o("s_cbranch_scc1 L2_nz")
    o("v_mov_b32 v1, 0")
    o(f"v_lshlrev_b32 v2, 2, v{L}")
    o(f"v_add_u32 v2, {CNT}, v2")
    o("ds_write_b32 v2, v1")
    o("ds_write_b32 v2, v1 offset:64")
    o.lab("L2_nz")
    o(f"v_lshrrev_b32 v1, 4, v{L}")
    o("v_lshlrev_b32 v1, 3, v1")
    o("v_add_u32 v1, s27, v1")
    o(f"s_mov_b32 s81, {CHB}")
    o(f"v_mul_lo_u32 v{V_LB}, v1, s81")
    o(f"v_mad_u32_u24 v{V_LB}, v3, 12, v{V_LB}")
    o(f"v_and_b32 v1, 31, v{L}")
    o(f"v_lshlrev_b32 v{V_LBP}, 4, v1")
    o(f"s_mov_b32 s{S_W}, 32")
    o(f"s_mov_b32 s{S_OFF}, 0")
    o(f"s_mov_b32 s{S_FIRST}, 1")
    o("s_mul_i32 s82, s31, 50000")
    o(f"s_add_u32 s82, s82, {XSHIFT}")
    o("v_lshlrev_b32 v7, 4, v0")
    o("s_waitcnt vmcnt(6)")
    T()
    o.lab("L2_pass")
    o(f"v_and_b32 v3, 15, v{L}")
    o(f"v_add_u32 v1, s{S_OFF}, v3")
    o("v_add_u32 v2, 16, v1")
    o(f"s_add_u32 s83, s{S_OFF}, s{S_W}")
    o(f"s_mul_i32 s84, s{S_OFF}, 12")
    o(f"v_add_u32 v6, s84, v{V_LB}")
    o(f"v_lshrrev_b32 v4, 16, v{V_DESC}")
    o("v_cmp_lt_u32 vcc, s83, v4")
    o("v_min_u32 v4, s83, v4")
    o(f"v_and_b32 v5, 0xffff, v{V_DESC}")
    o("s_cmp_lg_u64 vcc, 0")
    o(f"s_cselect_b32 s{S_MORE}, 1, 0")
    for i in range(8):
        o(f"v_mov_b32_dpp v{BS}, v4 row_newbcast:{i} row_mask:0xf bank_mask:0xf")
        o(f"v_add_u32_dpp v{BS+1+(i&1)}, v5, v6 row_newbcast:{i} row_mask:0xf bank_mask:0xf")
        o(f"v_cmp_lt_u32 {sr(MASK+4*i+2,2)}, v2, v{BS}")
        o(f"v_cmpx_lt_u32 {sr(MASK+4*i,2)}, v1, v{BS}")
        o(f"buffer_load_dwordx3 {vr(REC+8*i,3)}, v{BS+1+(i&1)}, s[12:15], s{SOFF+i} offen")
        o(f"s_mov_b64 exec, {sr(MASK+4*i+2,2)}")
        o(f"buffer_load_dwordx3 {vr(REC+8*i+4,3)}, v{BS+1+(i&1)}, s[12:15], s{SOFF+i} offen offset:192")
        o("s_mov_b64 exec, -1")
        if i < 7: o("s_nop 1")
    for i in range(7):
        if i < 6:
            o(f"s_add_u32 s85, s82, {8192*i}")
            o(f"buffer_load_dwordx4 {vr(DUM+4*i,4)}, v7, s[8:11], s85 offen")
        else:
            o(f"s_add_u32 s85, s82, {8192*i}")
            o("v_cmp_gt_u32 vcc, 53, v0")
            o("v_mov_b32 v1, 0x40000000")
            o("s_nop 0")
            o("v_cndmask_b32 v1, v1, v7, vcc")
            o(f"buffer_load_dwordx4 {vr(DUM+4*i,4)}, v1, s[8:11], s85 offen")
    o(f"s_cmp_eq_u32 s{S_FIRST}, 0")
    o("s_cbranch_scc1 L2_ranks")
    o(f"s_mov_b32 s{S_FIRST}, 0")
    T()
    o("s_waitcnt vmcnt(23) lgkmcnt(0)")
    o("s_barrier")
    T()
    o(f"v_lshlrev_b32 v1, 4, v{L}")
    o(f"v_add_u32 v1, {STG}, v1")
    o("s_and_b32 s86, s3, 1")
    o("s_bfe_u32 s87, s3, 0x10001")
    o("s_lshr_b32 s88, s3, 2")
    o("s_lshl_b32 s89, s86, 13")
    o("s_lshl_b32 s90, s88, 12")
    o("s_add_u32 s89, s89, s90")
    o("s_add_u32 s89, s89, 16384")
    o("v_add_u32 v2, s89, v1")
    for s in range(4):
        o(f"ds_read_b128 {vr(BS+4*s,4)}, v2 offset:{1024*s}")
    o("s_lshl_b32 s90, s87, 12")
    o(f"s_add_u32 s90, s90, {XT}")
    for s in range(4):
        o(f"v_add_u32 v3, s90, v{AAD+s}")
        o(f"ds_read_b128 {vr(A+4*s,4)}, v3")
    for f in range(7):
        o(f"ds_read_b128 {vr(WB+4*f,4)}, v1 offset:{1024*f}")
    o("s_waitcnt lgkmcnt(7)")
    for s in range(4):
        o(mfma16(CA, A + 4*s, BS + 4*s, None if s == 0 else CA))
    for f in range(7, 16):
        o(f"ds_read_b128 {vr(WB+4*f,4)}, v1 offset:{1024*f}")
    for s in range(4):
        o(f"v_add_u32 v{AAD+s}, s75, v{AAD+s}")
    o(f"v_lshrrev_b32 v2, 5, v{L}")
    o("v_lshlrev_b32 v2, 2, v2")
    o("s_lshl_b32 s90, s87, 5")
    o("v_add_u32 v2, s90, v2")
    o("s_nop 7")
    o("s_cmp_eq_u32 s86, 1")
    o("s_cbranch_scc1 L2_xu")
    o("s_lshl_b32 s90, s88, 9")
    o(f"v_lshl_add_u32 v2, v2, 10, v{V_LBP}")
    o("v_add_u32 v2, s90, v2")
    o(f"s_mov_b32 s91, {NEG_LOG2E:#x}")
    def pwrite(r):
        t = BS + 4 * (r & 3)
        for c in range(4):
            o(f"v_mul_f32 v{t+c}, s91, v{CA+r}")
        o(f"ds_write_b128 v2, {vr(t,4)} offset:{P4 + (8*(r>>2)+(r&3))*1024}")
    for r in range(8): pwrite(r)
    o("s_cmp_eq_u32 s87, 1")
    o("s_cselect_b32 exec_hi, 0, -1")
    for r in range(8, 10): pwrite(r)
    o("s_mov_b64 exec, -1")
    o("s_cbranch_scc1 L2_pdone")
    for r in range(10, 16): pwrite(r)
    o("s_branch L2_pdone")
    o.lab("L2_xu")
    o("s_lshl_b32 s90, s88, 8")
    o(f"v_lshrrev_b32 v3, 1, v{V_LBP}")
    o("v_lshl_add_u32 v2, v2, 9, v3")
    o("v_add_u32 v2, s90, v2")
    def uwrite(r):
        t = BS + 2 * (r & 7)
        o(f"v_cvt_f64_f32 {vr(t,2)}, v{CA+r}")
        o(f"ds_write_b64 v2, {vr(t,2)} offset:{AGG + (8*(r>>2)+(r&3))*512}")
    for r in range(8): uwrite(r)
    o("s_cmp_eq_u32 s87, 1")
    o("s_cselect_b32 exec_hi, 0, -1")
    for r in range(8, 10): uwrite(r)
    o("s_mov_b64 exec, -1")
    o("s_cbranch_scc1 L2_pdone")
    for r in range(10, 16): uwrite(r)
    o.lab("L2_pdone")
    o("s_waitcnt lgkmcnt(0)")
    o.lab("L2_ranks")
    T()
    o("v_mov_b32 v1, 4")
    o(f"s_cmp_eq_u32 s{S_MORE}, 0")
    o("s_cbranch_scc1 L2_nomore")
    o(f"v_mov_b32 v2, {MORE}")
    o("ds_write_b32 v2, v1")
    o.lab("L2_nomore")
    o(f"v_mov_b32 v2, {CNT}")
    for i in range(16):
        o(f"s_waitcnt vmcnt({7+15-i})")
        o(f"s_mov_b64 exec, {sr(MASK+2*i,2)}")
        o(f"v_add_u32_sdwa v{CA+i}, v{REC+4*i+2}, v2 dst_sel:DWORD dst_unused:UNUSED_PAD src0_sel:BYTE_3 src1_sel:DWORD")
        o("s_nop 0")
        o(f"ds_add_rtn_u32 v{REC+4*i+3}, v{CA+i}, v1")
    o("s_mov_b64 exec, -1")
    o("s_waitcnt lgkmcnt(0)")
    T()
    o("s_barrier")
    T()
    o(f"v_lshl_add_u32 v1, v{L}, 2, v2")
    o("ds_read_b32 v3, v1")
    o(f"ds_read_b32 v4, v2 offset:256")
    o("s_waitcnt lgkmcnt(0)")
    o("v_add_u32 v5, 15, v3")
    o("v_and_b32 v5, -16, v5")
    o("v_mov_b32 v6, v5")
    o(f"v_readfirstlane_b32 s{S_MORE}, v4")
    o("s_nop 0")
    wave_scan(o, 6)
    o("s_nop 0")
    o(f"v_readlane_b32 s{S_TOT}, v6, 63")
    o("v_sub_u32 v6, v6, v5")
    o(f"s_cmp_gt_u32 s{S_TOT}, {(CAP-32)*4}")
    o("s_cbranch_scc0 L2_fits")
    o.c("window too large for LDS: clear the counters and redo with the small window")
    o("s_barrier")
    o("v_mov_b32 v3, 0")
    o("ds_write_b32 v1, v3")
    o("ds_write_b32 v2, v3 offset:256")
    o(f"s_mov_b32 s{S_W}, {WSMALL}")
    o("s_waitcnt vmcnt(0) lgkmcnt(0)")
    o("s_barrier")
    o("s_branch L2_pass")
    o.lab("L2_fits")
    o(f"v_add_u32 v4, {SRC}, v6")
    for i in range(16):
        o(f"ds_bpermute_b32 v{BS+i}, v{CA+i}, v4")
    o(f"s_add_u32 s{S_NT}, s{S_TOT}, 127")
    o(f"s_lshr_b32 s{S_NT}, s{S_NT}, 7")
    o(f"s_mov_b32 s92, {EA-2*SRC}")
    o("s_waitcnt lgkmcnt(0)")
    for i in range(16):
        o(f"s_mov_b64 exec, {sr(MASK+2*i,2)}")
        o(f"v_add_u32 v{BS+i}, v{BS+i}, v{REC+4*i+3}")
        o(f"v_and_b32 v{REC+4*i+2}, 0xffffff, v{REC+4*i+2}")
        o(f"v_lshl_add_u32 v{REC+4*i+3}, v{BS+i}, 1, s92")
        o(f"ds_write_b32 v{BS+i}, v{REC+4*i+2}")
        o(f"ds_write_b64 v{REC+4*i+3}, {vr(REC+4*i,2)}")
    o("s_mov_b64 exec, -1")
    o(f"v_mov_b32 v{BS}, {OOBSRC:#x}")
    o(f"v_mov_b32 v{BS+2}, 0")
    o(f"v_mov_b32 v{BS+3}, 0")
    o("s_lshl_b32 s93, s3, 2")
    o("v_add_u32 v3, s93, v3")
    o("v_cmp_lt_u32 vcc, v3, v5")
    o("v_add_u32 v3, v3, v4")
    o("v_lshl_add_u32 v4, v3, 1, s92")
    o("s_and_saveexec_b64 s[94:95], vcc")
    o(f"ds_write_b32 v3, v{BS}")
    o(f"ds_write_b64 v4, {vr(BS+2,2)}")
    o("s_mov_b64 exec, -1")
    o(f"v_lshl_add_u32 v3, v{L}, 2, s{S_TOT}")
    o(f"s_lshl_b32 s93, s{S_NT}, 7")
    o("v_cmp_gt_u32 vcc, s93, v3")
    o(f"v_add_u32 v3, {SRC}, v3")
    o("v_lshl_add_u32 v4, v3, 1, s92")
    o("s_and_saveexec_b64 s[94:95], vcc")
    o(f"ds_write_b32 v3, v{BS}")
    o(f"ds_write_b64 v4, {vr(BS+2,2)}")
    o("s_mov_b64 exec, -1")
    o(f"s_lshr_b32 s96, s{S_TOT}, 2")
    o(f"v_lshl_add_u32 v3, v{L}, 2, s96")
    o("s_lshr_b32 s93, s93, 2")
    o("v_cmp_gt_u32 vcc, s93, v3")
    o(f"v_add_u32 v3, {GN}, v3")
    o(f"v_mov_b32 v4, {49*1024}")
    o("s_and_saveexec_b64 s[94:95], vcc")
    o("ds_write_b32 v3, v4")
    o("s_mov_b64 exec, -1")
    o("v_lshrrev_b32 v5, 2, v5")
    o("v_lshrrev_b32 v6, 2, v6")
    o(f"v_add_u32 v6, {GN}, v6")
    o(f"v_lshlrev_b32 v4, 10, v{L}")
    o("s_lshl_b32 s93, s3, 2")
    o.lab("L2_gloop")
    o("v_cmp_lt_u32 vcc, s93, v5")
    o("v_add_u32 v3, s93, v6")
    o("s_and_saveexec_b64 s[94:95], vcc")
    o("s_cbranch_execz L2_gdone")
    o("ds_write_b32 v3, v4")
    o("s_mov_b64 exec, -1")
    o("s_add_u32 s93, s93, 32")
    o("s_branch L2_gloop")
    o.lab("L2_gdone")
    o("s_mov_b64 exec, -1")
    o("s_waitcnt lgkmcnt(0)")
    T()
    o("s_barrier")
    T()
    o("s_cmp_lg_u32 s3, 0")
    o("s_cbranch_scc1 L2_nz2")
    o("v_mov_b32 v3, 0")
    o("ds_write_b32 v1, v3")
    o("ds_write_b32 v2, v3 offset:256")
    o.lab("L2_nz2")
    o(f"s_mov_b32 s{S_T}, s3")
    o(f"s_cmp_ge_u32 s{S_T}, s{S_NT}")
    o("s_cbranch_scc1 L2_done")
    o(f"v_lshrrev_b32 v1, 3, v{L}")
    o("v_lshlrev_b32 v1, 4, v1")
    o("s_lshl_b32 s93, s3, 7")
    o(f"s_add_u32 s93, s93, {SRC}")
    o(f"v_add_u32 v{V_SRCA}, s93, v1")
    o(f"ds_read_b128 {vr(SV,4)}, v{V_SRCA}")
    o(f"v_lshrrev_b32 v1, 5, v{L}")
    o("s_lshl_b32 s93, s3, 5")
    o(f"s_add_u32 s93, s93, {GN}")
    o(f"v_lshl_add_u32 v{V_GNA}, v1, 2, s93")
    o(f"ds_read2_b32 {vr(GNR,2)}, v{V_GNA} offset0:0 offset1:2")
    o(f"ds_read2_b32 {vr(GNR+2,2)}, v{V_GNA} offset0:4 offset1:6")
    o("s_lshl_b32 s93, s3, 8")
    o(f"s_add_u32 s93, s93, {EA}")
    o(f"v_lshl_add_u32 v{V_EAA}, v{L}, 3, s93")
    o(f"v_mov_b32 v2, {ZERO8}")
    o(f"v_mov_b32 v{V_EAI}, 0x800")
    o(f"v_cmp_gt_u32 vcc, 32, v{L}")
    o("s_nop 1")
    o(f"v_cndmask_b32 v{V_EAA}, v2, v{V_EAA}, vcc")
    o(f"v_cndmask_b32 v{V_EAI}, 0, v{V_EAI}, vcc")
    o(f"ds_read_b64 {vr(EAR,2)}, v{V_EAA}")
    o("s_waitcnt lgkmcnt(3)")
    for j in range(4):
        o(f"v_add_u32 v{SV+j}, v{SV+j}, v{KJ+j}")
    dma_tile(o)
    o(f"ds_read_b128 {vr(SV,4)}, v{V_SRCA} offset:1024")
    o(f"v_add_u32 v{V_SRCA}, 0x800, v{V_SRCA}")
    o(f"v_add_u32 v{V_GNA}, 0x100, v{V_GNA}")
    o(f"v_add_u32 v{V_EAA}, v{V_EAI}, v{V_EAA}")
    o("s_waitcnt lgkmcnt(1)")
    for q in range(4):
        o(f"v_add_u32 v{ADP+q}, v{GNR+q}, v{V_LBP}")
    for q in range(4):
        o(f"ds_read_b128 {vr(G[0]+4*q,4)}, v{ADP+q} offset:{P4}")
    o("s_waitcnt vmcnt(0)")
    for s in range(4):
        o(f"ds_read_b128 {vr(A+4*s,4)}, v{AAD+s}")
    o("s_waitcnt lgkmcnt(0)")
    for j in range(4):
        o(f"v_add_u32 v{SV+j}, v{SV+j}, v{KJ+j}")
    o(f"s_add_u32 s27, s{S_T}, 8")
    o(f"s_cmp_ge_u32 s27, s{S_NT}")
    o("s_cbranch_scc1 L2_nodma0")
    dma_tile(o)
    o.lab("L2_nodma0")
    for k in range(4):
        o(mfma16(G[0], A + 4*k, WB + 4*k, G[0]))
    o(mfma8(G[0], EAR, WC))
    for k in range(4):
        o(mfma16(H[0], A + 4*k, WV + 4*k, None if k == 0 else H[0]))
    o("s_nop 7")
    T(); T(True)
    o(".p2align 3")
    o.lab("L2_loop")
    stage(o, 0, cfg)
    stage(o, 1, cfg)
    o(f"s_add_u32 s{S_T}, s{S_T}, 8")
    o(f"s_cmp_lt_u32 s{S_T}, s{S_NT}")
    o("s_cbranch_scc1 L2_loop")
    o.lab("L2_done")
    o("s_waitcnt vmcnt(0) lgkmcnt(0)")
    T(); T(True)
    o("s_barrier")
    o(f"s_cmp_eq_u32 s{S_MORE}, 0")
    o("s_cbranch_scc1 L2_out")
    o(f"s_add_u32 s{S_OFF}, s{S_OFF}, s{S_W}")
    o("s_nop 15")
    o("s_branch L2_pass")
    o.lab("L2_out")
    o("v_cmp_gt_u32 vcc, 392, v0")
    o("s_and_saveexec_b64 s[94:95], vcc")
    o("s_cbranch_execz L2_fin")
    o("v_lshlrev_b32 v1, 6, v0")
    for c in range(4):
        o(f"ds_read_b128 {vr(80+4*c,4)}, v1 offset:{AGG+16*c}")
    o("s_lshl_b32 s93, s78, 7")
    o("v_add_u32 v2, s93, v7")
    o("s_waitcnt lgkmcnt(0)")
    for r in range(8): o(f"v_cvt_f32_f64 v{64+r}, {vr(80+2*r,2)}")
    for r in range(8): o(f"v_mul_f32 v{72+r}, {NEG_LOG2E:#x}, v{64+r}")
    for r in range(8): o(f"v_exp_f32 v{72+r}, v{72+r}")
    for r in range(8): o(f"v_add_f32 v{72+r}, 1.0, v{72+r}")
    for r in range(8): o(f"v_rcp_f32 v{72+r}, v{72+r}")
    for r in range(8): o(f"v_mul_f32 v{64+r}, v{64+r}, v{72+r}")
    for r in range(4): o(f"v_cvt_pk_bf16_f32 v{72+r}, v{64+2*r}, v{65+2*r}")
    o("buffer_store_dwordx4 v[72:75], v2, s[16:19], 0 offen")
    o.lab("L2_fin")
    if T.on:
        o("s_waitcnt vmcnt(0)"); T(); T(True); T.dump(12, 3, 1, V_LANE)
    o.lab("L2_end")
    o("s_endpgm")
    return o.text()

HEADER = """; Edge-gated MPNN layer: out = silu(x@U + sum over edges with dst=i of sigmoid(x[dst]@A + x[src]@B + e@C) * (x[src]@V))
; @launch kernel=bin_kernel grid=(256,1,1) block=(1024,1,1) lds={l1}
; @launch kernel=edge_kernel grid=(256,1,1) block=(512,1,1) lds={l2}
.amdgcn_target "amdgcn-amd-amdhsa--gfx950"
.text
"""
def kd(name, vg, sg):
    return f""".amdhsa_kernel {name}
  .amdhsa_next_free_vgpr {vg}
  .amdhsa_next_free_sgpr {sg}
  .amdhsa_accum_offset {(vg+3)//4*4}
  .amdhsa_group_segment_fixed_size 0
  .amdhsa_kernarg_size 80
  .amdhsa_user_sgpr_count 2
  .amdhsa_user_sgpr_kernarg_segment_ptr 1
  .amdhsa_system_sgpr_workgroup_id_x 1
  .amdhsa_float_denorm_mode_32 3
.end_amdhsa_kernel
"""
def build(cfg):
    s = HEADER.format(l1=K1_LDS, l2=K2_LDS)
    nn = cfg.get("nops", 0)
    if nn:
        line = "; @launch kernel=nop_kernel grid=(1,1,1) block=(64,1,1) lds=0\n"
        if cfg.get("nopfirst", 0): s = s.replace("; @launch kernel=bin_kernel", line * nn + "; @launch kernel=bin_kernel")
        else: s = s.replace(".amdgcn_target", line * nn + ".amdgcn_target")
        s += ".globl nop_kernel\n.p2align 8\n.type nop_kernel,@function\nnop_kernel:\n    s_endpgm\n"
    for name, fn in (("bin_kernel", kernel1), ("edge_kernel", kernel2)):
        s += f".globl {name}\n.p2align 8\n.type {name},@function\n" + fn(cfg)
    s += '.section .rodata,"a"\n.p2align 6\n' + kd("bin_kernel", 64, 100) + ".p2align 6\n" + kd("edge_kernel", 256, 100)
    if nn: s += ".p2align 6\n" + kd("nop_kernel", 8, 16)
    return s

if __name__ == "__main__":
    cfg = {}
    out = sys.argv[1]
    for a in sys.argv[2:]:
        k, v = a.split("=")
        cfg[k] = int(v) if v.lstrip("-").isdigit() else v
    open(out, "w").write(build(cfg))
```

```python
import sys
from gen import Asm, Stamper, vr, sr, srd, wave_scan, kd, mfma16

N = 12500; E = 800000; NPB = 49; CH = 3128; CHB = CH * 12
WS_DESC = 0x00A00000; WS_FRAG = 0x00A80000; WS_SIZE = 0x00C00000
WS_T = 0x00C00000; T_BYTES = 256 * NPB * 256
NULLROW = N * 256
XSHIFT = 4096
NEG_LOG2E = 0xBFB8AA3B
MAGIC49 = 21400

def swz_consts(o, L, kj, t0, t1):
    o(f"v_lshrrev_b32 v{t0}, 3, v{L}")
    o(f"v_and_b32 v{t1}, 7, v{L}")
    o(f"v_lshrrev_b32 v{kj}, 5, v{L}")
    o(f"v_lshlrev_b32 v{kj}, 2, v{kj}")
    o(f"v_xor_b32 v{t1}, v{t1}, v{kj}")
def aread_addrs(o, L, aad, t0, t1, t2):
    o(f"v_and_b32 v{t0}, 3, v{L}")
    o(f"v_bfe_u32 v{t1}, v{L}, 2, 3")
    o(f"v_lshl_add_u32 v{t1}, v{t0}, 3, v{t1}")
    o(f"v_lshlrev_b32 v{t1}, 7, v{t1}")
    o(f"v_bfe_u32 v{t2}, v{L}, 4, 1")
    o(f"v_lshl_or_b32 v{t0}, v{t2}, 2, v{t0}")
    o(f"v_lshrrev_b32 v{t2}, 5, v{L}")
    o(f"v_xor_b32 v{t0}, v{t0}, v{t2}")
    for s in range(4):
        o(f"v_xor_b32 v{aad+s}, {2*s}, v{t0}")
        o(f"v_lshl_add_u32 v{aad+s}, v{aad+s}, 4, v{t1}")

K1_HIST = 0; K1_STAGE = 1024; K1_TST = 38912; K1_PB = K1_TST + 16384; K1_TW = K1_PB + 14 * 1024
K1_LDS = K1_TW + 32768
assert K1_STAGE + CHB <= K1_TST
def kernel1(cfg):
    o = Asm()
    ST = cfg.get("st1", "sc0 sc1"); LD = cfg.get("ld1", "nt")
    T = Stamper(o, cfg.get("stamp", 0), 36, 0)
    if cfg.get("dbg", -1) == 0: T.dbgwg = cfg.get("dbgwg", 100); T.dbgback = -512
    o.lab("bin_kernel")
    o("s_cmp_ge_u32 s2, 256")
    o("s_cbranch_scc1 L1_end")
    T(True); T()
    o("s_load_dwordx4 s[40:43], s[0:1], 16")
    o("s_load_dwordx4 s[36:39], s[0:1], 0")
    o("s_load_dwordx4 s[44:47], s[0:1], 32")
    o("s_load_dwordx2 s[48:49], s[0:1], 48")
    o("s_load_dwordx2 s[50:51], s[0:1], 72")
    o("v_lshrrev_b32 v1, 6, v0")
    o("s_movk_i32 s4, 782")
    o("s_cmp_eq_u32 s2, 255")
    o("s_cselect_b32 s4, 590, s4")
    o("v_readfirstlane_b32 s3, v1")
    o("s_mul_i32 s5, s2, 12512")
    o("v_subrev_u32 v4, 192, v0")
    o("v_lshl_add_u32 v2, v4, 4, s5")
    o("v_lshlrev_b32 v3, 1, v2")
    o("v_cmp_gt_u32 s[52:53], s4, v4")
    o("v_and_b32 v1, 63, v0")
    o(f"s_mov_b32 s10, {E*4}"); o("s_mov_b32 s11, 0x00020000")
    o(f"s_mov_b32 s14, {E*4}"); o("s_mov_b32 s15, 0x00020000")
    o(f"s_mov_b32 s18, {E*8}"); o("s_mov_b32 s19, 0x00020000")
    o(f"s_mov_b32 s22, {WS_T+T_BYTES}"); o("s_mov_b32 s23, 0x00020000")
    o("s_waitcnt lgkmcnt(0)")
    for d, p in ((8, 42), (12, 40), (16, 38), (20, 50)):
        o(f"s_mov_b32 s{d}, s{p}"); o(f"s_and_b32 s{d+1}, s{p+1}, 0xffff")
    o("s_mov_b64 exec, s[52:53]")
    o("s_cbranch_execz L1_noload")
    o(f"buffer_load_dwordx4 v[4:7], v2, s[8:11], 0 offen {LD}")
    o(f"buffer_load_dwordx4 v[8:11], v2, s[12:15], 0 offen {LD}")
    o(f"buffer_load_dwordx4 v[12:15], v3, s[16:19], 0 offen {LD}")
    o(f"buffer_load_dwordx4 v[16:19], v3, s[16:19], 0 offen offset:16 {LD}")
    o.lab("L1_noload")
    o("s_mov_b64 exec, -1")
    o("s_cmp_gt_u32 s3, 2")
    o("s_cbranch_scc1 L1_barA")
    o("s_cmp_eq_u32 s3, 2")
    o("s_cbranch_scc1 L1_w13")
    o.c("table waves: LDS-DMA of 64 x rows and one channel half of B and V")
    o(f"s_sub_u32 s24, s36, {XSHIFT}"); o("s_subb_u32 s25, s37, 0"); o("s_and_b32 s25, s25, 0xffff")
    o(f"s_mov_b32 s26, {N*128+XSHIFT}"); o("s_mov_b32 s27, 0x00020000")
    srd(o, 28, 48, 132 * 128)
    srd(o, 32, 46, 64 * 128)
    o("s_mov_b32 s6, s3")
    o("s_lshl_b32 s7, s6, 14")
    o(f"s_add_u32 s7, s7, {K1_TW}")
    swz_consts(o, 1, 20, 24, 25)
    o("s_mul_i32 s54, s2, 49")
    o("s_lshl_b32 s54, s54, 7")
    o(f"s_add_u32 s54, s54, {XSHIFT}")
    o("v_lshl_add_u32 v24, v24, 9, s54")
    for j in range(4):
        o(f"v_xor_b32 v{20+j}, {j}, v25")
        o(f"v_lshl_add_u32 v{20+j}, v{20+j}, 4, v24")
        if j: o(f"v_subrev_u32 v{20+j}, {896*j}, v{20+j}")
    o("s_mov_b32 m0, s7")
    o("s_add_u32 s55, s7, 4096")
    for j in range(4):
        o(f"buffer_load_dwordx4 v{20+j}, s[24:27], 0 offen offset:{1024*j} {cfg.get('ldx', 'nt')} lds")
    for j in range(4):
        o(f"v_add_u32 v{20+j}, 0x1000, v{20+j}")
    o("s_mov_b32 m0, s55")
    o("s_add_u32 s55, s7, 8192")
    for j in range(4):
        o(f"buffer_load_dwordx4 v{20+j}, s[24:27], 0 offen offset:{1024*j} {cfg.get('ldx', 'nt')} lds")
    o("v_lshrrev_b32 v24, 2, v1")
    o("v_and_b32 v25, 3, v1")
    o("v_lshlrev_b32 v24, 7, v24")
    o("v_lshl_add_u32 v24, v25, 4, v24")
    o("s_lshl_b32 s54, s6, 6")
    o("v_add_u32 v24, s54, v24")
    o("s_mov_b32 m0, s55")
    o("s_add_u32 s55, s7, 12288")
    for i in range(4):
        o(f"s_movk_i32 s54, {8192+1024*i}")
        o(f"buffer_load_dwordx4 v24, s[28:31], s54 offen offset:{1024*i} {cfg.get('ldw', 'nt')} lds")
    o("s_mov_b32 m0, s55")
    for i in range(4):
        o(f"s_movk_i32 s54, {1024*i}")
        o(f"buffer_load_dwordx4 v24, s[32:35], s54 offen offset:{1024*i} {cfg.get('ldw', 'nt')} lds")
    aread_addrs(o, 1, 20, 24, 25, 26)
    for s in range(4):
        o(f"v_add_u32 v{20+s}, s7, v{20+s}")
    o("v_and_b32 v24, 31, v1")
    o("v_lshrrev_b32 v25, 5, v1")
    o("v_lshlrev_b32 v26, 9, v25")
    o("v_lshl_add_u32 v26, v24, 1, v26")
    o("v_add_u32 v26, s7, v26")
    o("v_lshlrev_b32 v27, 10, v25")
    o("v_lshl_add_u32 v27, v24, 2, v27")
    o("s_lshl_b32 s54, s6, 7")
    o("v_add_u32 v27, s54, v27")
    o("s_barrier")
    o("s_waitcnt vmcnt(0)")
    T()
    for m in range(2):
        for s in range(4):
            for j in range(8):
                op = "ds_read_u16_d16_hi" if j & 1 else "ds_read_u16"
                o(f"{op} v{64+32*(j&1)+16*m+4*s+(j>>1)}, v26 offset:{8192+4096*m+1024*s+64*j}")
    for s in range(4):
        o(f"ds_read_b128 {vr(40+4*s,4)}, v{20+s}")
    o("s_mov_b32 s54, 0xffff0000")
    o("s_waitcnt lgkmcnt(0)")
    for i in range(32):
        o(f"v_and_or_b32 v{64+i}, v{96+i}, s54, v{64+i}")
    T()
    o("s_setprio 2")
    o(f"s_mov_b32 s54, {NEG_LOG2E:#x}")
    o("s_mov_b32 s55, 0x7fff0000")
    o("s_brev_b32 s56, 1")
    for rt in range(2):
        for s in range(4):
            o(mfma16(96, 40+4*s, 64+4*s, None if s == 0 else 96))
        for s in range(4):
            o(mfma16(112, 40+4*s, 80+4*s, None if s == 0 else 112))
        if rt == 0:
            for s in range(4):
                o(f"ds_read_b128 {vr(40+4*s,4)}, v{20+s} offset:4096")
            o("s_nop 3")
        else:
            o("s_nop 7")
        for r in range(16):
            o(f"v_mul_f32 v{96+r}, s54, v{96+r}")
        for r in range(0, 16, 2):
            o(f"v_cvt_pk_bf16_f32 v{96+r}, v{96+r}, v{97+r}")
            o(f"v_lshrrev_b32 v{97+r}, 16, v{96+r}")
            o(f"v_and_b32 v{96+r}, 0xffff, v{96+r}")
        for r in range(16):
            t = 56 + (r & 3)
            o(f"v_and_b32 v{t}, 0x7fffffff, v{112+r}")
            o(f"v_sub_u32 v{t}, v{t}, v{96+r}")
            o(f"v_add_u32 v{t}, 0x8000, v{t}")
            o(f"v_max_i32 v{t}, 0, v{t}")
            o(f"v_and_or_b32 v{t}, v{t}, s55, v{96+r}")
            o(f"v_and_or_b32 v{t}, v{112+r}, s56, v{t}")
            o(f"ds_write_b32 v27, v{t} offset:{K1_TST + (32*rt + 8*(r>>2) + (r&3))*256}")
        o("s_waitcnt lgkmcnt(0)")
    T()
    o("s_setprio 0")
    o("s_barrier")
    o("s_branch L1_barD")
    o.lab("L1_w13")
    if cfg.get("touch", 1):
        o.c("touch the workspace pages this workgroup stores to later (address translation only, data unused)")
        o(f"s_mul_i32 s54, s2, {CHB}")
        o(f"s_mul_i32 s55, s2, {NPB*256}")
        o(f"s_add_u32 s55, s55, {WS_T}")
        o(f"s_mov_b32 s56, {WS_DESC}")
        o("v_mov_b32 v60, 0")
        for sreg in (54, 55, 56):
            o(f"buffer_load_dword v61, v60, s[20:23], s{sreg} offen")
        o(f"s_add_u32 s54, s54, {CHB-4}")
        o("buffer_load_dword v61, v60, s[20:23], s54 offen")
    for i in range(4): o(f"v_mov_b32 v{32+i}, 0")
    o("v_lshlrev_b32 v21, 4, v1")
    o(f"ds_write_b128 v21, v[32:35] offset:{K1_HIST}")
    o("s_cmp_ge_u32 s2, 17")
    o("s_cbranch_scc1 L1_w13a")
    o("s_cmp_lt_u32 s2, 8")
    o("s_cselect_b32 s28, s48, s44")
    o("s_cselect_b32 s29, s49, s45")
    o("s_cmp_eq_u32 s2, 16")
    o("s_cselect_b32 s28, s48, s28")
    o("s_cselect_b32 s29, s49, s29")
    o("s_and_b32 s29, s29, 0xffff")
    o("s_bitcmp1_b32 s2, 3")
    o("s_movk_i32 s30, 16896")
    o("s_cselect_b32 s30, 8192, s30")
    o("s_mov_b32 s31, 0x00020000")
    o("s_cmp_eq_u32 s2, 16")
    o("s_cbranch_scc1 L1_fragC")
    o("s_and_b32 s54, s2, 3")
    o("s_lshl_b32 s54, s54, 11")
    o("s_bfe_u32 s55, s2, 0x10002")
    o("s_lshl_b32 s55, s55, 6")
    o("s_add_u32 s54, s54, s55")
    o("v_and_b32 v22, 31, v1")
    o("v_lshrrev_b32 v23, 5, v1")
    o("v_lshlrev_b32 v23, 10, v23")
    o("v_lshl_add_u32 v22, v22, 1, v23")
    o("v_add_u32 v22, s54, v22")
    for j in range(8):
        o(f"buffer_load_ushort v{40+4*(j&1)+(j>>1)}, v22, s[28:31], 0 offen offset:{128*j}")
    o("s_lshl_b32 s55, s2, 10")
    o(f"s_add_u32 s55, s55, {WS_FRAG}")
    o("s_waitcnt lgkmcnt(0)")
    o("s_barrier")
    o("s_waitcnt vmcnt(0)")
    for j in range(4): o(f"v_lshl_or_b32 v{40+j}, v{44+j}, 16, v{40+j}")
    o(f"buffer_store_dwordx4 v[40:43], v21, s[20:23], s55 offen {ST}")
    o("s_branch L1_barB")
    o.lab("L1_fragC")
    o("v_lshlrev_b32 v22, 1, v1")
    o("v_add_u32 v22, 0x4000, v22")
    for j in range(4):
        o(f"buffer_load_ushort v{40+j}, v22, s[28:31], 0 offen offset:{128*j}")
    o(f"s_mov_b32 s55, {WS_FRAG+16*1024}")
    o("v_lshlrev_b32 v22, 3, v1")
    o("s_waitcnt lgkmcnt(0)")
    o("s_barrier")
    o("s_waitcnt vmcnt(0)")
    for j in range(4): o(f"v_lshlrev_b32 v{40+j}, 16, v{40+j}")
    for j in range(4): o(f"v_mul_f32 v{40+j}, {NEG_LOG2E:#x}, v{40+j}")
    o("v_cvt_pk_bf16_f32 v40, v40, v41")
    o("v_cvt_pk_bf16_f32 v41, v42, v43")
    o(f"buffer_store_dwordx2 v[40:41], v22, s[20:23], s55 offen {ST}")
    o("s_branch L1_barB")
    o.lab("L1_w13a")
    o("s_waitcnt lgkmcnt(0)")
    o.lab("L1_barA")
    T()
    o("s_barrier")
    o("s_mov_b64 exec, s[52:53]")
    o("s_cbranch_execz L1_histdone")
    o(f"s_movk_i32 s56, {MAGIC49}")
    o("v_mov_b32 v20, 1")
    o("s_waitcnt vmcnt(3)")
    T()
    for i in range(4): o(f"v_mul_u32_u24 v{24+i}, s56, v{4+i}")
    for i in range(4): o(f"v_lshrrev_b32 v{24+i}, 20, v{24+i}")
    for i in range(4):
        o(f"v_lshlrev_b32 v{28+i}, 2, v{24+i}")
        o(f"ds_add_rtn_u32 v{32+i}, v{28+i}, v20 offset:{K1_HIST}")
    for i in range(4): o(f"v_mul_u32_u24 v{24+i}, 49, v{24+i}")
    for i in range(4): o(f"v_sub_u32 v{4+i}, v{4+i}, v{24+i}")
    for i in range(4): o(f"v_lshlrev_b32 v{4+i}, 26, v{4+i}")
    o("s_waitcnt vmcnt(2)")
    for i in range(4): o(f"v_lshl_or_b32 v{8+i}, v{8+i}, 8, v{4+i}")
    o("s_waitcnt lgkmcnt(0)")
    o.lab("L1_histdone")
    o("s_mov_b64 exec, -1")
    o.lab("L1_barB")
    T()
    o("s_barrier")
    T()
    o.c("every wave scans the 256 bucket counts for itself")
    o("v_lshlrev_b32 v21, 4, v1")
    o(f"ds_read_b128 v[40:43], v21 offset:{K1_HIST}")
    o("s_sub_u32 s57, s3, 2")
    o("s_lshl_b32 s57, s57, 10")
    o("v_add_u32 v22, s57, v21")
    for i in range(4): o(f"v_add_u32 v{28+i}, s57, v{28+i}")
    o("s_waitcnt lgkmcnt(0)")
    o("v_add_u32 v45, v40, v41")
    o("v_add_u32 v46, v45, v42")
    o("v_add_u32 v47, v46, v43")
    o("v_mov_b32 v48, v47")
    o("s_nop 1")
    wave_scan(o, 48)
    o("v_sub_u32 v48, v48, v47")
    o("v_add_u32 v49, v48, v40")
    o("v_add_u32 v50, v48, v45")
    o("v_add_u32 v51, v48, v46")
    for j in range(4): o(f"v_mul_u32_u24 v{48+j}, 12, v{48+j}")
    o(f"ds_write_b128 v22, v[48:51] offset:{K1_PB}")
    o("s_cmp_lg_u32 s3, 2")
    o("s_cbranch_scc1 L1_scat")
    for j in range(4): o(f"v_lshl_or_b32 v{40+j}, v{40+j}, 16, v{48+j}")
    o("s_lshl_b32 s55, s2, 10")
    o(f"s_add_u32 s55, s55, {WS_DESC}")
    o(f"buffer_store_dwordx4 v[40:43], v21, s[20:23], s55 offen {ST}")
    o.lab("L1_scat")
    o("s_mov_b64 exec, s[52:53]")
    o("s_cbranch_execz L1_scatdone")
    for i in range(4): o(f"ds_read_b32 v{24+i}, v{28+i} offset:{K1_PB}")
    o("s_waitcnt lgkmcnt(0)")
    for i in range(4): o(f"v_mad_u32_u24 v{24+i}, v{32+i}, 12, v{24+i}")
    for i in range(4): o(f"ds_write_b32 v{24+i}, v{8+i} offset:{K1_STAGE+8}")
    for i in range(4): o(f"v_add_u32 v{24+i}, {K1_STAGE}, v{24+i}")
    o("s_waitcnt vmcnt(0)")
    T()
    for i in range(4): o(f"ds_write2_b32 v{24+i}, v{12+2*i}, v{13+2*i} offset0:0 offset1:1")
    o.lab("L1_scatdone")
    o("s_mov_b64 exec, -1")
    o("s_waitcnt lgkmcnt(0)")
    o.lab("L1_barD")
    o("s_barrier")
    T()
    o("v_lshlrev_b32 v20, 4, v0")
    o(f"s_mul_i32 s55, s2, {CHB}")
    o(f"s_mul_i32 s56, s2, {NPB*256}")
    o(f"s_add_u32 s56, s56, {WS_T}")
    o(f"ds_read_b128 v[24:27], v20 offset:{K1_STAGE}")
    o(f"ds_read_b128 v[28:31], v20 offset:{K1_STAGE+16384}")
    o(f"ds_read_b128 v[40:43], v20 offset:{K1_TST}")
    o(f"ds_read_b128 v[32:35], v20 offset:{K1_STAGE+32768}")
    o("v_add_u32 v21, 16384, v20")
    o("v_add_u32 v22, 32768, v20")
    o("v_cmp_gt_u32 vcc, 784, v0")
    o("s_movk_i32 s57, 298")
    o("v_cmp_gt_u32 s[60:61], s57, v0")
    o("s_waitcnt lgkmcnt(3)")
    o(f"buffer_store_dwordx4 v[24:27], v20, s[20:23], s55 offen {ST}")
    o("s_waitcnt lgkmcnt(2)")
    o(f"buffer_store_dwordx4 v[28:31], v21, s[20:23], s55 offen {ST}")
    o("s_mov_b64 exec, vcc")
    o("s_cbranch_execz L1_fin")
    o("s_waitcnt lgkmcnt(1)")
    o(f"buffer_store_dwordx4 v[40:43], v20, s[20:23], s56 offen {ST}")
    o("s_mov_b64 exec, s[60:61]")
    o("s_cbranch_execz L1_fin")
    o("s_waitcnt lgkmcnt(0)")
    o(f"buffer_store_dwordx4 v[32:35], v22, s[20:23], s55 offen {ST}")
    o.lab("L1_fin")
    if T.on:
        T(); o("s_waitcnt vmcnt(0)"); T(); T(True); T.dump(20, 3, 40, 1)
    o.lab("L1_end")
    o("s_endpgm")
    return o.text()

CAP = 4096
PT = 0; AGG = 13312; SRC = 38912; EA = SRC + CAP * 4 + 256; CNT = EA + CAP * 8 + 512
MORE = CNT + 256; FR = 90112; XT = FR + 16384; K2_LDS = XT + 8192
assert CNT % 256 == 0 and CNT + 320 <= FR and EA % 8 == 0
WSMALL = (CAP - 4 * NPB - 15) // 256

R = [64, 80, 96, 112]; G = [32, 48]
EAR = 30; CW = 28; SELA = 26; SELB = 24; PC = 20; PN = 19; ACC = 18; F64 = 16
V_SA = 15; V_EAA = 14; V_PA = 13; V_FA = 12; V_LANE = 10; V_DESC = 9; V_LB = 8; V_T16 = 7
REC = 64; CA = 96; BS = 104; DUM = 112; AAD = 20; PA_ = 32; PB_ = 48; PD = 96
S_W = 20; S_OFF = 21; S_REM = 22; S_FIRST = 24; S_MORE = 25; S_TOT = 26; MK = 76
MASK = 32; SOFF = 64

def m4(d, a, b, c, extra=""):
    return f"v_mfma_f32_4x4x4_16b_bf16 {vr(d,4)}, {vr(a,2)}, {vr(b,2)}, {vr(c,4)}{extra}"

def pswitch(o, lab, back):
    o.lab(lab)
    o("s_waitcnt lgkmcnt(0)")
    for c in range(4): o(f"v_mov_b32 v{PC+c}, v{PN}")
    o(f"v_add_u32 v{V_PA}, 0x100, v{V_PA}")
    o(f"ds_read_b32 v{PN}, v{V_PA} offset:{PT}")
    o(f"s_branch {back}")

def flush(o):
    o(f"v_cvt_f64_f32 {vr(F64,2)}, v{ACC}")
    o(f"ds_add_f64 v{V_FA}, {vr(F64,2)} offset:{AGG}")

def stage(o, tail, u, cfg):
    gc, gn = G[u & 1], G[(u + 1) & 1]
    rc, rn, rl = R[u], R[(u + 1) & 3], R[(u + 3) & 3]
    un = (u + 1) & 3
    prio = cfg.get("prio", 1)
    for q in range(4):
        o(f"ds_read_b128 {vr(rl+4*q,4)}, v{V_SA} offset:{SRC + (u+3)*64 + 16*q}")
    o(f"s_cmp_gt_u32 s{S_REM}, 2")
    o(f"s_cbranch_scc0 L2_tw{u}")
    o.lab(f"L2_tb{u}")
    tail.lab(f"L2_tw{u}")
    tail("s_waitcnt vmcnt(0)")
    tail(f"s_branch L2_tb{u}")
    o(f"s_and_b32 s27, s{MK}, 0xf0")
    if prio: o("s_setprio 1")
    o(f"s_cbranch_scc1 L2_se{u}")
    tail.lab(f"L2_se{u}")
    late = Asm()
    for oo in (o, tail):
        for r in range(8):
            if r in (0, 2, 4, 6):
                g = r >> 1
                if oo is tail:
                    oo(f"s_bitcmp1_b32 s{MK}, {4+g}")
                    oo(f"s_cbranch_scc1 L2_ps{u}_{g}")
                    oo.lab(f"L2_pb{u}_{g}")
                    pswitch(late, f"L2_ps{u}_{g}", f"L2_pb{u}_{g}")
                oo(m4(gn+4*g, EAR, CW, PC, f" cbsz:4 abid:{4*un+g}"))
            oo(f"v_exp_f32 v{gc+r}, v{gc+r}")
    tail(f"s_branch L2_eb{u}")
    tail.l += late.l
    o.lab(f"L2_eb{u}")
    if u == 2:
        o(f"ds_read_b64 {vr(EAR,2)}, v{V_EAA} offset:{EA+512}")
    o("s_waitcnt vmcnt(16)")
    for r in range(8, 16):
        if r in (8, 10, 12, 14):
            g = (r - 8) >> 1
            o(m4(gn+4*g, SELA, rn+4*g, gn+4*g))
        o(f"v_exp_f32 v{gc+r}, v{gc+r}")
    if prio: o("s_setprio 0")
    for r in range(16):
        o(f"v_add_f32 v{gc+r}, 1.0, v{gc+r}")
    if prio: o("s_setprio 1")
    lp = cfg.get("lp", "end")
    def ld(oo, r):
        if not cfg.get("noload", 0):
            oo(f"buffer_load_dword v{rl+r}, v{V_SA if cfg.get('sameload', 0) else rl+r}, s[8:11], 0 offen {cfg.get('ldt', '')}")
    if lp == "rcp":
        o(f"s_cmp_gt_u32 s{S_REM}, 3")
        o("s_waitcnt lgkmcnt(0)")
        o(f"s_cbranch_scc0 L2_nr{u}")
        tail.lab(f"L2_nr{u}")
    for oo in ((o, tail) if lp == "rcp" else (o,)):
        for r in range(16):
            if r in (0, 2, 4, 6):
                g = r >> 1
                oo(m4(gn+4*g, SELB, rn+4*g+2, gn+4*g))
            oo(f"v_rcp_f32 v{gc+r}, v{gc+r}")
            if lp == "rcp" and oo is o: ld(o, r)
            if r == 14: oo(f"s_and_b32 s27, s{MK}, 15")
    if lp == "rcp":
        tail(f"s_branch L2_rb{u}")
        o.lab(f"L2_rb{u}")
    if prio: o("s_setprio 0")
    o(f"s_cbranch_scc1 L2_sf{u}")
    for r in range(16):
        o(f"v_fmac_f32 v{ACC}, v{gc+r}, v{rc+r}")
    o.lab(f"L2_fb{u}")
    tail.lab(f"L2_sf{u}")
    for g in range(4):
        tail(f"s_bitcmp1_b32 s{MK}, {g}")
        tail(f"s_cbranch_scc0 L2_sk{u}_{g}")
        flush(tail)
        tail(f"v_add_u32 v{V_FA}, 0x200, v{V_FA}")
        tail(f"v_mov_b32 v{ACC}, 0")
        tail.lab(f"L2_sk{u}_{g}")
        for r in range(4*g, 4*g+4):
            tail(f"v_fmac_f32 v{ACC}, v{gc+r}, v{rc+r}")
    tail(f"s_branch L2_fb{u}")
    if u == 3:
        o(f"v_add_u32 v{V_SA}, 0x100, v{V_SA}")
        o(f"v_add_u32 v{V_EAA}, 0x200, v{V_EAA}")
    if lp == "end":
        o(f"s_cmp_gt_u32 s{S_REM}, 3")
        o(f"s_cbranch_scc0 L2_nl{u}")
        o("s_waitcnt lgkmcnt(0)")
        for r in range(16): ld(o, r)
        o.lab(f"L2_nl{u}")
    o(f"s_lshr_b64 {sr(MK,2)}, {sr(MK,2)}, 4")
    o(f"s_sub_u32 s{S_REM}, s{S_REM}, 1")
    o(f"s_cmp_lg_u32 s{S_REM}, 0")
    if u == 2: o("s_waitcnt lgkmcnt(0)")
    if u < 3: o("s_cbranch_scc0 L2_last")
    else: o("s_cbranch_scc1 L2_loop")

def kernel2(cfg):
    o = Asm(); tail = Asm()
    WE = cfg.get("we", 0); WL = cfg.get("wl", 0); LDR = cfg.get("ld2", "")
    T = Stamper(o, cfg.get("stamp", 0), 11, 1)
    if cfg.get("dbg", -1) == 1: T.dbgwg = cfg.get("dbgwg", 100); T.dbgback = 0
    L = V_LANE
    o.lab("edge_kernel")
    o("s_cmp_ge_u32 s2, 256")
    o("s_cbranch_scc1 L2_end")
    T(True); T()
    o("s_load_dwordx2 s[28:29], s[0:1], 72")
    o("s_load_dwordx2 s[4:5], s[0:1], 0")
    o("s_load_dwordx2 s[6:7], s[0:1], 56")
    o("v_lshrrev_b32 v1, 6, v0")
    o(f"v_and_b32 v{L}, 63, v0")
    o("s_and_b32 s30, s2, 7")
    o("s_lshl_b32 s30, s30, 5")
    o("s_lshr_b32 s31, s2, 3")
    o("v_readfirstlane_b32 s3, v1")
    o("s_add_u32 s30, s30, s31")
    o(f"v_lshrrev_b32 v2, 4, v{L}")
    o(f"v_and_b32 v3, 15, v{L}")
    o("v_and_b32 v4, 3, v3")
    o("s_lshl_b32 s27, s3, 4")
    o("v_lshl_add_u32 v2, v2, 2, s27")
    o("v_add_u32 v4, v2, v4")
    o("s_lshl_b32 s72, s30, 2")
    o(f"s_add_u32 s72, s72, {WS_DESC}")
    o("v_lshlrev_b32 v4, 10, v4")
    o(f"s_mov_b32 s14, {WS_T+T_BYTES}"); o("s_mov_b32 s15, 0x00020000")
    o("s_waitcnt lgkmcnt(0)")
    o("s_mov_b32 s12, s28"); o("s_and_b32 s13, s29, 0xffff")
    o(f"buffer_load_dword v{V_DESC}, v4, s[12:15], s72 offen")
    o(f"v_lshlrev_b32 v5, 3, v{L}")
    o(f"s_mov_b32 s73, {WS_FRAG+16*1024}")
    o(f"buffer_load_dwordx2 {vr(CW,2)}, v5, s[12:15], s73 offen")
    o(f"v_lshlrev_b32 v5, 4, v{L}")
    o("s_lshl_b32 s74, s3, 10")
    o(f"s_add_u32 s75, s74, {FR}")
    o("s_mov_b32 m0, s75")
    o(f"s_add_u32 s73, s74, {WS_FRAG}")
    o("buffer_load_dwordx4 v5, s[12:15], s73 offen lds")
    srd(o, 16, 4, N * 128)
    swz_consts(o, L, 1, 6, 5)
    o("s_and_b32 s76, s3, 3")
    o("s_bfe_u32 s77, s3, 0x10002")
    o("v_xor_b32 v1, s76, v5")
    o("v_lshlrev_b32 v1, 4, v1")
    o("s_mul_i32 s78, s30, 49")
    o("s_lshl_b32 s79, s77, 5")
    o("s_add_u32 s79, s79, s78")
    o("s_add_u32 s79, s79, s76")
    o("s_lshl_b32 s79, s79, 7")
    o("v_lshl_add_u32 v1, v6, 9, v1")
    o("s_and_b32 s80, s74, 0x1fff")
    o(f"s_add_u32 s80, s80, {XT}")
    o("s_mov_b32 m0, s80")
    o("v_add_u32 v1, s79, v1")
    o("buffer_load_dwordx4 v1, s[16:19], 0 offen lds")
    o(f"s_add_u32 s8, s28, {WS_T}"); o("s_addc_u32 s9, s29, 0")
    o("s_and_b32 s9, s9, 0xffff"); o("s_or_b32 s9, s9, 0x40000")
    o(f"s_mov_b32 s10, {T_BYTES}"); o("s_mov_b32 s11, 0x00800000")
    o(f"v_lshlrev_b32 v{V_T16}, 4, v0")
    o("s_mul_i32 s82, s31, 100000")
    o(f"s_add_u32 s82, s82, {WS_T}")
    for i in range(WE):
        o(f"buffer_load_dwordx4 {vr(DUM,4)}, v{V_T16}, s[12:15], s82 offen")
        o("s_add_u32 s82, s82, 16384")
    for i in range(4):
        o(f"s_mov_b32 s{SOFF+i}, {i*CHB}")
    o("s_cmp_lg_u32 s3, 15")
    o("s_cbranch_scc1 L2_nz")
    o("v_mov_b32 v1, 0")
    o(f"v_lshlrev_b32 v4, 2, v{L}")
    o(f"v_add_u32 v4, {CNT}, v4")
    o("ds_write_b32 v4, v1")
    o("ds_write_b32 v4, v1 offset:64")
    o.lab("L2_nz")
    o(f"s_mov_b32 s81, {CHB}")
    o(f"v_mul_lo_u32 v{V_LB}, v2, s81")
    o(f"v_mad_u32_u24 v{V_LB}, v3, 12, v{V_LB}")
    o(f"s_mov_b32 s{S_W}, 32")
    o(f"s_mov_b32 s{S_OFF}, 0")
    o(f"s_mov_b32 s{S_FIRST}, 1")
    o(f"s_waitcnt vmcnt({3+WE})")
    T()
    o.lab("L2_pass")
    o(f"v_and_b32 v3, 15, v{L}")
    o(f"v_add_u32 v1, s{S_OFF}, v3")
    o("v_add_u32 v2, 16, v1")
    o(f"s_add_u32 s83, s{S_OFF}, s{S_W}")
    o(f"s_mul_i32 s84, s{S_OFF}, 12")
    o(f"v_add_u32 v6, s84, v{V_LB}")
    o(f"v_lshrrev_b32 v4, 16, v{V_DESC}")
    o("v_cmp_lt_u32 vcc, s83, v4")
    o("v_min_u32 v4, s83, v4")
    o(f"v_and_b32 v5, 0xffff, v{V_DESC}")
    o("s_cmp_lg_u64 vcc, 0")
    o(f"s_cselect_b32 s{S_MORE}, 1, 0")
    for i in range(4):
        o(f"v_mov_b32_dpp v{BS}, v4 row_newbcast:{i} row_mask:0xf bank_mask:0xf")
        o(f"v_add_u32_dpp v{BS+1+i}, v5, v6 row_newbcast:{i} row_mask:0xf bank_mask:0xf")
        o(f"v_cmp_lt_u32 {sr(MASK+2*i,2)}, v1, v{BS}")
        o(f"v_cmp_lt_u32 {sr(MASK+8+2*i,2)}, v2, v{BS}")
    for i in range(4):
        o(f"s_mov_b64 exec, {sr(MASK+8+2*i,2)}")
        o(f"s_cbranch_execz L2_r2_{i}")
        o(f"buffer_load_dwordx3 {vr(REC+16+4*i,3)}, v{BS+1+i}, s[12:15], s{SOFF+i} offen offset:192 {LDR}")
        o.lab(f"L2_r2_{i}")
    for i in range(4):
        o(f"s_mov_b64 exec, {sr(MASK+2*i,2)}")
        o(f"buffer_load_dwordx3 {vr(REC+4*i,3)}, v{BS+1+i}, s[12:15], s{SOFF+i} offen {LDR}")
    o("s_mov_b64 exec, -1")
    o("s_mov_b32 s85, s82")
    for i in range(WL):
        o(f"buffer_load_dwordx4 {vr(DUM,4)}, v{V_T16}, s[12:15], s85 offen")
        o("s_add_u32 s85, s85, 16384")
    o(f"s_cmp_eq_u32 s{S_FIRST}, 0")
    o("s_cbranch_scc1 L2_ranks")
    o(f"s_mov_b32 s{S_FIRST}, 0")
    aread_addrs(o, L, AAD, 1, 2, 3)
    srd(o, 16, 6, N * 128)
    if cfg.get("touch", 1):
        o("s_cmp_lg_u32 s3, 15")
        o("s_cbranch_scc1 L2_nt")
        o("s_lshl_b32 s93, s78, 7")
        o("v_mov_b32 v1, s93")
        o(f"buffer_load_dword v{DUM}, v1, s[16:19], 0 offen")
        o("s_waitcnt vmcnt(0)")
        o.lab("L2_nt")
    T()
    o(f"s_waitcnt vmcnt({4+WL}) lgkmcnt(0)")
    o("s_barrier")
    T()
    o("s_cmp_ge_u32 s3, 8")
    o("s_cbranch_scc1 L2_pdone")
    o("s_and_b32 s86, s3, 1")
    o("s_bfe_u32 s87, s3, 0x10001")
    o("s_lshr_b32 s88, s3, 2")
    o("s_lshl_b32 s89, s86, 13")
    o("s_lshl_b32 s90, s88, 12")
    o("s_add_u32 s89, s89, s90")
    o(f"s_add_u32 s89, s89, {FR}")
    o(f"v_lshl_add_u32 v2, v{L}, 4, s89")
    for s in range(4):
        o(f"ds_read_b128 {vr(PB_+4*s,4)}, v2 offset:{1024*s}")
    o("s_lshl_b32 s90, s87, 12")
    o(f"s_add_u32 s90, s90, {XT}")
    for s in range(4):
        o(f"v_add_u32 v3, s90, v{AAD+s}")
        o(f"ds_read_b128 {vr(PA_+4*s,4)}, v3")
    o(f"v_lshrrev_b32 v2, 5, v{L}")
    o("v_lshlrev_b32 v2, 2, v2")
    o("s_lshl_b32 s90, s87, 5")
    o("v_add_u32 v2, s90, v2")
    o(f"v_and_b32 v3, 31, v{L}")
    o("s_lshl_b32 s90, s88, 5")
    o("v_add_u32 v3, s90, v3")
    o("v_lshl_add_u32 v2, v2, 6, v3")
    o("s_waitcnt lgkmcnt(0)")
    for s in range(4):
        o(mfma16(PD, PA_ + 4*s, PB_ + 4*s, None if s == 0 else PD))
    o("s_cmp_eq_u32 s86, 1")
    o("s_cbranch_scc1 L2_xu")
    o("v_lshlrev_b32 v2, 2, v2")
    o("s_nop 9")
    def pwrite(r):
        o(f"v_mul_f32 v{PD+r}, {NEG_LOG2E:#x}, v{PD+r}")
        o(f"ds_write_b32 v2, v{PD+r} offset:{PT + (8*(r>>2)+(r&3))*256}")
    for r in range(8): pwrite(r)
    o("s_cmp_eq_u32 s87, 1")
    o("s_cselect_b32 exec_hi, 0, -1")
    for r in range(8, 10): pwrite(r)
    o("s_mov_b64 exec, -1")
    o("s_cbranch_scc1 L2_pdone")
    for r in range(10, 16): pwrite(r)
    o("s_branch L2_pdone")
    o.lab("L2_xu")
    o("v_lshlrev_b32 v2, 3, v2")
    o("s_nop 9")
    def uwrite(r):
        t = PA_ + 2 * (r & 7)
        o(f"v_cvt_f64_f32 {vr(t,2)}, v{PD+r}")
        o(f"ds_write_b64 v2, {vr(t,2)} offset:{AGG + (8*(r>>2)+(r&3))*512}")
    for r in range(8): uwrite(r)
    o("s_cmp_eq_u32 s87, 1")
    o("s_cselect_b32 exec_hi, 0, -1")
    for r in range(8, 10): uwrite(r)
    o("s_mov_b64 exec, -1")
    o("s_cbranch_scc1 L2_pdone")
    for r in range(10, 16): uwrite(r)
    o.lab("L2_pdone")
    o.c("selector operands of the 4x4x4 MFMAs that add the gathered gate term")
    o(f"v_and_b32 v1, 3, v{L}")
    o("v_mov_b32 v2, 0x3f80")
    for idx, reg in enumerate((SELA, SELA+1, SELB, SELB+1)):
        o(f"v_cmp_eq_u32 vcc, {idx}, v1")
        o("s_nop 1")
        o(f"v_cndmask_b32 v{reg}, 0, v2, vcc")
    o.lab("L2_ranks")
    T()
    o("v_mov_b32 v1, 4")
    o(f"v_mov_b32 v2, {CNT}")
    o(f"s_cmp_eq_u32 s{S_MORE}, 0")
    o("s_cbranch_scc1 L2_nomore")
    o("ds_write_b32 v2, v1 offset:256")
    o.lab("L2_nomore")
    def rank(i):
        o(f"v_add_u32_sdwa v{CA+i}, v{REC+4*i+2}, v2 dst_sel:DWORD dst_unused:UNUSED_PAD src0_sel:BYTE_3 src1_sel:DWORD")
        o(f"ds_add_rtn_u32 v{REC+4*i+3}, v{CA+i}, v1")
    for i in range(4):
        o(f"s_waitcnt vmcnt({WL+3-i})")
        o(f"s_mov_b64 exec, {sr(MASK+2*i,2)}")
        rank(i)
    for i in range(4, 8):
        o(f"s_mov_b64 exec, {sr(MASK+2*i,2)}")
        o(f"s_cbranch_execz L2_rk{i}")
        rank(i)
        o.lab(f"L2_rk{i}")
    o("s_mov_b64 exec, -1")
    o("s_waitcnt lgkmcnt(0)")
    T()
    o("s_barrier")
    T()
    o(f"v_lshl_add_u32 v1, v{L}, 2, v2")
    o("ds_read_b32 v3, v1")
    o("ds_read_b32 v4, v2 offset:256")
    o(f"v_cmp_gt_u32 vcc, 49, v{L}")
    o("v_mov_b32 v6, 16")
    o("s_mov_b64 s[92:93], vcc")
    o("v_cndmask_b32 v6, 0, v6, vcc")
    o("s_waitcnt lgkmcnt(0)")
    o("v_add_u32 v5, 15, v3")
    o("v_and_b32 v5, -16, v5")
    o("v_max_u32 v5, v5, v6")
    o("v_mov_b32 v6, v5")
    o(f"v_readfirstlane_b32 s{S_MORE}, v4")
    o("s_nop 0")
    wave_scan(o, 6)
    o("s_nop 0")
    o(f"v_readlane_b32 s{S_TOT}, v6, 63")
    o("v_sub_u32 v6, v6, v5")
    o(f"s_cmp_gt_u32 s{S_TOT}, {CAP*4}")
    o("s_cbranch_scc0 L2_fits")
    o.c("window too large for LDS: clear the counters and redo with the small window")
    o("s_barrier")
    o("v_mov_b32 v3, 0")
    o("ds_write_b32 v1, v3")
    o("ds_write_b32 v2, v3 offset:256")
    o(f"s_mov_b32 s{S_W}, {WSMALL}")
    o("s_waitcnt vmcnt(0) lgkmcnt(0)")
    o("s_barrier")
    o("s_branch L2_pass")
    o.lab("L2_fits")
    for i in range(4):
        o(f"ds_bpermute_b32 v{BS+i}, v{CA+i}, v6")
    for i in range(4, 8):
        o(f"s_cmp_eq_u64 {sr(MASK+2*i,2)}, 0")
        o(f"s_cbranch_scc1 L2_bp{i}")
        o(f"ds_bpermute_b32 v{BS+i}, v{CA+i}, v6")
        o.lab(f"L2_bp{i}")
    o(f"s_add_u32 s86, s{S_TOT}, 63")
    o("s_lshr_b32 s86, s86, 6")
    o("s_mul_i32 s87, s86, s3")
    o("s_add_u32 s88, s87, s86")
    o("s_lshr_b32 s87, s87, 4")
    o("s_lshr_b32 s88, s88, 4")
    o(f"s_sub_u32 s{S_REM}, s88, s87")
    o("s_lshl_b32 s89, s87, 6")
    o("s_lshl_b32 s90, s88, 6")
    o("s_waitcnt lgkmcnt(0)")
    def scat(i):
        o(f"v_add_u32 v{BS+i}, v{BS+i}, v{REC+4*i+3}")
        o(f"v_and_b32 v{REC+4*i+2}, 0xffffff, v{REC+4*i+2}")
        o(f"v_add_u32 v{REC+4*i+3}, v{BS+i}, v{BS+i}")
        o(f"ds_write_b32 v{BS+i}, v{REC+4*i+2} offset:{SRC}")
        o(f"ds_write_b64 v{REC+4*i+3}, {vr(REC+4*i,2)} offset:{EA}")
    for i in range(4):
        o(f"s_mov_b64 exec, {sr(MASK+2*i,2)}")
        scat(i)
    for i in range(4, 8):
        o(f"s_mov_b64 exec, {sr(MASK+2*i,2)}")
        o(f"s_cbranch_execz L2_sc{i}")
        scat(i)
        o.lab(f"L2_sc{i}")
    o("s_mov_b64 exec, -1")
    o("s_cmp_gt_u32 s3, 4")
    o("s_cbranch_scc1 L2_nopad")
    o(f"v_mov_b32 v{BS}, {NULLROW}")
    o(f"v_mov_b32 v{BS+2}, 0")
    o(f"v_mov_b32 v{BS+3}, 0")
    o("s_lshl_b32 s91, s3, 2")
    o("v_add_u32 v3, s91, v3")
    o("v_cmp_lt_u32 vcc, v3, v5")
    o("v_add_u32 v3, v3, v6")
    o("s_cmp_lg_u32 s3, 4")
    o("s_cbranch_scc1 L2_padw")
    o(f"v_lshl_add_u32 v3, v{L}, 2, s{S_TOT}")
    o("s_lshl_b32 s91, s86, 6")
    o("v_cmp_gt_u32 vcc, s91, v3")
    o.lab("L2_padw")
    o("v_add_u32 v4, v3, v3")
    o("s_mov_b64 exec, vcc")
    o(f"ds_write_b32 v3, v{BS} offset:{SRC}")
    o(f"ds_write_b64 v4, {vr(BS+2,2)} offset:{EA}")
    o("s_mov_b64 exec, -1")
    o.lab("L2_nopad")
    o("v_cmp_ge_u32 vcc, s89, v6")
    o("s_and_b64 s[94:95], vcc, s[92:93]")
    o("s_bcnt1_i32_b64 s91, s[94:95]")
    o("s_sub_u32 s91, s91, 1")
    o("v_cmp_gt_u32 vcc, s90, v6")
    o("s_andn2_b64 s[94:95], vcc, s[94:95]")
    o("s_and_b64 s[94:95], s[94:95], s[92:93]")
    o(f"s_mov_b64 {sr(MK,2)}, 0")
    o("v_subrev_u32 v6, s89, v6")
    o("v_lshrrev_b32 v6, 4, v6")
    o.lab("L2_mloop")
    o("s_cmp_eq_u64 s[94:95], 0")
    o("s_cbranch_scc1 L2_mdone")
    o("s_ff1_i32_b64 s96, s[94:95]")
    o("s_bitset0_b64 s[94:95], s96")
    o("v_readlane_b32 s97, v6, s96")
    o("s_nop 0")
    o(f"s_bitset1_b64 {sr(MK,2)}, s97")
    o("s_branch L2_mloop")
    o.lab("L2_mdone")
    if cfg.get("nomask", 0): o(f"s_mov_b64 {sr(MK,2)}, 0")
    o(f"v_mov_b32 v{V_SA}, s89")
    o("s_lshl_b32 s96, s89, 1")
    o(f"v_lshl_add_u32 v{V_EAA}, v{L}, 3, s96")
    o("s_lshl_b32 s96, s91, 8")
    o(f"v_lshl_add_u32 v{V_PA}, v{L}, 2, s96")
    o(f"v_add_u32 v{V_FA}, v{V_PA}, v{V_PA}")
    o(f"v_mov_b32 v{ACC}, 0")
    o("s_waitcnt lgkmcnt(0)")
    T()
    o("s_barrier")
    T()
    o("s_cmp_lg_u32 s3, 15")
    o("s_cbranch_scc1 L2_nz2")
    o("v_mov_b32 v3, 0")
    o("ds_write_b32 v1, v3")
    o("ds_write_b32 v2, v3 offset:256")
    o.lab("L2_nz2")
    o(f"s_cmp_eq_u32 s{S_REM}, 0")
    o("s_cbranch_scc1 L2_idle" if cfg.get("fillbar", 0) else "s_cbranch_scc1 L2_done")
    if cfg.get("fillbar", 0):
        tail.lab("L2_idle"); tail("s_barrier"); tail("s_branch L2_done")
    if cfg.get("fillprio", 0): o("s_setprio 3")
    for b in range(3):
        for q in range(4):
            o(f"ds_read_b128 {vr(R[b]+4*q,4)}, v{V_SA} offset:{SRC + b*64 + 16*q}")
        if b == 0:
            o(f"ds_read_b32 v{PC}, v{V_PA} offset:{PT}")
            o(f"ds_read_b32 v{PN}, v{V_PA} offset:{PT+256}")
            o(f"ds_read_b64 {vr(EAR,2)}, v{V_EAA} offset:{EA}")
    o("s_waitcnt lgkmcnt(11)")
    for r in range(16):
        o(f"buffer_load_dword v{R[0]+r}, v{R[0]+r}, s[8:11], 0 offen {cfg.get('ldt', '')}")
    o("s_waitcnt lgkmcnt(0)")
    def issue12():
        for b in (1, 2):
            o(f"s_cmp_gt_u32 s{S_REM}, {b}")
            o("s_cbranch_scc0 L2_pre")
            for r in range(16):
                o(f"buffer_load_dword v{R[b]+r}, v{R[b]+r}, s[8:11], 0 offen {cfg.get('ldt', '')}")
        o.lab("L2_pre")
    ramp = cfg.get("ramp", 1)
    if not ramp: issue12()
    for c in range(1, 4): o(f"v_mov_b32 v{PC+c}, v{PC}")
    o(f"v_add_u32 v{V_PA}, 0x100, v{V_PA}")
    o("s_nop 0")
    for g in range(4):
        if g:
            o(f"s_bitcmp1_b32 s{MK}, {g}")
            o(f"s_cbranch_scc1 L2_psp_{g}")
            o.lab(f"L2_pbp_{g}")
            pswitch(tail, f"L2_psp_{g}", f"L2_pbp_{g}")
        o(m4(G[0]+4*g, EAR, CW, PC, f" cbsz:4 abid:{g}"))
        o("s_nop 0")
    if ramp:
        o("s_waitcnt vmcnt(0)")
        issue12()
    else:
        o("s_waitcnt vmcnt(32)")
        o(f"s_cmp_gt_u32 s{S_REM}, 2")
        o("s_cbranch_scc1 L2_pw")
        o("s_waitcnt vmcnt(0)")
        o.lab("L2_pw")
    for g in range(4): o(m4(G[0]+4*g, SELA, R[0]+4*g, G[0]+4*g))
    for g in range(4): o(m4(G[0]+4*g, SELB, R[0]+4*g+2, G[0]+4*g))
    o("s_nop 1")
    if cfg.get("fillbar", 0): o("s_barrier")
    T(); T(True)
    o(".p2align 3")
    o.lab("L2_loop")
    for u in range(4): stage(o, tail, u, cfg)
    o.lab("L2_last")
    flush(o)
    o.lab("L2_done")
    o("s_waitcnt vmcnt(0) lgkmcnt(0)")
    T(); T(True)
    o("s_barrier")
    o(f"s_cmp_eq_u32 s{S_MORE}, 0")
    o("s_cbranch_scc1 L2_out")
    o(f"s_add_u32 s{S_OFF}, s{S_OFF}, s{S_W}")
    o("s_branch L2_pass")
    o.lab("L2_out")
    o("v_cmp_gt_u32 vcc, 392, v0")
    o("s_and_saveexec_b64 s[94:95], vcc")
    o("s_cbranch_execz L2_fin")
    o("v_lshlrev_b32 v1, 6, v0")
    for c in range(4):
        o(f"ds_read_b128 {vr(80+4*c,4)}, v1 offset:{AGG+16*c}")
    o("s_lshl_b32 s93, s78, 7")
    o(f"v_add_u32 v2, s93, v{V_T16}")
    o("s_waitcnt lgkmcnt(0)")
    for r in range(8): o(f"v_cvt_f32_f64 v{64+r}, {vr(80+2*r,2)}")
    for r in range(8): o(f"v_mul_f32 v{72+r}, {NEG_LOG2E:#x}, v{64+r}")
    for r in range(8): o(f"v_exp_f32 v{72+r}, v{72+r}")
    for r in range(8): o(f"v_add_f32 v{72+r}, 1.0, v{72+r}")
    for r in range(8): o(f"v_rcp_f32 v{72+r}, v{72+r}")
    for r in range(8): o(f"v_mul_f32 v{64+r}, v{64+r}, v{72+r}")
    for r in range(4): o(f"v_cvt_pk_bf16_f32 v{72+r}, v{64+2*r}, v{65+2*r}")
    o("buffer_store_dwordx4 v[72:75], v2, s[16:19], 0 offen")
    o.lab("L2_fin")
    if T.on:
        o("s_waitcnt vmcnt(0)"); T(); T(True); T.dump(12, 3, 1, V_LANE)
    o.lab("L2_end")
    o("s_endpgm")
    return o.text() + tail.text()

HEADER = """; Edge-gated MPNN layer: out = silu(x@U + sum over edges with dst=i of sigmoid(x[dst]@A + x[src]@B + e@C) * (x[src]@V))
; @launch kernel=bin_kernel grid=(256,1,1) block=(1024,1,1) lds={l1}
; @launch kernel=edge_kernel grid=(256,1,1) block=(1024,1,1) lds={l2}
.amdgcn_target "amdgcn-amd-amdhsa--gfx950"
.text
"""
def build(cfg):
    s = HEADER.format(l1=K1_LDS, l2=K2_LDS)
    for name, fn in (("bin_kernel", kernel1), ("edge_kernel", kernel2)):
        s += f".globl {name}\n.p2align 8\n.type {name},@function\n" + fn(cfg)
    s += '.section .rodata,"a"\n.p2align 6\n' + kd("bin_kernel", 128, 102) + ".p2align 6\n" + kd("edge_kernel", 128, 102)
    return s

if __name__ == "__main__":
    cfg = {}
    for a in sys.argv[2:]:
        k, v = a.split("=")
        cfg[k] = int(v) if v.lstrip("-").isdigit() else v
    open(sys.argv[1], "w").write(build(cfg))
```

```python
import sys
from gen import Asm, Stamper, vr, sr, wave_scan, kd, mfma16
import gen2
from gen2 import swz_consts, aread_addrs, m4, pswitch, flush

N = 12500; E = 800000; NPB = 49; CH = 3128; CHB = CH * 12
WS_DESC = 0x00A00000; WS_T = 0x00C00000; T_BYTES = 256 * NPB * 256
NULLROW = N * 256; XSHIFT = 4096; NEG_LOG2E = 0xBFB8AA3B; MAGIC49 = 21400
NAME = "standalone__edge_featured_mpnn_egc__graph_kernel"

CAP = 4096
PT = 0; AGG = 13312; OV = 38912
SRC = OV; EA = SRC + CAP * 4 + 256
HIST = OV; STAGE = OV + 1024; PB = OV + 38912
CNT = PB + 13 * 1024; MORE = CNT + 256; PUB = CNT + 272; DSV = CNT + 512
TW = 93696; AU = TW + 4 * 12288; LDS = AU + 16384
assert EA + CAP * 8 + 512 <= CNT and STAGE + CHB <= PB and CNT % 256 == 0 and DSV + 2048 <= TW and LDS <= 163840
WSMALL = (CAP - 4 * NPB - 15) // 256
for k in ("PT", "AGG", "SRC", "EA"): setattr(gen2, k, globals()[k])
from gen2 import R, G, EAR, CW, SELA, SELB, PC, PN, ACC, V_SA, V_EAA, V_PA, V_FA, V_LANE, V_DESC, V_LB, V_T16
from gen2 import REC, CA, BS, DUM, S_W, S_OFF, S_REM, S_MORE, S_TOT, MK, MASK, SOFF, stage

def mk_srd(o, d, p, size):
    o(f"s_mov_b32 s{d}, s{p}"); o(f"s_and_b32 s{d+1}, s{p+1}, 0xffff")
    o(f"s_mov_b32 s{d+2}, {size}"); o(f"s_mov_b32 s{d+3}, 0x00020000")

def poll(o, name, mask, cfg):
    o(f"s_mov_b32 s86, {mask:#x}")
    o(f"s_mov_b32 s87, {cfg.get('spin', 400000)}")
    o(f"v_lshlrev_b32 v1, 2, v{V_LANE}")
    o.lab(name)
    o("buffer_load_dword v2, v1, s[68:71], 0 offen sc1")
    o("s_sub_u32 s87, s87, 1")
    o("s_waitcnt vmcnt(0)")
    o("v_and_b32 v2, s86, v2")
    o("v_cmp_ne_u32 vcc, s86, v2")
    o("s_cmp_eq_u32 s87, 0")
    o(f"s_cbranch_scc1 {name}_x")
    o(f"s_cbranch_vccnz {name}")
    o.lab(name + "_x")

def kernel(cfg):
    o = Asm(); tail = Asm()
    ST = cfg.get("st", "sc1"); LD = cfg.get("ld1", "nt"); WL = cfg.get("wl", 0)
    cfg.setdefault("ldt", "sc1"); cfg.setdefault("fillprio", 1)
    T = Stamper(o, cfg.get("stamp", 0), 11, 1); T.wide = True
    if cfg.get("dbg", -1) == 1: T.dbgwg = cfg.get("dbgwg", 100); T.dbgback = 0
    L = V_LANE
    o.lab(NAME)
    o("s_cmp_ge_u32 s2, 256")
    o("s_cbranch_scc1 L_end")
    T(True); T()
    o("s_load_dwordx16 s[80:95], s[0:1], 0")
    o("s_load_dwordx4 s[96:99], s[0:1], 64")
    o("v_lshrrev_b32 v1, 6, v0")
    o(f"v_and_b32 v{L}, 63, v0")
    o("s_movk_i32 s4, 768")
    o("s_cmp_eq_u32 s2, 255")
    o("s_cselect_b32 s4, 590, s4")
    o("s_cselect_b32 s6, 0, 56")
    o("v_readfirstlane_b32 s3, v1")
    o("s_mul_i32 s5, s2, 12512")
    o("v_subrev_u32 v4, 256, v0")
    o("v_lshl_add_u32 v2, v4, 4, s5")
    o("v_lshlrev_b32 v3, 1, v2")
    o("v_cmp_gt_u32 s[72:73], s4, v4")
    o("v_cmp_gt_u32 s[74:75], s6, v4")
    o("s_and_b32 s30, s2, 7")
    o("s_lshl_b32 s30, s30, 5")
    o("s_lshr_b32 s31, s2, 3")
    o("s_add_u32 s30, s30, s31")
    o("s_mul_i32 s78, s30, 49")
    o(f"v_lshlrev_b32 v{V_T16}, 4, v0")
    o("s_waitcnt lgkmcnt(0)")
    mk_srd(o, 36, 86, E * 4); mk_srd(o, 40, 84, E * 4); mk_srd(o, 44, 82, E * 8)
    o("s_mov_b64 exec, s[72:73]")
    o("s_cbranch_execz L1_noload")
    o(f"buffer_load_dwordx4 v[64:67], v2, s[36:39], 0 offen {LD}")
    o(f"buffer_load_dwordx4 v[68:71], v2, s[40:43], 0 offen {LD}")
    o(f"buffer_load_dwordx4 v[72:75], v3, s[44:47], 0 offen {LD}")
    o(f"buffer_load_dwordx4 v[76:79], v3, s[44:47], 0 offen offset:16 {LD}")
    o("s_mov_b64 exec, s[74:75]")
    o("s_cbranch_execz L1_noload")
    o("s_add_u32 s5, s5, 12288")
    o("v_lshl_add_u32 v2, v4, 2, s5")
    o("v_lshlrev_b32 v3, 1, v2")
    o(f"buffer_load_dword v80, v2, s[36:39], 0 offen {LD}")
    o(f"buffer_load_dword v81, v2, s[40:43], 0 offen {LD}")
    o(f"buffer_load_dwordx2 v[82:83], v3, s[44:47], 0 offen {LD}")
    o.lab("L1_noload")
    o("s_mov_b64 exec, -1")
    mk_srd(o, 12, 98, WS_T + T_BYTES); mk_srd(o, 16, 94, N * 128); mk_srd(o, 68, 96, 256)
    mk_srd(o, 52, 92, 132 * 128); mk_srd(o, 56, 90, 64 * 128); mk_srd(o, 60, 88, 64 * 128)
    o(f"s_sub_u32 s48, s80, {XSHIFT}"); o("s_subb_u32 s49, s81, 0"); o("s_and_b32 s49, s49, 0xffff")
    o(f"s_mov_b32 s50, {N*128+XSHIFT}"); o("s_mov_b32 s51, 0x00020000")
    o(f"s_add_u32 s8, s98, {WS_T}"); o("s_addc_u32 s9, s99, 0")
    o("s_and_b32 s9, s9, 0xffff"); o("s_or_b32 s9, s9, 0x40000")
    o(f"s_mov_b32 s10, {T_BYTES}"); o("s_mov_b32 s11, 0x00800000")
    o("s_cmp_gt_u32 s3, 3")
    o("s_cbranch_scc1 L1_barA")
    o("s_and_b32 s6, s3, 1")
    o("s_lshr_b32 s7, s3, 1")
    o("s_mul_i32 s29, s3, 12288")
    o(f"s_add_u32 s29, s29, {TW}")
    swz_consts(o, L, 20, 24, 25)
    o("s_lshl_b32 s84, s7, 5")
    o("s_add_u32 s84, s84, s78")
    o("s_lshl_b32 s84, s84, 7")
    o(f"s_add_u32 s84, s84, {XSHIFT}")
    o("v_lshl_add_u32 v24, v24, 9, s84")
    for j in range(4):
        o(f"v_xor_b32 v{20+j}, {j}, v25")
        o(f"v_lshl_add_u32 v{20+j}, v{20+j}, 4, v24")
        if j: o(f"v_subrev_u32 v{20+j}, {896*j}, v{20+j}")
    o("s_mov_b32 m0, s29")
    o("s_add_u32 s85, s29, 4096")
    for j in range(4):
        o(f"buffer_load_dwordx4 v{20+j}, s[48:51], 0 offen offset:{1024*j} lds")
    o(f"v_lshrrev_b32 v24, 2, v{L}")
    o(f"v_and_b32 v25, 3, v{L}")
    o("v_lshlrev_b32 v24, 7, v24")
    o("v_lshl_add_u32 v24, v25, 4, v24")
    o("s_lshl_b32 s84, s6, 6")
    o("v_add_u32 v24, s84, v24")
    o("s_mov_b32 m0, s85")
    o("s_add_u32 s85, s29, 8192")
    for i in range(4):
        o(f"s_movk_i32 s84, {8192+1024*i}")
        o(f"buffer_load_dwordx4 v24, s[52:55], s84 offen offset:{1024*i} lds")
    o("s_mov_b32 m0, s85")
    for i in range(4):
        o(f"s_movk_i32 s84, {1024*i}")
        o(f"buffer_load_dwordx4 v24, s[56:59], s84 offen offset:{1024*i} lds")
    o.c("raw A (waves 0,1) and U (waves 2,3) weights, 4 KB per wave")
    o("s_lshl_b32 s84, s3, 12")
    o(f"s_add_u32 s85, s84, {AU}")
    o("s_mov_b32 m0, s85")
    o("s_lshl_b32 s84, s6, 12")
    o(f"v_lshlrev_b32 v25, 4, v{L}")
    o("s_cmp_eq_u32 s7, 0")
    o("s_cbranch_scc0 L1_ldu")
    for i in range(4): o(f"buffer_load_dwordx4 v25, s[52:55], s84 offen offset:{1024*i} lds")
    o("s_branch L1_ldd")
    o.lab("L1_ldu")
    for i in range(4): o(f"buffer_load_dwordx4 v25, s[60:63], s84 offen offset:{1024*i} lds")
    o.lab("L1_ldd")
    o("s_cmp_lg_u32 s3, 1")
    o("s_cbranch_scc1 L1_nn")
    o("s_cmp_lg_u32 s2, 0")
    o("s_cbranch_scc1 L1_nn")
    o.c("launch tag: tells this launch's descriptors from whatever an earlier launch left in ws")
    o("s_memrealtime s[84:85]")
    o("s_waitcnt lgkmcnt(0)")
    o("s_lshl_b32 s86, s84, 24")
    o("s_lshr_b64 s[84:85], s[84:85], 8")
    o("s_bitset1_b32 s84, 31")
    o("v_mov_b32 v32, s86")
    o("v_mov_b32 v33, s84")
    o("v_mov_b32 v34, 0")
    o("s_mov_b64 exec, 1")
    o("buffer_store_dwordx2 v[32:33], v34, s[68:71], 0 offen sc1")
    o("s_mov_b64 exec, -1")
    o.lab("L1_nn")
    o("s_cmp_lg_u32 s3, 2")
    o("s_cbranch_scc1 L1_nz")
    for i in range(4): o(f"v_mov_b32 v{32+i}, 0")
    o(f"ds_write_b128 v25, v[32:35] offset:{HIST}")
    o(f"v_lshlrev_b32 v26, 2, v{L}")
    o(f"v_add_u32 v26, {CNT}, v26")
    o("ds_write_b32 v26, v32")
    o("ds_write_b32 v26, v32 offset:64")
    o.c("touch the pages stored to later (address translation only, data unused)")
    o(f"s_mul_i32 s84, s2, {CHB}")
    o("s_lshl_b32 s85, s78, 8")
    o(f"s_add_u32 s85, s85, {WS_T}")
    o(f"s_mov_b32 s86, {WS_DESC}")
    for sreg in (84, 85, 86): o(f"buffer_load_dword v33, v32, s[12:15], s{sreg} offen")
    o(f"s_add_u32 s84, s84, {CHB-4}")
    o("buffer_load_dword v33, v32, s[12:15], s84 offen")
    o("buffer_load_dword v33, v32, s[16:19], 0 offen")
    o.lab("L1_nz")
    aread_addrs(o, L, 20, 24, 25, 26)
    for s in range(4): o(f"v_add_u32 v{20+s}, s29, v{20+s}")
    o(f"v_and_b32 v24, 31, v{L}")
    o(f"v_lshrrev_b32 v25, 5, v{L}")
    o("v_lshlrev_b32 v26, 9, v25")
    o("v_lshl_add_u32 v27, v24, 2, v26")
    o("v_lshl_add_u32 v26, v24, 1, v26")
    o("v_add_u32 v26, s29, v26")
    o("v_add_u32 v27, s29, v27")
    o("s_waitcnt lgkmcnt(0)")
    o("s_barrier")
    o("s_barrier")
    o("s_cmp_lg_u32 s3, 3")
    o("s_cbranch_scc1 L1_tbl")
    tail.lab("L1_back3")
    tail("s_branch L1_tbl")
    o("s_branch L1_scan")
    o.lab("L1_tbl")
    o("s_setprio 2")
    o("s_waitcnt vmcnt(0)")
    for m in range(2):
        for s in range(4):
            for j in range(8):
                op = "ds_read_u16_d16_hi" if j & 1 else "ds_read_u16"
                o(f"{op} v{64+32*(j&1)+16*m+4*s+(j>>1)}, v26 offset:{4096+4096*m+1024*s+64*j}")
    for s in range(4): o(f"ds_read_b128 {vr(40+4*s,4)}, v{20+s}")
    o("s_mov_b32 s84, 0xffff0000")
    o("s_waitcnt lgkmcnt(0)")
    for i in range(32): o(f"v_and_or_b32 v{64+i}, v{96+i}, s84, v{64+i}")
    o(f"s_mov_b32 s85, {NEG_LOG2E:#x}")
    o("s_brev_b32 s86, 1")
    for s in range(4): o(mfma16(96, 40+4*s, 64+4*s, None if s == 0 else 96))
    for s in range(4): o(mfma16(112, 40+4*s, 80+4*s, None if s == 0 else 112))
    o(f"v_lshrrev_b32 v24, 3, v{L}")
    o(f"v_and_b32 v25, 7, v{L}")
    o("v_lshlrev_b32 v25, 4, v25")
    o("s_lshl_b32 s87, s7, 5")
    o("v_add_u32 v28, s87, v24")
    o("v_lshl_add_u32 v29, v28, 8, v25")
    o("v_lshl_add_u32 v24, v24, 7, v25")
    o("v_add_u32 v24, s29, v24")
    for r in range(16): o(f"v_mul_f32 v{96+r}, s85, v{96+r}")
    for r in range(0, 16, 2):
        o(f"v_cvt_pk_bf16_f32 v{96+r}, v{96+r}, v{97+r}")
        o(f"v_lshrrev_b32 v{97+r}, 16, v{96+r}")
        o(f"v_and_b32 v{96+r}, 0xffff, v{96+r}")
    for r in range(16):
        t = 56 + (r & 3); t2 = 60 + (r & 3)
        o(f"v_add_u32 v{t}, 0x8000, v{112+r}")
        o(f"v_and_b32 v{t2}, s86, v{112+r}")
        o(f"v_sub_u32_e64 v{t}, v{t}, v{96+r} clamp")
        o(f"v_max_u32 v{t}, v{t}, v{t2}")
        o(f"v_and_or_b32 v{t}, v{t}, s84, v{96+r}")
        o(f"ds_write_b32 v27, v{t} offset:{4096 + (8*(r>>2) + (r&3))*128}")
    o("s_lshl_b32 s84, s78, 8")
    o("s_lshl_b32 s85, s6, 7")
    o("s_add_u32 s84, s84, s85")
    o(f"s_add_u32 s84, s84, {WS_T}")
    for i in range(4): o(f"ds_read_b128 {vr(64+4*i,4)}, v24 offset:{4096+1024*i}")
    for i in range(4):
        o(f"v_cmp_gt_u32 vcc, {49-8*i}, v28")
        o(f"s_waitcnt lgkmcnt({3-i})")
        o("s_mov_b64 exec, vcc")
        o(f"buffer_store_dwordx4 {vr(64+4*i,4)}, v29, s[12:15], s84 offen {ST}")
        o("s_add_u32 s84, s84, 2048")
        o("s_mov_b64 exec, -1")
    o("s_setprio 0")
    o("s_barrier")
    o("s_branch L1_copy")
    o.lab("L1_barA")
    T()
    o("s_barrier")
    o("s_mov_b64 exec, s[72:73]")
    o("s_cbranch_execz L1_histdone")
    o(f"s_movk_i32 s84, {MAGIC49}")
    o("v_mov_b32 v20, 1")
    def hist(regs):
        for d, b, a, r in regs: o(f"v_mul_u32_u24 v{b}, s84, v{d}")
        for d, b, a, r in regs: o(f"v_lshrrev_b32 v{b}, 20, v{b}")
        for d, b, a, r in regs:
            o(f"v_lshlrev_b32 v{a}, 2, v{b}")
            o(f"ds_add_rtn_u32 v{r}, v{a}, v20 offset:{HIST}")
        for d, b, a, r in regs: o(f"v_mul_u32_u24 v{b}, 49, v{b}")
        for d, b, a, r in regs: o(f"v_sub_u32 v{d}, v{d}, v{b}")
        for d, b, a, r in regs: o(f"v_lshlrev_b32 v{d}, 26, v{d}")
    o("s_cmp_eq_u64 s[74:75], 0")
    o("s_cbranch_scc1 L1_h4")
    o("s_mov_b64 exec, s[74:75]")
    o("s_waitcnt vmcnt(1)")
    hist([(80, 88, 93, 98)])
    o("v_lshl_or_b32 v81, v81, 8, v80")
    o("s_mov_b64 exec, s[72:73]")
    o.lab("L1_h4")
    o("s_waitcnt vmcnt(3)")
    T()
    hist([(64+i, 84+i, 89+i, 94+i) for i in range(4)])
    o("s_waitcnt vmcnt(2)")
    for i in range(4): o(f"v_lshl_or_b32 v{68+i}, v{68+i}, 8, v{64+i}")
    o("s_waitcnt lgkmcnt(0)")
    o.lab("L1_histdone")
    o("s_mov_b64 exec, -1")
    T()
    o("s_barrier")
    T()
    o.lab("L1_scan")
    o(f"v_lshlrev_b32 v104, 4, v{L}")
    o(f"ds_read_b128 v[108:111], v104 offset:{HIST}")
    o("s_sub_u32 s85, s3, 3")
    o("s_lshl_b32 s85, s85, 10")
    o(f"s_add_u32 s85, s85, {PB}")
    o("v_add_u32 v105, s85, v104")
    for i in range(5): o(f"v_add_u32 v{89+i}, s85, v{89+i}")
    o("s_waitcnt lgkmcnt(0)")
    o("v_add_u32 v106, v108, v109")
    o("v_add_u32 v107, v106, v110")
    o("v_add_u32 v116, v107, v111")
    o("v_mov_b32 v112, v116")
    o("s_nop 1")
    wave_scan(o, 112)
    o("v_sub_u32 v112, v112, v116")
    o("v_add_u32 v113, v112, v108")
    o("v_add_u32 v114, v112, v106")
    o("v_add_u32 v115, v112, v107")
    o("s_cmp_lg_u32 s3, 3")
    o("s_cbranch_scc1 L1_scat")
    for j in range(4): o(f"v_lshl_or_b32 v{108+j}, v{108+j}, 12, v{112+j}")
    o(f"v_add_u32 v104, {DSV}, v104")
    o("ds_write_b128 v104, v[108:111]")
    o("s_branch L1_back3")
    o.lab("L1_scat")
    for j in range(4): o(f"v_mul_u32_u24 v{112+j}, 12, v{112+j}")
    o("ds_write_b128 v105, v[112:115]")
    o("s_mov_b64 exec, s[72:73]")
    o("s_cbranch_execz L1_scatdone")
    for i in range(5): o(f"ds_read_b32 v{84+i}, v{89+i}")
    o("s_waitcnt lgkmcnt(0)")
    for i in range(5): o(f"v_mad_u32_u24 v{84+i}, v{94+i}, 12, v{84+i}")
    for i in range(4): o(f"ds_write_b32 v{84+i}, v{68+i} offset:{STAGE+8}")
    for i in range(5): o(f"v_add_u32 v{84+i}, {STAGE}, v{84+i}")
    o("s_waitcnt vmcnt(0)")
    T()
    for i in range(4): o(f"ds_write2_b32 v{84+i}, v{72+2*i}, v{73+2*i} offset0:0 offset1:1")
    o("s_mov_b64 exec, s[74:75]")
    o("s_cbranch_execz L1_scatdone")
    o("ds_write_b32 v88, v81 offset:8")
    o("ds_write2_b32 v88, v82, v83 offset0:0 offset1:1")
    o.lab("L1_scatdone")
    o("s_mov_b64 exec, -1")
    o("s_waitcnt lgkmcnt(0)")
    o("s_barrier")
    o.lab("L1_copy")
    T()
    o(f"s_mul_i32 s85, s2, {CHB}")
    o(f"v_add_u32 v4, {STAGE}, v{V_T16}")
    o("ds_read_b128 v[64:67], v4")
    o("ds_read_b128 v[68:71], v4 offset:16384")
    o("ds_read_b128 v[72:75], v4 offset:32768")
    o(f"v_add_u32 v5, 16384, v{V_T16}")
    o(f"v_add_u32 v6, 32768, v{V_T16}")
    o("v_cmp_gt_u32 vcc, 298, v0")
    o("s_waitcnt lgkmcnt(2)")
    o(f"buffer_store_dwordx4 v[64:67], v{V_T16}, s[12:15], s85 offen {ST}")
    o("s_waitcnt lgkmcnt(1)")
    o(f"buffer_store_dwordx4 v[68:71], v5, s[12:15], s85 offen {ST}")
    o("s_mov_b64 exec, vcc")
    o("s_cbranch_execz L1_c3")
    o("s_waitcnt lgkmcnt(0)")
    o(f"buffer_store_dwordx4 v[72:75], v6, s[12:15], s85 offen {ST}")
    o.lab("L1_c3")
    o("s_mov_b64 exec, -1")
    T()
    o(f"v_lshlrev_b32 v1, 1, v{L}")
    o("v_add_u32 v1, 0x4000, v1")
    for j in range(4): o(f"buffer_load_ushort v{76+j}, v1, s[52:55], 0 offen offset:{128*j}")
    o("v_mov_b32 v82, 0")
    o("buffer_load_dwordx2 v[80:81], v82, s[68:71], 0 offen sc1")
    o(f"v_and_b32 v1, 3, v{L}")
    o("v_mov_b32 v2, 0x3f80")
    for idx, reg in enumerate((SELA, SELA+1, SELB, SELB+1)):
        o(f"v_cmp_eq_u32 vcc, {idx}, v1")
        o("s_nop 1")
        o(f"v_cndmask_b32 v{reg}, 0, v2, vcc")
    o("s_cmp_lt_u32 s3, 8")
    o("s_cbranch_scc1 L2_pdone")
    o("s_and_b32 s86, s3, 1")
    o("s_bfe_u32 s87, s3, 0x10001")
    o("s_bfe_u32 s88, s3, 0x10002")
    aread_addrs(o, L, 20, 1, 2, 3)
    o("s_mul_i32 s89, s87, 24576")
    o(f"s_add_u32 s89, s89, {TW}")
    for s in range(4):
        o(f"v_add_u32 v3, s89, v{20+s}")
        o(f"ds_read_b128 {vr(32+4*s,4)}, v3")
    o(f"v_and_b32 v3, 31, v{L}")
    o("s_lshl_b32 s90, s88, 5")
    o("v_add_u32 v3, s90, v3")
    o(f"v_lshrrev_b32 v2, 5, v{L}")
    o("v_lshlrev_b32 v1, 10, v2")
    o("v_lshl_add_u32 v1, v3, 1, v1")
    o("s_lshl_b32 s89, s86, 13")
    o(f"s_add_u32 s89, s89, {AU}")
    o("v_add_u32 v1, s89, v1")
    for s in range(4):
        for j in range(8):
            op = "ds_read_u16_d16_hi" if j & 1 else "ds_read_u16"
            o(f"{op} v{48+48*(j&1)+4*s+(j>>1)}, v1 offset:{2048*s+128*j}")
    o("v_lshlrev_b32 v2, 2, v2")
    o("s_lshl_b32 s90, s87, 5")
    o("v_add_u32 v2, s90, v2")
    o("v_lshl_add_u32 v2, v2, 6, v3")
    o("s_mov_b32 s84, 0xffff0000")
    o("s_waitcnt lgkmcnt(0)")
    for i in range(16): o(f"v_and_or_b32 v{48+i}, v{96+i}, s84, v{48+i}")
    o("s_nop 0")
    PD = 96
    for s in range(4): o(mfma16(PD, 32+4*s, 48+4*s, None if s == 0 else PD))
    o("s_cmp_eq_u32 s86, 1")
    o("s_cbranch_scc1 L2_xu")
    o("v_lshlrev_b32 v2, 2, v2")
    o("s_nop 9")
    def pwrite(r):
        o(f"v_mul_f32 v{PD+r}, {NEG_LOG2E:#x}, v{PD+r}")
        o(f"ds_write_b32 v2, v{PD+r} offset:{PT + (8*(r>>2)+(r&3))*256}")
    def uwrite(r):
        t = 32 + 2 * (r & 7)
        o(f"v_cvt_f64_f32 {vr(t,2)}, v{PD+r}")
        o(f"ds_write_b64 v2, {vr(t,2)} offset:{AGG + (8*(r>>2)+(r&3))*512}")
    for wr, lab in ((pwrite, None), (uwrite, "L2_xu")):
        if lab:
            o.lab(lab); o("v_lshlrev_b32 v2, 3, v2"); o("s_nop 9")
        for r in range(8): wr(r)
        o("s_cmp_eq_u32 s87, 1")
        o("s_cselect_b32 exec_hi, 0, -1")
        for r in range(8, 10): wr(r)
        o("s_mov_b64 exec, -1")
        o("s_cbranch_scc1 L2_pdone")
        for r in range(10, 16): wr(r)
        if not lab: o("s_branch L2_pdone")
    o.lab("L2_pdone")
    o(f"v_lshrrev_b32 v2, 4, v{L}")
    o(f"v_and_b32 v3, 15, v{L}")
    o("v_and_b32 v4, 3, v3")
    o("s_lshr_b32 s27, s3, 3")
    o("s_lshl_b32 s27, s27, 7")
    o("s_and_b32 s81, s3, 7")
    o("s_add_u32 s27, s27, s81")
    o("v_lshl_add_u32 v2, v2, 5, s27")
    o("v_lshl_add_u32 v4, v4, 3, v2")
    o("v_lshlrev_b32 v4, 11, v4")
    o(f"s_mov_b32 s81, {CHB}")
    o(f"v_mul_lo_u32 v{V_LB}, v2, s81")
    o(f"v_mad_u32_u24 v{V_LB}, v3, 12, v{V_LB}")
    for i in range(4): o(f"s_mov_b32 s{SOFF+i}, {8*i*CHB}")
    o("s_lshl_b32 s72, s30, 3")
    o(f"s_add_u32 s72, s72, {WS_DESC}")
    o("s_mul_i32 s82, s31, 100000")
    o(f"s_add_u32 s82, s82, {WS_T}")
    o(f"s_mov_b32 s{S_W}, 32")
    o(f"s_mov_b32 s{S_OFF}, 0")
    o("s_waitcnt vmcnt(0) lgkmcnt(0)")
    for j in range(4): o(f"v_lshlrev_b32 v{76+j}, 16, v{76+j}")
    for j in range(4): o(f"v_mul_f32 v{76+j}, {NEG_LOG2E:#x}, v{76+j}")
    o(f"v_cvt_pk_bf16_f32 v{CW}, v76, v77")
    o(f"v_cvt_pk_bf16_f32 v{CW+1}, v78, v79")
    o(f"s_mov_b32 s87, {cfg.get('spin', 400000)}")
    o.lab("L2_tag")
    o("v_readfirstlane_b32 s74, v80")
    o("v_readfirstlane_b32 s75, v81")
    o("s_sub_u32 s87, s87, 1")
    o("s_cmp_lg_u32 s75, 0")
    o("s_cbranch_scc1 L2_tagok")
    o("s_cmp_eq_u32 s87, 0")
    o("s_cbranch_scc1 L2_tagok")
    o("buffer_load_dwordx2 v[80:81], v82, s[68:71], 0 offen sc1")
    o("s_waitcnt vmcnt(0)")
    o("s_branch L2_tag")
    o.lab("L2_tagok")
    T()
    o("s_barrier")
    o("s_cmp_lg_u32 s3, 15")
    o("s_cbranch_scc1 L2_f")
    o(f"v_lshlrev_b32 v1, 4, v{L}")
    o(f"v_add_u32 v2, {DSV}, v1")
    o("ds_read_b128 v[64:67], v2")
    o("v_lshlrev_b32 v1, 1, v1")
    o("s_lshl_b32 s85, s2, 11")
    o(f"s_add_u32 s85, s85, {WS_DESC}")
    for j in (69, 71, 73, 75): o(f"v_mov_b32 v{j}, s75")
    o("s_waitcnt lgkmcnt(0)")
    for j in range(4): o(f"v_or_b32 v{68+2*j}, s74, v{64+j}")
    o("buffer_store_dwordx4 v[68:71], v1, s[12:15], s85 offen sc1")
    o("buffer_store_dwordx4 v[72:75], v1, s[12:15], s85 offen offset:16 sc1")
    o.lab("L2_f")
    T()
    for i in range(cfg.get("we", 0)):
        o(f"buffer_load_dwordx4 {vr(DUM,4)}, v{V_T16}, s[12:15], s82 offen sc1")
        o("s_add_u32 s82, s82, 16384")
    o.lab("L2_poll")
    o("buffer_load_dwordx2 v[2:3], v4, s[12:15], s72 offen sc1")
    o("s_sub_u32 s87, s87, 1")
    o("s_waitcnt vmcnt(0)")
    o("v_xor_b32 v2, s74, v2")
    o("v_cmp_ne_u32 vcc, s75, v3")
    o("v_lshrrev_b32 v3, 24, v2")
    o("v_cmp_ne_u32 s[84:85], 0, v3")
    o("s_or_b64 vcc, vcc, s[84:85]")
    o("s_cbranch_scc0 L2_g")
    o("s_cmp_eq_u32 s87, 0")
    o("s_cbranch_scc1 L2_g")
    if cfg.get("sleep", 2): o(f"s_sleep {cfg.get('sleep', 2)}")
    o("s_branch L2_poll")
    o.lab("L2_g")
    o("v_and_b32 v3, 0xfff, v2")
    o("v_bfe_u32 v2, v2, 12, 12")
    o("v_mul_u32_u24 v3, 12, v3")
    o(f"v_lshl_or_b32 v{V_DESC}, v2, 16, v3")
    T()
    o.lab("L2_pass")
    o(f"v_and_b32 v3, 15, v{L}")
    o(f"v_add_u32 v1, s{S_OFF}, v3")
    o("v_add_u32 v2, 16, v1")
    o(f"s_add_u32 s83, s{S_OFF}, s{S_W}")
    o(f"s_mul_i32 s84, s{S_OFF}, 12")
    o(f"v_add_u32 v6, s84, v{V_LB}")
    o(f"v_lshrrev_b32 v4, 16, v{V_DESC}")
    o("v_cmp_lt_u32 vcc, s83, v4")
    o("v_min_u32 v4, s83, v4")
    o(f"v_and_b32 v5, 0xffff, v{V_DESC}")
    o("s_cmp_lg_u64 vcc, 0")
    o(f"s_cselect_b32 s{S_MORE}, 1, 0")
    for i in range(4):
        o(f"v_mov_b32_dpp v{BS}, v4 row_newbcast:{i} row_mask:0xf bank_mask:0xf")
        o(f"v_add_u32_dpp v{BS+1+i}, v5, v6 row_newbcast:{i} row_mask:0xf bank_mask:0xf")
        o(f"v_cmp_lt_u32 {sr(MASK+2*i,2)}, v1, v{BS}")
        o(f"v_cmp_lt_u32 {sr(MASK+8+2*i,2)}, v2, v{BS}")
    for i in range(4):
        o(f"s_mov_b64 exec, {sr(MASK+8+2*i,2)}")
        o(f"s_cbranch_execz L2_r2_{i}")
        o(f"buffer_load_dwordx3 {vr(REC+16+4*i,3)}, v{BS+1+i}, s[12:15], s{SOFF+i} offen offset:192 sc1")
        o.lab(f"L2_r2_{i}")
    for i in range(4):
        o(f"s_mov_b64 exec, {sr(MASK+2*i,2)}")
        o(f"buffer_load_dwordx3 {vr(REC+4*i,3)}, v{BS+1+i}, s[12:15], s{SOFF+i} offen sc1")
    o("s_mov_b64 exec, -1")
    o("v_mov_b32 v1, 4")
    o(f"v_mov_b32 v2, {CNT}")
    o(f"s_cmp_eq_u32 s{S_MORE}, 0")
    o("s_cbranch_scc1 L2_nomore")
    o("ds_write_b32 v2, v1 offset:256")
    o.lab("L2_nomore")
    def rank(i):
        o(f"v_add_u32_sdwa v{CA+i}, v{REC+4*i+2}, v2 dst_sel:DWORD dst_unused:UNUSED_PAD src0_sel:BYTE_3 src1_sel:DWORD")
        o(f"ds_add_rtn_u32 v{REC+4*i+3}, v{CA+i}, v1")
    for i in range(4):
        o(f"s_waitcnt vmcnt({3-i})")
        o(f"s_mov_b64 exec, {sr(MASK+2*i,2)}")
        rank(i)
    for i in range(4, 8):
        o(f"s_mov_b64 exec, {sr(MASK+2*i,2)}")
        o(f"s_cbranch_execz L2_rk{i}")
        rank(i)
        o.lab(f"L2_rk{i}")
    o("s_mov_b64 exec, -1")
    for i in range(WL):
        o(f"buffer_load_dwordx4 {vr(DUM,4)}, v{V_T16}, s[12:15], s82 offen sc1")
        o("s_add_u32 s82, s82, 16384" if cfg.get("once", 0) else "s_nop 0")
    o("s_waitcnt lgkmcnt(0)")
    T()
    o("s_barrier")
    src2 = gen2.kernel2(dict(cfg, stamp=0))
    a = src2.index("    v_lshl_add_u32 v1, v10, 2, v2\n    ds_read_b32 v3, v1")
    body = src2[a:]
    body = body.replace("L2_end:", "L_end:")
    if T.on:
        def st(real=False):
            t = Asm(); T.o = t; T(real); T.o = o; return t.text()
        body = body.replace("    s_barrier\n    s_cmp_lg_u32 s3, 15\n    s_cbranch_scc1 L2_nz2", st() + "    s_barrier\n" + st() + "    s_cmp_lg_u32 s3, 15\n    s_cbranch_scc1 L2_nz2")
        body = body.replace("    .p2align 3\nL2_loop:", st() + st(True) + "    .p2align 3\nL2_loop:")
        body = body.replace("L2_done:\n    s_waitcnt vmcnt(0) lgkmcnt(0)\n", "L2_done:\n    s_waitcnt vmcnt(0) lgkmcnt(0)\n" + st() + st(True))
        t = Asm(); T.o = t; t("s_waitcnt vmcnt(0)"); T(); T(True); T.dump(12, 3, 1, V_LANE); T.o = o
        body = body.replace("L2_fin:\n", "L2_fin:\n" + t.text())
    return o.text() + body + tail.text()

HEADER = """; Edge-gated MPNN layer: out = silu(x@U + sum over edges with dst=i of sigmoid(x[dst]@A + x[src]@B + e@C) * (x[src]@V))
; @launch grid=(256,1,1) block=(1024,1,1) lds={l}
.amdgcn_target "amdgcn-amd-amdhsa--gfx950"
.text
"""
def build(cfg):
    s = HEADER.format(l=LDS)
    s += f".globl {NAME}\n.p2align 8\n.type {NAME},@function\n" + kernel(cfg)
    s += '.section .rodata,"a"\n.p2align 6\n' + kd(NAME, 128, 102)
    return s

if __name__ == "__main__":
    cfg = {}
    for a in sys.argv[2:]:
        k, v = a.split("=")
        cfg[k] = int(v) if v.lstrip("-").isdigit() else v
    open(sys.argv[1], "w").write(build(cfg))
```

```python
import sys
from gen import Asm, Stamper, vr, sr, srd, wave_scan, kd, mfma16

N = 12500; E = 800000; NPB = 49; CH = 3128; CHB = CH * 12
WS_DESC = 0x00A00000; WS_FRAG = 0x00A80000; WS_SIZE = 0x00C00000
WS_T = 0x00C00000; T_BYTES = 256 * NPB * 256
NULLROW = N * 256
XSHIFT = 4096
NEG_LOG2E = 0xBFB8AA3B
MAGIC49 = 21400

def swz_consts(o, L, kj, t0, t1):
    o(f"v_lshrrev_b32 v{t0}, 3, v{L}")
    o(f"v_and_b32 v{t1}, 7, v{L}")
    o(f"v_lshrrev_b32 v{kj}, 5, v{L}")
    o(f"v_lshlrev_b32 v{kj}, 2, v{kj}")
    o(f"v_xor_b32 v{t1}, v{t1}, v{kj}")
def aread_addrs(o, L, aad, t0, t1, t2):
    o(f"v_and_b32 v{t0}, 3, v{L}")
    o(f"v_bfe_u32 v{t1}, v{L}, 2, 3")
    o(f"v_lshl_add_u32 v{t1}, v{t0}, 3, v{t1}")
    o(f"v_lshlrev_b32 v{t1}, 7, v{t1}")
    o(f"v_bfe_u32 v{t2}, v{L}, 4, 1")
    o(f"v_lshl_or_b32 v{t0}, v{t2}, 2, v{t0}")
    o(f"v_lshrrev_b32 v{t2}, 5, v{L}")
    o(f"v_xor_b32 v{t0}, v{t0}, v{t2}")
    for s in range(4):
        o(f"v_xor_b32 v{aad+s}, {2*s}, v{t0}")
        o(f"v_lshl_add_u32 v{aad+s}, v{aad+s}, 4, v{t1}")

K1_HIST = 0; K1_STAGE = 1024; K1_TST = 38912; K1_PB = K1_TST + 16384; K1_TW = K1_PB + 14 * 1024
K1_LDS = K1_TW + 32768
assert K1_STAGE + CHB <= K1_TST
def kernel1(cfg):
    o = Asm()
    ST = cfg.get("st1", "sc0 sc1"); LD = cfg.get("ld1", "nt")
    T = Stamper(o, cfg.get("stamp", 0), 36, 0)
    if cfg.get("dbg", -1) == 0: T.dbgwg = cfg.get("dbgwg", 100); T.dbgback = -512
    o.lab("bin_kernel")
    o("s_cmp_ge_u32 s2, 256")
    o("s_cbranch_scc1 L1_end")
    T(True); T()
    o("s_load_dwordx4 s[40:43], s[0:1], 16")
    o("s_load_dwordx4 s[36:39], s[0:1], 0")
    o("s_load_dwordx4 s[44:47], s[0:1], 32")
    o("s_load_dwordx2 s[48:49], s[0:1], 48")
    o("s_load_dwordx2 s[50:51], s[0:1], 72")
    o("v_lshrrev_b32 v1, 6, v0")
    o("s_movk_i32 s4, 782")
    o("s_cmp_eq_u32 s2, 255")
    o("s_cselect_b32 s4, 590, s4")
    o("v_readfirstlane_b32 s3, v1")
    o("s_mul_i32 s5, s2, 12512")
    o("v_subrev_u32 v4, 192, v0")
    o("v_lshl_add_u32 v2, v4, 4, s5")
    o("v_lshlrev_b32 v3, 1, v2")
    o("v_cmp_gt_u32 s[52:53], s4, v4")
    o("v_and_b32 v1, 63, v0")
    o(f"s_mov_b32 s10, {E*4}"); o("s_mov_b32 s11, 0x00020000")
    o(f"s_mov_b32 s14, {E*4}"); o("s_mov_b32 s15, 0x00020000")
    o(f"s_mov_b32 s18, {E*8}"); o("s_mov_b32 s19, 0x00020000")
    o(f"s_mov_b32 s22, {WS_T+T_BYTES}"); o("s_mov_b32 s23, 0x00020000")
    o("s_waitcnt lgkmcnt(0)")
    for d, p in ((8, 42), (12, 40), (16, 38), (20, 50)):
        o(f"s_mov_b32 s{d}, s{p}"); o(f"s_and_b32 s{d+1}, s{p+1}, 0xffff")
    o("s_mov_b64 exec, s[52:53]")
    o("s_cbranch_execz L1_noload")
    o(f"buffer_load_dwordx4 v[4:7], v2, s[8:11], 0 offen {LD}")
    o(f"buffer_load_dwordx4 v[8:11], v2, s[12:15], 0 offen {LD}")
    o(f"buffer_load_dwordx4 v[12:15], v3, s[16:19], 0 offen {LD}")
    o(f"buffer_load_dwordx4 v[16:19], v3, s[16:19], 0 offen offset:16 {LD}")
    o.lab("L1_noload")
    o("s_mov_b64 exec, -1")
    o("s_cmp_gt_u32 s3, 2")
    o("s_cbranch_scc1 L1_barA")
    o("s_cmp_eq_u32 s3, 2")
    o("s_cbranch_scc1 L1_w13")
    o.c("table waves: LDS-DMA of 64 x rows and one channel half of B and V")
    o(f"s_sub_u32 s24, s36, {XSHIFT}"); o("s_subb_u32 s25, s37, 0"); o("s_and_b32 s25, s25, 0xffff")
    o(f"s_mov_b32 s26, {N*128+XSHIFT}"); o("s_mov_b32 s27, 0x00020000")
    srd(o, 28, 48, 132 * 128)
    srd(o, 32, 46, 64 * 128)
    o("s_mov_b32 s6, s3")
    o("s_lshl_b32 s7, s6, 14")
    o(f"s_add_u32 s7, s7, {K1_TW}")
    swz_consts(o, 1, 20, 24, 25)
    o("s_mul_i32 s54, s2, 49")
    o("s_lshl_b32 s54, s54, 7")
    o(f"s_add_u32 s54, s54, {XSHIFT}")
    o("v_lshl_add_u32 v24, v24, 9, s54")
    for j in range(4):
        o(f"v_xor_b32 v{20+j}, {j}, v25")
        o(f"v_lshl_add_u32 v{20+j}, v{20+j}, 4, v24")
        if j: o(f"v_subrev_u32 v{20+j}, {896*j}, v{20+j}")
    o("s_mov_b32 m0, s7")
    o("s_add_u32 s55, s7, 4096")
    for j in range(4):
        o(f"buffer_load_dwordx4 v{20+j}, s[24:27], 0 offen offset:{1024*j} {cfg.get('ldx', 'nt')} lds")
    for j in range(4):
        o(f"v_add_u32 v{20+j}, 0x1000, v{20+j}")
    o("s_mov_b32 m0, s55")
    o("s_add_u32 s55, s7, 8192")
    for j in range(4):
        o(f"buffer_load_dwordx4 v{20+j}, s[24:27], 0 offen offset:{1024*j} {cfg.get('ldx', 'nt')} lds")
    o("v_lshrrev_b32 v24, 2, v1")
    o("v_and_b32 v25, 3, v1")
    o("v_lshlrev_b32 v24, 7, v24")
    o("v_lshl_add_u32 v24, v25, 4, v24")
    o("s_lshl_b32 s54, s6, 6")
    o("v_add_u32 v24, s54, v24")
    o("s_mov_b32 m0, s55")
    o("s_add_u32 s55, s7, 12288")
    for i in range(4):
        o(f"s_movk_i32 s54, {8192+1024*i}")
        o(f"buffer_load_dwordx4 v24, s[28:31], s54 offen offset:{1024*i} {cfg.get('ldw', 'nt')} lds")
    o("s_mov_b32 m0, s55")
    for i in range(4):
        o(f"s_movk_i32 s54, {1024*i}")
        o(f"buffer_load_dwordx4 v24, s[32:35], s54 offen offset:{1024*i} {cfg.get('ldw', 'nt')} lds")
    aread_addrs(o, 1, 20, 24, 25, 26)
    for s in range(4):
        o(f"v_add_u32 v{20+s}, s7, v{20+s}")
    o("v_and_b32 v24, 31, v1")
    o("v_lshrrev_b32 v25, 5, v1")
    o("v_lshlrev_b32 v26, 9, v25")
    o("v_lshl_add_u32 v26, v24, 1, v26")
    o("v_add_u32 v26, s7, v26")
    o("v_lshlrev_b32 v27, 10, v25")
    o("v_lshl_add_u32 v27, v24, 2, v27")
    o("s_lshl_b32 s54, s6, 7")
    o("v_add_u32 v27, s54, v27")
    o("s_barrier")
    o("s_waitcnt vmcnt(0)")
    T()
    for m in range(2):
        for s in range(4):
            for j in range(8):
                op = "ds_read_u16_d16_hi" if j & 1 else "ds_read_u16"
                o(f"{op} v{64+32*(j&1)+16*m+4*s+(j>>1)}, v26 offset:{8192+4096*m+1024*s+64*j}")
    for s in range(4):
        o(f"ds_read_b128 {vr(40+4*s,4)}, v{20+s}")
    o("s_mov_b32 s54, 0xffff0000")
    o("s_waitcnt lgkmcnt(0)")
    for i in range(32):
        o(f"v_and_or_b32 v{64+i}, v{96+i}, s54, v{64+i}")
    T()
    o("s_setprio 2")
    o(f"s_mov_b32 s54, {NEG_LOG2E:#x}")
    o("s_mov_b32 s55, 0x7fff0000")
    o("s_brev_b32 s56, 1")
    for rt in range(2):
        for s in range(4):
            o(mfma16(96, 40+4*s, 64+4*s, None if s == 0 else 96))
        for s in range(4):
            o(mfma16(112, 40+4*s, 80+4*s, None if s == 0 else 112))
        if rt == 0:
            for s in range(4):
                o(f"ds_read_b128 {vr(40+4*s,4)}, v{20+s} offset:4096")
            o("s_nop 3")
        else:
            o("s_nop 7")
        for r in range(16):
            o(f"v_mul_f32 v{96+r}, s54, v{96+r}")
        for r in range(0, 16, 2):
            o(f"v_cvt_pk_bf16_f32 v{96+r}, v{96+r}, v{97+r}")
            o(f"v_lshrrev_b32 v{97+r}, 16, v{96+r}")
            o(f"v_and_b32 v{96+r}, 0xffff, v{96+r}")
        for r in range(16):
            t = 56 + (r & 3)
            o(f"v_and_b32 v{t}, 0x7fffffff, v{112+r}")
            o(f"v_sub_u32 v{t}, v{t}, v{96+r}")
            o(f"v_add_u32 v{t}, 0x8000, v{t}")
            o(f"v_max_i32 v{t}, 0, v{t}")
            o(f"v_and_or_b32 v{t}, v{t}, s55, v{96+r}")
            o(f"v_and_or_b32 v{t}, v{112+r}, s56, v{t}")
            o(f"ds_write_b32 v27, v{t} offset:{K1_TST + (32*rt + 8*(r>>2) + (r&3))*256}")
        o("s_waitcnt lgkmcnt(0)")
    T()
    o("s_setprio 0")
    o("s_barrier")
    o("s_branch L1_barD")
    o.lab("L1_w13")
    if cfg.get("touch", 1):
        o.c("touch the workspace pages this workgroup stores to later (address translation only, data unused)")
        o(f"s_mul_i32 s54, s2, {CHB}")
        o(f"s_mul_i32 s55, s2, {NPB*256}")
        o(f"s_add_u32 s55, s55, {WS_T}")
        o(f"s_mov_b32 s56, {WS_DESC}")
        o("v_mov_b32 v60, 0")
        for sreg in (54, 55, 56):
            o(f"buffer_load_dword v61, v60, s[20:23], s{sreg} offen")
        o(f"s_add_u32 s54, s54, {CHB-4}")
        o("buffer_load_dword v61, v60, s[20:23], s54 offen")
    for i in range(4): o(f"v_mov_b32 v{32+i}, 0")
    o("v_lshlrev_b32 v21, 4, v1")
    o(f"ds_write_b128 v21, v[32:35] offset:{K1_HIST}")
    o("s_cmp_ge_u32 s2, 17")
    o("s_cbranch_scc1 L1_w13a")
    o("s_cmp_lt_u32 s2, 8")
    o("s_cselect_b32 s28, s48, s44")
    o("s_cselect_b32 s29, s49, s45")
    o("s_cmp_eq_u32 s2, 16")
    o("s_cselect_b32 s28, s48, s28")
    o("s_cselect_b32 s29, s49, s29")
    o("s_and_b32 s29, s29, 0xffff")
    o("s_bitcmp1_b32 s2, 3")
    o("s_movk_i32 s30, 16896")
    o("s_cselect_b32 s30, 8192, s30")
    o("s_mov_b32 s31, 0x00020000")
    o("s_cmp_eq_u32 s2, 16")
    o("s_cbranch_scc1 L1_fragC")
    o("s_and_b32 s54, s2, 3")
    o("s_lshl_b32 s54, s54, 11")
    o("s_bfe_u32 s55, s2, 0x10002")
    o("s_lshl_b32 s55, s55, 6")
    o("s_add_u32 s54, s54, s55")
    o("v_and_b32 v22, 31, v1")
    o("v_lshrrev_b32 v23, 5, v1")
    o("v_lshlrev_b32 v23, 10, v23")
    o("v_lshl_add_u32 v22, v22, 1, v23")
    o("v_add_u32 v22, s54, v22")
    for j in range(8):
        o(f"buffer_load_ushort v{40+4*(j&1)+(j>>1)}, v22, s[28:31], 0 offen offset:{128*j}")
    o("s_lshl_b32 s55, s2, 10")
    o(f"s_add_u32 s55, s55, {WS_FRAG}")
    o("s_waitcnt lgkmcnt(0)")
    o("s_barrier")
    o("s_waitcnt vmcnt(0)")
    for j in range(4): o(f"v_lshl_or_b32 v{40+j}, v{44+j}, 16, v{40+j}")
    o(f"buffer_store_dwordx4 v[40:43], v21, s[20:23], s55 offen {ST}")
    o("s_branch L1_barB")
    o.lab("L1_fragC")
    o("v_lshlrev_b32 v22, 1, v1")
    o("v_add_u32 v22, 0x4000, v22")
    for j in range(4):
        o(f"buffer_load_ushort v{40+j}, v22, s[28:31], 0 offen offset:{128*j}")
    o(f"s_mov_b32 s55, {WS_FRAG+16*1024}")
    o("v_lshlrev_b32 v22, 3, v1")
    o("s_waitcnt lgkmcnt(0)")
    o("s_barrier")
    o("s_waitcnt vmcnt(0)")
    for j in range(4): o(f"v_lshlrev_b32 v{40+j}, 16, v{40+j}")
    for j in range(4): o(f"v_mul_f32 v{40+j}, {NEG_LOG2E:#x}, v{40+j}")
    o("v_cvt_pk_bf16_f32 v40, v40, v41")
    o("v_cvt_pk_bf16_f32 v41, v42, v43")
    o(f"buffer_store_dwordx2 v[40:41], v22, s[20:23], s55 offen {ST}")
    o("s_branch L1_barB")
    o.lab("L1_w13a")
    o("s_waitcnt lgkmcnt(0)")
    o.lab("L1_barA")
    T()
    o("s_barrier")
    o("s_mov_b64 exec, s[52:53]")
    o("s_cbranch_execz L1_histdone")
    o(f"s_movk_i32 s56, {MAGIC49}")
    o("v_mov_b32 v20, 1")
    o("s_waitcnt vmcnt(3)")
    T()
    for i in range(4): o(f"v_mul_u32_u24 v{24+i}, s56, v{4+i}")
    for i in range(4): o(f"v_lshrrev_b32 v{24+i}, 20, v{24+i}")
    for i in range(4):
        o(f"v_lshlrev_b32 v{28+i}, 2, v{24+i}")
        o(f"ds_add_rtn_u32 v{32+i}, v{28+i}, v20 offset:{K1_HIST}")
    for i in range(4): o(f"v_mul_u32_u24 v{24+i}, 49, v{24+i}")
    for i in range(4): o(f"v_sub_u32 v{4+i}, v{4+i}, v{24+i}")
    for i in range(4): o(f"v_lshlrev_b32 v{4+i}, 26, v{4+i}")
    o("s_waitcnt vmcnt(2)")
    for i in range(4): o(f"v_lshl_or_b32 v{8+i}, v{8+i}, 8, v{4+i}")
    o("s_waitcnt lgkmcnt(0)")
    o.lab("L1_histdone")
    o("s_mov_b64 exec, -1")
    o.lab("L1_barB")
    T()
    o("s_barrier")
    T()
    o.c("every wave scans the 256 bucket counts for itself")
    o("v_lshlrev_b32 v21, 4, v1")
    o(f"ds_read_b128 v[40:43], v21 offset:{K1_HIST}")
    o("s_sub_u32 s57, s3, 2")
    o("s_lshl_b32 s57, s57, 10")
    o("v_add_u32 v22, s57, v21")
    for i in range(4): o(f"v_add_u32 v{28+i}, s57, v{28+i}")
    o("s_waitcnt lgkmcnt(0)")
    o("v_add_u32 v45, v40, v41")
    o("v_add_u32 v46, v45, v42")
    o("v_add_u32 v47, v46, v43")
    o("v_mov_b32 v48, v47")
    o("s_nop 1")
    wave_scan(o, 48)
    o("v_sub_u32 v48, v48, v47")
    o("v_add_u32 v49, v48, v40")
    o("v_add_u32 v50, v48, v45")
    o("v_add_u32 v51, v48, v46")
    for j in range(4): o(f"v_mul_u32_u24 v{48+j}, 12, v{48+j}")
    o(f"ds_write_b128 v22, v[48:51] offset:{K1_PB}")
    o("s_cmp_lg_u32 s3, 2")
    o("s_cbranch_scc1 L1_scat")
    for j in range(4): o(f"v_lshl_or_b32 v{40+j}, v{40+j}, 16, v{48+j}")
    o("s_lshl_b32 s55, s2, 10")
    o(f"s_add_u32 s55, s55, {WS_DESC}")
    o(f"buffer_store_dwordx4 v[40:43], v21, s[20:23], s55 offen {ST}")
    o.lab("L1_scat")
    o("s_mov_b64 exec, s[52:53]")
    o("s_cbranch_execz L1_scatdone")
    for i in range(4): o(f"ds_read_b32 v{24+i}, v{28+i} offset:{K1_PB}")
    o("s_waitcnt lgkmcnt(0)")
    for i in range(4): o(f"v_mad_u32_u24 v{24+i}, v{32+i}, 12, v{24+i}")
    for i in range(4): o(f"ds_write_b32 v{24+i}, v{8+i} offset:{K1_STAGE+8}")
    for i in range(4): o(f"v_add_u32 v{24+i}, {K1_STAGE}, v{24+i}")
    o("s_waitcnt vmcnt(0)")
    T()
    for i in range(4): o(f"ds_write2_b32 v{24+i}, v{12+2*i}, v{13+2*i} offset0:0 offset1:1")
    o.lab("L1_scatdone")
    o("s_mov_b64 exec, -1")
    o("s_waitcnt lgkmcnt(0)")
    o.lab("L1_barD")
    o("s_barrier")
    T()
    o("v_lshlrev_b32 v20, 4, v0")
    o(f"s_mul_i32 s55, s2, {CHB}")
    o(f"s_mul_i32 s56, s2, {NPB*256}")
    o(f"s_add_u32 s56, s56, {WS_T}")
    o(f"ds_read_b128 v[24:27], v20 offset:{K1_STAGE}")
    o(f"ds_read_b128 v[28:31], v20 offset:{K1_STAGE+16384}")
    o(f"ds_read_b128 v[40:43], v20 offset:{K1_TST}")
    o(f"ds_read_b128 v[32:35], v20 offset:{K1_STAGE+32768}")
    o("v_add_u32 v21, 16384, v20")
    o("v_add_u32 v22, 32768, v20")
    o("v_cmp_gt_u32 vcc, 784, v0")
    o("s_movk_i32 s57, 298")
    o("v_cmp_gt_u32 s[60:61], s57, v0")
    o("s_waitcnt lgkmcnt(3)")
    o(f"buffer_store_dwordx4 v[24:27], v20, s[20:23], s55 offen {ST}")
    o("s_waitcnt lgkmcnt(2)")
    o(f"buffer_store_dwordx4 v[28:31], v21, s[20:23], s55 offen {ST}")
    o("s_mov_b64 exec, vcc")
    o("s_cbranch_execz L1_fin")
    o("s_waitcnt lgkmcnt(1)")
    o(f"buffer_store_dwordx4 v[40:43], v20, s[20:23], s56 offen {ST}")
    o("s_mov_b64 exec, s[60:61]")
    o("s_cbranch_execz L1_fin")
    o("s_waitcnt lgkmcnt(0)")
    o(f"buffer_store_dwordx4 v[32:35], v22, s[20:23], s55 offen {ST}")
    o.lab("L1_fin")
    if T.on:
        T(); o("s_waitcnt vmcnt(0)"); T(); T(True); T.dump(20, 3, 40, 1)
    o.lab("L1_end")
    o("s_endpgm")
    return o.text()

CAP = 4096
PT = 0; AGG = 13312; SRC = 38912; EA = SRC + CAP * 4 + 256; CNT = EA + CAP * 8 + 512
MORE = CNT + 256; FR = 90112; XT = FR + 16384; K2_LDS = XT + 8192
assert CNT % 256 == 0 and CNT + 320 <= FR and EA % 8 == 0
WSMALL = (CAP - 4 * NPB - 15) // 256

R = [64, 80, 96, 112]; G = [32, 48]
EAR = 30; CW = 28; SELA = 26; SELB = 24; PC = 20; PN = 19; ACC = 18; F64 = 16
V_SA = 15; V_EAA = 14; V_PA = 13; V_FA = 12; V_LANE = 10; V_DESC = 9; V_LB = 8; V_T16 = 7
REC = 64; CA = 96; BS = 104; DUM = 112; AAD = 20; PA_ = 32; PB_ = 48; PD = 96
S_W = 20; S_OFF = 21; S_REM = 22; S_FIRST = 24; S_MORE = 25; S_TOT = 26; MK = 76
MASK = 32; SOFF = 64

def m4(d, a, b, c, extra=""):
    return f"v_mfma_f32_4x4x4_16b_bf16 {vr(d,4)}, {vr(a,2)}, {vr(b,2)}, {vr(c,4)}{extra}"

def pswitch(o, lab, back):
    o.lab(lab)
    o("s_waitcnt lgkmcnt(0)")
    for c in range(4): o(f"v_mov_b32 v{PC+c}, v{PN}")
    o(f"v_add_u32 v{V_PA}, 0x100, v{V_PA}")
    o(f"ds_read_b32 v{PN}, v{V_PA} offset:{PT}")
    o(f"s_branch {back}")

def flush(o):
    o(f"v_cvt_f64_f32 {vr(F64,2)}, v{ACC}")
    o(f"ds_add_f64 v{V_FA}, {vr(F64,2)} offset:{AGG}")

def stage(o, tail, u, cfg):
    gc, gn = G[u & 1], G[(u + 1) & 1]
    rc, rn, rl = R[u], R[(u + 1) & 3], R[(u + 3) & 3]
    un = (u + 1) & 3
    prio = cfg.get("prio", 1)
    for q in range(4):
        o(f"ds_read_b128 {vr(rl+4*q,4)}, v{V_SA} offset:{SRC + (u+3)*64 + 16*q}")
    o(f"s_cmp_gt_u32 s{S_REM}, 2")
    o(f"s_cbranch_scc0 L2_tw{u}")
    o.lab(f"L2_tb{u}")
    tail.lab(f"L2_tw{u}")
    tail("s_waitcnt vmcnt(0)")
    tail(f"s_branch L2_tb{u}")
    o(f"s_and_b32 s27, s{MK}, 0xf0")
    if prio: o("s_setprio 1")
    o(f"s_cbranch_scc1 L2_se{u}")
    tail.lab(f"L2_se{u}")
    late = Asm()
    for oo in (o, tail):
        for r in range(8):
            if r in (0, 2, 4, 6):
                g = r >> 1
                if oo is tail:
                    oo(f"s_bitcmp1_b32 s{MK}, {4+g}")
                    oo(f"s_cbranch_scc1 L2_ps{u}_{g}")
                    oo.lab(f"L2_pb{u}_{g}")
                    pswitch(late, f"L2_ps{u}_{g}", f"L2_pb{u}_{g}")
                oo(m4(gn+4*g, EAR, CW, PC, f" cbsz:4 abid:{4*un+g}"))
            oo(f"v_exp_f32 v{gc+r}, v{gc+r}")
    tail(f"s_branch L2_eb{u}")
    tail.l += late.l
    o.lab(f"L2_eb{u}")
    if u == 2:
        o(f"ds_read_b64 {vr(EAR,2)}, v{V_EAA} offset:{EA+512}")
    o("s_waitcnt vmcnt(16)")
    for r in range(8, 16):
        if r in (8, 10, 12, 14):
            g = (r - 8) >> 1
            o(m4(gn+4*g, SELA, rn+4*g, gn+4*g))
        o(f"v_exp_f32 v{gc+r}, v{gc+r}")
    if prio: o("s_setprio 0")
    for r in range(16):
        o(f"v_add_f32 v{gc+r}, 1.0, v{gc+r}")
    if prio: o("s_setprio 1")
    lp = cfg.get("lp", "end")
    def ld(oo, r):
        if not cfg.get("noload", 0):
            oo(f"buffer_load_dword v{rl+r}, v{V_SA if cfg.get('sameload', 0) else rl+r}, s[8:11], 0 offen {cfg.get('ldt', '')}")
    if lp == "rcp":
        o(f"s_cmp_gt_u32 s{S_REM}, 3")
        o("s_waitcnt lgkmcnt(0)")
        o(f"s_cbranch_scc0 L2_nr{u}")
        tail.lab(f"L2_nr{u}")
    for oo in ((o, tail) if lp == "rcp" else (o,)):
        for r in range(16):
            if r in (0, 2, 4, 6):
                g = r >> 1
                oo(m4(gn+4*g, SELB, rn+4*g+2, gn+4*g))
            oo(f"v_rcp_f32 v{gc+r}, v{gc+r}")
            if lp == "rcp" and oo is o: ld(o, r)
            if r == 14: oo(f"s_and_b32 s27, s{MK}, 15")
    if lp == "rcp":
        tail(f"s_branch L2_rb{u}")
        o.lab(f"L2_rb{u}")
    if prio: o("s_setprio 0")
    o(f"s_cbranch_scc1 L2_sf{u}")
    for r in range(16):
        o(f"v_fmac_f32 v{ACC}, v{gc+r}, v{rc+r}")
    o.lab(f"L2_fb{u}")
    tail.lab(f"L2_sf{u}")
    for g in range(4):
        tail(f"s_bitcmp1_b32 s{MK}, {g}")
        tail(f"s_cbranch_scc0 L2_sk{u}_{g}")
        flush(tail)
        tail(f"v_add_u32 v{V_FA}, 0x200, v{V_FA}")
        tail(f"v_mov_b32 v{ACC}, 0")
        tail.lab(f"L2_sk{u}_{g}")
        for r in range(4*g, 4*g+4):
            tail(f"v_fmac_f32 v{ACC}, v{gc+r}, v{rc+r}")
    tail(f"s_branch L2_fb{u}")
    if u == 3:
        o(f"v_add_u32 v{V_SA}, 0x100, v{V_SA}")
        o(f"v_add_u32 v{V_EAA}, 0x200, v{V_EAA}")
    if lp == "end":
        o(f"s_cmp_gt_u32 s{S_REM}, 3")
        o(f"s_cbranch_scc0 L2_nl{u}")
        o("s_waitcnt lgkmcnt(0)")
        for r in range(16): ld(o, r)
        o.lab(f"L2_nl{u}")
    o(f"s_lshr_b64 {sr(MK,2)}, {sr(MK,2)}, 4")
    o(f"s_sub_u32 s{S_REM}, s{S_REM}, 1")
    o(f"s_cmp_lg_u32 s{S_REM}, 0")
    if u == 2: o("s_waitcnt lgkmcnt(0)")
    if u < 3: o("s_cbranch_scc0 L2_last")
    else: o("s_cbranch_scc1 L2_loop")

S_FL = 23; V_C = 1
QC = 0x30000000
def qflush(o):
    o(f"v_mul_f32 v{ACC}, {QC:#x}, v{ACC}")
    flush(o)

def qacc(o, tail, name, rp):
    o(f"s_cbranch_scc1 L2_sf{name}")
    for g in range(4): o(f"v_fmac_f32 v{ACC}, v{rp+4*g}, v{rp+4*g+1}")
    o.lab(f"L2_fb{name}")
    tail.lab(f"L2_sf{name}")
    for g in range(4):
        tail(f"s_bitcmp1_b32 s{S_FL}, {g}")
        tail(f"s_cbranch_scc0 L2_sk{name}_{g}")
        qflush(tail)
        tail(f"v_add_u32 v{V_FA}, 0x200, v{V_FA}")
        tail(f"v_mov_b32 v{ACC}, 0")
        tail.lab(f"L2_sk{name}_{g}")
        tail(f"v_fmac_f32 v{ACC}, v{rp+4*g}, v{rp+4*g+1}")
    tail(f"s_branch L2_fb{name}")

def qstage(o, tail, u, cfg):
    gc, gn = G[u & 1], G[(u + 1) & 1]
    rc, rn, rl = R[u], R[(u + 1) & 3], R[(u + 3) & 3]
    un = (u + 1) & 3
    o(f"s_cmp_gt_u32 s{S_REM}, 2")
    o(f"s_cbranch_scc0 L2_tw{u}")
    o.lab(f"L2_tb{u}")
    tail.lab(f"L2_tw{u}")
    tail("s_waitcnt vmcnt(0)")
    tail(f"s_branch L2_tb{u}")
    o(f"s_and_b32 s27, s{MK}, 0xf0")
    o("s_setprio 1")
    o(f"s_cbranch_scc1 L2_se{u}")
    tail.lab(f"L2_se{u}")
    late = Asm()
    for oo in (o, tail):
        for g in range(4):
            if oo is tail:
                oo(f"s_bitcmp1_b32 s{MK}, {4+g}")
                oo(f"s_cbranch_scc1 L2_ps{u}_{g}")
                oo.lab(f"L2_pb{u}_{g}")
                pswitch(late, f"L2_ps{u}_{g}", f"L2_pb{u}_{g}")
            oo(m4(gn+4*g, EAR, CW, PC, f" cbsz:4 abid:{4*un+g}"))
            oo(f"v_rcp_f32 v{rl+4*g+1}, v{rl+4*g+1}")
    tail(f"s_branch L2_eb{u}")
    tail.l += late.l
    o.lab(f"L2_eb{u}")
    if u == 2:
        o(f"ds_read_b64 {vr(EAR,2)}, v{V_EAA} offset:{EA+512}")
    o("s_waitcnt vmcnt(16)")
    for r in range(16):
        if r < 4: o(m4(gn+4*r, SELA, rn+4*r, gn+4*r))
        elif r < 8: o(m4(gn+4*(r-4), SELB, rn+4*(r-4)+2, gn+4*(r-4)))
        o(f"v_exp_f32_e64 v{gc+r}, v{gc+r} clamp")
        if r == 14: o(f"s_cmp_lg_u32 s{S_FL}, 0")
    if cfg.get("sb", 0): o("s_barrier")
    o("s_setprio 0")
    qacc(o, tail, str(u), rl)
    for q in range(4):
        o(f"ds_read_b128 {vr(rl+4*q,4)}, v{V_SA} offset:{SRC + (u+3)*64 + 16*q}")
    for r in range(16): o(f"v_add_f32 v{gc+r}, v{V_C}, v{gc+r}")
    seq = [lambda d, h: f"v_mul_f32 v{h}, v{h}, v{d+1}",
           lambda d, h: f"v_mul_f32 v{h+2}, v{h+2}, v{d+3}",
           lambda d, h: f"v_fmac_f32 v{h}, v{h+1}, v{d}",
           lambda d, h: f"v_fmac_f32 v{h+2}, v{h+3}, v{d+2}",
           lambda d, h: f"v_mul_f32 v{d}, v{d}, v{d+1}",
           lambda d, h: f"v_mul_f32 v{d+2}, v{d+2}, v{d+3}",
           lambda d, h: f"v_mul_f32 v{h}, v{h}, v{d+2}",
           lambda d, h: f"v_mul_f32 v{h+1}, v{d}, v{d+2}",
           lambda d, h: f"v_fmac_f32 v{h}, v{h+2}, v{d}"]
    for f in seq:
        for g in range(4): o(f(gc+4*g, rc+4*g))
    if u == 3:
        o(f"v_add_u32 v{V_SA}, 0x100, v{V_SA}")
        o(f"v_add_u32 v{V_EAA}, 0x200, v{V_EAA}")
    o(f"s_cmp_gt_u32 s{S_REM}, 3")
    o("s_waitcnt lgkmcnt(0)")
    o(f"s_cbranch_scc0 L2_nl{u}")
    if not cfg.get("noload", 0):
        for r in range(16):
            o(f"buffer_load_dword v{rl+r}, v{rl+r}, s[8:11], 0 offen {cfg.get('ldt', '')}")
    o.lab(f"L2_nl{u}")
    o(f"s_and_b32 s{S_FL}, s{MK}, 15")
    o(f"s_lshr_b64 {sr(MK,2)}, {sr(MK,2)}, 4")
    o(f"s_sub_u32 s{S_REM}, s{S_REM}, 1")
    o(f"s_cmp_lg_u32 s{S_REM}, 0")
    if u < 3: o(f"s_cbranch_scc0 L2_last{u}")
    else: o("s_cbranch_scc1 L2_loop")

def qfinish(o, tail):
    for u in (3, 0, 1, 2):
        oo = o if u == 3 else tail
        oo.lab(f"L2_last{u}")
        for g in range(4): oo(f"v_rcp_f32 v{R[u]+4*g+1}, v{R[u]+4*g+1}")
        oo(f"s_cmp_lg_u32 s{S_FL}, 0")
        t2 = Asm()
        qacc(oo, t2, f"e{u}", R[u])
        if u != 3: oo("s_branch L2_last")
        tail.l += t2.l
    o.lab("L2_last")
    qflush(o)

def kernel2(cfg):
    o = Asm(); tail = Asm()
    WE = cfg.get("we", 0); WL = cfg.get("wl", 0); LDR = cfg.get("ld2", "")
    T = Stamper(o, cfg.get("stamp", 0), 11, 1)
    if cfg.get("dbg", -1) == 1: T.dbgwg = cfg.get("dbgwg", 100); T.dbgback = 0
    L = V_LANE
    o.lab("edge_kernel")
    o("s_cmp_ge_u32 s2, 256")
    o("s_cbranch_scc1 L2_end")
    T(True); T()
    o("s_load_dwordx2 s[28:29], s[0:1], 72")
    o("s_load_dwordx2 s[4:5], s[0:1], 0")
    o("s_load_dwordx2 s[6:7], s[0:1], 56")
    o("v_lshrrev_b32 v1, 6, v0")
    o(f"v_and_b32 v{L}, 63, v0")
    o("s_and_b32 s30, s2, 7")
    o("s_lshl_b32 s30, s30, 5")
    o("s_lshr_b32 s31, s2, 3")
    o("v_readfirstlane_b32 s3, v1")
    o("s_add_u32 s30, s30, s31")
    o(f"v_lshrrev_b32 v2, 4, v{L}")
    o(f"v_and_b32 v3, 15, v{L}")
    o("v_and_b32 v4, 3, v3")
    o("s_lshl_b32 s27, s3, 4")
    o("v_lshl_add_u32 v2, v2, 2, s27")
    o("v_add_u32 v4, v2, v4")
    o("s_lshl_b32 s72, s30, 2")
    o(f"s_add_u32 s72, s72, {WS_DESC}")
    o("v_lshlrev_b32 v4, 10, v4")
    o(f"s_mov_b32 s14, {WS_T+T_BYTES}"); o("s_mov_b32 s15, 0x00020000")
    o("s_waitcnt lgkmcnt(0)")
    o("s_mov_b32 s12, s28"); o("s_and_b32 s13, s29, 0xffff")
    o(f"buffer_load_dword v{V_DESC}, v4, s[12:15], s72 offen")
    o(f"v_lshlrev_b32 v5, 3, v{L}")
    o(f"s_mov_b32 s73, {WS_FRAG+16*1024}")
    o(f"buffer_load_dwordx2 {vr(CW,2)}, v5, s[12:15], s73 offen")
    o(f"v_lshlrev_b32 v5, 4, v{L}")
    o("s_lshl_b32 s74, s3, 10")
    o(f"s_add_u32 s75, s74, {FR}")
    o("s_mov_b32 m0, s75")
    o(f"s_add_u32 s73, s74, {WS_FRAG}")
    o("buffer_load_dwordx4 v5, s[12:15], s73 offen lds")
    srd(o, 16, 4, N * 128)
    swz_consts(o, L, 1, 6, 5)
    o("s_and_b32 s76, s3, 3")
    o("s_bfe_u32 s77, s3, 0x10002")
    o("v_xor_b32 v1, s76, v5")
    o("v_lshlrev_b32 v1, 4, v1")
    o("s_mul_i32 s78, s30, 49")
    o("s_lshl_b32 s79, s77, 5")
    o("s_add_u32 s79, s79, s78")
    o("s_add_u32 s79, s79, s76")
    o("s_lshl_b32 s79, s79, 7")
    o("v_lshl_add_u32 v1, v6, 9, v1")
    o("s_and_b32 s80, s74, 0x1fff")
    o(f"s_add_u32 s80, s80, {XT}")
    o("s_mov_b32 m0, s80")
    o("v_add_u32 v1, s79, v1")
    o("buffer_load_dwordx4 v1, s[16:19], 0 offen lds")
    o(f"s_add_u32 s8, s28, {WS_T}"); o("s_addc_u32 s9, s29, 0")
    o("s_and_b32 s9, s9, 0xffff"); o("s_or_b32 s9, s9, 0x40000")
    o(f"s_mov_b32 s10, {T_BYTES}"); o("s_mov_b32 s11, 0x00800000")
    o(f"v_lshlrev_b32 v{V_T16}, 4, v0")
    o("s_mul_i32 s82, s31, 100000")
    o(f"s_add_u32 s82, s82, {WS_T}")
    for i in range(WE):
        o(f"buffer_load_dwordx4 {vr(DUM,4)}, v{V_T16}, s[12:15], s82 offen")
        o("s_add_u32 s82, s82, 16384")
    for i in range(4):
        o(f"s_mov_b32 s{SOFF+i}, {i*CHB}")
    o("s_cmp_lg_u32 s3, 15")
    o("s_cbranch_scc1 L2_nz")
    o("v_mov_b32 v1, 0")
    o(f"v_lshlrev_b32 v4, 2, v{L}")
    o(f"v_add_u32 v4, {CNT}, v4")
    o("ds_write_b32 v4, v1")
    o("ds_write_b32 v4, v1 offset:64")
    o.lab("L2_nz")
    o(f"s_mov_b32 s81, {CHB}")
    o(f"v_mul_lo_u32 v{V_LB}, v2, s81")
    o(f"v_mad_u32_u24 v{V_LB}, v3, 12, v{V_LB}")
    o(f"s_mov_b32 s{S_W}, 32")
    o(f"s_mov_b32 s{S_OFF}, 0")
    o(f"s_mov_b32 s{S_FIRST}, 1")
    o(f"s_waitcnt vmcnt({3+WE})")
    T()
    o.lab("L2_pass")
    o(f"v_and_b32 v3, 15, v{L}")
    o(f"v_add_u32 v1, s{S_OFF}, v3")
    o("v_add_u32 v2, 16, v1")
    o(f"s_add_u32 s83, s{S_OFF}, s{S_W}")
    o(f"s_mul_i32 s84, s{S_OFF}, 12")
    o(f"v_add_u32 v6, s84, v{V_LB}")
    o(f"v_lshrrev_b32 v4, 16, v{V_DESC}")
    o("v_cmp_lt_u32 vcc, s83, v4")
    o("v_min_u32 v4, s83, v4")
    o(f"v_and_b32 v5, 0xffff, v{V_DESC}")
    o("s_cmp_lg_u64 vcc, 0")
    o(f"s_cselect_b32 s{S_MORE}, 1, 0")
    for i in range(4):
        o(f"v_mov_b32_dpp v{BS}, v4 row_newbcast:{i} row_mask:0xf bank_mask:0xf")
        o(f"v_add_u32_dpp v{BS+1+i}, v5, v6 row_newbcast:{i} row_mask:0xf bank_mask:0xf")
        o(f"v_cmp_lt_u32 {sr(MASK+2*i,2)}, v1, v{BS}")
        o(f"v_cmp_lt_u32 {sr(MASK+8+2*i,2)}, v2, v{BS}")
    for i in range(4):
        o(f"s_mov_b64 exec, {sr(MASK+8+2*i,2)}")
        o(f"s_cbranch_execz L2_r2_{i}")
        o(f"buffer_load_dwordx3 {vr(REC+16+4*i,3)}, v{BS+1+i}, s[12:15], s{SOFF+i} offen offset:192 {LDR}")
        o.lab(f"L2_r2_{i}")
    for i in range(4):
        o(f"s_mov_b64 exec, {sr(MASK+2*i,2)}")
        o(f"buffer_load_dwordx3 {vr(REC+4*i,3)}, v{BS+1+i}, s[12:15], s{SOFF+i} offen {LDR}")
    o("s_mov_b64 exec, -1")
    o("s_mov_b32 s85, s82")
    for i in range(WL):
        o(f"buffer_load_dwordx4 {vr(DUM,4)}, v{V_T16}, s[12:15], s85 offen")
        o("s_add_u32 s85, s85, 16384")
    o(f"s_cmp_eq_u32 s{S_FIRST}, 0")
    o("s_cbranch_scc1 L2_ranks")
    o(f"s_mov_b32 s{S_FIRST}, 0")
    aread_addrs(o, L, AAD, 1, 2, 3)
    srd(o, 16, 6, N * 128)
    if cfg.get("touch", 1):
        o("s_cmp_lg_u32 s3, 15")
        o("s_cbranch_scc1 L2_nt")
        o("s_lshl_b32 s93, s78, 7")
        o("v_mov_b32 v1, s93")
        o(f"buffer_load_dword v{DUM}, v1, s[16:19], 0 offen")
        o("s_waitcnt vmcnt(0)")
        o.lab("L2_nt")
    T()
    o(f"s_waitcnt vmcnt({4+WL}) lgkmcnt(0)")
    o("s_barrier")
    T()
    o("s_cmp_ge_u32 s3, 8")
    o("s_cbranch_scc1 L2_pdone")
    o("s_and_b32 s86, s3, 1")
    o("s_bfe_u32 s87, s3, 0x10001")
    o("s_lshr_b32 s88, s3, 2")
    o("s_lshl_b32 s89, s86, 13")
    o("s_lshl_b32 s90, s88, 12")
    o("s_add_u32 s89, s89, s90")
    o(f"s_add_u32 s89, s89, {FR}")
    o(f"v_lshl_add_u32 v2, v{L}, 4, s89")
    for s in range(4):
        o(f"ds_read_b128 {vr(PB_+4*s,4)}, v2 offset:{1024*s}")
    o("s_lshl_b32 s90, s87, 12")
    o(f"s_add_u32 s90, s90, {XT}")
    for s in range(4):
        o(f"v_add_u32 v3, s90, v{AAD+s}")
        o(f"ds_read_b128 {vr(PA_+4*s,4)}, v3")
    o(f"v_lshrrev_b32 v2, 5, v{L}")
    o("v_lshlrev_b32 v2, 2, v2")
    o("s_lshl_b32 s90, s87, 5")
    o("v_add_u32 v2, s90, v2")
    o(f"v_and_b32 v3, 31, v{L}")
    o("s_lshl_b32 s90, s88, 5")
    o("v_add_u32 v3, s90, v3")
    o("v_lshl_add_u32 v2, v2, 6, v3")
    o("s_waitcnt lgkmcnt(0)")
    for s in range(4):
        o(mfma16(PD, PA_ + 4*s, PB_ + 4*s, None if s == 0 else PD))
    o("s_cmp_eq_u32 s86, 1")
    o("s_cbranch_scc1 L2_xu")
    o("v_lshlrev_b32 v2, 2, v2")
    o("s_nop 9")
    def pwrite(r):
        o(f"v_mul_f32 v{PD+r}, {NEG_LOG2E:#x}, v{PD+r}")
        o(f"ds_write_b32 v2, v{PD+r} offset:{PT + (8*(r>>2)+(r&3))*256}")
    for r in range(8): pwrite(r)
    o("s_cmp_eq_u32 s87, 1")
    o("s_cselect_b32 exec_hi, 0, -1")
    for r in range(8, 10): pwrite(r)
    o("s_mov_b64 exec, -1")
    o("s_cbranch_scc1 L2_pdone")
    for r in range(10, 16): pwrite(r)
    o("s_branch L2_pdone")
    o.lab("L2_xu")
    o("v_lshlrev_b32 v2, 3, v2")
    o("s_nop 9")
    def uwrite(r):
        t = PA_ + 2 * (r & 7)
        o(f"v_cvt_f64_f32 {vr(t,2)}, v{PD+r}")
        o(f"ds_write_b64 v2, {vr(t,2)} offset:{AGG + (8*(r>>2)+(r&3))*512}")
    for r in range(8): uwrite(r)
    o("s_cmp_eq_u32 s87, 1")
    o("s_cselect_b32 exec_hi, 0, -1")
    for r in range(8, 10): uwrite(r)
    o("s_mov_b64 exec, -1")
    o("s_cbranch_scc1 L2_pdone")
    for r in range(10, 16): uwrite(r)
    o.lab("L2_pdone")
    o.c("selector operands of the 4x4x4 MFMAs that add the gathered gate term")
    o(f"v_and_b32 v1, 3, v{L}")
    o("v_mov_b32 v2, 0x3f80")
    for idx, reg in enumerate((SELA, SELA+1, SELB, SELB+1)):
        o(f"v_cmp_eq_u32 vcc, {idx}, v1")
        o("s_nop 1")
        o(f"v_cndmask_b32 v{reg}, 0, v2, vcc")
    o.lab("L2_ranks")
    T()
    o("v_mov_b32 v1, 4")
    o(f"v_mov_b32 v2, {CNT}")
    o(f"s_cmp_eq_u32 s{S_MORE}, 0")
    o("s_cbranch_scc1 L2_nomore")
    o("ds_write_b32 v2, v1 offset:256")
    o.lab("L2_nomore")
    def rank(i):
        o(f"v_add_u32_sdwa v{CA+i}, v{REC+4*i+2}, v2 dst_sel:DWORD dst_unused:UNUSED_PAD src0_sel:BYTE_3 src1_sel:DWORD")
        o(f"ds_add_rtn_u32 v{REC+4*i+3}, v{CA+i}, v1")
    for i in range(4):
        o(f"s_waitcnt vmcnt({WL+3-i})")
        o(f"s_mov_b64 exec, {sr(MASK+2*i,2)}")
        rank(i)
    for i in range(4, 8):
        o(f"s_mov_b64 exec, {sr(MASK+2*i,2)}")
        o(f"s_cbranch_execz L2_rk{i}")
        rank(i)
        o.lab(f"L2_rk{i}")
    o("s_mov_b64 exec, -1")
    o("s_waitcnt lgkmcnt(0)")
    T()
    o("s_barrier")
    T()
    o(f"v_lshl_add_u32 v1, v{L}, 2, v2")
    o("ds_read_b32 v3, v1")
    o("ds_read_b32 v4, v2 offset:256")
    o(f"v_cmp_gt_u32 vcc, 49, v{L}")
    o("v_mov_b32 v6, 16")
    o("s_mov_b64 s[92:93], vcc")
    o("v_cndmask_b32 v6, 0, v6, vcc")
    o("s_waitcnt lgkmcnt(0)")
    o("v_add_u32 v5, 15, v3")
    o("v_and_b32 v5, -16, v5")
    o("v_max_u32 v5, v5, v6")
    o("v_mov_b32 v6, v5")
    o(f"v_readfirstlane_b32 s{S_MORE}, v4")
    o("s_nop 0")
    wave_scan(o, 6)
    o("s_nop 0")
    o(f"v_readlane_b32 s{S_TOT}, v6, 63")
    o("v_sub_u32 v6, v6, v5")
    o(f"s_cmp_gt_u32 s{S_TOT}, {CAP*4}")
    o("s_cbranch_scc0 L2_fits")
    o.c("window too large for LDS: clear the counters and redo with the small window")
    o("s_barrier")
    o("v_mov_b32 v3, 0")
    o("ds_write_b32 v1, v3")
    o("ds_write_b32 v2, v3 offset:256")
    o(f"s_mov_b32 s{S_W}, {WSMALL}")
    o("s_waitcnt vmcnt(0) lgkmcnt(0)")
    o("s_barrier")
    o("s_branch L2_pass")
    o.lab("L2_fits")
    for i in range(4):
        o(f"ds_bpermute_b32 v{BS+i}, v{CA+i}, v6")
    for i in range(4, 8):
        o(f"s_cmp_eq_u64 {sr(MASK+2*i,2)}, 0")
        o(f"s_cbranch_scc1 L2_bp{i}")
        o(f"ds_bpermute_b32 v{BS+i}, v{CA+i}, v6")
        o.lab(f"L2_bp{i}")
    o(f"s_add_u32 s86, s{S_TOT}, 63")
    o("s_lshr_b32 s86, s86, 6")
    o("s_mul_i32 s87, s86, s3")
    o("s_add_u32 s88, s87, s86")
    o("s_lshr_b32 s87, s87, 4")
    o("s_lshr_b32 s88, s88, 4")
    o(f"s_sub_u32 s{S_REM}, s88, s87")
    if cfg.get("sb", 0):
        o("s_add_u32 s28, s86, 15")
        o("s_lshr_b32 s28, s28, 4")
        o(f"s_sub_u32 s28, s28, s{S_REM}")
    o("s_lshl_b32 s89, s87, 6")
    o("s_lshl_b32 s90, s88, 6")
    o("s_waitcnt lgkmcnt(0)")
    def scat(i):
        o(f"v_add_u32 v{BS+i}, v{BS+i}, v{REC+4*i+3}")
        o(f"v_and_b32 v{REC+4*i+2}, 0xffffff, v{REC+4*i+2}")
        o(f"v_add_u32 v{REC+4*i+3}, v{BS+i}, v{BS+i}")
        o(f"ds_write_b32 v{BS+i}, v{REC+4*i+2} offset:{SRC}")
        o(f"ds_write_b64 v{REC+4*i+3}, {vr(REC+4*i,2)} offset:{EA}")
    for i in range(4):
        o(f"s_mov_b64 exec, {sr(MASK+2*i,2)}")
        scat(i)
    for i in range(4, 8):
        o(f"s_mov_b64 exec, {sr(MASK+2*i,2)}")
        o(f"s_cbranch_execz L2_sc{i}")
        scat(i)
        o.lab(f"L2_sc{i}")
    o("s_mov_b64 exec, -1")
    o("s_cmp_gt_u32 s3, 4")
    o("s_cbranch_scc1 L2_nopad")
    o(f"v_mov_b32 v{BS}, {NULLROW}")
    o(f"v_mov_b32 v{BS+2}, 0")
    o(f"v_mov_b32 v{BS+3}, 0")
    o("s_lshl_b32 s91, s3, 2")
    o("v_add_u32 v3, s91, v3")
    o("v_cmp_lt_u32 vcc, v3, v5")
    o("v_add_u32 v3, v3, v6")
    o("s_cmp_lg_u32 s3, 4")
    o("s_cbranch_scc1 L2_padw")
    o(f"v_lshl_add_u32 v3, v{L}, 2, s{S_TOT}")
    o("s_lshl_b32 s91, s86, 6")
    o("v_cmp_gt_u32 vcc, s91, v3")
    o.lab("L2_padw")
    o("v_add_u32 v4, v3, v3")
    o("s_mov_b64 exec, vcc")
    o(f"ds_write_b32 v3, v{BS} offset:{SRC}")
    o(f"ds_write_b64 v4, {vr(BS+2,2)} offset:{EA}")
    o("s_mov_b64 exec, -1")
    o.lab("L2_nopad")
    o("v_cmp_ge_u32 vcc, s89, v6")
    o("s_and_b64 s[94:95], vcc, s[92:93]")
    o("s_bcnt1_i32_b64 s91, s[94:95]")
    o("s_sub_u32 s91, s91, 1")
    o("v_cmp_gt_u32 vcc, s90, v6")
    o("s_andn2_b64 s[94:95], vcc, s[94:95]")
    o("s_and_b64 s[94:95], s[94:95], s[92:93]")
    o(f"s_mov_b64 {sr(MK,2)}, 0")
    o("v_subrev_u32 v6, s89, v6")
    o("v_lshrrev_b32 v6, 4, v6")
    o.lab("L2_mloop")
    o("s_cmp_eq_u64 s[94:95], 0")
    o("s_cbranch_scc1 L2_mdone")
    o("s_ff1_i32_b64 s96, s[94:95]")
    o("s_bitset0_b64 s[94:95], s96")
    o("v_readlane_b32 s97, v6, s96")
    o("s_nop 0")
    o(f"s_bitset1_b64 {sr(MK,2)}, s97")
    o("s_branch L2_mloop")
    o.lab("L2_mdone")
    if cfg.get("nomask", 0): o(f"s_mov_b64 {sr(MK,2)}, 0")
    if cfg.get("tf", 0):
        o("s_cmp_eq_u32 s79, 0")
        o("s_cbranch_scc1 L2_tfd")
        o(f"s_waitcnt vmcnt({cfg.get('wb', 3)})")
        o.lab("L2_tfp")
        o("v_cmp_ne_u32 vcc, s74, v12")
        o("v_cmp_ne_u32 s[96:97], s75, v13")
        o("s_or_b64 vcc, vcc, s[96:97]")
        o("s_cbranch_scc0 L2_tfo")
        o("s_sub_u32 s79, s79, 1")
        o("s_cmp_eq_u32 s79, 0")
        o("s_cbranch_scc1 L2_tfo")
        o("s_sleep 2")
        o("buffer_load_dwordx2 v[12:13], v14, s[12:15], s73 offen sc1")
        o("s_waitcnt vmcnt(0)")
        o("s_branch L2_tfp")
        o.lab("L2_tfo")
        o("s_mov_b32 s79, 0")
        o.lab("L2_tfd")
    o(f"v_mov_b32 v{V_SA}, s89")
    o("s_lshl_b32 s96, s89, 1")
    o(f"v_lshl_add_u32 v{V_EAA}, v{L}, 3, s96")
    o("s_lshl_b32 s96, s91, 8")
    o(f"v_lshl_add_u32 v{V_PA}, v{L}, 2, s96")
    o(f"v_add_u32 v{V_FA}, v{V_PA}, v{V_PA}")
    o(f"v_mov_b32 v{ACC}, 0")
    o("s_waitcnt lgkmcnt(0)")
    T()
    o("s_barrier")
    T()
    o("s_cmp_lg_u32 s3, 15")
    o("s_cbranch_scc1 L2_nz2")
    o("v_mov_b32 v3, 0")
    o("ds_write_b32 v1, v3")
    o("ds_write_b32 v2, v3 offset:256")
    o.lab("L2_nz2")
    o(f"s_cmp_eq_u32 s{S_REM}, 0")
    o("s_cbranch_scc1 L2_idle" if cfg.get("fillbar", 0) else "s_cbranch_scc1 L2_done")
    if cfg.get("fillbar", 0):
        tail.lab("L2_idle"); tail("s_barrier"); tail("s_branch L2_done")
    if cfg.get("fillprio", 0): o("s_setprio 3")
    for b in range(3):
        for q in range(4):
            o(f"ds_read_b128 {vr(R[b]+4*q,4)}, v{V_SA} offset:{SRC + b*64 + 16*q}")
        if b == 0:
            o(f"ds_read_b32 v{PC}, v{V_PA} offset:{PT}")
            o(f"ds_read_b32 v{PN}, v{V_PA} offset:{PT+256}")
            o(f"ds_read_b64 {vr(EAR,2)}, v{V_EAA} offset:{EA}")
    o("s_waitcnt lgkmcnt(11)")
    for r in range(16):
        o(f"buffer_load_dword v{R[0]+r}, v{R[0]+r}, s[8:11], 0 offen {cfg.get('ldt', '')}")
    o("s_waitcnt lgkmcnt(0)")
    def issue12():
        for b in (1, 2):
            o(f"s_cmp_gt_u32 s{S_REM}, {b}")
            o("s_cbranch_scc0 L2_pre")
            for r in range(16):
                o(f"buffer_load_dword v{R[b]+r}, v{R[b]+r}, s[8:11], 0 offen {cfg.get('ldt', '')}")
        o.lab("L2_pre")
    ramp = cfg.get("ramp", 1)
    if not ramp: issue12()
    for c in range(1, 4): o(f"v_mov_b32 v{PC+c}, v{PC}")
    o(f"v_add_u32 v{V_PA}, 0x100, v{V_PA}")
    o("s_nop 0")
    for g in range(4):
        if g:
            o(f"s_bitcmp1_b32 s{MK}, {g}")
            o(f"s_cbranch_scc1 L2_psp_{g}")
            o.lab(f"L2_pbp_{g}")
            pswitch(tail, f"L2_psp_{g}", f"L2_pbp_{g}")
        o(m4(G[0]+4*g, EAR, CW, PC, f" cbsz:4 abid:{g}"))
        o("s_nop 0")
    if ramp:
        o("s_waitcnt vmcnt(0)")
        issue12()
    else:
        o("s_waitcnt vmcnt(32)")
        o(f"s_cmp_gt_u32 s{S_REM}, 2")
        o("s_cbranch_scc1 L2_pw")
        o("s_waitcnt vmcnt(0)")
        o.lab("L2_pw")
    for g in range(4): o(m4(G[0]+4*g, SELA, R[0]+4*g, G[0]+4*g))
    for g in range(4): o(m4(G[0]+4*g, SELB, R[0]+4*g+2, G[0]+4*g))
    if cfg.get("quad", 1):
        o(f"v_mov_b32 v{V_C}, {QC:#x}")
        o(f"s_mov_b32 s{S_FL}, 0")
        for g in range(4):
            o(f"v_mov_b32 v{R[3]+4*g}, 0")
            o(f"v_mov_b32 v{R[3]+4*g+1}, 1.0")
    o("s_nop 1")
    if cfg.get("fillbar", 0): o("s_barrier")
    T(); T(True)
    o(".p2align 3")
    o.lab("L2_loop")
    if cfg.get("quad", 1):
        for u in range(4): qstage(o, tail, u, cfg)
        qfinish(o, tail)
    else:
        for u in range(4): stage(o, tail, u, cfg)
        o.lab("L2_last")
        flush(o)
    o.lab("L2_done")
    if cfg.get("sb", 0):
        o.lab("L2_xb")
        o("s_cmp_eq_u32 s28, 0")
        o("s_cbranch_scc1 L2_xd")
        o("s_barrier")
        o("s_sub_u32 s28, s28, 1")
        o("s_branch L2_xb")
        o.lab("L2_xd")
    o("s_waitcnt vmcnt(0) lgkmcnt(0)")
    T(); T(True)
    o("s_barrier")
    o(f"s_cmp_eq_u32 s{S_MORE}, 0")
    o("s_cbranch_scc1 L2_out")
    o(f"s_add_u32 s{S_OFF}, s{S_OFF}, s{S_W}")
    o("s_branch L2_pass")
    o.lab("L2_out")
    o("v_cmp_gt_u32 vcc, 392, v0")
    o("s_and_saveexec_b64 s[94:95], vcc")
    o("s_cbranch_execz L2_fin")
    o("v_lshlrev_b32 v1, 6, v0")
    for c in range(4):
        o(f"ds_read_b128 {vr(80+4*c,4)}, v1 offset:{AGG+16*c}")
    o("s_lshl_b32 s93, s78, 7")
    o(f"v_add_u32 v2, s93, v{V_T16}")
    o("s_waitcnt lgkmcnt(0)")
    for r in range(8): o(f"v_cvt_f32_f64 v{64+r}, {vr(80+2*r,2)}")
    for r in range(8): o(f"v_mul_f32 v{72+r}, {NEG_LOG2E:#x}, v{64+r}")
    for r in range(8): o(f"v_exp_f32 v{72+r}, v{72+r}")
    for r in range(8): o(f"v_add_f32 v{72+r}, 1.0, v{72+r}")
    for r in range(8): o(f"v_rcp_f32 v{72+r}, v{72+r}")
    for r in range(8): o(f"v_mul_f32 v{64+r}, v{64+r}, v{72+r}")
    for r in range(4): o(f"v_cvt_pk_bf16_f32 v{72+r}, v{64+2*r}, v{65+2*r}")
    o("buffer_store_dwordx4 v[72:75], v2, s[16:19], 0 offen")
    o.lab("L2_fin")
    if T.on:
        o("s_waitcnt vmcnt(0)"); T(); T(True); T.dump(12, 3, 1, V_LANE)
    o.lab("L2_end")
    o("s_endpgm")
    return o.text() + tail.text()

HEADER = """; Edge-gated MPNN layer: out = silu(x@U + sum over edges with dst=i of sigmoid(x[dst]@A + x[src]@B + e@C) * (x[src]@V))
; @launch kernel=bin_kernel grid=(256,1,1) block=(1024,1,1) lds={l1}
; @launch kernel=edge_kernel grid=(256,1,1) block=(1024,1,1) lds={l2}
.amdgcn_target "amdgcn-amd-amdhsa--gfx950"
.text
"""
def build(cfg):
    s = HEADER.format(l1=K1_LDS, l2=K2_LDS)
    for name, fn in (("bin_kernel", kernel1), ("edge_kernel", kernel2)):
        s += f".globl {name}\n.p2align 8\n.type {name},@function\n" + fn(cfg)
    s += '.section .rodata,"a"\n.p2align 6\n' + kd("bin_kernel", 128, 102) + ".p2align 6\n" + kd("edge_kernel", 128, 102)
    return s

if __name__ == "__main__":
    cfg = {}
    for a in sys.argv[2:]:
        k, v = a.split("=")
        cfg[k] = int(v) if v.lstrip("-").isdigit() else v
    open(sys.argv[1], "w").write(build(cfg))
```

```python
import sys
from gen import Asm, Stamper, vr, sr, wave_scan, kd, mfma16
import gen2
from gen2 import swz_consts, aread_addrs, m4, pswitch, flush

N = 12500; E = 800000; NPB = 49; CH = 3128; CHB = CH * 12
WS_DESC = 0x00A00000; WS_TF = 0x00A80000; WS_T = 0x00C00000; T_BYTES = 256 * NPB * 256
NULLROW = N * 256; XSHIFT = 4096; NEG_LOG2E = 0xBFB8AA3B; MAGIC49 = 21400
NAME = "standalone__edge_featured_mpnn_egc__graph_kernel"

CAP = 4096
PT = 0; AGG = 13312; OV = 38912
SRC = OV; EA = SRC + CAP * 4 + 256
HIST = OV; STAGE = OV + 1024; PB = OV + 38912
CNT = PB + 13 * 1024; MORE = CNT + 256; PUB = CNT + 272; DSV = CNT + 512
TW = 93696; XS = TW; WS_ = XS + 8192; TS = WS_ + 16384; AU = TS + 16384; LDS = AU + 16384
assert EA + CAP * 8 + 512 <= CNT and STAGE + CHB <= PB and CNT % 256 == 0 and DSV + 2048 <= TW and LDS <= 163840
WSMALL = (CAP - 4 * NPB - 15) // 256
for k in ("PT", "AGG", "SRC", "EA"): setattr(gen2, k, globals()[k])
from gen2 import R, G, EAR, CW, SELA, SELB, PC, PN, ACC, V_SA, V_EAA, V_PA, V_FA, V_LANE, V_DESC, V_LB, V_T16
from gen2 import REC, CA, BS, DUM, S_W, S_OFF, S_REM, S_MORE, S_TOT, MK, MASK, SOFF, stage

def mk_srd(o, d, p, size):
    o(f"s_mov_b32 s{d}, s{p}"); o(f"s_and_b32 s{d+1}, s{p+1}, 0xffff")
    o(f"s_mov_b32 s{d+2}, {size}"); o(f"s_mov_b32 s{d+3}, 0x00020000")

def poll(o, name, mask, cfg):
    o(f"s_mov_b32 s86, {mask:#x}")
    o(f"s_mov_b32 s87, {cfg.get('spin', 400000)}")
    o(f"v_lshlrev_b32 v1, 2, v{V_LANE}")
    o.lab(name)
    o("buffer_load_dword v2, v1, s[68:71], 0 offen sc1")
    o("s_sub_u32 s87, s87, 1")
    o("s_waitcnt vmcnt(0)")
    o("v_and_b32 v2, s86, v2")
    o("v_cmp_ne_u32 vcc, s86, v2")
    o("s_cmp_eq_u32 s87, 0")
    o(f"s_cbranch_scc1 {name}_x")
    o(f"s_cbranch_vccnz {name}")
    o.lab(name + "_x")

def kernel(cfg):
    o = Asm(); tail = Asm()
    ST = cfg.get("st", "sc1"); LD = cfg.get("ld1", "nt"); WL = cfg.get("wl", 0)
    cfg.setdefault("ldt", "sc1"); cfg.setdefault("fillprio", 1)
    T = Stamper(o, cfg.get("stamp", 0), 11, 1); T.wide = True
    if cfg.get("dbg", -1) == 1: T.dbgwg = cfg.get("dbgwg", 100); T.dbgback = 0; T.dbgshift = cfg.get("dbgshift", 0); T.dbgwave = cfg.get("dbgwave", 13)
    L = V_LANE
    TF = cfg.get("tpos", "D") != "D"
    def tstore():
        o.c("table rows go out now; their own flag follows when all four table waves have drained them")
        o(f"v_lshrrev_b32 v64, 3, v{L}")
        o(f"v_and_b32 v65, 7, v{L}")
        o("v_lshlrev_b32 v65, 4, v65")
        o("s_lshl_b32 s86, s7, 5")
        o("v_add_u32 v66, s86, v64")
        o("v_lshl_add_u32 v67, v66, 8, v65")
        o("v_lshl_add_u32 v64, v64, 7, v65")
        o("v_add_u32 v64, s29, v64")
        o("s_lshl_b32 s84, s78, 8")
        o("s_lshl_b32 s85, s6, 7")
        o("s_add_u32 s84, s84, s85")
        o(f"s_add_u32 s84, s84, {WS_T}")
        for i in range(4): o(f"ds_read_b128 {vr(80+4*i,4)}, v64 offset:{1024*i}")
        for i in range(4):
            o(f"v_cmp_gt_u32 vcc, {49-8*i}, v66")
            o(f"s_waitcnt lgkmcnt({3-i})")
            o("s_mov_b64 exec, vcc")
            o(f"buffer_store_dwordx4 {vr(80+4*i,4)}, v67, s[12:15], s84 offen {ST}")
            o("s_add_u32 s84, s84, 2048")
            o("s_mov_b64 exec, -1")
    o.lab(NAME)
    o("s_cmp_ge_u32 s2, 256")
    o("s_cbranch_scc1 L_end")
    T(True); T()
    o("s_load_dwordx16 s[80:95], s[0:1], 0")
    o("s_load_dwordx4 s[96:99], s[0:1], 64")
    o("v_lshrrev_b32 v1, 6, v0")
    o(f"v_and_b32 v{L}, 63, v0")
    o("s_movk_i32 s4, 768")
    o("s_cmp_eq_u32 s2, 255")
    o("s_cselect_b32 s4, 590, s4")
    o("s_cselect_b32 s6, 0, 56")
    o("v_readfirstlane_b32 s3, v1")
    o("s_mul_i32 s5, s2, 12512")
    o("v_subrev_u32 v4, 256, v0")
    o("v_lshl_add_u32 v2, v4, 4, s5")
    o("v_lshlrev_b32 v3, 1, v2")
    o("v_cmp_gt_u32 s[72:73], s4, v4")
    o("v_cmp_gt_u32 s[74:75], s6, v4")
    o("s_and_b32 s30, s2, 7")
    o("s_lshl_b32 s30, s30, 5")
    o("s_lshr_b32 s31, s2, 3")
    o("s_add_u32 s30, s30, s31")
    o("s_mul_i32 s78, s30, 49")
    o(f"v_lshlrev_b32 v{V_T16}, 4, v0")
    o("s_waitcnt lgkmcnt(0)")
    if cfg.get("wsoff", 0):
        o(f"s_add_u32 s98, s98, {cfg['wsoff'] << 20}"); o("s_addc_u32 s99, s99, 0")
    mk_srd(o, 36, 86, E * 4)
    o("s_add_u32 s5, s5, 12288")
    o("v_lshl_add_u32 v5, v4, 2, s5")
    o("s_mov_b64 exec, s[72:73]")
    o("s_cbranch_execz L1_noload")
    o(f"buffer_load_dwordx4 v[64:67], v2, s[36:39], 0 offen {LD}")
    o("s_mov_b64 exec, s[74:75]")
    o("s_cbranch_execz L1_noload")
    o(f"buffer_load_dword v80, v5, s[36:39], 0 offen {LD}")
    o.lab("L1_noload")
    o("s_mov_b64 exec, -1")
    o("s_cmp_gt_u32 s3, 3")
    o("s_cbranch_scc1 L1_nz0")
    o.c("table waves: LDS-DMA of the block's 64 x rows and the raw B / V weights")
    mk_srd(o, 48, 80, N * 128)
    o(f"v_lshlrev_b32 v25, 4, v{L}")
    o("s_lshl_b32 s4, s3, 11")
    o("s_lshl_b32 s5, s78, 7")
    o("s_add_u32 s5, s5, s4")
    o(f"s_add_u32 s4, s4, {XS}")
    o("s_mov_b32 m0, s4")
    o("v_add_u32 v20, s5, v25")
    o("s_and_b32 s6, s3, 1")
    o("s_lshr_b32 s7, s3, 1")
    o("buffer_load_dwordx4 v20, s[48:51], 0 offen lds")
    o("buffer_load_dwordx4 v20, s[48:51], 0 offen offset:1024 lds")
    o("s_cmp_eq_u32 s7, 0")
    o("s_cselect_b32 s52, s92, s90")
    o("s_cselect_b32 s53, s93, s91")
    o("s_cselect_b32 s5, 8192, 0")
    o("s_and_b32 s53, s53, 0xffff")
    o("s_add_u32 s54, s5, 8192")
    o("s_mov_b32 s55, 0x00020000")
    o("s_lshl_b32 s4, s6, 12")
    o("s_add_u32 s5, s5, s4")
    o("s_lshl_b32 s4, s3, 12")
    o(f"s_add_u32 s4, s4, {WS_}")
    o("s_mov_b32 m0, s4")
    o("s_nop 0")
    for i in range(4): o(f"buffer_load_dwordx4 v25, s[52:55], s5 offen offset:{1024*i} lds")
    o("s_cmp_lg_u32 s3, 2")
    o("s_cbranch_scc1 L1_nz0")
    for i in range(4): o(f"v_mov_b32 v{32+i}, 0")
    o(f"v_lshlrev_b32 v25, 4, v{L}")
    o(f"ds_write_b128 v25, v[32:35] offset:{HIST}")
    o(f"v_lshlrev_b32 v26, 2, v{L}")
    o(f"v_add_u32 v26, {CNT}, v26")
    o("ds_write_b32 v26, v32")
    o("ds_write_b32 v26, v32 offset:64")
    o("s_waitcnt lgkmcnt(0)")
    o.lab("L1_nz0")
    mk_srd(o, 40, 84, E * 4); mk_srd(o, 44, 82, E * 8)
    T()
    o("s_barrier")
    o("s_mov_b64 exec, s[72:73]")
    o("s_cbranch_execz L1_noload2")
    o(f"buffer_load_dwordx4 v[68:71], v2, s[40:43], 0 offen {LD}")
    o(f"buffer_load_dwordx4 v[72:75], v3, s[44:47], 0 offen {LD}")
    o(f"buffer_load_dwordx4 v[76:79], v3, s[44:47], 0 offen offset:16 {LD}")
    o("s_mov_b64 exec, s[74:75]")
    o("s_cbranch_execz L1_noload2")
    o("v_lshlrev_b32 v3, 1, v5")
    o(f"buffer_load_dword v81, v5, s[40:43], 0 offen {LD}")
    o(f"buffer_load_dwordx2 v[82:83], v3, s[44:47], 0 offen {LD}")
    o.lab("L1_noload2")
    o("s_mov_b64 exec, -1")
    mk_srd(o, 12, 98, WS_T + T_BYTES); mk_srd(o, 16, 94, N * 128); mk_srd(o, 68, 96, 256)
    mk_srd(o, 52, 92, 132 * 128); mk_srd(o, 60, 88, 64 * 128)
    o(f"s_add_u32 s8, s98, {WS_T}"); o("s_addc_u32 s9, s99, 0")
    o("s_and_b32 s9, s9, 0xffff"); o("s_or_b32 s9, s9, 0x40000")
    o(f"s_mov_b32 s10, {T_BYTES}"); o("s_mov_b32 s11, 0x00800000")
    o("s_cmp_gt_u32 s3, 3")
    o("s_cbranch_scc1 L1_barA")
    o("s_lshl_b32 s29, s3, 12")
    o(f"s_add_u32 s29, s29, {TS}")
    o(f"v_and_b32 v24, 31, v{L}")
    o(f"v_lshrrev_b32 v25, 5, v{L}")
    o("s_lshl_b32 s84, s7, 12")
    o(f"s_add_u32 s84, s84, {XS}")
    o("v_lshl_add_u32 v20, v25, 4, s84")
    o("v_lshl_add_u32 v20, v24, 7, v20")
    o("v_lshlrev_b32 v27, 9, v25")
    o("v_lshl_add_u32 v27, v24, 2, v27")
    o("v_add_u32 v27, s29, v27")
    o("v_lshlrev_b32 v26, 10, v25")
    o("v_lshl_add_u32 v26, v24, 1, v26")
    o("s_lshl_b32 s84, s6, 6")
    o(f"s_add_u32 s84, s84, {WS_}")
    o("v_add_u32 v26, s84, v26")
    o("s_waitcnt vmcnt(0)")
    o("s_cmp_lg_u32 s3, 1")
    o("s_cbranch_scc1 L1_nn")
    o("s_cmp_lg_u32 s2, 0")
    o("s_cbranch_scc1 L1_nn")
    o.c("launch tag: tells this launch's descriptors from whatever an earlier launch left in ws")
    o("s_memrealtime s[84:85]")
    o("s_waitcnt lgkmcnt(0)")
    o("s_lshl_b32 s86, s84, 24")
    o("s_lshr_b64 s[84:85], s[84:85], 8")
    o("s_bitset1_b32 s84, 31")
    o("v_mov_b32 v32, s86")
    o("v_mov_b32 v33, s84")
    o("v_mov_b32 v34, 0")
    o("s_mov_b64 exec, 1")
    o("buffer_store_dwordx2 v[32:33], v34, s[68:71], 0 offen sc1")
    o("s_mov_b64 exec, -1")
    o.lab("L1_nn")
    o("s_cmp_lg_u32 s3, 2")
    o("s_cbranch_scc1 L1_nz")
    o("v_mov_b32 v32, 0")
    o.c("touch the pages stored to later (address translation only, data unused)")
    o(f"s_mul_i32 s84, s2, {CHB}")
    o("s_lshl_b32 s85, s78, 8")
    o(f"s_add_u32 s85, s85, {WS_T}")
    o(f"s_mov_b32 s86, {WS_DESC}")
    for sreg in (84, 85, 86): o(f"buffer_load_dword v33, v32, s[12:15], s{sreg} offen")
    o(f"s_add_u32 s84, s84, {CHB-4}")
    o("buffer_load_dword v33, v32, s[12:15], s84 offen")
    o("buffer_load_dword v33, v32, s[16:19], 0 offen")
    o.lab("L1_nz")
    if T.on:
        n = T.n; T.n = 4; T(); T.n = n
    o("s_barrier")
    o.lab("L1_tbl")
    o("s_setprio 2")
    o.c("raw A (waves 0,1) and U (waves 2,3) weights for the P and x@U products")
    o("s_lshl_b32 s84, s3, 12")
    o(f"s_add_u32 s85, s84, {AU}")
    o("s_mov_b32 m0, s85")
    o("s_lshl_b32 s84, s6, 12")
    o(f"v_lshlrev_b32 v28, 4, v{L}")
    o("s_cmp_eq_u32 s7, 0")
    o("s_cbranch_scc0 L1_ldu")
    for i in range(4): o(f"buffer_load_dwordx4 v28, s[52:55], s84 offen offset:{1024*i} lds")
    o("s_branch L1_ldd")
    o.lab("L1_ldu")
    for i in range(4): o(f"buffer_load_dwordx4 v28, s[60:63], s84 offen offset:{1024*i} lds")
    o.lab("L1_ldd")
    if T.on:
        n = T.n; T.n = 5; T(); T.n = n
    for m in range(2):
        for s in range(4):
            for j in range(8):
                op = "ds_read_u16_d16_hi" if j & 1 else "ds_read_u16"
                o(f"{op} v{64+32*(j&1)+16*m+4*s+(j>>1)}, v26 offset:{8192*m+2048*s+128*j}")
    for s in range(4): o(f"ds_read_b128 {vr(40+4*s,4)}, v20 offset:{32*s}")
    o("s_mov_b32 s84, 0xffff0000")
    o("s_waitcnt lgkmcnt(0)")
    for i in range(32): o(f"v_and_or_b32 v{64+i}, v{96+i}, s84, v{64+i}")
    o(f"s_mov_b32 s85, {NEG_LOG2E:#x}")
    o("s_brev_b32 s86, 1")
    for s in range(4): o(mfma16(96, 40+4*s, 64+4*s, None if s == 0 else 96))
    for s in range(4): o(mfma16(112, 40+4*s, 80+4*s, None if s == 0 else 112))
    o("s_nop 7")
    for r in range(16): o(f"v_mul_f32 v{96+r}, s85, v{96+r}")
    for r in range(0, 16, 2):
        o(f"v_cvt_pk_bf16_f32 v{96+r}, v{96+r}, v{97+r}")
        o(f"v_lshrrev_b32 v{97+r}, 16, v{96+r}")
        o(f"v_and_b32 v{96+r}, 0xffff, v{96+r}")
    for r in range(16):
        t = 56 + (r & 3); t2 = 60 + (r & 3)
        o(f"v_add_u32 v{t}, 0x8000, v{112+r}")
        o(f"v_and_b32 v{t2}, s86, v{112+r}")
        o(f"v_sub_u32_e64 v{t}, v{t}, v{96+r} clamp")
        o(f"v_max_u32 v{t}, v{t}, v{t2}")
        o(f"v_and_or_b32 v{t}, v{t}, s84, v{96+r}")
        o(f"ds_write_b32 v27, v{t} offset:{(8*(r>>2) + (r&3))*128}")
    o("s_waitcnt vmcnt(0) lgkmcnt(0)")
    if not TF: tstore()
    o("s_setprio 0")
    if T.on:
        n = T.n; T.n = 6; T(); T.n = n
    o("s_barrier")
    o("s_branch L1_copy")
    o.lab("L1_barA")
    o("s_mov_b64 exec, s[72:73]")
    o("s_cbranch_execz L1_histdone")
    o(f"s_movk_i32 s84, {MAGIC49}")
    o("v_mov_b32 v20, 1")
    def hist(regs):
        for d, b, a, r in regs: o(f"v_mul_u32_u24 v{b}, s84, v{d}")
        for d, b, a, r in regs: o(f"v_lshrrev_b32 v{b}, 20, v{b}")
        for d, b, a, r in regs:
            o(f"v_lshlrev_b32 v{a}, 2, v{b}")
            o(f"ds_add_rtn_u32 v{r}, v{a}, v20 offset:{HIST}")
        for d, b, a, r in regs: o(f"v_mul_u32_u24 v{b}, 49, v{b}")
        for d, b, a, r in regs: o(f"v_sub_u32 v{d}, v{d}, v{b}")
        for d, b, a, r in regs: o(f"v_lshlrev_b32 v{d}, 26, v{d}")
    o("s_cmp_eq_u64 s[74:75], 0")
    o("s_cbranch_scc1 L1_h4")
    o("s_mov_b64 exec, s[74:75]")
    o("s_waitcnt vmcnt(5)")
    hist([(80, 88, 93, 98)])
    o("s_mov_b64 exec, s[72:73]")
    o("s_branch L1_h5")
    o.lab("L1_h4")
    o("s_waitcnt vmcnt(3)")
    o.lab("L1_h5")
    T()
    hist([(64+i, 84+i, 89+i, 94+i) for i in range(4)])
    o("s_waitcnt lgkmcnt(0)")
    o.lab("L1_histdone")
    o("s_mov_b64 exec, -1")
    T()
    o("s_barrier")
    T()
    o.lab("L1_scan")
    o(f"v_lshlrev_b32 v104, 4, v{L}")
    o(f"ds_read_b128 v[108:111], v104 offset:{HIST}")
    o("s_sub_u32 s85, s3, 3")
    o("s_lshl_b32 s85, s85, 10")
    o(f"s_add_u32 s85, s85, {PB}")
    o("v_add_u32 v105, s85, v104")
    for i in range(5): o(f"v_add_u32 v{89+i}, s85, v{89+i}")
    o("s_waitcnt lgkmcnt(0)")
    o("v_add_u32 v106, v108, v109")
    o("v_add_u32 v107, v106, v110")
    o("v_add_u32 v116, v107, v111")
    o("v_mov_b32 v112, v116")
    o("s_nop 1")
    wave_scan(o, 112)
    o("v_sub_u32 v112, v112, v116")
    o("v_add_u32 v113, v112, v108")
    o("v_add_u32 v114, v112, v106")
    o("v_add_u32 v115, v112, v107")
    o("s_cmp_lg_u32 s3, 15")
    o("s_cbranch_scc1 L1_scat")
    for j in range(4): o(f"v_lshl_or_b32 v{108+j}, v{108+j}, 12, v{112+j}")
    o(f"v_add_u32 v104, {DSV}, v104")
    o("ds_write_b128 v104, v[108:111]")
    o.lab("L1_scat")
    for j in range(4): o(f"v_mul_u32_u24 v{112+j}, 12, v{112+j}")
    o("ds_write_b128 v105, v[112:115]")
    o("s_mov_b64 exec, s[72:73]")
    o("s_cbranch_execz L1_scatdone")
    for i in range(5): o(f"ds_read_b32 v{84+i}, v{89+i}")
    o("s_waitcnt lgkmcnt(0)")
    for i in range(5): o(f"v_mad_u32_u24 v{84+i}, v{94+i}, 12, v{84+i}")
    o("s_waitcnt vmcnt(2)")
    for i in range(4): o(f"v_lshl_or_b32 v{68+i}, v{68+i}, 8, v{64+i}")
    for i in range(4): o(f"ds_write_b32 v{84+i}, v{68+i} offset:{STAGE+8}")
    for i in range(5): o(f"v_add_u32 v{84+i}, {STAGE}, v{84+i}")
    o("s_waitcnt vmcnt(0)")
    T()
    for i in range(4): o(f"ds_write2_b32 v{84+i}, v{72+2*i}, v{73+2*i} offset0:0 offset1:1")
    o("s_mov_b64 exec, s[74:75]")
    o("s_cbranch_execz L1_scatdone")
    o("v_lshl_or_b32 v81, v81, 8, v80")
    o("ds_write_b32 v88, v81 offset:8")
    o("ds_write2_b32 v88, v82, v83 offset0:0 offset1:1")
    o.lab("L1_scatdone")
    o("s_mov_b64 exec, -1")
    o("s_waitcnt lgkmcnt(0)")
    o("s_barrier")
    o.lab("L1_copy")
    T(cfg.get("rt", 0))
    o(f"s_mul_i32 s85, s2, {CHB}")
    o(f"v_add_u32 v4, {STAGE}, v{V_T16}")
    o("ds_read_b128 v[64:67], v4")
    o("ds_read_b128 v[68:71], v4 offset:16384")
    o("ds_read_b128 v[72:75], v4 offset:32768")
    o(f"v_add_u32 v5, 16384, v{V_T16}")
    o(f"v_add_u32 v6, 32768, v{V_T16}")
    o("v_cmp_gt_u32 vcc, 298, v0")
    o("s_waitcnt lgkmcnt(2)")
    o(f"buffer_store_dwordx4 v[64:67], v{V_T16}, s[12:15], s85 offen {ST}")
    o("s_waitcnt lgkmcnt(1)")
    o(f"buffer_store_dwordx4 v[68:71], v5, s[12:15], s85 offen {ST}")
    o("s_mov_b64 exec, vcc")
    o("s_cbranch_execz L1_c3")
    o("s_waitcnt lgkmcnt(0)")
    o(f"buffer_store_dwordx4 v[72:75], v6, s[12:15], s85 offen {ST}")
    o.lab("L1_c3")
    o("s_mov_b64 exec, -1")
    T()
    o(f"v_lshlrev_b32 v1, 1, v{L}")
    o("v_add_u32 v1, 0x4000, v1")
    for j in range(4): o(f"buffer_load_ushort v{76+j}, v1, s[52:55], 0 offen offset:{128*j}")
    o("v_mov_b32 v82, 0")
    o("buffer_load_dwordx2 v[80:81], v82, s[68:71], 0 offen sc1")
    o(f"v_and_b32 v1, 3, v{L}")
    o("v_mov_b32 v2, 0x3f80")
    for idx, reg in enumerate((SELA, SELA+1, SELB, SELB+1)):
        o(f"v_cmp_eq_u32 vcc, {idx}, v1")
        o("s_nop 1")
        o(f"v_cndmask_b32 v{reg}, 0, v2, vcc")
    o("s_cmp_lt_u32 s3, 8")
    o("s_cbranch_scc1 L2_pdone")
    o("s_and_b32 s86, s3, 1")
    o("s_bfe_u32 s91, s3, 0x10001")
    o("s_bfe_u32 s88, s3, 0x10002")
    o("s_lshl_b32 s89, s91, 12")
    o(f"s_add_u32 s89, s89, {XS}")
    o(f"v_and_b32 v3, 31, v{L}")
    o(f"v_lshrrev_b32 v2, 5, v{L}")
    o("v_lshl_add_u32 v1, v2, 4, s89")
    o("v_lshl_add_u32 v1, v3, 7, v1")
    for s in range(4): o(f"ds_read_b128 {vr(32+4*s,4)}, v1 offset:{32*s}")
    o("s_lshl_b32 s90, s88, 5")
    o("v_add_u32 v3, s90, v3")
    o("v_lshlrev_b32 v1, 10, v2")
    o("v_lshl_add_u32 v1, v3, 1, v1")
    o("s_lshl_b32 s89, s86, 13")
    o(f"s_add_u32 s89, s89, {AU}")
    o("v_add_u32 v1, s89, v1")
    for s in range(4):
        for j in range(8):
            op = "ds_read_u16_d16_hi" if j & 1 else "ds_read_u16"
            o(f"{op} v{48+48*(j&1)+4*s+(j>>1)}, v1 offset:{2048*s+128*j}")
    o("v_lshlrev_b32 v2, 2, v2")
    o("s_lshl_b32 s90, s91, 5")
    o("v_add_u32 v2, s90, v2")
    o("v_lshl_add_u32 v2, v2, 6, v3")
    o("s_mov_b32 s84, 0xffff0000")
    o("s_waitcnt lgkmcnt(0)")
    for i in range(16): o(f"v_and_or_b32 v{48+i}, v{96+i}, s84, v{48+i}")
    o("s_nop 0")
    PD = 96
    for s in range(4): o(mfma16(PD, 32+4*s, 48+4*s, None if s == 0 else PD))
    o("s_cmp_eq_u32 s86, 1")
    o("s_cbranch_scc1 L2_xu")
    o("v_lshlrev_b32 v2, 2, v2")
    o(f"v_mov_b32 v3, {NEG_LOG2E:#x}")
    o("s_nop 9")
    def pwrite(r):
        if cfg.get("quad", 1): o(f"v_fmaak_f32 v{PD+r}, v3, v{PD+r}, 0xc1f80000")
        else: o(f"v_mul_f32 v{PD+r}, {NEG_LOG2E:#x}, v{PD+r}")
        o(f"ds_write_b32 v2, v{PD+r} offset:{PT + (8*(r>>2)+(r&3))*256}")
    def uwrite(r):
        t = 32 + 2 * (r & 7)
        o(f"v_cvt_f64_f32 {vr(t,2)}, v{PD+r}")
        o(f"ds_write_b64 v2, {vr(t,2)} offset:{AGG + (8*(r>>2)+(r&3))*512}")
    for wr, lab in ((pwrite, None), (uwrite, "L2_xu")):
        if lab:
            o.lab(lab); o("v_lshlrev_b32 v2, 3, v2"); o("s_nop 9")
        for r in range(8): wr(r)
        o("s_cmp_eq_u32 s91, 1")
        o("s_cselect_b32 exec_hi, 0, -1")
        for r in range(8, 10): wr(r)
        o("s_mov_b64 exec, -1")
        o("s_cbranch_scc1 L2_pdone")
        for r in range(10, 16): wr(r)
        if not lab: o("s_branch L2_pdone")
    o.lab("L2_pdone")
    o(f"v_lshrrev_b32 v2, 4, v{L}")
    o(f"v_and_b32 v3, 15, v{L}")
    o("v_and_b32 v4, 3, v3")
    o("s_lshr_b32 s27, s3, 3")
    o("s_lshl_b32 s27, s27, 7")
    o("s_and_b32 s81, s3, 7")
    o("s_add_u32 s27, s27, s81")
    o("v_lshl_add_u32 v2, v2, 5, s27")
    o("v_lshl_add_u32 v4, v4, 3, v2")
    o("v_lshlrev_b32 v4, 11, v4")
    o(f"s_mov_b32 s81, {CHB}")
    o(f"v_mul_lo_u32 v{V_LB}, v2, s81")
    o(f"v_mad_u32_u24 v{V_LB}, v3, 12, v{V_LB}")
    for i in range(4): o(f"s_mov_b32 s{SOFF+i}, {8*i*CHB}")
    o("s_lshl_b32 s72, s30, 3")
    o(f"s_add_u32 s72, s72, {WS_DESC}")
    o("s_mul_i32 s82, s31, 100000")
    o(f"s_add_u32 s82, s82, {WS_T}")
    o(f"s_add_u32 s83, s82, {16384*cfg.get('ap', 0)}")
    o(f"s_mov_b32 s{S_W}, 32")
    o(f"s_mov_b32 s{S_OFF}, 0")
    o("s_waitcnt vmcnt(0) lgkmcnt(0)")
    for j in range(4): o(f"v_lshlrev_b32 v{76+j}, 16, v{76+j}")
    for j in range(4): o(f"v_mul_f32 v{76+j}, {NEG_LOG2E:#x}, v{76+j}")
    o(f"v_cvt_pk_bf16_f32 v{CW}, v76, v77")
    o(f"v_cvt_pk_bf16_f32 v{CW+1}, v78, v79")
    o(f"s_mov_b32 s87, {cfg.get('spin', 400000)}")
    o.lab("L2_tag")
    o("v_readfirstlane_b32 s74, v80")
    o("v_readfirstlane_b32 s75, v81")
    o("s_sub_u32 s87, s87, 1")
    o("s_cmp_lg_u32 s75, 0")
    o("s_cbranch_scc1 L2_tagok")
    o("s_cmp_eq_u32 s87, 0")
    o("s_cbranch_scc1 L2_tagok")
    o("buffer_load_dwordx2 v[80:81], v82, s[68:71], 0 offen sc1")
    o("s_waitcnt vmcnt(0)")
    o("s_branch L2_tag")
    o.lab("L2_tagok")
    T(cfg.get("rt", 0))
    o("s_barrier")
    if T.on and cfg.get("stampE", 0):
        n = T.n; T.n = 8; T(); T.n = n
    o("s_cmp_lg_u32 s3, 15")
    o("s_cbranch_scc1 L2_pxu")
    o(f"v_lshlrev_b32 v1, 4, v{L}")
    o(f"v_add_u32 v2, {DSV}, v1")
    o("ds_read_b128 v[64:67], v2")
    o("v_lshlrev_b32 v1, 1, v1")
    o("s_lshl_b32 s85, s2, 11")
    o(f"s_add_u32 s85, s85, {WS_DESC}")
    for j in (69, 71, 73, 75): o(f"v_mov_b32 v{j}, s75")
    o("s_waitcnt lgkmcnt(0)")
    for j in range(4): o(f"v_or_b32 v{68+2*j}, s74, v{64+j}")
    o("buffer_store_dwordx4 v[68:71], v1, s[12:15], s85 offen sc1")
    o("buffer_store_dwordx4 v[72:75], v1, s[12:15], s85 offen offset:16 sc1")
    o("s_waitcnt vmcnt(0)")
    o.lab("L2_pxu")
    if TF:
        o("s_cmp_gt_u32 s3, 3")
        o("s_cbranch_scc1 L2_nts")
        tstore()
        o.lab("L2_nts")
    o("s_barrier")
    T(cfg.get("rt", 0))
    for i in range(cfg.get("we", 0)):
        o(f"buffer_load_dwordx4 {vr(DUM,4)}, v{V_T16}, s[12:15], s82 offen sc1")
        o("s_add_u32 s82, s82, 16384")
    o.lab("L2_poll")
    o("buffer_load_dwordx2 v[2:3], v4, s[12:15], s72 offen sc1")
    o("s_sub_u32 s87, s87, 1")
    o("s_waitcnt vmcnt(0)")
    o("v_xor_b32 v2, s74, v2")
    o("v_cmp_ne_u32 vcc, s75, v3")
    o("v_lshrrev_b32 v3, 24, v2")
    o("v_cmp_ne_u32 s[84:85], 0, v3")
    o("s_or_b64 vcc, vcc, s[84:85]")
    o("s_cbranch_scc0 L2_g")
    o("s_cmp_eq_u32 s87, 0")
    o("s_cbranch_scc1 L2_g")
    if cfg.get("ap", 0):
        o(f"s_cmp_ge_u32 s82, s83")
        o("s_cbranch_scc1 L2_nap")
        o(f"buffer_load_dwordx4 {vr(DUM,4)}, v{V_T16}, s[12:15], s82 offen sc1")
        o("s_add_u32 s82, s82, 16384")
        o("s_branch L2_poll")
        o.lab("L2_nap")
    if cfg.get("sleep", 2): o(f"s_sleep {cfg.get('sleep', 2)}")
    o("s_branch L2_poll")
    o.lab("L2_g")
    o("v_and_b32 v3, 0xfff, v2")
    o("v_bfe_u32 v2, v2, 12, 12")
    o("v_mul_u32_u24 v3, 12, v3")
    o(f"v_lshl_or_b32 v{V_DESC}, v2, 16, v3")
    if TF:
        o("v_lshrrev_b32 v14, 4, v4")
        o(f"s_mov_b32 s73, {WS_TF}")
        o(f"s_mov_b32 s79, {cfg.get('spin', 400000)}")
        o("s_cmp_gt_u32 s3, 3")
        o("s_cbranch_scc1 L2_ntf")
        o(f"v_mov_b32 v1, {PUB}")
        o("v_mov_b32 v2, 1")
        o("s_mov_b64 exec, 1")
        o("ds_add_rtn_u32 v3, v1, v2")
        o("s_lshl_b32 s84, s2, 7")
        o("v_mov_b32 v1, s84")
        o("s_waitcnt lgkmcnt(0)")
        o("v_cmp_eq_u32 vcc, 3, v3")
        o("v_mov_b32 v2, s74")
        o("v_mov_b32 v3, s75")
        o("s_mov_b64 exec, vcc")
        o("s_cbranch_execz L2_ntf")
        o("buffer_store_dwordx2 v[2:3], v1, s[12:15], s73 offen sc1")
        o.lab("L2_ntf")
        o("s_mov_b64 exec, -1")
    T(cfg.get("rt", 0))
    o.lab("L2_pass")
    o(f"v_and_b32 v3, 15, v{L}")
    o(f"v_add_u32 v1, s{S_OFF}, v3")
    o("v_add_u32 v2, 16, v1")
    o(f"s_add_u32 s83, s{S_OFF}, s{S_W}")
    o(f"s_mul_i32 s84, s{S_OFF}, 12")
    o(f"v_add_u32 v6, s84, v{V_LB}")
    o(f"v_lshrrev_b32 v4, 16, v{V_DESC}")
    o("v_cmp_lt_u32 vcc, s83, v4")
    o("v_min_u32 v4, s83, v4")
    o(f"v_and_b32 v5, 0xffff, v{V_DESC}")
    o("s_cmp_lg_u64 vcc, 0")
    o(f"s_cselect_b32 s{S_MORE}, 1, 0")
    for i in range(4):
        o(f"v_mov_b32_dpp v{BS}, v4 row_newbcast:{i} row_mask:0xf bank_mask:0xf")
        o(f"v_add_u32_dpp v{BS+1+i}, v5, v6 row_newbcast:{i} row_mask:0xf bank_mask:0xf")
        o(f"v_cmp_lt_u32 {sr(MASK+2*i,2)}, v1, v{BS}")
        o(f"v_cmp_lt_u32 {sr(MASK+8+2*i,2)}, v2, v{BS}")
    for i in range(4):
        o(f"s_mov_b64 exec, {sr(MASK+8+2*i,2)}")
        o(f"s_cbranch_execz L2_r2_{i}")
        o(f"buffer_load_dwordx3 {vr(REC+16+4*i,3)}, v{BS+1+i}, s[12:15], s{SOFF+i} offen offset:192 sc1")
        o.lab(f"L2_r2_{i}")
    for i in range(4):
        o(f"s_mov_b64 exec, {sr(MASK+2*i,2)}")
        o(f"buffer_load_dwordx3 {vr(REC+4*i,3)}, v{BS+1+i}, s[12:15], s{SOFF+i} offen sc1")
    o("s_mov_b64 exec, -1")
    o("v_mov_b32 v1, 4")
    o(f"v_mov_b32 v2, {CNT}")
    o(f"s_cmp_eq_u32 s{S_MORE}, 0")
    o("s_cbranch_scc1 L2_nomore")
    o("ds_write_b32 v2, v1 offset:256")
    o.lab("L2_nomore")
    def rank(i):
        o(f"v_add_u32_sdwa v{CA+i}, v{REC+4*i+2}, v2 dst_sel:DWORD dst_unused:UNUSED_PAD src0_sel:BYTE_3 src1_sel:DWORD")
        o(f"ds_add_rtn_u32 v{REC+4*i+3}, v{CA+i}, v1")
    for i in range(4):
        o(f"s_waitcnt vmcnt({3-i})")
        o(f"s_mov_b64 exec, {sr(MASK+2*i,2)}")
        rank(i)
    for i in range(4, 8):
        o(f"s_mov_b64 exec, {sr(MASK+2*i,2)}")
        o(f"s_cbranch_execz L2_rk{i}")
        rank(i)
        o.lab(f"L2_rk{i}")
    o("s_mov_b64 exec, -1")
    for i in range(WL):
        o(f"buffer_load_dwordx4 {vr(DUM,4)}, v{V_T16}, s[12:15], s82 offen sc1")
        o("s_add_u32 s82, s82, 16384" if cfg.get("once", 0) else "s_nop 0")
    o("s_waitcnt lgkmcnt(0)")
    T()
    o("s_barrier")
    wb = cfg.get("wb", 3); wbw = 0
    if TF:
        cfg["tf"] = 1
        o("s_cmp_eq_u32 s79, 0")
        o("s_cbranch_scc1 L2_ntl")
        o("buffer_load_dwordx2 v[12:13], v14, s[12:15], s73 offen sc1")
        o.lab("L2_ntl")
    if wb:
        if wbw:
            o(f"s_cmp_lt_u32 s3, {wbw}")
            o("s_cbranch_scc1 L2_nwb")
            o(f"s_sub_u32 s84, s3, {wbw}")
            o(f"s_mul_i32 s84, s84, {wb*1024}")
            o("s_add_u32 s84, s84, s82")
            o(f"v_lshlrev_b32 v5, 4, v{L}")
            for i in range(wb):
                o(f"buffer_load_dwordx4 {vr(DUM,4)}, v5, s[12:15], s84 offen sc1")
                o("s_add_u32 s84, s84, 1024")
            o.lab("L2_nwb")
        else:
            o("s_mov_b32 s84, s82")
            for i in range(wb):
                o(f"buffer_load_dwordx4 {vr(DUM,4)}, v{V_T16}, s[12:15], s84 offen sc1")
                o("s_add_u32 s84, s84, 16384")
    src2 = gen2.kernel2(dict(cfg, stamp=0))
    a = src2.index("    v_lshl_add_u32 v1, v10, 2, v2\n    ds_read_b32 v3, v1")
    body = src2[a:]
    body = body.replace("L2_end:", "L_end:")
    if T.on:
        def st(real=False):
            t = Asm(); T.o = t; T(real); T.o = o; return t.text()
        body = body.replace("    s_barrier\n    s_cmp_lg_u32 s3, 15\n    s_cbranch_scc1 L2_nz2", st() + "    s_barrier\n" + st() + "    s_cmp_lg_u32 s3, 15\n    s_cbranch_scc1 L2_nz2")
        body = body.replace("    .p2align 3\nL2_loop:", st() + st(True) + "    .p2align 3\nL2_loop:")
        lab = "L2_xd:" if cfg.get("sb", 0) else "L2_done:"
        body = body.replace(lab + "\n    s_waitcnt vmcnt(0) lgkmcnt(0)\n", lab + "\n    s_waitcnt vmcnt(0) lgkmcnt(0)\n" + st() + st(True))
        t = Asm(); T.o = t; t("s_waitcnt vmcnt(0)"); T(); T(True); T.dump(12, 3, 1, V_LANE); T.o = o
        body = body.replace("L2_fin:\n", "L2_fin:\n" + t.text())
    return o.text() + body + tail.text()

HEADER = """; Edge-gated MPNN layer: out = silu(x@U + sum over edges with dst=i of sigmoid(x[dst]@A + x[src]@B + e@C) * (x[src]@V))
; @launch grid=(256,1,1) block=(1024,1,1) lds={l}
.amdgcn_target "amdgcn-amd-amdhsa--gfx950"
.text
"""
def build(cfg):
    s = HEADER.format(l=LDS)
    s += f".globl {NAME}\n.p2align 8\n.type {NAME},@function\n" + kernel(cfg)
    s += '.section .rodata,"a"\n.p2align 6\n' + kd(NAME, 128, 102).replace(".end_amdhsa_kernel", "  .amdhsa_dx10_clamp 0\n.end_amdhsa_kernel")
    return s

if __name__ == "__main__":
    cfg = {}
    for a in sys.argv[2:]:
        k, v = a.split("=")
        cfg[k] = int(v) if v.lstrip("-").isdigit() else v
    open(sys.argv[1], "w").write(build(cfg))
```

```python
import sys
from gen import Asm, Stamper, vr, sr, srd, wave_scan, kd, mfma16

N = 12500; E = 800000; NPB = 49; CH = 3128; CHB = CH * 12
WS_DESC = 0x00A00000; WS_FRAG = 0x00A80000; WS_SIZE = 0x00C00000
WS_T = 0x00C00000; T_BYTES = 256 * NPB * 256
NULLROW = N * 256
XSHIFT = 4096
NEG_LOG2E = 0xBFB8AA3B
MAGIC49 = 21400

def swz_consts(o, L, kj, t0, t1):
    o(f"v_lshrrev_b32 v{t0}, 3, v{L}")
    o(f"v_and_b32 v{t1}, 7, v{L}")
    o(f"v_lshrrev_b32 v{kj}, 5, v{L}")
    o(f"v_lshlrev_b32 v{kj}, 2, v{kj}")
    o(f"v_xor_b32 v{t1}, v{t1}, v{kj}")
def aread_addrs(o, L, aad, t0, t1, t2):
    o(f"v_and_b32 v{t0}, 3, v{L}")
    o(f"v_bfe_u32 v{t1}, v{L}, 2, 3")
    o(f"v_lshl_add_u32 v{t1}, v{t0}, 3, v{t1}")
    o(f"v_lshlrev_b32 v{t1}, 7, v{t1}")
    o(f"v_bfe_u32 v{t2}, v{L}, 4, 1")
    o(f"v_lshl_or_b32 v{t0}, v{t2}, 2, v{t0}")
    o(f"v_lshrrev_b32 v{t2}, 5, v{L}")
    o(f"v_xor_b32 v{t0}, v{t0}, v{t2}")
    for s in range(4):
        o(f"v_xor_b32 v{aad+s}, {2*s}, v{t0}")
        o(f"v_lshl_add_u32 v{aad+s}, v{aad+s}, 4, v{t1}")

K1_HIST = 0; K1_STAGE = 1024; K1_TST = 38912; K1_PB = K1_TST + 16384; K1_TW = K1_PB + 14 * 1024
K1_LDS = K1_TW + 32768
assert K1_STAGE + CHB <= K1_TST
def kernel1(cfg):
    o = Asm()
    ST = cfg.get("st1", "sc0 sc1"); LD = cfg.get("ld1", "nt")
    T = Stamper(o, cfg.get("stamp", 0), 36, 0)
    if cfg.get("dbg", -1) == 0: T.dbgwg = cfg.get("dbgwg", 100); T.dbgback = -512
    o.lab("bin_kernel")
    o("s_cmp_ge_u32 s2, 256")
    o("s_cbranch_scc1 L1_end")
    T(True); T()
    o("s_load_dwordx4 s[40:43], s[0:1], 16")
    o("s_load_dwordx4 s[36:39], s[0:1], 0")
    o("s_load_dwordx4 s[44:47], s[0:1], 32")
    o("s_load_dwordx2 s[48:49], s[0:1], 48")
    o("s_load_dwordx2 s[50:51], s[0:1], 72")
    o("v_lshrrev_b32 v1, 6, v0")
    o("s_movk_i32 s4, 782")
    o("s_cmp_eq_u32 s2, 255")
    o("s_cselect_b32 s4, 590, s4")
    o("v_readfirstlane_b32 s3, v1")
    o("s_mul_i32 s5, s2, 12512")
    o("v_subrev_u32 v4, 192, v0")
    o("v_lshl_add_u32 v2, v4, 4, s5")
    o("v_lshlrev_b32 v3, 1, v2")
    o("v_cmp_gt_u32 s[52:53], s4, v4")
    o("v_and_b32 v1, 63, v0")
    o(f"s_mov_b32 s10, {E*4}"); o("s_mov_b32 s11, 0x00020000")
    o(f"s_mov_b32 s14, {E*4}"); o("s_mov_b32 s15, 0x00020000")
    o(f"s_mov_b32 s18, {E*8}"); o("s_mov_b32 s19, 0x00020000")
    o(f"s_mov_b32 s22, {WS_T+T_BYTES}"); o("s_mov_b32 s23, 0x00020000")
    o("s_waitcnt lgkmcnt(0)")
    for d, p in ((8, 42), (12, 40), (16, 38), (20, 50)):
        o(f"s_mov_b32 s{d}, s{p}"); o(f"s_and_b32 s{d+1}, s{p+1}, 0xffff")
    o("s_mov_b64 exec, s[52:53]")
    o("s_cbranch_execz L1_noload")
    o(f"buffer_load_dwordx4 v[4:7], v2, s[8:11], 0 offen {LD}")
    o(f"buffer_load_dwordx4 v[8:11], v2, s[12:15], 0 offen {LD}")
    o(f"buffer_load_dwordx4 v[12:15], v3, s[16:19], 0 offen {LD}")
    o(f"buffer_load_dwordx4 v[16:19], v3, s[16:19], 0 offen offset:16 {LD}")
    o.lab("L1_noload")
    o("s_mov_b64 exec, -1")
    o("s_cmp_gt_u32 s3, 2")
    o("s_cbranch_scc1 L1_barA")
    o("s_cmp_eq_u32 s3, 2")
    o("s_cbranch_scc1 L1_w13")
    o.c("table waves: LDS-DMA of 64 x rows and one channel half of B and V")
    o(f"s_sub_u32 s24, s36, {XSHIFT}"); o("s_subb_u32 s25, s37, 0"); o("s_and_b32 s25, s25, 0xffff")
    o(f"s_mov_b32 s26, {N*128+XSHIFT}"); o("s_mov_b32 s27, 0x00020000")
    srd(o, 28, 48, 132 * 128)
    srd(o, 32, 46, 64 * 128)
    o("s_mov_b32 s6, s3")
    o("s_lshl_b32 s7, s6, 14")
    o(f"s_add_u32 s7, s7, {K1_TW}")
    swz_consts(o, 1, 20, 24, 25)
    o("s_mul_i32 s54, s2, 49")
    o("s_lshl_b32 s54, s54, 7")
    o(f"s_add_u32 s54, s54, {XSHIFT}")
    o("v_lshl_add_u32 v24, v24, 9, s54")
    for j in range(4):
        o(f"v_xor_b32 v{20+j}, {j}, v25")
        o(f"v_lshl_add_u32 v{20+j}, v{20+j}, 4, v24")
        if j: o(f"v_subrev_u32 v{20+j}, {896*j}, v{20+j}")
    o("s_mov_b32 m0, s7")
    o("s_add_u32 s55, s7, 4096")
    for j in range(4):
        o(f"buffer_load_dwordx4 v{20+j}, s[24:27], 0 offen offset:{1024*j} {cfg.get('ldx', 'nt')} lds")
    for j in range(4):
        o(f"v_add_u32 v{20+j}, 0x1000, v{20+j}")
    o("s_mov_b32 m0, s55")
    o("s_add_u32 s55, s7, 8192")
    for j in range(4):
        o(f"buffer_load_dwordx4 v{20+j}, s[24:27], 0 offen offset:{1024*j} {cfg.get('ldx', 'nt')} lds")
    o("v_lshrrev_b32 v24, 2, v1")
    o("v_and_b32 v25, 3, v1")
    o("v_lshlrev_b32 v24, 7, v24")
    o("v_lshl_add_u32 v24, v25, 4, v24")
    o("s_lshl_b32 s54, s6, 6")
    o("v_add_u32 v24, s54, v24")
    o("s_mov_b32 m0, s55")
    o("s_add_u32 s55, s7, 12288")
    for i in range(4):
        o(f"s_movk_i32 s54, {8192+1024*i}")
        o(f"buffer_load_dwordx4 v24, s[28:31], s54 offen offset:{1024*i} {cfg.get('ldw', 'nt')} lds")
    o("s_mov_b32 m0, s55")
    for i in range(4):
        o(f"s_movk_i32 s54, {1024*i}")
        o(f"buffer_load_dwordx4 v24, s[32:35], s54 offen offset:{1024*i} {cfg.get('ldw', 'nt')} lds")
    aread_addrs(o, 1, 20, 24, 25, 26)
    for s in range(4):
        o(f"v_add_u32 v{20+s}, s7, v{20+s}")
    o("v_and_b32 v24, 31, v1")
    o("v_lshrrev_b32 v25, 5, v1")
    o("v_lshlrev_b32 v26, 9, v25")
    o("v_lshl_add_u32 v26, v24, 1, v26")
    o("v_add_u32 v26, s7, v26")
    o("v_lshlrev_b32 v27, 10, v25")
    o("v_lshl_add_u32 v27, v24, 2, v27")
    o("s_lshl_b32 s54, s6, 7")
    o("v_add_u32 v27, s54, v27")
    o("s_barrier")
    o("s_waitcnt vmcnt(0)")
    T()
    for m in range(2):
        for s in range(4):
            for j in range(8):
                op = "ds_read_u16_d16_hi" if j & 1 else "ds_read_u16"
                o(f"{op} v{64+32*(j&1)+16*m+4*s+(j>>1)}, v26 offset:{8192+4096*m+1024*s+64*j}")
    for s in range(4):
        o(f"ds_read_b128 {vr(40+4*s,4)}, v{20+s}")
    o("s_mov_b32 s54, 0xffff0000")
    o("s_waitcnt lgkmcnt(0)")
    for i in range(32):
        o(f"v_and_or_b32 v{64+i}, v{96+i}, s54, v{64+i}")
    T()
    o("s_setprio 2")
    o(f"s_mov_b32 s54, {NEG_LOG2E:#x}")
    o("s_mov_b32 s55, 0x7fff0000")
    o("s_brev_b32 s56, 1")
    for rt in range(2):
        for s in range(4):
            o(mfma16(96, 40+4*s, 64+4*s, None if s == 0 else 96))
        for s in range(4):
            o(mfma16(112, 40+4*s, 80+4*s, None if s == 0 else 112))
        if rt == 0:
            for s in range(4):
                o(f"ds_read_b128 {vr(40+4*s,4)}, v{20+s} offset:4096")
            o("s_nop 3")
        else:
            o("s_nop 7")
        for r in range(16):
            o(f"v_mul_f32 v{96+r}, s54, v{96+r}")
        for r in range(0, 16, 2):
            o(f"v_cvt_pk_bf16_f32 v{96+r}, v{96+r}, v{97+r}")
            o(f"v_lshrrev_b32 v{97+r}, 16, v{96+r}")
            o(f"v_and_b32 v{96+r}, 0xffff, v{96+r}")
        for r in range(16):
            t = 56 + (r & 3)
            o(f"v_and_b32 v{t}, 0x7fffffff, v{112+r}")
            o(f"v_sub_u32 v{t}, v{t}, v{96+r}")
            o(f"v_add_u32 v{t}, 0x8000, v{t}")
            o(f"v_max_i32 v{t}, 0, v{t}")
            o(f"v_and_or_b32 v{t}, v{t}, s55, v{96+r}")
            o(f"v_and_or_b32 v{t}, v{112+r}, s56, v{t}")
            o(f"ds_write_b32 v27, v{t} offset:{K1_TST + (32*rt + 8*(r>>2) + (r&3))*256}")
        o("s_waitcnt lgkmcnt(0)")
    T()
    o("s_setprio 0")
    o("s_barrier")
    o("s_branch L1_barD")
    o.lab("L1_w13")
    if cfg.get("touch", 1):
        o.c("touch the workspace pages this workgroup stores to later (address translation only, data unused)")
        o(f"s_mul_i32 s54, s2, {CHB}")
        o(f"s_mul_i32 s55, s2, {NPB*256}")
        o(f"s_add_u32 s55, s55, {WS_T}")
        o(f"s_mov_b32 s56, {WS_DESC}")
        o("v_mov_b32 v60, 0")
        for sreg in (54, 55, 56):
            o(f"buffer_load_dword v61, v60, s[20:23], s{sreg} offen")
        o(f"s_add_u32 s54, s54, {CHB-4}")
        o("buffer_load_dword v61, v60, s[20:23], s54 offen")
    for i in range(4): o(f"v_mov_b32 v{32+i}, 0")
    o("v_lshlrev_b32 v21, 4, v1")
    o(f"ds_write_b128 v21, v[32:35] offset:{K1_HIST}")
    o("s_cmp_ge_u32 s2, 17")
    o("s_cbranch_scc1 L1_w13a")
    o("s_cmp_lt_u32 s2, 8")
    o("s_cselect_b32 s28, s48, s44")
    o("s_cselect_b32 s29, s49, s45")
    o("s_cmp_eq_u32 s2, 16")
    o("s_cselect_b32 s28, s48, s28")
    o("s_cselect_b32 s29, s49, s29")
    o("s_and_b32 s29, s29, 0xffff")
    o("s_bitcmp1_b32 s2, 3")
    o("s_movk_i32 s30, 16896")
    o("s_cselect_b32 s30, 8192, s30")
    o("s_mov_b32 s31, 0x00020000")
    o("s_cmp_eq_u32 s2, 16")
    o("s_cbranch_scc1 L1_fragC")
    o("s_and_b32 s54, s2, 3")
    o("s_lshl_b32 s54, s54, 11")
    o("s_bfe_u32 s55, s2, 0x10002")
    o("s_lshl_b32 s55, s55, 6")
    o("s_add_u32 s54, s54, s55")
    o("v_and_b32 v22, 31, v1")
    o("v_lshrrev_b32 v23, 5, v1")
    o("v_lshlrev_b32 v23, 10, v23")
    o("v_lshl_add_u32 v22, v22, 1, v23")
    o("v_add_u32 v22, s54, v22")
    for j in range(8):
        o(f"buffer_load_ushort v{40+4*(j&1)+(j>>1)}, v22, s[28:31], 0 offen offset:{128*j}")
    o("s_lshl_b32 s55, s2, 10")
    o(f"s_add_u32 s55, s55, {WS_FRAG}")
    o("s_waitcnt lgkmcnt(0)")
    o("s_barrier")
    o("s_waitcnt vmcnt(0)")
    for j in range(4): o(f"v_lshl_or_b32 v{40+j}, v{44+j}, 16, v{40+j}")
    o(f"buffer_store_dwordx4 v[40:43], v21, s[20:23], s55 offen {ST}")
    o("s_branch L1_barB")
    o.lab("L1_fragC")
    o("v_lshlrev_b32 v22, 1, v1")
    o("v_add_u32 v22, 0x4000, v22")
    for j in range(4):
        o(f"buffer_load_ushort v{40+j}, v22, s[28:31], 0 offen offset:{128*j}")
    o(f"s_mov_b32 s55, {WS_FRAG+16*1024}")
    o("v_lshlrev_b32 v22, 3, v1")
    o("s_waitcnt lgkmcnt(0)")
    o("s_barrier")
    o("s_waitcnt vmcnt(0)")
    for j in range(4): o(f"v_lshlrev_b32 v{40+j}, 16, v{40+j}")
    for j in range(4): o(f"v_mul_f32 v{40+j}, {NEG_LOG2E:#x}, v{40+j}")
    o("v_cvt_pk_bf16_f32 v40, v40, v41")
    o("v_cvt_pk_bf16_f32 v41, v42, v43")
    o(f"buffer_store_dwordx2 v[40:41], v22, s[20:23], s55 offen {ST}")
    o("s_branch L1_barB")
    o.lab("L1_w13a")
    o("s_waitcnt lgkmcnt(0)")
    o.lab("L1_barA")
    T()
    o("s_barrier")
    o("s_mov_b64 exec, s[52:53]")
    o("s_cbranch_execz L1_histdone")
    o(f"s_movk_i32 s56, {MAGIC49}")
    o("v_mov_b32 v20, 1")
    o("s_waitcnt vmcnt(3)")
    T()
    for i in range(4): o(f"v_mul_u32_u24 v{24+i}, s56, v{4+i}")
    for i in range(4): o(f"v_lshrrev_b32 v{24+i}, 20, v{24+i}")
    for i in range(4):
        o(f"v_lshlrev_b32 v{28+i}, 2, v{24+i}")
        o(f"ds_add_rtn_u32 v{32+i}, v{28+i}, v20 offset:{K1_HIST}")
    for i in range(4): o(f"v_mul_u32_u24 v{24+i}, 49, v{24+i}")
    for i in range(4): o(f"v_sub_u32 v{4+i}, v{4+i}, v{24+i}")
    for i in range(4): o(f"v_lshlrev_b32 v{4+i}, 26, v{4+i}")
    o("s_waitcnt vmcnt(2)")
    for i in range(4): o(f"v_lshl_or_b32 v{8+i}, v{8+i}, 8, v{4+i}")
    o("s_waitcnt lgkmcnt(0)")
    o.lab("L1_histdone")
    o("s_mov_b64 exec, -1")
    o.lab("L1_barB")
    T()
    o("s_barrier")
    T()
    o.c("every wave scans the 256 bucket counts for itself")
    o("v_lshlrev_b32 v21, 4, v1")
    o(f"ds_read_b128 v[40:43], v21 offset:{K1_HIST}")
    o("s_sub_u32 s57, s3, 2")
    o("s_lshl_b32 s57, s57, 10")
    o("v_add_u32 v22, s57, v21")
    for i in range(4): o(f"v_add_u32 v{28+i}, s57, v{28+i}")
    o("s_waitcnt lgkmcnt(0)")
    o("v_add_u32 v45, v40, v41")
    o("v_add_u32 v46, v45, v42")
    o("v_add_u32 v47, v46, v43")
    o("v_mov_b32 v48, v47")
    o("s_nop 1")
    wave_scan(o, 48)
    o("v_sub_u32 v48, v48, v47")
    o("v_add_u32 v49, v48, v40")
    o("v_add_u32 v50, v48, v45")
    o("v_add_u32 v51, v48, v46")
    for j in range(4): o(f"v_mul_u32_u24 v{48+j}, 12, v{48+j}")
    o(f"ds_write_b128 v22, v[48:51] offset:{K1_PB}")
    o("s_cmp_lg_u32 s3, 2")
    o("s_cbranch_scc1 L1_scat")
    for j in range(4): o(f"v_lshl_or_b32 v{40+j}, v{40+j}, 16, v{48+j}")
    o("s_lshl_b32 s55, s2, 10")
    o(f"s_add_u32 s55, s55, {WS_DESC}")
    o(f"buffer_store_dwordx4 v[40:43], v21, s[20:23], s55 offen {ST}")
    o.lab("L1_scat")
    o("s_mov_b64 exec, s[52:53]")
    o("s_cbranch_execz L1_scatdone")
    for i in range(4): o(f"ds_read_b32 v{24+i}, v{28+i} offset:{K1_PB}")
    o("s_waitcnt lgkmcnt(0)")
    for i in range(4): o(f"v_mad_u32_u24 v{24+i}, v{32+i}, 12, v{24+i}")
    for i in range(4): o(f"ds_write_b32 v{24+i}, v{8+i} offset:{K1_STAGE+8}")
    for i in range(4): o(f"v_add_u32 v{24+i}, {K1_STAGE}, v{24+i}")
    o("s_waitcnt vmcnt(0)")
    T()
    for i in range(4): o(f"ds_write2_b32 v{24+i}, v{12+2*i}, v{13+2*i} offset0:0 offset1:1")
    o.lab("L1_scatdone")
    o("s_mov_b64 exec, -1")
    o("s_waitcnt lgkmcnt(0)")
    o.lab("L1_barD")
    o("s_barrier")
    T()
    o("v_lshlrev_b32 v20, 4, v0")
    o(f"s_mul_i32 s55, s2, {CHB}")
    o(f"s_mul_i32 s56, s2, {NPB*256}")
    o(f"s_add_u32 s56, s56, {WS_T}")
    o(f"ds_read_b128 v[24:27], v20 offset:{K1_STAGE}")
    o(f"ds_read_b128 v[28:31], v20 offset:{K1_STAGE+16384}")
    o(f"ds_read_b128 v[40:43], v20 offset:{K1_TST}")
    o(f"ds_read_b128 v[32:35], v20 offset:{K1_STAGE+32768}")
    o("v_add_u32 v21, 16384, v20")
    o("v_add_u32 v22, 32768, v20")
    o("v_cmp_gt_u32 vcc, 784, v0")
    o("s_movk_i32 s57, 298")
    o("v_cmp_gt_u32 s[60:61], s57, v0")
    o("s_waitcnt lgkmcnt(3)")
    o(f"buffer_store_dwordx4 v[24:27], v20, s[20:23], s55 offen {ST}")
    o("s_waitcnt lgkmcnt(2)")
    o(f"buffer_store_dwordx4 v[28:31], v21, s[20:23], s55 offen {ST}")
    o("s_mov_b64 exec, vcc")
    o("s_cbranch_execz L1_fin")
    o("s_waitcnt lgkmcnt(1)")
    o(f"buffer_store_dwordx4 v[40:43], v20, s[20:23], s56 offen {ST}")
    o("s_mov_b64 exec, s[60:61]")
    o("s_cbranch_execz L1_fin")
    o("s_waitcnt lgkmcnt(0)")
    o(f"buffer_store_dwordx4 v[32:35], v22, s[20:23], s55 offen {ST}")
    o.lab("L1_fin")
    if T.on:
        T(); o("s_waitcnt vmcnt(0)"); T(); T(True); T.dump(20, 3, 40, 1)
    o.lab("L1_end")
    o("s_endpgm")
    return o.text()

CAP = 4096
PT = 0; AGG = 13312; SRC = 38912; EA = SRC + CAP * 4 + 256; CNT = EA + CAP * 8 + 512
MORE = CNT + 256; FR = 90112; XT = FR + 16384; K2_LDS = XT + 8192
assert CNT % 256 == 0 and CNT + 320 <= FR and EA % 8 == 0
WSMALL = (CAP - 256 - 4 * NPB - 15) // 256

R = [64, 80, 96, 112]; G = [32, 48]
EAR = 30; CW = 28; SELA = 26; SELB = 24; PC = 20; PN = 19; ACC = 18; F64 = 16
V_SA = 15; V_EAA = 14; V_PA = 13; V_FA = 12; V_LANE = 10; V_DESC = 9; V_LB = 8; V_T16 = 7
REC = 64; CA = 96; BS = 104; DUM = 112; AAD = 20; PA_ = 32; PB_ = 48; PD = 96
S_W = 20; S_OFF = 21; S_REM = 22; S_FIRST = 24; S_MORE = 25; S_TOT = 26; MK = 76
MASK = 32; SOFF = 64

def m4(d, a, b, c, extra=""):
    return f"v_mfma_f32_4x4x4_16b_bf16 {vr(d,4)}, {vr(a,2)}, {vr(b,2)}, {vr(c,4)}{extra}"

def pswitch(o, lab, back):
    o.lab(lab)
    o("s_waitcnt lgkmcnt(0)")
    for c in range(4): o(f"v_mov_b32 v{PC+c}, v{PN}")
    o(f"v_add_u32 v{V_PA}, 0x100, v{V_PA}")
    o(f"ds_read_b32 v{PN}, v{V_PA} offset:{PT}")
    o(f"s_branch {back}")

def flush(o):
    o(f"v_cvt_f64_f32 {vr(F64,2)}, v{ACC}")
    o(f"ds_add_f64 v{V_FA}, {vr(F64,2)} offset:{AGG}")

def stage(o, tail, u, cfg):
    gc, gn = G[u & 1], G[(u + 1) & 1]
    rc, rn, rl = R[u], R[(u + 1) & 3], R[(u + 3) & 3]
    un = (u + 1) & 3
    prio = cfg.get("prio", 1)
    for q in range(4):
        o(f"ds_read_b128 {vr(rl+4*q,4)}, v{V_SA} offset:{SRC + (u+3)*64 + 16*q}")
    o(f"s_cmp_gt_u32 s{S_REM}, 2")
    o(f"s_cbranch_scc0 L2_tw{u}")
    o.lab(f"L2_tb{u}")
    tail.lab(f"L2_tw{u}")
    tail("s_waitcnt vmcnt(0)")
    tail(f"s_branch L2_tb{u}")
    o(f"s_and_b32 s27, s{MK}, 0xf0")
    if prio: o("s_setprio 1")
    o(f"s_cbranch_scc1 L2_se{u}")
    tail.lab(f"L2_se{u}")
    late = Asm()
    for oo in (o, tail):
        for r in range(8):
            if r in (0, 2, 4, 6):
                g = r >> 1
                if oo is tail:
                    oo(f"s_bitcmp1_b32 s{MK}, {4+g}")
                    oo(f"s_cbranch_scc1 L2_ps{u}_{g}")
                    oo.lab(f"L2_pb{u}_{g}")
                    pswitch(late, f"L2_ps{u}_{g}", f"L2_pb{u}_{g}")
                oo(m4(gn+4*g, EAR, CW, PC, f" cbsz:4 abid:{4*un+g}"))
            oo(f"v_exp_f32 v{gc+r}, v{gc+r}")
    tail(f"s_branch L2_eb{u}")
    tail.l += late.l
    o.lab(f"L2_eb{u}")
    if u == 2:
        o(f"ds_read_b64 {vr(EAR,2)}, v{V_EAA} offset:{EA+512}")
    o("s_waitcnt vmcnt(16)")
    for r in range(8, 16):
        if r in (8, 10, 12, 14):
            g = (r - 8) >> 1
            o(m4(gn+4*g, SELA, rn+4*g, gn+4*g))
        o(f"v_exp_f32 v{gc+r}, v{gc+r}")
    if prio: o("s_setprio 0")
    for r in range(16):
        o(f"v_add_f32 v{gc+r}, 1.0, v{gc+r}")
    if prio: o("s_setprio 1")
    lp = cfg.get("lp", "end")
    def ld(oo, r):
        if not cfg.get("noload", 0):
            oo(f"buffer_load_dword v{rl+r}, v{V_SA if cfg.get('sameload', 0) else rl+r}, s[8:11], 0 offen {cfg.get('ldt', '')}")
    if lp == "rcp":
        o(f"s_cmp_gt_u32 s{S_REM}, 3")
        o("s_waitcnt lgkmcnt(0)")
        o(f"s_cbranch_scc0 L2_nr{u}")
        tail.lab(f"L2_nr{u}")
    for oo in ((o, tail) if lp == "rcp" else (o,)):
        for r in range(16):
            if r in (0, 2, 4, 6):
                g = r >> 1
                oo(m4(gn+4*g, SELB, rn+4*g+2, gn+4*g))
            oo(f"v_rcp_f32 v{gc+r}, v{gc+r}")
            if lp == "rcp" and oo is o: ld(o, r)
            if r == 14: oo(f"s_and_b32 s27, s{MK}, 15")
    if lp == "rcp":
        tail(f"s_branch L2_rb{u}")
        o.lab(f"L2_rb{u}")
    if prio: o("s_setprio 0")
    o(f"s_cbranch_scc1 L2_sf{u}")
    for r in range(16):
        o(f"v_fmac_f32 v{ACC}, v{gc+r}, v{rc+r}")
    o.lab(f"L2_fb{u}")
    tail.lab(f"L2_sf{u}")
    for g in range(4):
        tail(f"s_bitcmp1_b32 s{MK}, {g}")
        tail(f"s_cbranch_scc0 L2_sk{u}_{g}")
        flush(tail)
        tail(f"v_add_u32 v{V_FA}, 0x200, v{V_FA}")
        tail(f"v_mov_b32 v{ACC}, 0")
        tail.lab(f"L2_sk{u}_{g}")
        for r in range(4*g, 4*g+4):
            tail(f"v_fmac_f32 v{ACC}, v{gc+r}, v{rc+r}")
    tail(f"s_branch L2_fb{u}")
    if u == 3:
        o(f"v_add_u32 v{V_SA}, 0x100, v{V_SA}")
        o(f"v_add_u32 v{V_EAA}, 0x200, v{V_EAA}")
    if lp == "end":
        o(f"s_cmp_gt_u32 s{S_REM}, 3")
        o(f"s_cbranch_scc0 L2_nl{u}")
        o("s_waitcnt lgkmcnt(0)")
        for r in range(16): ld(o, r)
        o.lab(f"L2_nl{u}")
    o(f"s_lshr_b64 {sr(MK,2)}, {sr(MK,2)}, 4")
    o(f"s_sub_u32 s{S_REM}, s{S_REM}, 1")
    o(f"s_cmp_lg_u32 s{S_REM}, 0")
    if u == 2: o("s_waitcnt lgkmcnt(0)")
    if u < 3: o("s_cbranch_scc0 L2_last")
    else: o("s_cbranch_scc1 L2_loop")

S_FL = 23; V_C = 1
QC = 0x30000000
def qflush(o):
    o(f"v_mul_f32 v{ACC}, {QC:#x}, v{ACC}")
    flush(o)

def qacc(o, tail, name, rp):
    o(f"s_cbranch_scc1 L2_sf{name}")
    for g in range(4): o(f"v_fmac_f32 v{ACC}, v{rp+4*g}, v{rp+4*g+1}")
    o.lab(f"L2_fb{name}")
    tail.lab(f"L2_sf{name}")
    for g in range(4):
        tail(f"s_bitcmp1_b32 s{S_FL}, {g}")
        tail(f"s_cbranch_scc0 L2_sk{name}_{g}")
        qflush(tail)
        tail(f"v_add_u32 v{V_FA}, 0x200, v{V_FA}")
        tail(f"v_mov_b32 v{ACC}, 0")
        tail.lab(f"L2_sk{name}_{g}")
        tail(f"v_fmac_f32 v{ACC}, v{rp+4*g}, v{rp+4*g+1}")
    tail(f"s_branch L2_fb{name}")

def qstage(o, tail, u, cfg):
    gc, gn = G[u & 1], G[(u + 1) & 1]
    rc, rn, rl = R[u], R[(u + 1) & 3], R[(u + 3) & 3]
    un = (u + 1) & 3
    o(f"s_cmp_gt_u32 s{S_REM}, 2")
    o(f"s_cbranch_scc0 L2_tw{u}")
    o.lab(f"L2_tb{u}")
    tail.lab(f"L2_tw{u}")
    tail("s_waitcnt vmcnt(0)")
    tail(f"s_branch L2_tb{u}")
    o(f"s_and_b32 s27, s{MK}, 0xf0")
    o("s_setprio 1")
    o(f"s_cbranch_scc1 L2_se{u}")
    tail.lab(f"L2_se{u}")
    late = Asm()
    for oo in (o, tail):
        for g in range(4):
            if oo is tail:
                oo(f"s_bitcmp1_b32 s{MK}, {4+g}")
                oo(f"s_cbranch_scc1 L2_ps{u}_{g}")
                oo.lab(f"L2_pb{u}_{g}")
                pswitch(late, f"L2_ps{u}_{g}", f"L2_pb{u}_{g}")
            oo(m4(gn+4*g, EAR, CW, PC, f" cbsz:4 abid:{4*un+g}"))
            oo(f"v_rcp_f32 v{rl+4*g+1}, v{rl+4*g+1}")
    tail(f"s_branch L2_eb{u}")
    tail.l += late.l
    o.lab(f"L2_eb{u}")
    if u == 2:
        o(f"ds_read_b64 {vr(EAR,2)}, v{V_EAA} offset:{EA+512}")
    o("s_waitcnt vmcnt(16)")
    for r in range(16):
        if r < 4: o(m4(gn+4*r, SELA, rn+4*r, gn+4*r))
        elif r < 8: o(m4(gn+4*(r-4), SELB, rn+4*(r-4)+2, gn+4*(r-4)))
        o(f"v_exp_f32_e64 v{gc+r}, v{gc+r} clamp")
        if r == 14: o(f"s_cmp_lg_u32 s{S_FL}, 0")
    if cfg.get("sb", 0): o("s_barrier")
    o("s_setprio 0")
    qacc(o, tail, str(u), rl)
    for q in range(4):
        o(f"ds_read_b128 {vr(rl+4*q,4)}, v{V_SA} offset:{SRC + (u+3)*64 + 16*q}")
    for r in range(16): o(f"v_add_f32 v{gc+r}, v{V_C}, v{gc+r}")
    seq = [lambda d, h: f"v_mul_f32 v{h}, v{h}, v{d+1}",
           lambda d, h: f"v_mul_f32 v{h+2}, v{h+2}, v{d+3}",
           lambda d, h: f"v_fmac_f32 v{h}, v{h+1}, v{d}",
           lambda d, h: f"v_fmac_f32 v{h+2}, v{h+3}, v{d+2}",
           lambda d, h: f"v_mul_f32 v{d}, v{d}, v{d+1}",
           lambda d, h: f"v_mul_f32 v{d+2}, v{d+2}, v{d+3}",
           lambda d, h: f"v_mul_f32 v{h}, v{h}, v{d+2}",
           lambda d, h: f"v_mul_f32 v{h+1}, v{d}, v{d+2}",
           lambda d, h: f"v_fmac_f32 v{h}, v{h+2}, v{d}"]
    for f in seq:
        for g in range(4): o(f(gc+4*g, rc+4*g))
    if u == 3:
        o(f"v_add_u32 v{V_SA}, 0x100, v{V_SA}")
        o(f"v_add_u32 v{V_EAA}, 0x200, v{V_EAA}")
    o(f"s_cmp_gt_u32 s{S_REM}, 3")
    o("s_waitcnt lgkmcnt(0)")
    o(f"s_cbranch_scc0 L2_nl{u}")
    if not cfg.get("noload", 0):
        for r in range(16):
            o(f"buffer_load_dword v{rl+r}, v{rl+r}, s[8:11], 0 offen {cfg.get('ldt', '')}")
    o.lab(f"L2_nl{u}")
    o(f"s_and_b32 s{S_FL}, s{MK}, 15")
    o(f"s_lshr_b64 {sr(MK,2)}, {sr(MK,2)}, 4")
    o(f"s_sub_u32 s{S_REM}, s{S_REM}, 1")
    o(f"s_cmp_lg_u32 s{S_REM}, 0")
    if u < 3: o(f"s_cbranch_scc0 L2_last{u}")
    else: o("s_cbranch_scc1 L2_loop")

def qfinish(o, tail):
    for u in (3, 0, 1, 2):
        oo = o if u == 3 else tail
        oo.lab(f"L2_last{u}")
        for g in range(4): oo(f"v_rcp_f32 v{R[u]+4*g+1}, v{R[u]+4*g+1}")
        oo(f"s_cmp_lg_u32 s{S_FL}, 0")
        t2 = Asm()
        qacc(oo, t2, f"e{u}", R[u])
        if u != 3: oo("s_branch L2_last")
        tail.l += t2.l
    o.lab("L2_last")
    qflush(o)

FL = 28; MF = 4
S_LF = 23
def v3head(oo, late, u, cfg, slow):
    LA = cfg.get("la", 2)
    gc = G[0]; rc = R[u]; rl = R[(u + LA) & 3]; rp = R[(u + 3) & 3]
    if slow:
        oo(f"s_bitcmp1_b32 s{FL}, {4*u+2}")
        oo(f"s_cbranch_scc1 L3_nl{u}")
    if not cfg.get("noload", 0):
        for r in range(16): oo(f"buffer_load_dword v{rl+r}, v{rl+r}, s[8:11], 0 offen {cfg.get('ldt', '')}")
    oo(f"s_waitcnt vmcnt({16*LA})")
    if slow:
        oo.lab(f"L3_lb{u}")
        late.lab(f"L3_nl{u}")
        late("s_waitcnt vmcnt(0)")
        late(f"s_branch L3_lb{u}")
    oo("s_setprio 1")
    if cfg.get("mo", 1):
        def E(g):
            if slow:
                oo(f"s_bitcmp1_b32 s{MK}, {4*u+g}")
                oo(f"s_cbranch_scc1 L3_ps{u}_{g}")
                oo.lab(f"L3_pb{u}_{g}")
                pswitch(late, f"L3_ps{u}_{g}", f"L3_pb{u}_{g}")
            oo(m4(gc+4*g, EAR, CW, PC, f" cbsz:4 abid:{4*u+g}"))
        rcp = lambda g: oo(f"v_rcp_f32 v{rp+4*g+1}, v{rp+4*g+1}")
        E(0); rcp(0); E(1); rcp(1)
        oo(m4(gc, SELA, rc, gc)); rcp(2); E(2); rcp(3)
        oo(m4(gc, SELB, rc+2, gc)); E(3)
        return
    for g in range(4):
        if slow:
            oo(f"s_bitcmp1_b32 s{MK}, {4*u+g}")
            oo(f"s_cbranch_scc1 L3_ps{u}_{g}")
            oo.lab(f"L3_pb{u}_{g}")
            pswitch(late, f"L3_ps{u}_{g}", f"L3_pb{u}_{g}")
        oo(m4(gc+4*g, EAR, CW, PC, f" cbsz:4 abid:{4*u+g}"))
    for g in range(4):
        oo(m4(gc+4*g, SELA, rc+4*g, gc+4*g))
        if g & 1: oo(f"v_rcp_f32 v{rp+4*(g>>1)+1}, v{rp+4*(g>>1)+1}")

def v3acc(o, tail, name, rp, reg, bit0):
    o(f"s_cbranch_scc1 L3_sf{name}")
    for g in range(4): o(f"v_fmac_f32 v{ACC}, v{rp+4*g}, v{rp+4*g+1}")
    o.lab(f"L3_fb{name}")
    tail.lab(f"L3_sf{name}")
    for g in range(4):
        tail(f"s_bitcmp1_b32 s{reg}, {bit0+g}")
        tail(f"s_cbranch_scc0 L3_sk{name}_{g}")
        qflush(tail)
        tail(f"v_add_u32 v{V_FA}, 0x200, v{V_FA}")
        tail(f"v_mov_b32 v{ACC}, 0")
        tail.lab(f"L3_sk{name}_{g}")
        tail(f"v_fmac_f32 v{ACC}, v{rp+4*g}, v{rp+4*g+1}")
    tail(f"s_branch L3_fb{name}")

def v3stage(o, tail, u, cfg):
    LA = cfg.get("la", 2)
    gc = G[0]; rc = R[u]; rp = R[(u + 3) & 3]; ro = R[(u + 1 + LA) & 3]
    o(f"s_bitcmp1_b32 s{FL}, {4*u}")
    o(f"s_cbranch_scc1 L3_se{u}")
    v3head(o, None, u, cfg, False)
    o.lab(f"L3_eb{u}")
    tail.lab(f"L3_se{u}")
    tail(f"s_bitcmp1_b32 s{FL}, {4*u+3}")
    tail(f"s_cbranch_scc1 L3_last{(u+3)&3}")
    late = Asm()
    v3head(tail, late, u, cfg, True)
    tail(f"s_branch L3_eb{u}")
    tail.l += late.l
    mo = cfg.get("mo", 1)
    QA = lambda g: o(m4(gc+4*g, SELA, rc+4*g, gc+4*g))
    QB = lambda g: o(m4(gc+4*g, SELB, rc+4*g+2, gc+4*g))
    if mo:
        QA(1); QA(2)
        if u == 3: o(f"ds_read_b64 {vr(EAR,2)}, v{V_EAA} offset:{EA+512}")
        else: o("s_nop 0")
        QB(1)
    else:
        for g in range(4):
            QB(g)
            if g & 1: o(f"v_rcp_f32 v{rp+4*(2+(g>>1))+1}, v{rp+4*(2+(g>>1))+1}")
        if u == 3: o(f"ds_read_b64 {vr(EAR,2)}, v{V_EAA} offset:{EA+512}")
        else: o("s_nop 0")
    for r in range(16):
        o(f"v_exp_f32_e64 v{gc+r}, v{gc+r} clamp")
        if mo and r == 0: QA(3)
        if mo and r == 1: QB(2)
        if mo and r == 2: QB(3)
        if r == 14: o(f"s_bitcmp1_b32 s{FL}, {4*u+1}")
    o("s_setprio 0")
    v3acc(o, tail, str(u), rp, MF, 4*u)
    for q in range(4):
        o(f"ds_read_b128 {vr(ro+4*q,4)}, v{V_SA} offset:{SRC + (u+1+LA)*64 + 16*q}")
    for r in range(16): o(f"v_add_f32 v{gc+r}, v{V_C}, v{gc+r}")
    seq = [lambda d, h: f"v_mul_f32 v{h}, v{h}, v{d+1}",
           lambda d, h: f"v_mul_f32 v{h+2}, v{h+2}, v{d+3}",
           lambda d, h: f"v_fmac_f32 v{h}, v{h+1}, v{d}",
           lambda d, h: f"v_fmac_f32 v{h+2}, v{h+3}, v{d+2}",
           lambda d, h: f"v_mul_f32 v{d}, v{d}, v{d+1}",
           lambda d, h: f"v_mul_f32 v{d+2}, v{d+2}, v{d+3}",
           lambda d, h: f"v_mul_f32 v{h}, v{h}, v{d+2}",
           lambda d, h: f"v_mul_f32 v{h+1}, v{d}, v{d+2}",
           lambda d, h: f"v_fmac_f32 v{h}, v{h+2}, v{d}"]
    for f in seq:
        for g in range(4): o(f(gc+4*g, rc+4*g))
    if u == 3:
        o(f"v_add_u32 v{V_SA}, 0x100, v{V_SA}")
        o(f"v_add_u32 v{V_EAA}, 0x200, v{V_EAA}")
        for r in (FL, MK, MF): o(f"s_lshr_b64 {sr(r,2)}, {sr(r,2)}, 16")
    o("s_waitcnt lgkmcnt(0)")
    if u == 3: o("s_branch L2_loop")

def v3finish(o, tail):
    for u in range(4):
        oo = o if u == 0 else tail
        oo.lab(f"L3_last{u}")
        for g in range(4): oo(f"v_rcp_f32 v{R[u]+4*g+1}, v{R[u]+4*g+1}")
        oo(f"s_cmp_lg_u32 s{S_LF}, 0")
        t2 = Asm()
        v3acc(oo, t2, f"e{u}", R[u], S_LF, 0)
        if u != 0: oo("s_branch L2_last")
        tail.l += t2.l
    o.lab("L2_last")
    qflush(o)

def v3setup(o, tail, cfg):
    LA = cfg.get("la", 2)
    o(f"s_lshr_b64 s[84:85], {sr(MK,2)}, 1")
    o(f"s_or_b64 s[84:85], s[84:85], {sr(MK,2)}")
    o("s_lshr_b64 s[86:87], s[84:85], 2")
    o("s_or_b64 s[84:85], s[84:85], s[86:87]")
    o("s_mov_b32 s86, 0x11111111")
    o("s_mov_b32 s87, 0x11111111")
    o("s_and_b64 s[84:85], s[84:85], s[86:87]")
    o(f"s_lshl_b64 {sr(FL,2)}, s[84:85], 5")
    o(f"s_or_b64 {sr(FL,2)}, {sr(FL,2)}, s[84:85]")
    o(f"s_lshl_b64 {sr(MF,2)}, {sr(MK,2)}, 4")
    o(f"s_lshl_b32 s88, s{S_REM}, 2")
    o("s_sub_u32 s90, s88, 4")
    o(f"s_lshr_b64 s[84:85], {sr(MK,2)}, s90")
    o(f"s_and_b32 s{S_LF}, s84, 15")
    o(f"s_max_u32 s90, s88, {4*LA}")
    o(f"s_sub_u32 s90, s90, {4*LA}")
    o("s_mov_b32 s84, 0x55555555")
    o("s_mov_b32 s85, 0x55555555")
    o("s_lshl_b64 s[84:85], s[84:85], s90")
    o(f"s_or_b64 {sr(FL,2)}, {sr(FL,2)}, s[84:85]")
    o("s_mov_b64 s[84:85], 8")
    o("s_lshl_b64 s[84:85], s[84:85], s88")
    o(f"s_or_b64 {sr(FL,2)}, {sr(FL,2)}, s[84:85]")
    for b in range(LA + 1):
        for q in range(4):
            o(f"ds_read_b128 {vr(R[b]+4*q,4)}, v{V_SA} offset:{SRC + b*64 + 16*q}")
        if b == 0:
            o(f"ds_read_b32 v{PC}, v{V_PA} offset:{PT}")
            o(f"ds_read_b32 v{PN}, v{V_PA} offset:{PT+256}")
            o(f"ds_read_b64 {vr(EAR,2)}, v{V_EAA} offset:{EA}")
    o(f"s_waitcnt lgkmcnt({3+4*LA})")
    for r in range(16):
        o(f"buffer_load_dword v{R[0]+r}, v{R[0]+r}, s[8:11], 0 offen {cfg.get('ldt', '')}")
    o("s_waitcnt lgkmcnt(0)")
    if LA == 2:
        o(f"s_cmp_gt_u32 s{S_REM}, 1")
        o("s_cbranch_scc0 L3_pre")
        if cfg.get("ramp", 1): o("s_waitcnt vmcnt(0)")
        for r in range(16):
            o(f"buffer_load_dword v{R[1]+r}, v{R[1]+r}, s[8:11], 0 offen {cfg.get('ldt', '')}")
        o.lab("L3_pre")
    for c in range(1, 4): o(f"v_mov_b32 v{PC+c}, v{PC}")
    o(f"v_add_u32 v{V_PA}, 0x100, v{V_PA}")
    o(f"v_mov_b32 v{V_C}, {QC:#x}")
    o("s_waitcnt vmcnt(16)")
    for g in range(4):
        o(f"v_mov_b32 v{R[3]+4*g}, 0")
        o(f"v_mov_b32 v{R[3]+4*g+1}, 1.0")

PN4 = 48; VC2 = 50; ACC2 = 18; FT = 52
def pk(op, d, a, b, c=None):
    t = f"v_pk_{op}_f32 {vr(d,2)}, {vr(a,2)}, {vr(b,2)}"
    return t + (f", {vr(c,2)}" if c is not None else "")
def v4flush(o):
    o(f"v_add_f32 v{FT}, v{ACC2}, v{ACC2+1}")
    o(f"v_mul_f32 v{FT}, {QC:#x}, v{FT}")
    o(f"v_cvt_f64_f32 {vr(F64,2)}, v{FT}")
    o(f"ds_add_f64 v{V_FA}, {vr(F64,2)} offset:{AGG}")
def v4next(o, lab, back):
    o.lab(lab)
    o("s_waitcnt lgkmcnt(0)")
    o(f"v_mov_b32 v{PC+1}, v{PN4}")
    o(f"v_add_u32 v{V_PA}, 0x100, v{V_PA}")
    o(f"ds_read_b32 v{PN4}, v{V_PA} offset:{PT}")
    o(f"s_branch {back}")
def v4offsets(o, reg, batch):
    for b in range(2):
        for e in range(4):
            d = batch * 16 + 8 * b + e
            o(f"ds_read2_b32 {vr(reg+8*b+2*e,2)}, v{V_SA} offset0:{d} offset1:{d+4}")
def v4head(oo, late, u, cfg, slow):
    LA = cfg.get("la", 1)
    gc = G[0]; rc = R[u]; rl = R[(u + LA) & 3]; rp = R[(u + 3) & 3]
    if slow:
        oo(f"s_bitcmp1_b32 s{FL}, {4*u+2}")
        oo(f"s_cbranch_scc1 L3_nl{u}")
    if not cfg.get("noload", 0):
        for r in range(16): oo(f"buffer_load_dword v{rl+r}, v{rl+r}, s[8:11], 0 offen {cfg.get('ldt', '')}")
    oo(f"s_waitcnt vmcnt({16*LA})")
    if slow:
        oo.lab(f"L3_lb{u}")
        late.lab(f"L3_nl{u}")
        late("s_waitcnt vmcnt(0)")
        late(f"s_branch L3_lb{u}")
    if cfg.get("pp", ""):
        if slow:
            oo(f"s_bitcmp1_b32 s6, {u}")
            oo(f"s_cbranch_scc1 L3_pd{u}")
            oo.lab(f"L3_pe{u}")
            late.lab(f"L3_pd{u}")
            late("s_sub_u32 s7, s7, 1")
            late("s_setprio 0")
            late("s_cmp_eq_u32 s7, 0")
            late(f"s_cbranch_scc1 L3_pe{u}")
            late("s_setprio 1")
            late("s_cmp_eq_u32 s7, 1")
            late(f"s_cbranch_scc1 L3_pe{u}")
            late("s_setprio 2")
            late(f"s_branch L3_pe{u}")
    else:
        oo(f"s_setprio {cfg.get('p1', 0)}")
    E = lambda t: oo(m4(gc+4*t, EAR, CW, PC, f" cbsz:4 abid:{4*u+t}"))
    rr = [rp+2, rp+3, rp+10, rp+11]
    rcp = lambda i: oo(f"v_rcp_f32 v{rr[i]}, v{rr[i]}")
    def block(b):
        for j in range(2):
            oo(f"s_bitcmp1_b32 s{MK}, {4*u+2*b+j}")
            oo(f"s_cbranch_scc1 L3_ps{u}_{2*b+j}")
            oo.lab(f"L3_pb{u}_{2*b+j}")
            v4next(late, f"L3_ps{u}_{2*b+j}", f"L3_pb{u}_{2*b+j}")
            if j == 0:
                oo(f"v_mov_b32 v{PC}, v{PC+1}")
                oo(f"v_mov_b32 v{PC+2}, v{PC+1}")
            else:
                oo(f"v_mov_b32 v{PC+3}, v{PC+1}")
                oo("s_nop 1")
    if slow: block(0)
    E(0); rcp(0); E(1); rcp(1)
    oo(m4(gc, SELA, rc, gc)); rcp(2)
    if slow: block(1)
    E(2); rcp(3)
    oo(m4(gc, SELB, rc+2, gc)); E(3)
    if slow:
        oo("s_nop 0")
        oo(f"v_mov_b32 v{PC}, v{PC+1}")
        oo(f"v_mov_b32 v{PC+2}, v{PC+1}")

def v4acc(o, tail, name, rp, reg, bit0):
    o(f"s_cbranch_scc1 L3_sf{name}")
    for b in range(2): o(pk("fma", ACC2, rp+8*b, rp+8*b+2, ACC2))
    o.lab(f"L3_fb{name}")
    tail.lab(f"L3_sf{name}")
    for g in range(4):
        b, j = g >> 1, g & 1
        tail(f"s_bitcmp1_b32 s{reg}, {bit0+g}")
        tail(f"s_cbranch_scc0 L3_sk{name}_{g}")
        v4flush(tail)
        tail(f"v_add_u32 v{V_FA}, 0x200, v{V_FA}")
        tail(f"v_mov_b32 v{ACC2}, 0")
        tail(f"v_mov_b32 v{ACC2+1}, 0")
        tail.lab(f"L3_sk{name}_{g}")
        tail(f"v_fmac_f32 v{ACC2+j}, v{rp+8*b+j}, v{rp+8*b+2+j}")
    tail(f"s_branch L3_fb{name}")

def v4stage(o, tail, u, cfg):
    LA = cfg.get("la", 1)
    gc = G[0]; rc = R[u]; rp = R[(u + 3) & 3]; ro = R[(u + 1 + LA) & 3]
    o(f"s_bitcmp1_b32 s{FL}, {4*u}")
    o(f"s_cbranch_scc1 L3_se{u}")
    v4head(o, None, u, cfg, False)
    o.lab(f"L3_eb{u}")
    tail.lab(f"L3_se{u}")
    tail(f"s_bitcmp1_b32 s{FL}, {4*u+3}")
    tail(f"s_cbranch_scc1 L3_last{(u+3)&3}")
    late = Asm()
    v4head(tail, late, u, cfg, True)
    tail(f"s_branch L3_eb{u}")
    tail.l += late.l
    QA = lambda g: o(m4(gc+4*g, SELA, rc+4*g, gc+4*g))
    QB = lambda g: o(m4(gc+4*g, SELB, rc+4*g+2, gc+4*g))
    QA(1); QA(2)
    if u == 3: o(f"ds_read_b64 {vr(EAR,2)}, v{V_EAA} offset:{EA+512}")
    else: o("s_nop 0")
    QB(1)
    for r in range(16):
        o(f"v_exp_f32_e64 v{gc+r}, v{gc+r} clamp")
        if r == 0: QA(3)
        if r == 1: QB(2)
        if r == 2: QB(3)
        if r == 14: o(f"s_bitcmp1_b32 s{FL}, {4*u+1}")
    if not cfg.get("pp", ""): o(f"s_setprio {cfg.get('p0', 1)}")
    v4acc(o, tail, str(u), rp, MF, 4*u)
    v4offsets(o, ro, u + 1 + LA)
    for r in range(0, 16, 2): o(pk("add", gc+r, gc+r, VC2))
    seq = [lambda d, h: pk("mul", h, h, d+2), lambda d, h: pk("mul", h+4, h+4, d+6),
           lambda d, h: pk("fma", h, h+2, d, h), lambda d, h: pk("fma", h+4, h+6, d+4, h+4),
           lambda d, h: pk("mul", d, d, d+2), lambda d, h: pk("mul", d+4, d+4, d+6),
           lambda d, h: pk("mul", h, h, d+4), lambda d, h: pk("mul", h+2, d, d+4),
           lambda d, h: pk("fma", h, h+4, d, h)]
    for f in seq:
        for b in range(2): o(f(gc+8*b, rc+8*b))
    if u == 3:
        o(f"v_add_u32 v{V_SA}, 0x100, v{V_SA}")
        o(f"v_add_u32 v{V_EAA}, 0x200, v{V_EAA}")
        for r in (FL, MK, MF): o(f"s_lshr_b64 {sr(r,2)}, {sr(r,2)}, 16")
        if cfg.get("pp", ""): o("s_lshr_b32 s6, s6, 4")
    o("s_waitcnt lgkmcnt(0)")
    if u == 3: o("s_branch L2_loop")

def v4finish(o, tail):
    for u in range(4):
        oo = o if u == 0 else tail
        oo.lab(f"L3_last{u}")
        for r in (2, 3, 10, 11): oo(f"v_rcp_f32 v{R[u]+r}, v{R[u]+r}")
        oo(f"s_cmp_lg_u32 s{S_LF}, 0")
        t2 = Asm()
        v4acc(oo, t2, f"e{u}", R[u], S_LF, 0)
        if u != 0: oo("s_branch L2_last")
        tail.l += t2.l
    o.lab("L2_last")
    v4flush(o)

def v4setup(o, tail, cfg):
    LA = cfg.get('la', 1)
    t = Asm(); v3setup(t, tail, dict(cfg, la=LA))
    k = [i for i, l in enumerate(t.l) if "ds_read_b128" in l][0]
    o.l += t.l[:k]
    if cfg.get("pp", ""):
        o("s_mov_b32 s6, 0")
        o("s_mov_b32 s7, 3")
        for i, rem in enumerate(int(x) for x in str(cfg["pp"])):
            o(f"s_cmp_gt_u32 s{S_REM}, {rem}")
            o(f"s_cbranch_scc0 L3_np{i}")
            o(f"s_sub_u32 s90, s{S_REM}, {rem}")
            o("s_bitset1_b32 s6, s90")
            o("s_lshl_b32 s90, s90, 2")
            o(f"s_bitset1_b64 {sr(FL,2)}, s90")
            o.lab(f"L3_np{i}")
    o(f"v_add_u32 v{V_SA}, {SRC}, v{V_SA}")
    v4offsets(o, R[0], 0)
    o(f"v_and_b32 v2, 1, v{V_LANE}")
    o(f"v_bfe_u32 v3, v{V_LANE}, 1, 2")
    o("v_lshl_or_b32 v2, v2, 2, v3")
    o(f"v_and_b32 v3, 7, v{V_LANE}")
    o("v_sub_u32 v2, v2, v3")
    o(f"v_lshl_add_u32 v{V_EAA}, v2, 3, v{V_EAA}")
    o(f"ds_read_b32 v{PC}, v{V_PA} offset:{PT}")
    o(f"ds_read_b32 v{PN4}, v{V_PA} offset:{PT+256}")
    o(f"ds_read_b64 {vr(EAR,2)}, v{V_EAA} offset:{EA}")
    o("s_waitcnt lgkmcnt(3)")
    for r in range(16):
        o(f"buffer_load_dword v{R[0]+r}, v{R[0]+r}, s[8:11], 0 offen {cfg.get('ldt', '')}")
    v4offsets(o, R[1], 1)
    o(f"v_add_u32 v{V_PA}, 0x100, v{V_PA}")
    o(f"v_mov_b32 v{VC2}, {QC:#x}")
    o(f"v_mov_b32 v{VC2+1}, {QC:#x}")
    o(f"v_mov_b32 v{ACC2+1}, 0")
    o("s_waitcnt vmcnt(16) lgkmcnt(0)")
    if LA == 2:
        o(f"s_cmp_gt_u32 s{S_REM}, 1")
        o("s_cbranch_scc0 L3_pre")
        for r in range(16):
            o(f"buffer_load_dword v{R[1]+r}, v{R[1]+r}, s[8:11], 0 offen {cfg.get('ldt', '')}")
        o.lab("L3_pre")
        v4offsets(o, R[2], 2)
        o("s_waitcnt lgkmcnt(0)")
    for c in range(1, 4): o(f"v_mov_b32 v{PC+c}, v{PC}")
    for b in range(2):
        for j in range(2):
            o(f"v_mov_b32 v{R[3]+8*b+j}, 0")
            o(f"v_mov_b32 v{R[3]+8*b+2+j}, 1.0")

def kernel2(cfg):
    o = Asm(); tail = Asm()
    WE = cfg.get("we", 0); WL = cfg.get("wl", 0); LDR = cfg.get("ld2", "")
    T = Stamper(o, cfg.get("stamp", 0), 11, 1)
    if cfg.get("dbg", -1) == 1: T.dbgwg = cfg.get("dbgwg", 100); T.dbgback = 0
    L = V_LANE
    o.lab("edge_kernel")
    o("s_cmp_ge_u32 s2, 256")
    o("s_cbranch_scc1 L2_end")
    T(True); T()
    o("s_load_dwordx2 s[28:29], s[0:1], 72")
    o("s_load_dwordx2 s[4:5], s[0:1], 0")
    o("s_load_dwordx2 s[6:7], s[0:1], 56")
    o("v_lshrrev_b32 v1, 6, v0")
    o(f"v_and_b32 v{L}, 63, v0")
    o("s_and_b32 s30, s2, 7")
    o("s_lshl_b32 s30, s30, 5")
    o("s_lshr_b32 s31, s2, 3")
    o("v_readfirstlane_b32 s3, v1")
    o("s_add_u32 s30, s30, s31")
    o(f"v_lshrrev_b32 v2, 4, v{L}")
    o(f"v_and_b32 v3, 15, v{L}")
    o("v_and_b32 v4, 3, v3")
    o("s_lshl_b32 s27, s3, 4")
    o("v_lshl_add_u32 v2, v2, 2, s27")
    o("v_add_u32 v4, v2, v4")
    o("s_lshl_b32 s72, s30, 2")
    o(f"s_add_u32 s72, s72, {WS_DESC}")
    o("v_lshlrev_b32 v4, 10, v4")
    o(f"s_mov_b32 s14, {WS_T+T_BYTES}"); o("s_mov_b32 s15, 0x00020000")
    o("s_waitcnt lgkmcnt(0)")
    o("s_mov_b32 s12, s28"); o("s_and_b32 s13, s29, 0xffff")
    o(f"buffer_load_dword v{V_DESC}, v4, s[12:15], s72 offen")
    o(f"v_lshlrev_b32 v5, 3, v{L}")
    o(f"s_mov_b32 s73, {WS_FRAG+16*1024}")
    o(f"buffer_load_dwordx2 {vr(CW,2)}, v5, s[12:15], s73 offen")
    o(f"v_lshlrev_b32 v5, 4, v{L}")
    o("s_lshl_b32 s74, s3, 10")
    o(f"s_add_u32 s75, s74, {FR}")
    o("s_mov_b32 m0, s75")
    o(f"s_add_u32 s73, s74, {WS_FRAG}")
    o("buffer_load_dwordx4 v5, s[12:15], s73 offen lds")
    srd(o, 16, 4, N * 128)
    swz_consts(o, L, 1, 6, 5)
    o("s_and_b32 s76, s3, 3")
    o("s_bfe_u32 s77, s3, 0x10002")
    o("v_xor_b32 v1, s76, v5")
    o("v_lshlrev_b32 v1, 4, v1")
    o("s_mul_i32 s78, s30, 49")
    o("s_lshl_b32 s79, s77, 5")
    o("s_add_u32 s79, s79, s78")
    o("s_add_u32 s79, s79, s76")
    o("s_lshl_b32 s79, s79, 7")
    o("v_lshl_add_u32 v1, v6, 9, v1")
    o("s_and_b32 s80, s74, 0x1fff")
    o(f"s_add_u32 s80, s80, {XT}")
    o("s_mov_b32 m0, s80")
    o("v_add_u32 v1, s79, v1")
    o("buffer_load_dwordx4 v1, s[16:19], 0 offen lds")
    o(f"s_add_u32 s8, s28, {WS_T}"); o("s_addc_u32 s9, s29, 0")
    o("s_and_b32 s9, s9, 0xffff"); o("s_or_b32 s9, s9, 0x40000")
    o(f"s_mov_b32 s10, {T_BYTES}"); o("s_mov_b32 s11, 0x00800000")
    o(f"v_lshlrev_b32 v{V_T16}, 4, v0")
    o("s_mul_i32 s82, s31, 100000")
    o(f"s_add_u32 s82, s82, {WS_T}")
    for i in range(WE):
        o(f"buffer_load_dwordx4 {vr(DUM,4)}, v{V_T16}, s[12:15], s82 offen")
        o("s_add_u32 s82, s82, 16384")
    for i in range(4):
        o(f"s_mov_b32 s{SOFF+i}, {i*CHB}")
    o("s_cmp_lg_u32 s3, 15")
    o("s_cbranch_scc1 L2_nz")
    o("v_mov_b32 v1, 0")
    o(f"v_lshlrev_b32 v4, 2, v{L}")
    o(f"v_add_u32 v4, {CNT}, v4")
    o("ds_write_b32 v4, v1")
    o("ds_write_b32 v4, v1 offset:64")
    o.lab("L2_nz")
    o(f"s_mov_b32 s81, {CHB}")
    o(f"v_mul_lo_u32 v{V_LB}, v2, s81")
    o(f"v_mad_u32_u24 v{V_LB}, v3, 12, v{V_LB}")
    o(f"s_mov_b32 s{S_W}, 32")
    o(f"s_mov_b32 s{S_OFF}, 0")
    o(f"s_mov_b32 s{S_FIRST}, 1")
    o(f"s_waitcnt vmcnt({3+WE})")
    T()
    o.lab("L2_pass")
    o(f"v_and_b32 v3, 15, v{L}")
    o(f"v_add_u32 v1, s{S_OFF}, v3")
    o("v_add_u32 v2, 16, v1")
    o(f"s_add_u32 s83, s{S_OFF}, s{S_W}")
    o(f"s_mul_i32 s84, s{S_OFF}, 12")
    o(f"v_add_u32 v6, s84, v{V_LB}")
    o(f"v_lshrrev_b32 v4, 16, v{V_DESC}")
    o("v_cmp_lt_u32 vcc, s83, v4")
    o("v_min_u32 v4, s83, v4")
    o(f"v_and_b32 v5, 0xffff, v{V_DESC}")
    o("s_cmp_lg_u64 vcc, 0")
    o(f"s_cselect_b32 s{S_MORE}, 1, 0")
    for i in range(4):
        o(f"v_mov_b32_dpp v{BS}, v4 row_newbcast:{i} row_mask:0xf bank_mask:0xf")
        o(f"v_add_u32_dpp v{BS+1+i}, v5, v6 row_newbcast:{i} row_mask:0xf bank_mask:0xf")
        o(f"v_cmp_lt_u32 {sr(MASK+2*i,2)}, v1, v{BS}")
        o(f"v_cmp_lt_u32 {sr(MASK+8+2*i,2)}, v2, v{BS}")
    for i in range(4):
        o(f"s_mov_b64 exec, {sr(MASK+8+2*i,2)}")
        o(f"s_cbranch_execz L2_r2_{i}")
        o(f"buffer_load_dwordx3 {vr(REC+16+4*i,3)}, v{BS+1+i}, s[12:15], s{SOFF+i} offen offset:192 {LDR}")
        o.lab(f"L2_r2_{i}")
    for i in range(4):
        o(f"s_mov_b64 exec, {sr(MASK+2*i,2)}")
        o(f"buffer_load_dwordx3 {vr(REC+4*i,3)}, v{BS+1+i}, s[12:15], s{SOFF+i} offen {LDR}")
    o("s_mov_b64 exec, -1")
    o("s_mov_b32 s85, s82")
    for i in range(WL):
        o(f"buffer_load_dwordx4 {vr(DUM,4)}, v{V_T16}, s[12:15], s85 offen")
        o("s_add_u32 s85, s85, 16384")
    o(f"s_cmp_eq_u32 s{S_FIRST}, 0")
    o("s_cbranch_scc1 L2_ranks")
    o(f"s_mov_b32 s{S_FIRST}, 0")
    aread_addrs(o, L, AAD, 1, 2, 3)
    srd(o, 16, 6, N * 128)
    if cfg.get("touch", 1):
        o("s_cmp_lg_u32 s3, 15")
        o("s_cbranch_scc1 L2_nt")
        o("s_lshl_b32 s93, s78, 7")
        o("v_mov_b32 v1, s93")
        o(f"buffer_load_dword v{DUM}, v1, s[16:19], 0 offen")
        o("s_waitcnt vmcnt(0)")
        o.lab("L2_nt")
    T()
    o(f"s_waitcnt vmcnt({4+WL}) lgkmcnt(0)")
    o("s_barrier")
    T()
    o("s_cmp_ge_u32 s3, 8")
    o("s_cbranch_scc1 L2_pdone")
    o("s_and_b32 s86, s3, 1")
    o("s_bfe_u32 s87, s3, 0x10001")
    o("s_lshr_b32 s88, s3, 2")
    o("s_lshl_b32 s89, s86, 13")
    o("s_lshl_b32 s90, s88, 12")
    o("s_add_u32 s89, s89, s90")
    o(f"s_add_u32 s89, s89, {FR}")
    o(f"v_lshl_add_u32 v2, v{L}, 4, s89")
    for s in range(4):
        o(f"ds_read_b128 {vr(PB_+4*s,4)}, v2 offset:{1024*s}")
    o("s_lshl_b32 s90, s87, 12")
    o(f"s_add_u32 s90, s90, {XT}")
    for s in range(4):
        o(f"v_add_u32 v3, s90, v{AAD+s}")
        o(f"ds_read_b128 {vr(PA_+4*s,4)}, v3")
    o(f"v_lshrrev_b32 v2, 5, v{L}")
    o("v_lshlrev_b32 v2, 2, v2")
    o("s_lshl_b32 s90, s87, 5")
    o("v_add_u32 v2, s90, v2")
    o(f"v_and_b32 v3, 31, v{L}")
    o("s_lshl_b32 s90, s88, 5")
    o("v_add_u32 v3, s90, v3")
    o("v_lshl_add_u32 v2, v2, 6, v3")
    o("s_waitcnt lgkmcnt(0)")
    for s in range(4):
        o(mfma16(PD, PA_ + 4*s, PB_ + 4*s, None if s == 0 else PD))
    o("s_cmp_eq_u32 s86, 1")
    o("s_cbranch_scc1 L2_xu")
    o("v_lshlrev_b32 v2, 2, v2")
    o("s_nop 9")
    def pwrite(r):
        o(f"v_mul_f32 v{PD+r}, {NEG_LOG2E:#x}, v{PD+r}")
        o(f"ds_write_b32 v2, v{PD+r} offset:{PT + (8*(r>>2)+(r&3))*256}")
    for r in range(8): pwrite(r)
    o("s_cmp_eq_u32 s87, 1")
    o("s_cselect_b32 exec_hi, 0, -1")
    for r in range(8, 10): pwrite(r)
    o("s_mov_b64 exec, -1")
    o("s_cbranch_scc1 L2_pdone")
    for r in range(10, 16): pwrite(r)
    o("s_branch L2_pdone")
    o.lab("L2_xu")
    o("v_lshlrev_b32 v2, 3, v2")
    o("s_nop 9")
    def uwrite(r):
        t = PA_ + 2 * (r & 7)
        o(f"v_cvt_f64_f32 {vr(t,2)}, v{PD+r}")
        o(f"ds_write_b64 v2, {vr(t,2)} offset:{AGG + (8*(r>>2)+(r&3))*512}")
    for r in range(8): uwrite(r)
    o("s_cmp_eq_u32 s87, 1")
    o("s_cselect_b32 exec_hi, 0, -1")
    for r in range(8, 10): uwrite(r)
    o("s_mov_b64 exec, -1")
    o("s_cbranch_scc1 L2_pdone")
    for r in range(10, 16): uwrite(r)
    o.lab("L2_pdone")
    o.c("selector operands of the 4x4x4 MFMAs that add the gathered gate term")
    o(f"v_and_b32 v1, 3, v{L}")
    o("v_mov_b32 v2, 0x3f80")
    for idx, reg in enumerate((SELA, SELA+1, SELB, SELB+1)):
        o(f"v_cmp_eq_u32 vcc, {idx}, v1")
        o("s_nop 1")
        o(f"v_cndmask_b32 v{reg}, 0, v2, vcc")
    o.lab("L2_ranks")
    T()
    o("v_mov_b32 v1, 4")
    o(f"v_mov_b32 v2, {CNT}")
    o(f"s_cmp_eq_u32 s{S_MORE}, 0")
    o("s_cbranch_scc1 L2_nomore")
    o("ds_write_b32 v2, v1 offset:256")
    o.lab("L2_nomore")
    def rank(i):
        o(f"v_add_u32_sdwa v{CA+i}, v{REC+4*i+2}, v2 dst_sel:DWORD dst_unused:UNUSED_PAD src0_sel:BYTE_3 src1_sel:DWORD")
        o(f"ds_add_rtn_u32 v{REC+4*i+3}, v{CA+i}, v1")
    for i in range(4):
        o(f"s_waitcnt vmcnt({WL+3-i})")
        o(f"s_mov_b64 exec, {sr(MASK+2*i,2)}")
        rank(i)
    for i in range(4, 8):
        o(f"s_mov_b64 exec, {sr(MASK+2*i,2)}")
        o(f"s_cbranch_execz L2_rk{i}")
        rank(i)
        o.lab(f"L2_rk{i}")
    o("s_mov_b64 exec, -1")
    o("s_waitcnt lgkmcnt(0)")
    T()
    o("s_barrier")
    T()
    o(f"v_lshl_add_u32 v1, v{L}, 2, v2")
    o("ds_read_b32 v3, v1")
    o("ds_read_b32 v4, v2 offset:256")
    o(f"v_cmp_gt_u32 vcc, 49, v{L}")
    o("v_mov_b32 v6, 16")
    o("s_mov_b64 s[92:93], vcc")
    o("v_cndmask_b32 v6, 0, v6, vcc")
    o("s_waitcnt lgkmcnt(0)")
    o("v_add_u32 v5, 15, v3")
    o("v_and_b32 v5, -16, v5")
    o("v_max_u32 v5, v5, v6")
    o("v_mov_b32 v6, v5")
    o(f"v_readfirstlane_b32 s{S_MORE}, v4")
    o("s_nop 0")
    wave_scan(o, 6)
    o("s_nop 0")
    o(f"v_readlane_b32 s{S_TOT}, v6, 63")
    o("v_sub_u32 v6, v6, v5")
    o(f"s_cmp_gt_u32 s{S_TOT}, {(CAP-256)*4 if cfg.get('v3', 1) else CAP*4}")
    o("s_cbranch_scc0 L2_fits")
    o.c("window too large for LDS: clear the counters and redo with the small window")
    o("s_barrier")
    o("v_mov_b32 v3, 0")
    o("ds_write_b32 v1, v3")
    o("ds_write_b32 v2, v3 offset:256")
    o(f"s_mov_b32 s{S_W}, {WSMALL}")
    o("s_waitcnt vmcnt(0) lgkmcnt(0)")
    o("s_barrier")
    o("s_branch L2_pass")
    o.lab("L2_fits")
    for i in range(4):
        o(f"ds_bpermute_b32 v{BS+i}, v{CA+i}, v6")
    for i in range(4, 8):
        o(f"s_cmp_eq_u64 {sr(MASK+2*i,2)}, 0")
        o(f"s_cbranch_scc1 L2_bp{i}")
        o(f"ds_bpermute_b32 v{BS+i}, v{CA+i}, v6")
        o.lab(f"L2_bp{i}")
    o(f"s_add_u32 s86, s{S_TOT}, 63")
    o("s_lshr_b32 s86, s86, 6")
    o("s_mul_i32 s87, s86, s3")
    o("s_add_u32 s88, s87, s86")
    o("s_lshr_b32 s87, s87, 4")
    o("s_lshr_b32 s88, s88, 4")
    o(f"s_sub_u32 s{S_REM}, s88, s87")
    if cfg.get("sb", 0):
        o("s_add_u32 s28, s86, 15")
        o("s_lshr_b32 s28, s28, 4")
        o(f"s_sub_u32 s28, s28, s{S_REM}")
    o("s_lshl_b32 s89, s87, 6")
    o("s_lshl_b32 s90, s88, 6")
    o("s_waitcnt lgkmcnt(0)")
    def scat(i):
        o(f"v_add_u32 v{BS+i}, v{BS+i}, v{REC+4*i+3}")
        o(f"v_and_b32 v{REC+4*i+2}, 0xffffff, v{REC+4*i+2}")
        o(f"v_add_u32 v{REC+4*i+3}, v{BS+i}, v{BS+i}")
        o(f"ds_write_b32 v{BS+i}, v{REC+4*i+2} offset:{SRC}")
        o(f"ds_write_b64 v{REC+4*i+3}, {vr(REC+4*i,2)} offset:{EA}")
    for i in range(4):
        o(f"s_mov_b64 exec, {sr(MASK+2*i,2)}")
        scat(i)
    for i in range(4, 8):
        o(f"s_mov_b64 exec, {sr(MASK+2*i,2)}")
        o(f"s_cbranch_execz L2_sc{i}")
        scat(i)
        o.lab(f"L2_sc{i}")
    o("s_mov_b64 exec, -1")
    o("s_cmp_gt_u32 s3, 4")
    o("s_cbranch_scc1 L2_nopad")
    o(f"v_mov_b32 v{BS}, {NULLROW}")
    o(f"v_mov_b32 v{BS+2}, 0")
    o(f"v_mov_b32 v{BS+3}, 0")
    o("s_lshl_b32 s91, s3, 2")
    o("v_add_u32 v3, s91, v3")
    o("v_cmp_lt_u32 vcc, v3, v5")
    o("v_add_u32 v3, v3, v6")
    o("s_cmp_lg_u32 s3, 4")
    o("s_cbranch_scc1 L2_padw")
    o(f"v_lshl_add_u32 v3, v{L}, 2, s{S_TOT}")
    o("s_lshl_b32 s91, s86, 6")
    o("v_cmp_gt_u32 vcc, s91, v3")
    o.lab("L2_padw")
    o("v_add_u32 v4, v3, v3")
    o("s_mov_b64 exec, vcc")
    o(f"ds_write_b32 v3, v{BS} offset:{SRC}")
    o(f"ds_write_b64 v4, {vr(BS+2,2)} offset:{EA}")
    o("s_mov_b64 exec, -1")
    o.lab("L2_nopad")
    o("v_cmp_ge_u32 vcc, s89, v6")
    o("s_and_b64 s[94:95], vcc, s[92:93]")
    o("s_bcnt1_i32_b64 s91, s[94:95]")
    o("s_sub_u32 s91, s91, 1")
    o("v_cmp_gt_u32 vcc, s90, v6")
    o("s_andn2_b64 s[94:95], vcc, s[94:95]")
    o("s_and_b64 s[94:95], s[94:95], s[92:93]")
    o(f"s_mov_b64 {sr(MK,2)}, 0")
    o("v_subrev_u32 v6, s89, v6")
    o("v_lshrrev_b32 v6, 4, v6")
    o.lab("L2_mloop")
    o("s_cmp_eq_u64 s[94:95], 0")
    o("s_cbranch_scc1 L2_mdone")
    o("s_ff1_i32_b64 s96, s[94:95]")
    o("s_bitset0_b64 s[94:95], s96")
    o("v_readlane_b32 s97, v6, s96")
    o("s_nop 0")
    o(f"s_bitset1_b64 {sr(MK,2)}, s97")
    o("s_branch L2_mloop")
    o.lab("L2_mdone")
    if cfg.get("nomask", 0): o(f"s_mov_b64 {sr(MK,2)}, 0")
    if cfg.get("tf", 0):
        o("s_cmp_eq_u32 s79, 0")
        o("s_cbranch_scc1 L2_tfd")
        o(f"s_waitcnt vmcnt({cfg.get('wb', 3)})")
        o.lab("L2_tfp")
        o("v_cmp_ne_u32 vcc, s74, v12")
        o("v_cmp_ne_u32 s[96:97], s75, v13")
        o("s_or_b64 vcc, vcc, s[96:97]")
        o("s_cbranch_scc0 L2_tfo")
        o("s_sub_u32 s79, s79, 1")
        o("s_cmp_eq_u32 s79, 0")
        o("s_cbranch_scc1 L2_tfo")
        o("s_sleep 2")
        o("buffer_load_dwordx2 v[12:13], v14, s[12:15], s73 offen sc1")
        o("s_waitcnt vmcnt(0)")
        o("s_branch L2_tfp")
        o.lab("L2_tfo")
        o("s_mov_b32 s79, 0")
        o.lab("L2_tfd")
    o(f"v_mov_b32 v{V_SA}, s89")
    o("s_lshl_b32 s96, s89, 1")
    o(f"v_lshl_add_u32 v{V_EAA}, v{L}, 3, s96")
    o("s_lshl_b32 s96, s91, 8")
    o(f"v_lshl_add_u32 v{V_PA}, v{L}, 2, s96")
    o(f"v_add_u32 v{V_FA}, v{V_PA}, v{V_PA}")
    o(f"v_mov_b32 v{ACC}, 0")
    o("s_waitcnt lgkmcnt(0)")
    T()
    o("s_barrier")
    T()
    o("s_cmp_lg_u32 s3, 15")
    o("s_cbranch_scc1 L2_nz2")
    o("v_mov_b32 v3, 0")
    o("ds_write_b32 v1, v3")
    o("ds_write_b32 v2, v3 offset:256")
    o.lab("L2_nz2")
    o(f"s_cmp_eq_u32 s{S_REM}, 0")
    o("s_cbranch_scc1 L2_idle" if cfg.get("fillbar", 0) else "s_cbranch_scc1 L2_done")
    if cfg.get("fillbar", 0):
        tail.lab("L2_idle"); tail("s_barrier"); tail("s_branch L2_done")
    if cfg.get("fillprio", 0): o("s_setprio 3")
    if cfg.get("v4", 1):
        v4setup(o, tail, cfg)
    elif cfg.get("v3", 1):
        v3setup(o, tail, cfg)
    else:
        for b in range(3):
            for q in range(4):
                o(f"ds_read_b128 {vr(R[b]+4*q,4)}, v{V_SA} offset:{SRC + b*64 + 16*q}")
            if b == 0:
                o(f"ds_read_b32 v{PC}, v{V_PA} offset:{PT}")
                o(f"ds_read_b32 v{PN}, v{V_PA} offset:{PT+256}")
                o(f"ds_read_b64 {vr(EAR,2)}, v{V_EAA} offset:{EA}")
        o("s_waitcnt lgkmcnt(11)")
        for r in range(16):
            o(f"buffer_load_dword v{R[0]+r}, v{R[0]+r}, s[8:11], 0 offen {cfg.get('ldt', '')}")
        o("s_waitcnt lgkmcnt(0)")
        def issue12():
            for b in (1, 2):
                o(f"s_cmp_gt_u32 s{S_REM}, {b}")
                o("s_cbranch_scc0 L2_pre")
                for r in range(16):
                    o(f"buffer_load_dword v{R[b]+r}, v{R[b]+r}, s[8:11], 0 offen {cfg.get('ldt', '')}")
            o.lab("L2_pre")
        ramp = cfg.get("ramp", 1)
        if not ramp: issue12()
        for c in range(1, 4): o(f"v_mov_b32 v{PC+c}, v{PC}")
        o(f"v_add_u32 v{V_PA}, 0x100, v{V_PA}")
        o("s_nop 0")
        for g in range(4):
            if g:
                o(f"s_bitcmp1_b32 s{MK}, {g}")
                o(f"s_cbranch_scc1 L2_psp_{g}")
                o.lab(f"L2_pbp_{g}")
                pswitch(tail, f"L2_psp_{g}", f"L2_pbp_{g}")
            o(m4(G[0]+4*g, EAR, CW, PC, f" cbsz:4 abid:{g}"))
            o("s_nop 0")
        if ramp:
            o("s_waitcnt vmcnt(0)")
            issue12()
        else:
            o("s_waitcnt vmcnt(32)")
            o(f"s_cmp_gt_u32 s{S_REM}, 2")
            o("s_cbranch_scc1 L2_pw")
            o("s_waitcnt vmcnt(0)")
            o.lab("L2_pw")
        for g in range(4): o(m4(G[0]+4*g, SELA, R[0]+4*g, G[0]+4*g))
        for g in range(4): o(m4(G[0]+4*g, SELB, R[0]+4*g+2, G[0]+4*g))
        if cfg.get("quad", 1):
            o(f"v_mov_b32 v{V_C}, {QC:#x}")
            o(f"s_mov_b32 s{S_FL}, 0")
            for g in range(4):
                o(f"v_mov_b32 v{R[3]+4*g}, 0")
                o(f"v_mov_b32 v{R[3]+4*g+1}, 1.0")
        o("s_nop 1")
    if cfg.get("fillbar", 0): o("s_barrier")
    T(); T(True)
    o(".p2align 3")
    o.lab("L2_loop")
    if cfg.get("v4", 1):
        for u in range(4): v4stage(o, tail, u, cfg)
        v4finish(o, tail)
    elif cfg.get("v3", 1):
        for u in range(4): v3stage(o, tail, u, cfg)
        v3finish(o, tail)
    elif cfg.get("quad", 1):
        for u in range(4): qstage(o, tail, u, cfg)
        qfinish(o, tail)
    else:
        for u in range(4): stage(o, tail, u, cfg)
        o.lab("L2_last")
        flush(o)
    o.lab("L2_done")
    if cfg.get("sb", 0):
        o.lab("L2_xb")
        o("s_cmp_eq_u32 s28, 0")
        o("s_cbranch_scc1 L2_xd")
        o("s_barrier")
        o("s_sub_u32 s28, s28, 1")
        o("s_branch L2_xb")
        o.lab("L2_xd")
    o("s_waitcnt vmcnt(0) lgkmcnt(0)")
    T(); T(True)
    o("s_barrier")
    o(f"s_cmp_eq_u32 s{S_MORE}, 0")
    o("s_cbranch_scc1 L2_out")
    o(f"s_add_u32 s{S_OFF}, s{S_OFF}, s{S_W}")
    o("s_branch L2_pass")
    o.lab("L2_out")
    o("v_cmp_gt_u32 vcc, 392, v0")
    o("s_and_saveexec_b64 s[94:95], vcc")
    o("s_cbranch_execz L2_fin")
    o("v_lshlrev_b32 v1, 6, v0")
    for c in range(4):
        o(f"ds_read_b128 {vr(80+4*c,4)}, v1 offset:{AGG+16*c}")
    o("s_lshl_b32 s93, s78, 7")
    o(f"v_add_u32 v2, s93, v{V_T16}")
    o("s_waitcnt lgkmcnt(0)")
    for r in range(8): o(f"v_cvt_f32_f64 v{64+r}, {vr(80+2*r,2)}")
    for r in range(8): o(f"v_mul_f32 v{72+r}, {NEG_LOG2E:#x}, v{64+r}")
    for r in range(8): o(f"v_exp_f32 v{72+r}, v{72+r}")
    for r in range(8): o(f"v_add_f32 v{72+r}, 1.0, v{72+r}")
    for r in range(8): o(f"v_rcp_f32 v{72+r}, v{72+r}")
    for r in range(8): o(f"v_mul_f32 v{64+r}, v{64+r}, v{72+r}")
    for r in range(4): o(f"v_cvt_pk_bf16_f32 v{72+r}, v{64+2*r}, v{65+2*r}")
    o("buffer_store_dwordx4 v[72:75], v2, s[16:19], 0 offen")
    o.lab("L2_fin")
    if T.on:
        o("s_waitcnt vmcnt(0)"); T(); T(True); T.dump(12, 3, 1, V_LANE)
    o.lab("L2_end")
    o("s_endpgm")
    return o.text() + tail.text()

HEADER = """; Edge-gated MPNN layer: out = silu(x@U + sum over edges with dst=i of sigmoid(x[dst]@A + x[src]@B + e@C) * (x[src]@V))
; @launch kernel=bin_kernel grid=(256,1,1) block=(1024,1,1) lds={l1}
; @launch kernel=edge_kernel grid=(256,1,1) block=(1024,1,1) lds={l2}
.amdgcn_target "amdgcn-amd-amdhsa--gfx950"
.text
"""
def build(cfg):
    s = HEADER.format(l1=K1_LDS, l2=K2_LDS)
    for name, fn in (("bin_kernel", kernel1), ("edge_kernel", kernel2)):
        s += f".globl {name}\n.p2align 8\n.type {name},@function\n" + fn(cfg)
    s += '.section .rodata,"a"\n.p2align 6\n' + kd("bin_kernel", 128, 102) + ".p2align 6\n" + kd("edge_kernel", 128, 102)
    return s

if __name__ == "__main__":
    cfg = {}
    for a in sys.argv[2:]:
        k, v = a.split("=")
        cfg[k] = int(v) if v.lstrip("-").isdigit() else v
    open(sys.argv[1], "w").write(build(cfg))
```

```python
import sys
from gen import Asm, Stamper, vr, sr, wave_scan, kd, mfma16
import gen2
from gen2 import swz_consts, aread_addrs, m4, pswitch, flush

N = 12500; E = 800000; NPB = 49; CH = 3128; CHB = CH * 12
WS_DESC = 0x00A00000; WS_TF = 0x00A80000; WS_T = 0x00C00000; T_BYTES = 256 * NPB * 256
NULLROW = N * 256; XSHIFT = 4096; NEG_LOG2E = 0xBFB8AA3B; MAGIC49 = 21400
NAME = "standalone__edge_featured_mpnn_egc__graph_kernel"

CAP = 4096
PT = 0; AGG = 13312; OV = 38912
SRC = OV; EA = SRC + CAP * 4 + 256
HIST = OV; STAGE = OV + 1024; PB = OV + 38912
CNT = PB + 13 * 1024; MORE = CNT + 256; PUB = CNT + 272; DSV = CNT + 512
TW = 93696; XS = TW; WS_ = XS + 8192; TS = WS_ + 16384; AU = TS + 16384; LDS = AU + 16384
assert EA + CAP * 8 + 512 <= CNT and STAGE + CHB <= PB and CNT % 256 == 0 and DSV + 2048 <= TW and LDS <= 163840
WSMALL = (CAP - 4 * NPB - 15) // 256
for k in ("PT", "AGG", "SRC", "EA"): setattr(gen2, k, globals()[k])
from gen2 import R, G, EAR, CW, SELA, SELB, PC, PN, ACC, V_SA, V_EAA, V_PA, V_FA, V_LANE, V_DESC, V_LB, V_T16
from gen2 import REC, CA, BS, DUM, S_W, S_OFF, S_REM, S_MORE, S_TOT, MK, MASK, SOFF, stage

def mk_srd(o, d, p, size):
    o(f"s_mov_b32 s{d}, s{p}"); o(f"s_and_b32 s{d+1}, s{p+1}, 0xffff")
    o(f"s_mov_b32 s{d+2}, {size}"); o(f"s_mov_b32 s{d+3}, 0x00020000")

def poll(o, name, mask, cfg):
    o(f"s_mov_b32 s86, {mask:#x}")
    o(f"s_mov_b32 s87, {cfg.get('spin', 400000)}")
    o(f"v_lshlrev_b32 v1, 2, v{V_LANE}")
    o.lab(name)
    o("buffer_load_dword v2, v1, s[68:71], 0 offen sc1")
    o("s_sub_u32 s87, s87, 1")
    o("s_waitcnt vmcnt(0)")
    o("v_and_b32 v2, s86, v2")
    o("v_cmp_ne_u32 vcc, s86, v2")
    o("s_cmp_eq_u32 s87, 0")
    o(f"s_cbranch_scc1 {name}_x")
    o(f"s_cbranch_vccnz {name}")
    o.lab(name + "_x")

def kernel(cfg):
    o = Asm(); tail = Asm()
    ST = cfg.get("st", "sc1"); LD = cfg.get("ld1", "nt"); WL = cfg.get("wl", 0)
    cfg.setdefault("ldt", "sc1"); cfg.setdefault("fillprio", 1); cfg.setdefault("pp", 631)
    T = Stamper(o, cfg.get("stamp", 0), 11, 1); T.wide = True
    if cfg.get("dbg", -1) == 1: T.dbgwg = cfg.get("dbgwg", 100); T.dbgback = 0; T.dbgshift = cfg.get("dbgshift", 0); T.dbgwave = cfg.get("dbgwave", 13)
    L = V_LANE
    def trbase(d, h, t):
        o(f"v_bfe_u32 v{t}, v{L}, 2, 2")
        o(f"v_lshl_add_u32 v{d}, v{h}, 3, v{t}")
        o(f"v_lshlrev_b32 v{d}, 7, v{d}")
        o(f"v_bfe_u32 v{t}, v{L}, 4, 1")
        o(f"v_lshl_add_u32 v{d}, v{t}, 5, v{d}")
        o(f"v_and_b32 v{t}, 3, v{L}")
        o(f"v_lshl_add_u32 v{d}, v{t}, 3, v{d}")
    TF = cfg.get("tpos", "D") != "D"
    def tstore():
        o.c("table rows go out now; their own flag follows when all four table waves have drained them")
        o(f"v_lshrrev_b32 v64, 3, v{L}")
        o(f"v_and_b32 v65, 7, v{L}")
        o("v_lshlrev_b32 v65, 4, v65")
        o("s_lshl_b32 s86, s7, 5")
        o("v_add_u32 v66, s86, v64")
        o("v_lshl_add_u32 v67, v66, 8, v65")
        o("v_lshl_add_u32 v64, v64, 7, v65")
        o("v_add_u32 v64, s29, v64")
        o("s_lshl_b32 s84, s78, 8")
        o("s_lshl_b32 s85, s6, 7")
        o("s_add_u32 s84, s84, s85")
        o(f"s_add_u32 s84, s84, {WS_T}")
        for i in range(4): o(f"ds_read_b128 {vr(80+4*i,4)}, v64 offset:{1024*i}")
        for i in range(4):
            o(f"v_cmp_gt_u32 vcc, {49-8*i}, v66")
            o(f"s_waitcnt lgkmcnt({3-i})")
            o("s_mov_b64 exec, vcc")
            o(f"buffer_store_dwordx4 {vr(80+4*i,4)}, v67, s[12:15], s84 offen {ST}")
            o("s_add_u32 s84, s84, 2048")
            o("s_mov_b64 exec, -1")
    o.lab(NAME)
    o("s_cmp_ge_u32 s2, 256")
    o("s_cbranch_scc1 L_end")
    T(True); T()
    o("s_load_dwordx16 s[80:95], s[0:1], 0")
    o("s_load_dwordx4 s[96:99], s[0:1], 64")
    o("v_lshrrev_b32 v1, 6, v0")
    o(f"v_and_b32 v{L}, 63, v0")
    o("s_movk_i32 s4, 768")
    o("s_cmp_eq_u32 s2, 255")
    o("s_cselect_b32 s4, 590, s4")
    o("s_cselect_b32 s6, 0, 56")
    o("v_readfirstlane_b32 s3, v1")
    o("s_mul_i32 s5, s2, 12512")
    o("v_subrev_u32 v4, 256, v0")
    o("v_lshl_add_u32 v2, v4, 4, s5")
    o("v_lshlrev_b32 v3, 1, v2")
    o("v_cmp_gt_u32 s[72:73], s4, v4")
    o("v_cmp_gt_u32 s[74:75], s6, v4")
    o("s_and_b32 s30, s2, 7")
    o("s_lshl_b32 s30, s30, 5")
    o("s_lshr_b32 s31, s2, 3")
    o("s_add_u32 s30, s30, s31")
    o("s_mul_i32 s78, s30, 49")
    o(f"v_lshlrev_b32 v{V_T16}, 4, v0")
    o("s_waitcnt lgkmcnt(0)")
    if cfg.get("wsoff", 0):
        o(f"s_add_u32 s98, s98, {cfg['wsoff'] << 20}"); o("s_addc_u32 s99, s99, 0")
    mk_srd(o, 36, 86, E * 4)
    o("s_add_u32 s5, s5, 12288")
    o("v_lshl_add_u32 v5, v4, 2, s5")
    o("s_mov_b64 exec, s[72:73]")
    o("s_cbranch_execz L1_noload")
    o(f"buffer_load_dwordx4 v[64:67], v2, s[36:39], 0 offen {LD}")
    o("s_mov_b64 exec, s[74:75]")
    o("s_cbranch_execz L1_noload")
    o(f"buffer_load_dword v80, v5, s[36:39], 0 offen {LD}")
    o.lab("L1_noload")
    o("s_mov_b64 exec, -1")
    o("s_cmp_gt_u32 s3, 3")
    o("s_cbranch_scc1 L1_nz0")
    o.c("table waves: LDS-DMA of the block's 64 x rows and the raw B / V weights")
    mk_srd(o, 48, 80, N * 128)
    o(f"v_lshlrev_b32 v25, 4, v{L}")
    o("s_lshl_b32 s4, s3, 11")
    o("s_lshl_b32 s5, s78, 7")
    o("s_add_u32 s5, s5, s4")
    o(f"s_add_u32 s4, s4, {XS}")
    o("s_mov_b32 m0, s4")
    o("v_add_u32 v20, s5, v25")
    o("s_and_b32 s6, s3, 1")
    o("s_lshr_b32 s7, s3, 1")
    o("buffer_load_dwordx4 v20, s[48:51], 0 offen lds")
    o("buffer_load_dwordx4 v20, s[48:51], 0 offen offset:1024 lds")
    o("s_cmp_eq_u32 s7, 0")
    o("s_cselect_b32 s52, s92, s90")
    o("s_cselect_b32 s53, s93, s91")
    o("s_cselect_b32 s5, 8192, 0")
    o("s_and_b32 s53, s53, 0xffff")
    o("s_add_u32 s54, s5, 8192")
    o("s_mov_b32 s55, 0x00020000")
    o("s_lshl_b32 s4, s6, 12")
    o("s_add_u32 s5, s5, s4")
    o("s_lshl_b32 s4, s3, 12")
    o(f"s_add_u32 s4, s4, {WS_}")
    o("s_mov_b32 m0, s4")
    o("s_nop 0")
    for i in range(4): o(f"buffer_load_dwordx4 v25, s[52:55], s5 offen offset:{1024*i} lds")
    o("s_cmp_lg_u32 s3, 2")
    o("s_cbranch_scc1 L1_nz0")
    for i in range(4): o(f"v_mov_b32 v{32+i}, 0")
    o(f"v_lshlrev_b32 v25, 4, v{L}")
    o(f"ds_write_b128 v25, v[32:35] offset:{HIST}")
    o(f"v_lshlrev_b32 v26, 2, v{L}")
    o(f"v_add_u32 v26, {CNT}, v26")
    o("ds_write_b32 v26, v32")
    o("ds_write_b32 v26, v32 offset:64")
    o("s_waitcnt lgkmcnt(0)")
    o.lab("L1_nz0")
    mk_srd(o, 40, 84, E * 4); mk_srd(o, 44, 82, E * 8)
    T()
    o("s_barrier")
    o("s_mov_b64 exec, s[72:73]")
    o("s_cbranch_execz L1_noload2")
    o(f"buffer_load_dwordx4 v[68:71], v2, s[40:43], 0 offen {LD}")
    o(f"buffer_load_dwordx4 v[72:75], v3, s[44:47], 0 offen {LD}")
    o(f"buffer_load_dwordx4 v[76:79], v3, s[44:47], 0 offen offset:16 {LD}")
    o("s_mov_b64 exec, s[74:75]")
    o("s_cbranch_execz L1_noload2")
    o("v_lshlrev_b32 v3, 1, v5")
    o(f"buffer_load_dword v81, v5, s[40:43], 0 offen {LD}")
    o(f"buffer_load_dwordx2 v[82:83], v3, s[44:47], 0 offen {LD}")
    o.lab("L1_noload2")
    o("s_mov_b64 exec, -1")
    mk_srd(o, 12, 98, WS_T + T_BYTES); mk_srd(o, 16, 94, N * 128); mk_srd(o, 68, 96, 256)
    mk_srd(o, 52, 92, 132 * 128); mk_srd(o, 60, 88, 64 * 128)
    o(f"s_add_u32 s8, s98, {WS_T}"); o("s_addc_u32 s9, s99, 0")
    o("s_and_b32 s9, s9, 0xffff"); o("s_or_b32 s9, s9, 0x40000")
    o(f"s_mov_b32 s10, {T_BYTES}"); o("s_mov_b32 s11, 0x00800000")
    o("s_cmp_gt_u32 s3, 3")
    o("s_cbranch_scc1 L1_barA")
    o("s_lshl_b32 s29, s3, 12")
    o(f"s_add_u32 s29, s29, {TS}")
    o(f"v_and_b32 v24, 31, v{L}")
    o(f"v_lshrrev_b32 v25, 5, v{L}")
    o("s_lshl_b32 s84, s7, 12")
    o(f"s_add_u32 s84, s84, {XS}")
    o("v_lshl_add_u32 v20, v25, 4, s84")
    o("v_lshl_add_u32 v20, v24, 7, v20")
    o("v_lshlrev_b32 v27, 9, v25")
    o("v_lshl_add_u32 v27, v24, 2, v27")
    o("v_add_u32 v27, s29, v27")
    trbase(26, 25, 28)
    o("s_lshl_b32 s84, s6, 6")
    o(f"s_add_u32 s84, s84, {WS_}")
    o("v_add_u32 v26, s84, v26")
    o("s_waitcnt vmcnt(0)")
    o("s_cmp_lg_u32 s3, 1")
    o("s_cbranch_scc1 L1_nn")
    o("s_cmp_lg_u32 s2, 0")
    o("s_cbranch_scc1 L1_nn")
    o.c("launch tag: tells this launch's descriptors from whatever an earlier launch left in ws")
    o("s_memrealtime s[84:85]")
    o("s_waitcnt lgkmcnt(0)")
    o("s_lshl_b32 s86, s84, 24")
    o("s_lshr_b64 s[84:85], s[84:85], 8")
    o("s_bitset1_b32 s84, 31")
    o("v_mov_b32 v32, s86")
    o("v_mov_b32 v33, s84")
    o("v_mov_b32 v34, 0")
    o("s_mov_b64 exec, 1")
    o("buffer_store_dwordx2 v[32:33], v34, s[68:71], 0 offen sc1")
    o("s_mov_b64 exec, -1")
    o.lab("L1_nn")
    o("s_cmp_lg_u32 s3, 2")
    o("s_cbranch_scc1 L1_nz")
    o("v_mov_b32 v32, 0")
    o.c("touch the pages stored to later (address translation only, data unused)")
    o(f"s_mul_i32 s84, s2, {CHB}")
    o("s_lshl_b32 s85, s78, 8")
    o(f"s_add_u32 s85, s85, {WS_T}")
    o(f"s_mov_b32 s86, {WS_DESC}")
    for sreg in (84, 85, 86): o(f"buffer_load_dword v33, v32, s[12:15], s{sreg} offen")
    o(f"s_add_u32 s84, s84, {CHB-4}")
    o("buffer_load_dword v33, v32, s[12:15], s84 offen")
    o("buffer_load_dword v33, v32, s[16:19], 0 offen")
    o.lab("L1_nz")
    if T.on:
        n = T.n; T.n = 4; T(); T.n = n
    o("s_barrier")
    o.lab("L1_tbl")
    o("s_setprio 2")
    o.c("raw A (waves 0,1) and U (waves 2,3) weights for the P and x@U products")
    o("s_lshl_b32 s84, s3, 12")
    o(f"s_add_u32 s85, s84, {AU}")
    o("s_mov_b32 m0, s85")
    o("s_lshl_b32 s84, s6, 12")
    o(f"v_lshlrev_b32 v28, 4, v{L}")
    o("s_cmp_eq_u32 s7, 0")
    o("s_cbranch_scc0 L1_ldu")
    for i in range(4): o(f"buffer_load_dwordx4 v28, s[52:55], s84 offen offset:{1024*i} lds")
    o("s_branch L1_ldd")
    o.lab("L1_ldu")
    for i in range(4): o(f"buffer_load_dwordx4 v28, s[60:63], s84 offen offset:{1024*i} lds")
    o.lab("L1_ldd")
    if T.on:
        n = T.n; T.n = 5; T(); T.n = n
    for s in range(4): o(f"ds_read_b128 {vr(40+4*s,4)}, v20 offset:{32*s}")
    for m in range(2):
        for s in range(4):
            for t in range(2):
                o(f"ds_read_b64_tr_b16 {vr(64+16*m+4*s+2*t,2)}, v26 offset:{8192*m+2048*s+512*t}")
    o("s_mov_b32 s84, 0xffff0000")
    o(f"s_mov_b32 s85, {NEG_LOG2E:#x}")
    o("s_brev_b32 s86, 1")
    o("s_waitcnt lgkmcnt(8)")
    for s in range(4): o(mfma16(96, 40+4*s, 64+4*s, None if s == 0 else 96))
    o("s_waitcnt lgkmcnt(0)")
    for s in range(4): o(mfma16(112, 40+4*s, 80+4*s, None if s == 0 else 112))
    o("s_nop 7")
    for r in range(16): o(f"v_mul_f32 v{96+r}, s85, v{96+r}")
    for r in range(0, 16, 2):
        o(f"v_cvt_pk_bf16_f32 v{96+r}, v{96+r}, v{97+r}")
        o(f"v_lshrrev_b32 v{97+r}, 16, v{96+r}")
        o(f"v_and_b32 v{96+r}, 0xffff, v{96+r}")
    for r in range(16):
        t = 56 + (r & 3); t2 = 60 + (r & 3)
        o(f"v_add_u32 v{t}, 0x8000, v{112+r}")
        o(f"v_and_b32 v{t2}, s86, v{112+r}")
        o(f"v_sub_u32_e64 v{t}, v{t}, v{96+r} clamp")
        o(f"v_max_u32 v{t}, v{t}, v{t2}")
        o(f"v_and_or_b32 v{t}, v{t}, s84, v{96+r}")
        o(f"ds_write_b32 v27, v{t} offset:{(8*(r>>2) + (r&3))*128}")
    o("s_waitcnt vmcnt(0) lgkmcnt(0)")
    if not TF: tstore()
    o("s_setprio 0")
    if T.on:
        n = T.n; T.n = 6; T(); T.n = n
    o("s_barrier")
    o("s_branch L1_copy")
    o.lab("L1_barA")
    o("s_mov_b64 exec, s[72:73]")
    o("s_cbranch_execz L1_histdone")
    o(f"s_movk_i32 s84, {MAGIC49}")
    o("v_mov_b32 v20, 1")
    def hist(regs):
        for d, b, a, r in regs: o(f"v_mul_u32_u24 v{b}, s84, v{d}")
        for d, b, a, r in regs: o(f"v_lshrrev_b32 v{b}, 20, v{b}")
        for d, b, a, r in regs:
            o(f"v_lshlrev_b32 v{a}, 2, v{b}")
            o(f"ds_add_rtn_u32 v{r}, v{a}, v20 offset:{HIST}")
        for d, b, a, r in regs: o(f"v_mul_u32_u24 v{b}, 49, v{b}")
        for d, b, a, r in regs: o(f"v_sub_u32 v{d}, v{d}, v{b}")
        for d, b, a, r in regs: o(f"v_lshlrev_b32 v{d}, 26, v{d}")
    o("s_cmp_eq_u64 s[74:75], 0")
    o("s_cbranch_scc1 L1_h4")
    o("s_mov_b64 exec, s[74:75]")
    o("s_waitcnt vmcnt(5)")
    hist([(80, 88, 93, 98)])
    o("s_mov_b64 exec, s[72:73]")
    o("s_branch L1_h5")
    o.lab("L1_h4")
    o("s_waitcnt vmcnt(3)")
    o.lab("L1_h5")
    T()
    hist([(64+i, 84+i, 89+i, 94+i) for i in range(4)])
    o("s_waitcnt lgkmcnt(0)")
    o.lab("L1_histdone")
    o("s_mov_b64 exec, -1")
    T()
    o("s_barrier")
    T()
    o.lab("L1_scan")
    o(f"v_lshlrev_b32 v104, 4, v{L}")
    o(f"ds_read_b128 v[108:111], v104 offset:{HIST}")
    o("s_sub_u32 s85, s3, 3")
    o("s_lshl_b32 s85, s85, 10")
    o(f"s_add_u32 s85, s85, {PB}")
    o("v_add_u32 v105, s85, v104")
    for i in range(5): o(f"v_add_u32 v{89+i}, s85, v{89+i}")
    o("s_waitcnt lgkmcnt(0)")
    o("v_add_u32 v106, v108, v109")
    o("v_add_u32 v107, v106, v110")
    o("v_add_u32 v116, v107, v111")
    o("v_mov_b32 v112, v116")
    o("s_nop 1")
    wave_scan(o, 112)
    o("v_sub_u32 v112, v112, v116")
    o("v_add_u32 v113, v112, v108")
    o("v_add_u32 v114, v112, v106")
    o("v_add_u32 v115, v112, v107")
    o("s_cmp_lg_u32 s3, 15")
    o("s_cbranch_scc1 L1_scat")
    for j in range(4): o(f"v_lshl_or_b32 v{108+j}, v{108+j}, 12, v{112+j}")
    o(f"v_add_u32 v104, {DSV}, v104")
    o("ds_write_b128 v104, v[108:111]")
    o.lab("L1_scat")
    for j in range(4): o(f"v_mul_u32_u24 v{112+j}, 12, v{112+j}")
    o("ds_write_b128 v105, v[112:115]")
    o("s_mov_b64 exec, s[72:73]")
    o("s_cbranch_execz L1_scatdone")
    for i in range(5): o(f"ds_read_b32 v{84+i}, v{89+i}")
    o("s_waitcnt lgkmcnt(0)")
    for i in range(5): o(f"v_mad_u32_u24 v{84+i}, v{94+i}, 12, v{84+i}")
    o("s_waitcnt vmcnt(2)")
    for i in range(4): o(f"v_lshl_or_b32 v{68+i}, v{68+i}, 8, v{64+i}")
    for i in range(4): o(f"ds_write_b32 v{84+i}, v{68+i} offset:{STAGE+8}")
    for i in range(5): o(f"v_add_u32 v{84+i}, {STAGE}, v{84+i}")
    o("s_waitcnt vmcnt(0)")
    T()
    for i in range(4): o(f"ds_write2_b32 v{84+i}, v{72+2*i}, v{73+2*i} offset0:0 offset1:1")
    o("s_mov_b64 exec, s[74:75]")
    o("s_cbranch_execz L1_scatdone")
    o("v_lshl_or_b32 v81, v81, 8, v80")
    o("ds_write_b32 v88, v81 offset:8")
    o("ds_write2_b32 v88, v82, v83 offset0:0 offset1:1")
    o.lab("L1_scatdone")
    o("s_mov_b64 exec, -1")
    o("s_waitcnt lgkmcnt(0)")
    o("s_barrier")
    o.lab("L1_copy")
    T(cfg.get("rt", 0))
    o(f"s_mul_i32 s85, s2, {CHB}")
    o(f"v_add_u32 v4, {STAGE}, v{V_T16}")
    o("ds_read_b128 v[64:67], v4")
    o("ds_read_b128 v[68:71], v4 offset:16384")
    o("ds_read_b128 v[72:75], v4 offset:32768")
    o(f"v_add_u32 v5, 16384, v{V_T16}")
    o(f"v_add_u32 v6, 32768, v{V_T16}")
    o("v_cmp_gt_u32 vcc, 298, v0")
    o("s_waitcnt lgkmcnt(2)")
    o(f"buffer_store_dwordx4 v[64:67], v{V_T16}, s[12:15], s85 offen {ST}")
    o("s_waitcnt lgkmcnt(1)")
    o(f"buffer_store_dwordx4 v[68:71], v5, s[12:15], s85 offen {ST}")
    o("s_mov_b64 exec, vcc")
    o("s_cbranch_execz L1_c3")
    o("s_waitcnt lgkmcnt(0)")
    o(f"buffer_store_dwordx4 v[72:75], v6, s[12:15], s85 offen {ST}")
    o.lab("L1_c3")
    o("s_mov_b64 exec, -1")
    T()
    o(f"v_lshlrev_b32 v1, 1, v{L}")
    o("v_add_u32 v1, 0x4000, v1")
    for j in range(4): o(f"buffer_load_ushort v{76+j}, v1, s[52:55], 0 offen offset:{128*j}")
    o("v_mov_b32 v82, 0")
    o("buffer_load_dwordx2 v[80:81], v82, s[68:71], 0 offen sc1")
    o(f"v_and_b32 v1, 3, v{L}")
    o("v_mov_b32 v2, 0x3f80")
    for idx, reg in enumerate((SELA, SELA+1, SELB, SELB+1)):
        o(f"v_cmp_eq_u32 vcc, {idx}, v1")
        o("s_nop 1")
        o(f"v_cndmask_b32 v{reg}, 0, v2, vcc")
    o("s_cmp_lt_u32 s3, 8")
    o("s_cbranch_scc1 L2_pdone")
    o("s_and_b32 s86, s3, 1")
    o("s_bfe_u32 s91, s3, 0x10001")
    o("s_bfe_u32 s88, s3, 0x10002")
    o("s_lshl_b32 s89, s91, 12")
    o(f"s_add_u32 s89, s89, {XS}")
    o(f"v_and_b32 v3, 31, v{L}")
    o(f"v_lshrrev_b32 v2, 5, v{L}")
    o("v_lshl_add_u32 v1, v2, 4, s89")
    o("v_lshl_add_u32 v1, v3, 7, v1")
    for s in range(4): o(f"ds_read_b128 {vr(32+4*s,4)}, v1 offset:{32*s}")
    o("s_lshl_b32 s90, s88, 5")
    o("v_add_u32 v3, s90, v3")
    trbase(1, 2, 20)
    o("s_lshl_b32 s89, s86, 13")
    o("s_lshl_b32 s90, s88, 6")
    o("s_add_u32 s89, s89, s90")
    o(f"s_add_u32 s89, s89, {AU}")
    o("v_add_u32 v1, s89, v1")
    for s in range(4):
        for t in range(2):
            o(f"ds_read_b64_tr_b16 {vr(48+4*s+2*t,2)}, v1 offset:{2048*s+512*t}")
    o("v_lshlrev_b32 v2, 2, v2")
    o("s_lshl_b32 s90, s91, 5")
    o("v_add_u32 v2, s90, v2")
    o("v_lshl_add_u32 v2, v2, 6, v3")
    o("s_waitcnt lgkmcnt(0)")
    PD = 96
    for s in range(4): o(mfma16(PD, 32+4*s, 48+4*s, None if s == 0 else PD))
    o("s_cmp_eq_u32 s86, 1")
    o("s_cbranch_scc1 L2_xu")
    o("v_lshlrev_b32 v2, 2, v2")
    o(f"v_mov_b32 v3, {NEG_LOG2E:#x}")
    o("s_nop 9")
    def pwrite(r):
        if cfg.get("quad", 1): o(f"v_fmaak_f32 v{PD+r}, v3, v{PD+r}, 0xc1f80000")
        else: o(f"v_mul_f32 v{PD+r}, {NEG_LOG2E:#x}, v{PD+r}")
        o(f"ds_write_b32 v2, v{PD+r} offset:{PT + (8*(r>>2)+(r&3))*256}")
    def uwrite(r):
        t = 32 + 2 * (r & 7)
        o(f"v_cvt_f64_f32 {vr(t,2)}, v{PD+r}")
        o(f"ds_write_b64 v2, {vr(t,2)} offset:{AGG + (8*(r>>2)+(r&3))*512}")
    for wr, lab in ((pwrite, None), (uwrite, "L2_xu")):
        if lab:
            o.lab(lab); o("v_lshlrev_b32 v2, 3, v2"); o("s_nop 9")
        for r in range(8): wr(r)
        o("s_cmp_eq_u32 s91, 1")
        o("s_cselect_b32 exec_hi, 0, -1")
        for r in range(8, 10): wr(r)
        o("s_mov_b64 exec, -1")
        o("s_cbranch_scc1 L2_pdone")
        for r in range(10, 16): wr(r)
        if not lab: o("s_branch L2_pdone")
    o.lab("L2_pdone")
    o(f"v_lshrrev_b32 v2, 4, v{L}")
    o(f"v_and_b32 v3, 15, v{L}")
    o("v_and_b32 v4, 3, v3")
    o("s_lshr_b32 s27, s3, 3")
    o("s_lshl_b32 s27, s27, 7")
    o("s_and_b32 s81, s3, 7")
    o("s_add_u32 s27, s27, s81")
    o("v_lshl_add_u32 v2, v2, 5, s27")
    o("v_lshl_add_u32 v4, v4, 3, v2")
    o("v_lshlrev_b32 v4, 11, v4")
    o(f"s_mov_b32 s81, {CHB}")
    o(f"v_mul_lo_u32 v{V_LB}, v2, s81")
    o(f"v_mad_u32_u24 v{V_LB}, v3, 12, v{V_LB}")
    for i in range(4): o(f"s_mov_b32 s{SOFF+i}, {8*i*CHB}")
    o("s_lshl_b32 s72, s30, 3")
    o(f"s_add_u32 s72, s72, {WS_DESC}")
    o("s_mul_i32 s82, s31, 100000")
    o(f"s_add_u32 s82, s82, {WS_T}")
    o(f"s_add_u32 s83, s82, {16384*cfg.get('ap', 0)}")
    o(f"s_mov_b32 s{S_W}, 32")
    o(f"s_mov_b32 s{S_OFF}, 0")
    for i in range(cfg.get("wd", 0)):
        o(f"buffer_load_dwordx4 {vr(DUM,4)}, v{V_T16}, s[12:15], s82 offen sc1")
        o("s_add_u32 s82, s82, 16384")
    o(f"s_waitcnt vmcnt({cfg.get('wd', 0)}) lgkmcnt(0)")
    for j in range(4): o(f"v_lshlrev_b32 v{76+j}, 16, v{76+j}")
    for j in range(4): o(f"v_mul_f32 v{76+j}, {NEG_LOG2E:#x}, v{76+j}")
    o(f"v_cvt_pk_bf16_f32 v{CW}, v76, v77")
    o(f"v_cvt_pk_bf16_f32 v{CW+1}, v78, v79")
    o(f"s_mov_b32 s87, {cfg.get('spin', 400000)}")
    o.lab("L2_tag")
    o("v_readfirstlane_b32 s74, v80")
    o("v_readfirstlane_b32 s75, v81")
    o("s_sub_u32 s87, s87, 1")
    o("s_cmp_lg_u32 s75, 0")
    o("s_cbranch_scc1 L2_tagok")
    o("s_cmp_eq_u32 s87, 0")
    o("s_cbranch_scc1 L2_tagok")
    o("buffer_load_dwordx2 v[80:81], v82, s[68:71], 0 offen sc1")
    o("s_waitcnt vmcnt(0)")
    o("s_branch L2_tag")
    o.lab("L2_tagok")
    T(cfg.get("rt", 0))
    o("s_barrier")
    if T.on and cfg.get("stampE", 0):
        n = T.n; T.n = 8; T(); T.n = n
    o("s_cmp_lg_u32 s3, 15")
    o("s_cbranch_scc1 L2_pxu")
    o(f"v_lshlrev_b32 v1, 4, v{L}")
    o(f"v_add_u32 v2, {DSV}, v1")
    o("ds_read_b128 v[64:67], v2")
    o("v_lshlrev_b32 v1, 1, v1")
    o("s_lshl_b32 s85, s2, 11")
    o(f"s_add_u32 s85, s85, {WS_DESC}")
    for j in (69, 71, 73, 75): o(f"v_mov_b32 v{j}, s75")
    o("s_waitcnt lgkmcnt(0)")
    for j in range(4): o(f"v_or_b32 v{68+2*j}, s74, v{64+j}")
    o("buffer_store_dwordx4 v[68:71], v1, s[12:15], s85 offen sc1")
    o("buffer_store_dwordx4 v[72:75], v1, s[12:15], s85 offen offset:16 sc1")
    o("s_waitcnt vmcnt(0)")
    o.lab("L2_pxu")
    if TF:
        o("s_cmp_gt_u32 s3, 3")
        o("s_cbranch_scc1 L2_nts")
        tstore()
        o.lab("L2_nts")
    o("s_barrier")
    T(cfg.get("rt", 0))
    for i in range(cfg.get("we", 0)):
        o(f"buffer_load_dwordx4 {vr(DUM,4)}, v{V_T16}, s[12:15], s82 offen sc1")
        o("s_add_u32 s82, s82, 16384")
    o.lab("L2_poll")
    o("buffer_load_dwordx2 v[2:3], v4, s[12:15], s72 offen sc1")
    o("s_sub_u32 s87, s87, 1")
    o("s_waitcnt vmcnt(0)")
    o("v_xor_b32 v2, s74, v2")
    o("v_cmp_ne_u32 vcc, s75, v3")
    o("v_lshrrev_b32 v3, 24, v2")
    o("v_cmp_ne_u32 s[84:85], 0, v3")
    o("s_or_b64 vcc, vcc, s[84:85]")
    o("s_cbranch_scc0 L2_g")
    o("s_cmp_eq_u32 s87, 0")
    o("s_cbranch_scc1 L2_g")
    if cfg.get("ap", 0):
        o(f"s_cmp_ge_u32 s82, s83")
        o("s_cbranch_scc1 L2_nap")
        o(f"buffer_load_dwordx4 {vr(DUM,4)}, v{V_T16}, s[12:15], s82 offen sc1")
        o("s_add_u32 s82, s82, 16384")
        o("s_branch L2_poll")
        o.lab("L2_nap")
    if cfg.get("sleep", 2): o(f"s_sleep {cfg.get('sleep', 2)}")
    o("s_branch L2_poll")
    o.lab("L2_g")
    o("v_and_b32 v3, 0xfff, v2")
    o("v_bfe_u32 v2, v2, 12, 12")
    o("v_mul_u32_u24 v3, 12, v3")
    o(f"v_lshl_or_b32 v{V_DESC}, v2, 16, v3")
    if TF:
        o("v_lshrrev_b32 v14, 4, v4")
        o(f"s_mov_b32 s73, {WS_TF}")
        o(f"s_mov_b32 s79, {cfg.get('spin', 400000)}")
        o("s_cmp_gt_u32 s3, 3")
        o("s_cbranch_scc1 L2_ntf")
        o(f"v_mov_b32 v1, {PUB}")
        o("v_mov_b32 v2, 1")
        o("s_mov_b64 exec, 1")
        o("ds_add_rtn_u32 v3, v1, v2")
        o("s_lshl_b32 s84, s2, 7")
        o("v_mov_b32 v1, s84")
        o("s_waitcnt lgkmcnt(0)")
        o("v_cmp_eq_u32 vcc, 3, v3")
        o("v_mov_b32 v2, s74")
        o("v_mov_b32 v3, s75")
        o("s_mov_b64 exec, vcc")
        o("s_cbranch_execz L2_ntf")
        o("buffer_store_dwordx2 v[2:3], v1, s[12:15], s73 offen sc1")
        o.lab("L2_ntf")
        o("s_mov_b64 exec, -1")
    T(cfg.get("rt", 0))
    o.lab("L2_pass")
    o(f"v_and_b32 v3, 15, v{L}")
    o(f"v_add_u32 v1, s{S_OFF}, v3")
    o("v_add_u32 v2, 16, v1")
    o(f"s_add_u32 s83, s{S_OFF}, s{S_W}")
    o(f"s_mul_i32 s84, s{S_OFF}, 12")
    o(f"v_add_u32 v6, s84, v{V_LB}")
    o(f"v_lshrrev_b32 v4, 16, v{V_DESC}")
    o("v_cmp_lt_u32 vcc, s83, v4")
    o("v_min_u32 v4, s83, v4")
    o(f"v_and_b32 v5, 0xffff, v{V_DESC}")
    o("s_cmp_lg_u64 vcc, 0")
    o(f"s_cselect_b32 s{S_MORE}, 1, 0")
    for i in range(4):
        o(f"v_mov_b32_dpp v{BS}, v4 row_newbcast:{i} row_mask:0xf bank_mask:0xf")
        o(f"v_add_u32_dpp v{BS+1+i}, v5, v6 row_newbcast:{i} row_mask:0xf bank_mask:0xf")
        o(f"v_cmp_lt_u32 {sr(MASK+2*i,2)}, v1, v{BS}")
        o(f"v_cmp_lt_u32 {sr(MASK+8+2*i,2)}, v2, v{BS}")
    for i in range(4):
        o(f"s_mov_b64 exec, {sr(MASK+8+2*i,2)}")
        o(f"s_cbranch_execz L2_r2_{i}")
        o(f"buffer_load_dwordx3 {vr(REC+16+4*i,3)}, v{BS+1+i}, s[12:15], s{SOFF+i} offen offset:192 sc1")
        o.lab(f"L2_r2_{i}")
    for i in range(4):
        o(f"s_mov_b64 exec, {sr(MASK+2*i,2)}")
        o(f"buffer_load_dwordx3 {vr(REC+4*i,3)}, v{BS+1+i}, s[12:15], s{SOFF+i} offen sc1")
    o("s_mov_b64 exec, -1")
    o("v_mov_b32 v1, 4")
    o(f"v_mov_b32 v2, {CNT}")
    o(f"s_cmp_eq_u32 s{S_MORE}, 0")
    o("s_cbranch_scc1 L2_nomore")
    o("ds_write_b32 v2, v1 offset:256")
    o.lab("L2_nomore")
    def rank(i):
        o(f"v_add_u32_sdwa v{CA+i}, v{REC+4*i+2}, v2 dst_sel:DWORD dst_unused:UNUSED_PAD src0_sel:BYTE_3 src1_sel:DWORD")
        o(f"ds_add_rtn_u32 v{REC+4*i+3}, v{CA+i}, v1")
    for i in range(4):
        o(f"s_waitcnt vmcnt({3-i})")
        o(f"s_mov_b64 exec, {sr(MASK+2*i,2)}")
        rank(i)
    for i in range(4, 8):
        o(f"s_mov_b64 exec, {sr(MASK+2*i,2)}")
        o(f"s_cbranch_execz L2_rk{i}")
        rank(i)
        o.lab(f"L2_rk{i}")
    o("s_mov_b64 exec, -1")
    for i in range(WL):
        o(f"buffer_load_dwordx4 {vr(DUM,4)}, v{V_T16}, s[12:15], s82 offen sc1")
        o("s_add_u32 s82, s82, 16384" if cfg.get("once", 0) else "s_nop 0")
    o("s_waitcnt lgkmcnt(0)")
    T()
    o("s_barrier")
    wb = cfg.get("wb", 3); wbw = 0
    if TF:
        cfg["tf"] = 1
        o("s_cmp_eq_u32 s79, 0")
        o("s_cbranch_scc1 L2_ntl")
        o("buffer_load_dwordx2 v[12:13], v14, s[12:15], s73 offen sc1")
        o.lab("L2_ntl")
    if wb:
        if wbw:
            o(f"s_cmp_lt_u32 s3, {wbw}")
            o("s_cbranch_scc1 L2_nwb")
            o(f"s_sub_u32 s84, s3, {wbw}")
            o(f"s_mul_i32 s84, s84, {wb*1024}")
            o("s_add_u32 s84, s84, s82")
            o(f"v_lshlrev_b32 v5, 4, v{L}")
            for i in range(wb):
                o(f"buffer_load_dwordx4 {vr(DUM,4)}, v5, s[12:15], s84 offen sc1")
                o("s_add_u32 s84, s84, 1024")
            o.lab("L2_nwb")
        else:
            o("s_mov_b32 s84, s82")
            for i in range(wb):
                o(f"buffer_load_dwordx4 {vr(DUM,4)}, v{V_T16}, s[12:15], s84 offen sc1")
                o("s_add_u32 s84, s84, 16384")
    src2 = gen2.kernel2(dict(cfg, stamp=0))
    a = src2.index("    v_lshl_add_u32 v1, v10, 2, v2\n    ds_read_b32 v3, v1")
    body = src2[a:]
    body = body.replace("L2_end:", "L_end:")
    if T.on:
        def st(real=False):
            t = Asm(); T.o = t; T(real); T.o = o; return t.text()
        body = body.replace("    s_barrier\n    s_cmp_lg_u32 s3, 15\n    s_cbranch_scc1 L2_nz2", st() + "    s_barrier\n" + st() + "    s_cmp_lg_u32 s3, 15\n    s_cbranch_scc1 L2_nz2")
        body = body.replace("    .p2align 3\nL2_loop:", st() + st(True) + "    .p2align 3\nL2_loop:")
        lab = "L2_xd:" if cfg.get("sb", 0) else "L2_done:"
        body = body.replace(lab + "\n    s_waitcnt vmcnt(0) lgkmcnt(0)\n", lab + "\n    s_waitcnt vmcnt(0) lgkmcnt(0)\n" + st() + st(True))
        t = Asm(); T.o = t; t("s_waitcnt vmcnt(0)"); T(); T(True); T.dump(12, 3, 1, V_LANE); T.o = o
        body = body.replace("L2_fin:\n", "L2_fin:\n" + t.text())
    return o.text() + body + tail.text()

HEADER = """; Edge-gated MPNN layer: out = silu(x@U + sum over edges with dst=i of sigmoid(x[dst]@A + x[src]@B + e@C) * (x[src]@V))
; @launch grid=(256,1,1) block=(1024,1,1) lds={l}
.amdgcn_target "amdgcn-amd-amdhsa--gfx950"
.text
"""
def build(cfg):
    s = HEADER.format(l=LDS)
    s += f".globl {NAME}\n.p2align 8\n.type {NAME},@function\n" + kernel(cfg)
    s += '.section .rodata,"a"\n.p2align 6\n' + kd(NAME, 128, 102).replace(".end_amdhsa_kernel", "  .amdhsa_dx10_clamp 0\n.end_amdhsa_kernel")
    return s

if __name__ == "__main__":
    cfg = {}
    for a in sys.argv[2:]:
        k, v = a.split("=")
        cfg[k] = int(v) if v.lstrip("-").isdigit() else v
    open(sys.argv[1], "w").write(build(cfg))
```

```python
import sys

class Asm:
    def __init__(self): self.l = []
    def __call__(self, s): self.l.append("    " + s)
    def lab(self, s): self.l.append(s + ":")
    def c(self, s): self.l.append("    ; " + s)
    def text(self): return "\n".join(self.l) + "\n"
def vr(a, n=1): return f"v{a}" if n == 1 else f"v[{a}:{a+n-1}]"
def sr(a, n=1): return f"s{a}" if n == 1 else f"s[{a}:{a+n-1}]"

N = 12500; E = 800000; NPB = 49; CH = 3128; CHB = CH * 12
WS_DESC = 0x00A00000; STAMP_BASE = 0x00B00000; WS_T = 0x00C00000; T_BYTES = 256 * NPB * 256
NULLROW = N * 256; NEG_LOG2E = 0xBFB8AA3B; MAGIC49 = 21400; QC = 0x30000000
assert all(((d * MAGIC49) >> 20) == d // 49 for d in range(N))
NAME = "standalone__edge_featured_mpnn_egc__graph_kernel"

CAPN = 128; CAPU = 3840; CAPL = 74
PT = 0; AGG = 13312; OV = 38912
LS = OV; LE = LS + 50 * CAPN * 4; CS = LE + 50 * CAPN * 8
HIST = OV; STAGE = OV + 1024; PB = OV + 38912
XS = 93696; WL = XS + 8192; TS = WL + 16384; AU = TS + 16384
CNT = AU + 16384; DSV = CNT + 512; LDS = DSV + 1024
NULLSLOT = 49 * CAPN
assert STAGE + CHB <= PB and PB + 13 * 1024 <= XS and CNT % 256 == 0 and CS + 16 * 1024 + 256 <= CNT and LE < 65536
assert NPB * ((CAPL + 3) // 4 * 4) + 15 <= CAPU and LDS <= 163840

R = [64, 80, 96, 112]; G = 32
EAR = 30; CW = 28; SELA = 26; SELB = 24; PC = 20; ACC = 18; F64 = 16
V_SA = 15; V_PA = 13; V_FA = 12; V_ST = 11; L = 10; V_DESC = 9; V_LB = 8; V_T16 = 7
PN = 48; VC2 = 50; FT = 52; EW = 54; V_LM = 14; V_SG = 60
REC = 64; CA = 96; BS = 104; DUM = 112
S_PEND = 20; S_OFF = 21; S_NB = 22; S_LF = 23; S_MORE = 25; S_TOT = 26
FL = 28; MF = 4; S_PL = 6; S_LV = 7; MK = 76; MASK = 32; SOFF = 64

class Stamper:
    def __init__(self, on): self.on = on
    def __call__(self, o, i, real=False):
        if not self.on: return
        o(f"{'s_memrealtime' if real else 's_memtime'} s[100:101]")
        o("s_waitcnt lgkmcnt(0)")
        o(f"v_writelane_b32 v{V_ST}, s100, {i}")
    def dump(self, o):
        if not self.on: return
        o("s_mov_b32 exec_hi, 0"); o("s_mov_b32 exec_lo, -1")
        o("s_lshl_b32 s4, s2, 4"); o("s_add_u32 s4, s4, s3"); o("s_lshl_b32 s4, s4, 7")
        o(f"s_add_u32 s4, s4, {STAMP_BASE}")
        o(f"v_lshl_add_u32 v1, v{L}, 2, s4")
        o(f"buffer_store_dword v{V_ST}, v1, s[12:15], 0 offen")

def srd(o, d, p, size):
    o(f"s_mov_b32 s{d}, s{p}"); o(f"s_and_b32 s{d+1}, s{p+1}, 0xffff")
    o(f"s_mov_b32 s{d+2}, {size}"); o(f"s_mov_b32 s{d+3}, 0x00020000")
def wave_scan(o, v):
    for sh in (1, 2, 4, 8):
        o(f"v_add_u32_dpp v{v}, v{v}, v{v} row_shr:{sh} row_mask:0xf bank_mask:0xf bound_ctrl:0")
        o("s_nop 1")
    o(f"v_add_u32_dpp v{v}, v{v}, v{v} row_bcast:15 row_mask:0xa bank_mask:0xf")
    o("s_nop 1")
    o(f"v_add_u32_dpp v{v}, v{v}, v{v} row_bcast:31 row_mask:0xc bank_mask:0xf")
def mfma16(d, a, b, first):
    return f"v_mfma_f32_32x32x16_bf16 {vr(d,16)}, {vr(a,4)}, {vr(b,4)}, {'0' if first else vr(d,16)}"
def m4(d, a, b, c, extra=""):
    return f"v_mfma_f32_4x4x4_16b_bf16 {vr(d,4)}, {vr(a,2)}, {vr(b,2)}, {vr(c,4)}{extra}"
def pk(op, d, a, b, c=None):
    return f"v_pk_{op}_f32 {vr(d,2)}, {vr(a,2)}, {vr(b,2)}" + (f", {vr(c,2)}" if c is not None else "")
def trbase(o, d, h, t):
    o(f"v_bfe_u32 v{t}, v{L}, 2, 2")
    o(f"v_lshl_add_u32 v{d}, v{h}, 3, v{t}")
    o(f"v_lshlrev_b32 v{d}, 7, v{d}")
    o(f"v_bfe_u32 v{t}, v{L}, 4, 1")
    o(f"v_lshl_add_u32 v{d}, v{t}, 5, v{d}")
    o(f"v_and_b32 v{t}, 3, v{L}")
    o(f"v_lshl_add_u32 v{d}, v{t}, 3, v{d}")

def phase1(o, tail, T, cfg):
    ST = cfg["st"]; LD = cfg["ld1"]
    def misc():
        o("s_cmp_lg_u32 s3, 1")
        o("s_cbranch_scc1 L1_nn")
        o("s_cmp_lg_u32 s2, 0")
        o("s_cbranch_scc1 L1_nn")
        o.c("launch tag: tells this launch's descriptors from whatever an earlier launch left in ws")
        o("s_memrealtime s[84:85]")
        o("s_waitcnt lgkmcnt(0)")
        o("s_lshl_b32 s86, s84, 24")
        o("s_lshr_b64 s[84:85], s[84:85], 8")
        o("s_bitset1_b32 s84, 31")
        o("v_mov_b32 v32, s86")
        o("v_mov_b32 v33, s84")
        o("v_mov_b32 v34, 0")
        o("s_mov_b64 exec, 1")
        o("buffer_store_dwordx2 v[32:33], v34, s[68:71], 0 offen sc1")
        o("s_mov_b64 exec, -1")
        o.lab("L1_nn")
        o("s_cmp_lg_u32 s3, 2")
        o("s_cbranch_scc1 L1_nz")
        o.c("touch the pages stored to later (address translation only, data unused)")
        o("v_mov_b32 v32, 0")
        o(f"s_mul_i32 s84, s2, {CHB}")
        o("s_lshl_b32 s85, s78, 8")
        o(f"s_add_u32 s85, s85, {WS_T}")
        o(f"s_mov_b32 s86, {WS_DESC}")
        for sreg in (84, 85, 86): o(f"buffer_load_dword v33, v32, s[12:15], s{sreg} offen sc1")
        o(f"s_add_u32 s84, s84, {CHB-4}")
        o("buffer_load_dword v33, v32, s[12:15], s84 offen sc1")
        o("buffer_load_dword v33, v32, s[16:19], 0 offen sc1")
        o.lab("L1_nz")
    o("s_load_dwordx16 s[80:95], s[0:1], 0")
    o("s_load_dwordx4 s[96:99], s[0:1], 64")
    o("v_lshrrev_b32 v1, 6, v0")
    o(f"v_and_b32 v{L}, 63, v0")
    o("s_movk_i32 s4, 768")
    o("s_cmp_eq_u32 s2, 255")
    o("s_cselect_b32 s4, 590, s4")
    o("s_cselect_b32 s6, 0, 56")
    o("v_readfirstlane_b32 s3, v1")
    o("s_mul_i32 s5, s2, 12512")
    o("v_subrev_u32 v4, 256, v0")
    o("v_lshl_add_u32 v2, v4, 4, s5")
    o("v_lshlrev_b32 v3, 1, v2")
    o("v_cmp_gt_u32 s[72:73], s4, v4")
    o("v_cmp_gt_u32 s[74:75], s6, v4")
    o("s_and_b32 s30, s2, 7")
    o("s_lshl_b32 s30, s30, 5")
    o("s_lshr_b32 s31, s2, 3")
    o("s_add_u32 s30, s30, s31")
    o("s_mul_i32 s78, s30, 49")
    o(f"v_lshlrev_b32 v{V_T16}, 4, v0")
    o("s_add_u32 s5, s5, 12288")
    o("v_lshl_add_u32 v5, v4, 2, s5")
    o(f"s_mov_b32 s38, {E*4}"); o("s_mov_b32 s39, 0x00020000")
    o("s_waitcnt lgkmcnt(0)")
    o("s_mov_b32 s36, s86"); o("s_and_b32 s37, s87, 0xffff")
    o("s_mov_b64 exec, s[72:73]")
    o("s_cbranch_execz L1_noload")
    o(f"buffer_load_dwordx4 v[64:67], v2, s[36:39], 0 offen {LD}")
    o("s_mov_b64 exec, s[74:75]")
    o("s_cbranch_execz L1_noload")
    o(f"buffer_load_dword v80, v5, s[36:39], 0 offen {LD}")
    o.lab("L1_noload")
    o("s_mov_b64 exec, -1")
    o("s_cmp_gt_u32 s3, 3")
    o("s_cbranch_scc1 L1_a")
    o.c("table waves 0..3, unit (rt = w>>1, hh = w&1): LDS-DMA of the block's 64 x rows and the raw B / V weights")
    srd(o, 48, 80, N * 128)
    o(f"v_lshlrev_b32 v25, 4, v{L}")
    o("s_lshl_b32 s4, s3, 11")
    o("s_lshl_b32 s5, s78, 7")
    o("s_add_u32 s5, s5, s4")
    o(f"s_add_u32 s4, s4, {XS}")
    o("s_mov_b32 m0, s4")
    o("v_add_u32 v20, s5, v25")
    o("s_and_b32 s6, s3, 1")
    o("s_lshr_b32 s7, s3, 1")
    o("buffer_load_dwordx4 v20, s[48:51], 0 offen lds")
    o("buffer_load_dwordx4 v20, s[48:51], 0 offen offset:1024 lds")
    o("s_cmp_eq_u32 s7, 0")
    o("s_cselect_b32 s52, s92, s90")
    o("s_cselect_b32 s53, s93, s91")
    o("s_cselect_b32 s5, 8192, 0")
    o("s_and_b32 s53, s53, 0xffff")
    o("s_add_u32 s54, s5, 8192")
    o("s_mov_b32 s55, 0x00020000")
    o("s_lshl_b32 s4, s6, 12")
    o("s_add_u32 s5, s5, s4")
    o("s_lshl_b32 s4, s3, 12")
    o(f"s_add_u32 s4, s4, {WL}")
    o("s_mov_b32 m0, s4")
    o("s_cmp_lg_u32 s3, 2")
    for i in range(4): o(f"buffer_load_dwordx4 v25, s[52:55], s5 offen offset:{1024*i} lds")
    o("s_cbranch_scc1 L1_a")
    for i in range(4): o(f"v_mov_b32 v{32+i}, 0")
    o(f"ds_write_b128 v25, v[32:35] offset:{HIST}")
    o(f"v_lshlrev_b32 v26, 2, v{L}")
    o(f"v_add_u32 v26, {CNT}, v26")
    o("ds_write_b32 v26, v32")
    o("ds_write_b32 v26, v32 offset:64")
    o("s_waitcnt lgkmcnt(0)")
    o.lab("L1_a")
    srd(o, 40, 84, E * 4); srd(o, 44, 82, E * 8)
    T(o, 2)
    o("s_barrier")
    o("s_mov_b64 exec, s[72:73]")
    o("s_cbranch_execz L1_noload2")
    o(f"buffer_load_dwordx4 v[68:71], v2, s[40:43], 0 offen {LD}")
    o(f"buffer_load_dwordx4 v[72:75], v3, s[44:47], 0 offen {LD}")
    o(f"buffer_load_dwordx4 v[76:79], v3, s[44:47], 0 offen offset:16 {LD}")
    o("s_mov_b64 exec, s[74:75]")
    o("s_cbranch_execz L1_noload2")
    o("v_lshlrev_b32 v3, 1, v5")
    o(f"buffer_load_dword v81, v5, s[40:43], 0 offen {LD}")
    o(f"buffer_load_dwordx2 v[82:83], v3, s[44:47], 0 offen {LD}")
    o.lab("L1_noload2")
    o("s_mov_b64 exec, -1")
    srd(o, 12, 98, WS_T + T_BYTES); srd(o, 16, 94, N * 128); srd(o, 68, 96, 256)
    srd(o, 52, 92, 132 * 128); srd(o, 60, 88, 64 * 128)
    o.c("table descriptor: stride 4 with thread-id addressing, so one uniform row offset reads the 64 channels")
    o(f"s_add_u32 s8, s98, {WS_T}"); o("s_addc_u32 s9, s99, 0")
    o("s_and_b32 s9, s9, 0xffff"); o("s_or_b32 s9, s9, 0x40000")
    o(f"s_mov_b32 s10, {T_BYTES}"); o("s_mov_b32 s11, 0x00800000")
    o("s_cmp_gt_u32 s3, 3")
    o("s_cbranch_scc1 L1_edge")
    o("s_lshl_b32 s29, s3, 12")
    o(f"s_add_u32 s29, s29, {TS}")
    o(f"v_and_b32 v24, 31, v{L}")
    o(f"v_lshrrev_b32 v25, 5, v{L}")
    o("s_lshl_b32 s84, s7, 12")
    o(f"s_add_u32 s84, s84, {XS}")
    o("v_lshl_add_u32 v20, v25, 4, s84")
    o("v_lshl_add_u32 v20, v24, 7, v20")
    o("v_lshlrev_b32 v27, 9, v25")
    o("v_lshl_add_u32 v27, v24, 2, v27")
    o("v_add_u32 v27, s29, v27")
    trbase(o, 26, 25, 28)
    o("s_lshl_b32 s84, s6, 6")
    o(f"s_add_u32 s84, s84, {WL}")
    o("v_add_u32 v26, s84, v26")
    o(f"v_lshrrev_b32 v21, 3, v{L}")
    o(f"v_and_b32 v22, 7, v{L}")
    o("v_lshlrev_b32 v22, 4, v22")
    o("s_lshl_b32 s84, s7, 5")
    o("v_add_u32 v23, s84, v21")
    o("v_lshl_add_u32 v29, v23, 8, v22")
    o("v_lshl_add_u32 v21, v21, 7, v22")
    o("v_add_u32 v21, s29, v21")
    o("s_lshl_b32 s84, s3, 12")
    o(f"s_add_u32 s85, s84, {AU}")
    o("s_mov_b32 m0, s85")
    o(f"v_lshlrev_b32 v28, 4, v{L}")
    if cfg["early"]:
        o.c("the four table waves meet through an LDS counter once their staging loads have landed")
        o(f"v_mov_b32 v32, {CNT+272}")
        o("v_mov_b32 v33, 1")
        o("s_setprio 2")
        o("s_waitcnt vmcnt(0)")
        o("s_mov_b64 exec, 1")
        o("ds_add_u32 v32, v33")
        o("s_mov_b64 exec, -1")
        o.lab("L1_tw")
        o("ds_read_b32 v33, v32")
        o("s_waitcnt lgkmcnt(0)")
        o("v_readfirstlane_b32 s84, v33")
        o("s_cmp_lt_u32 s84, 4")
        o("s_cbranch_scc1 L1_tw")
        T(o, 4)
    else:
        o("s_waitcnt vmcnt(0)")
        misc()
        T(o, 4)
        o("s_barrier")
        o("s_setprio 2")
    for s in range(4): o(f"ds_read_b128 {vr(40+4*s,4)}, v20 offset:{32*s}")
    for m in range(2):
        for s in range(4):
            for t in range(2):
                o(f"ds_read_b64_tr_b16 {vr(64+16*m+4*s+2*t,2)}, v26 offset:{8192*m+2048*s+512*t}")
    def au():
        o.c("raw A (waves 0,1) and U (waves 2,3) weights for the P and x@U products")
        o("s_lshl_b32 s87, s6, 12")
        o("s_cmp_eq_u32 s7, 0")
        o("s_cbranch_scc0 L1_ldu")
        for i in range(4): o(f"buffer_load_dwordx4 v28, s[52:55], s87 offen offset:{1024*i} lds")
        o("s_branch L1_ldd")
        o.lab("L1_ldu")
        for i in range(4): o(f"buffer_load_dwordx4 v28, s[60:63], s87 offen offset:{1024*i} lds")
        o.lab("L1_ldd")
    if not cfg["early"]: au()
    o("s_mov_b32 s84, 0xffff0000")
    o(f"s_mov_b32 s85, {NEG_LOG2E:#x}")
    o("s_brev_b32 s86, 1")
    o("s_waitcnt lgkmcnt(8)")
    for s in range(4): o(mfma16(96, 40+4*s, 64+4*s, s == 0))
    o("s_waitcnt lgkmcnt(0)")
    for s in range(4): o(mfma16(112, 40+4*s, 80+4*s, s == 0))
    o("s_nop 6")
    o.c("row entry = bf16(-log2e * x@B) in the low half; the high half is chosen so the whole dword is nearest to x@V")
    for r in range(16): o(f"v_mul_f32 v{96+r}, s85, v{96+r}")
    for r in range(0, 16, 2):
        o(f"v_cvt_pk_bf16_f32 v{96+r}, v{96+r}, v{97+r}")
        o(f"v_lshrrev_b32 v{97+r}, 16, v{96+r}")
        o(f"v_and_b32 v{96+r}, 0xffff, v{96+r}")
    for r in range(16):
        t = 56 + (r & 3); t2 = 60 + (r & 3)
        if cfg["early"] and r == cfg["early"] - 1:
            T(o, 5)
            o("s_barrier")
            au()
        o(f"v_add_u32 v{t}, 0x8000, v{112+r}")
        o(f"v_and_b32 v{t2}, s86, v{112+r}")
        o(f"v_sub_u32_e64 v{t}, v{t}, v{96+r} clamp")
        o(f"v_max_u32 v{t}, v{t}, v{t2}")
        o(f"v_and_or_b32 v{t}, v{t}, s84, v{96+r}")
        o(f"ds_write_b32 v27, v{t} offset:{(8*(r>>2) + (r&3))*128}")
    for i in range(4): o(f"ds_read_b128 {vr(64+4*i,4)}, v21 offset:{1024*i}")
    o("s_lshl_b32 s84, s78, 8")
    o("s_lshl_b32 s85, s6, 7")
    o("s_add_u32 s84, s84, s85")
    o(f"s_add_u32 s84, s84, {WS_T}")
    if not cfg["early"]: o("s_waitcnt vmcnt(0)")
    for i in range(4):
        o(f"v_cmp_gt_u32 vcc, {49-8*i}, v23")
        o(f"s_waitcnt lgkmcnt({3-i})")
        o("s_mov_b64 exec, vcc")
        o(f"buffer_store_dwordx4 {vr(64+4*i,4)}, v29, s[12:15], s84 offen {ST}")
        o("s_add_u32 s84, s84, 2048")
        o("s_mov_b64 exec, -1")
    o("s_setprio 0")
    T(o, 6)
    if cfg["early"]:
        o("s_waitcnt vmcnt(4)")
        misc()
    o("s_branch L1_d")
    o.lab("L1_edge")
    o("s_mov_b64 exec, s[72:73]")
    o("s_cbranch_execz L1_histdone")
    o(f"s_movk_i32 s84, {MAGIC49}")
    o("v_mov_b32 v20, 1")
    def hist(regs):
        for d, b, a, r in regs: o(f"v_mul_u32_u24 v{b}, s84, v{d}")
        for d, b, a, r in regs: o(f"v_lshrrev_b32 v{b}, 20, v{b}")
        for d, b, a, r in regs:
            o(f"v_lshlrev_b32 v{a}, 2, v{b}")
            o(f"ds_add_rtn_u32 v{r}, v{a}, v20 offset:{HIST}")
        for d, b, a, r in regs: o(f"v_mul_u32_u24 v{b}, 49, v{b}")
        for d, b, a, r in regs: o(f"v_sub_u32 v{d}, v{d}, v{b}")
        for d, b, a, r in regs: o(f"v_lshlrev_b32 v{d}, 26, v{d}")
    o("s_cmp_eq_u64 s[74:75], 0")
    o("s_cbranch_scc1 L1_h4")
    o("s_mov_b64 exec, s[74:75]")
    o("s_waitcnt vmcnt(5)")
    hist([(80, 88, 93, 98)])
    o("s_mov_b64 exec, s[72:73]")
    o("s_branch L1_h5")
    o.lab("L1_h4")
    o("s_waitcnt vmcnt(3)")
    o.lab("L1_h5")
    T(o, 3)
    hist([(64+i, 84+i, 89+i, 94+i) for i in range(4)])
    o("s_waitcnt lgkmcnt(0)")
    o.lab("L1_histdone")
    o("s_mov_b64 exec, -1")
    o(f"v_lshlrev_b32 v104, 4, v{L}")
    o("s_sub_u32 s85, s3, 3")
    o("s_lshl_b32 s85, s85, 10")
    o(f"s_add_u32 s85, s85, {PB}")
    o("v_add_u32 v105, s85, v104")
    for i in range(5): o(f"v_add_u32 v{89+i}, s85, v{89+i}")
    T(o, 4)
    o("s_barrier")
    T(o, 5)
    o.c("every edge wave scans the 256 bucket counts for itself")
    o(f"ds_read_b128 v[108:111], v104 offset:{HIST}")
    o("s_waitcnt lgkmcnt(0)")
    o("v_add_u32 v106, v108, v109")
    o("v_add_u32 v107, v106, v110")
    o("v_add_u32 v116, v107, v111")
    o("v_mov_b32 v112, v116")
    o("s_nop 1")
    wave_scan(o, 112)
    o("v_sub_u32 v112, v112, v116")
    o("v_add_u32 v113, v112, v108")
    o("v_add_u32 v114, v112, v106")
    o("v_add_u32 v115, v112, v107")
    o("s_cmp_lg_u32 s3, 15")
    o("s_cbranch_scc1 L1_scat")
    for j in range(4): o(f"v_lshl_or_b32 v{108+j}, v{108+j}, 12, v{112+j}")
    o(f"v_add_u32 v104, {DSV}, v104")
    o("ds_write_b128 v104, v[108:111]")
    o.lab("L1_scat")
    for j in range(4): o(f"v_mul_u32_u24 v{112+j}, 12, v{112+j}")
    o("ds_write_b128 v105, v[112:115]")
    o("s_mov_b64 exec, s[72:73]")
    o("s_cbranch_execz L1_scatdone")
    for i in range(5): o(f"ds_read_b32 v{84+i}, v{89+i}")
    o("s_waitcnt lgkmcnt(0)")
    for i in range(5): o(f"v_mad_u32_u24 v{84+i}, v{94+i}, 12, v{84+i}")
    o("s_waitcnt vmcnt(2)")
    for i in range(4): o(f"v_lshl_or_b32 v{68+i}, v{68+i}, 8, v{64+i}")
    for i in range(4): o(f"ds_write_b32 v{84+i}, v{68+i} offset:{STAGE+8}")
    for i in range(5): o(f"v_add_u32 v{84+i}, {STAGE}, v{84+i}")
    o("s_waitcnt vmcnt(0)")
    T(o, 6)
    for i in range(4): o(f"ds_write2_b32 v{84+i}, v{72+2*i}, v{73+2*i} offset0:0 offset1:1")
    o("s_mov_b64 exec, s[74:75]")
    o("s_cbranch_execz L1_scatdone")
    o("v_lshl_or_b32 v81, v81, 8, v80")
    o("ds_write_b32 v88, v81 offset:8")
    o("ds_write2_b32 v88, v82, v83 offset0:0 offset1:1")
    o.lab("L1_scatdone")
    o("s_mov_b64 exec, -1")
    o.lab("L1_d")
    o(f"s_mul_i32 s85, s2, {CHB}")
    o(f"v_add_u32 v4, {STAGE}, v{V_T16}")
    o(f"v_add_u32 v5, 16384, v{V_T16}")
    o(f"v_add_u32 v6, 32768, v{V_T16}")
    o("v_cmp_gt_u32 vcc, 298, v0")
    o("s_waitcnt lgkmcnt(0)")
    o("s_barrier")
    T(o, 7)
    o("ds_read_b128 v[80:83], v4")
    o("ds_read_b128 v[84:87], v4 offset:16384")
    o("ds_read_b128 v[88:91], v4 offset:32768")
    o("s_waitcnt lgkmcnt(2)")
    o(f"buffer_store_dwordx4 v[80:83], v{V_T16}, s[12:15], s85 offen {ST}")
    o("s_waitcnt lgkmcnt(1)")
    o(f"buffer_store_dwordx4 v[84:87], v5, s[12:15], s85 offen {ST}")
    o("s_mov_b64 exec, vcc")
    o("s_cbranch_execz L1_c3")
    o("s_waitcnt lgkmcnt(0)")
    o(f"buffer_store_dwordx4 v[88:91], v6, s[12:15], s85 offen {ST}")
    o.lab("L1_c3")
    o("s_mov_b64 exec, -1")
    T(o, 8)

def handoff(o, tail, T, cfg):
    o(f"v_lshlrev_b32 v1, 1, v{L}")
    o("v_add_u32 v1, 0x4000, v1")
    for j in range(4): o(f"buffer_load_ushort v{76+j}, v1, s[52:55], 0 offen offset:{128*j}")
    o("v_mov_b32 v74, 0")
    o("buffer_load_dwordx2 v[72:73], v74, s[68:71], 0 offen sc1")
    o.c("selector operands of the 4x4x4 MFMAs that add the gathered gate term")
    o(f"v_and_b32 v1, 3, v{L}")
    o("v_mov_b32 v2, 0x3f80")
    for idx, reg in enumerate((SELA, SELA+1, SELB, SELB+1)):
        o(f"v_cmp_eq_u32 vcc, {idx}, v1")
        o("s_nop 1")
        o(f"v_cndmask_b32 v{reg}, 0, v2, vcc")
    o("s_cmp_lt_u32 s3, 8")
    o("s_cbranch_scc1 L2_pdone")
    o.c("waves 8..15: P = -log2e * x@A - 31 (gate term of the destination node) and x@U (start value of the sums)")
    o("s_and_b32 s86, s3, 1")
    o("s_bfe_u32 s91, s3, 0x10001")
    o("s_bfe_u32 s88, s3, 0x10002")
    o("s_lshl_b32 s89, s91, 12")
    o(f"s_add_u32 s89, s89, {XS}")
    o(f"v_and_b32 v3, 31, v{L}")
    o(f"v_lshrrev_b32 v2, 5, v{L}")
    o("v_lshl_add_u32 v1, v2, 4, s89")
    o("v_lshl_add_u32 v1, v3, 7, v1")
    for s in range(4): o(f"ds_read_b128 {vr(32+4*s,4)}, v1 offset:{32*s}")
    o("s_lshl_b32 s90, s88, 5")
    o("v_add_u32 v3, s90, v3")
    trbase(o, 1, 2, 20)
    o("s_lshl_b32 s89, s86, 13")
    o("s_lshl_b32 s90, s88, 6")
    o("s_add_u32 s89, s89, s90")
    o(f"s_add_u32 s89, s89, {AU}")
    o("v_add_u32 v1, s89, v1")
    for s in range(4):
        for t in range(2):
            o(f"ds_read_b64_tr_b16 {vr(48+4*s+2*t,2)}, v1 offset:{2048*s+512*t}")
    o("v_lshlrev_b32 v2, 2, v2")
    o("s_lshl_b32 s90, s91, 5")
    o("v_add_u32 v2, s90, v2")
    o("v_lshl_add_u32 v2, v2, 6, v3")
    o("s_waitcnt lgkmcnt(0)")
    PD = 96
    for s in range(4): o(mfma16(PD, 32+4*s, 48+4*s, s == 0))
    o("s_cmp_eq_u32 s86, 1")
    o("s_cbranch_scc1 L2_xu")
    o("v_lshlrev_b32 v2, 2, v2")
    o(f"v_mov_b32 v3, {NEG_LOG2E:#x}")
    o("s_nop 8")
    def pwrite(r):
        o(f"v_fmaak_f32 v{PD+r}, v3, v{PD+r}, 0xc1f80000")
        o(f"ds_write_b32 v2, v{PD+r} offset:{PT + (8*(r>>2)+(r&3))*256}")
    def uwrite(r):
        t = 32 + 2 * (r & 7)
        o(f"v_cvt_f64_f32 {vr(t,2)}, v{PD+r}")
        o(f"ds_write_b64 v2, {vr(t,2)} offset:{AGG + (8*(r>>2)+(r&3))*512}")
    for wr, lab in ((pwrite, None), (uwrite, "L2_xu")):
        if lab:
            o.lab(lab); o("v_lshlrev_b32 v2, 3, v2"); o("s_nop 9")
        for r in range(8): wr(r)
        o("s_cmp_eq_u32 s91, 1")
        o("s_cselect_b32 exec_hi, 0, -1")
        for r in range(8, 10): wr(r)
        o("s_mov_b64 exec, -1")
        o("s_cbranch_scc1 L2_pdone")
        for r in range(10, 16): wr(r)
        if not lab: o("s_branch L2_pdone")
    o.lab("L2_pdone")
    o.c("record addressing: wave w, lane group g, step i reads chunk (w&7) + 8*(16*(w>>3) + 4*g + i)")
    o(f"v_lshrrev_b32 v2, 4, v{L}")
    o(f"v_and_b32 v3, 15, v{L}")
    o("v_and_b32 v4, 3, v3")
    o("s_lshr_b32 s27, s3, 3")
    o("s_lshl_b32 s27, s27, 7")
    o("s_and_b32 s81, s3, 7")
    o("s_add_u32 s27, s27, s81")
    o("v_lshl_add_u32 v2, v2, 5, s27")
    o("v_lshl_add_u32 v4, v4, 3, v2")
    o("v_lshlrev_b32 v4, 11, v4")
    o(f"s_mov_b32 s81, {CHB}")
    o(f"v_mul_lo_u32 v{V_LB}, v2, s81")
    o(f"v_mad_u32_u24 v{V_LB}, v3, 12, v{V_LB}")
    for i in range(4): o(f"s_mov_b32 s{SOFF+i}, {8*i*CHB}")
    o("s_lshl_b32 s72, s30, 3")
    o(f"s_add_u32 s72, s72, {WS_DESC}")
    o("s_mul_i32 s82, s31, 100000")
    o(f"s_add_u32 s82, s82, {WS_T}")
    o(f"s_mov_b32 s{S_OFF}, 0")
    o(f"v_mov_b32 v{VC2}, {QC:#x}")
    o(f"v_mov_b32 v{VC2+1}, {QC:#x}")
    o(f"s_mov_b32 s87, {cfg['spin']}")
    o.c("lane l of a 64-slot window takes slot (l & ~7) | ((l & 1) << 2) | ((l >> 1) & 3): two groups interleaved per block")
    o(f"v_and_b32 v3, 1, v{L}")
    o(f"v_bfe_u32 v5, v{L}, 1, 2")
    o("v_lshl_or_b32 v3, v3, 2, v5")
    o(f"v_and_b32 v5, 56, v{L}")
    o(f"v_or_b32 v{V_SG}, v3, v5")
    o(f"v_lshrrev_b32 v3, 2, v{V_SG}")
    o(f"v_lshlrev_b32 v{V_LM}, v3, 2")
    o(f"v_subrev_u32 v{V_LM}, 1, v{V_LM}")
    o("s_cmp_lg_u32 s3, 15")
    o("s_cbranch_scc1 L2_nd")
    o(f"v_lshlrev_b32 v1, 4, v{L}")
    o(f"v_add_u32 v2, {DSV}, v1")
    o("ds_read_b128 v[64:67], v2")
    o("v_lshlrev_b32 v1, 1, v1")
    o("s_lshl_b32 s85, s2, 11")
    o(f"s_add_u32 s85, s85, {WS_DESC}")
    o.lab("L2_nd")
    for i in range(cfg.get("wd", 0)):
        o(f"buffer_load_dwordx4 {vr(DUM,4)}, v{V_T16}, s[12:15], s82 offen sc1")
        o("s_add_u32 s82, s82, 16384")
    o(f"s_waitcnt vmcnt({cfg.get('wd', 0)}) lgkmcnt(0)")
    for j in range(4): o(f"v_lshlrev_b32 v{76+j}, 16, v{76+j}")
    for j in range(4): o(f"v_mul_f32 v{76+j}, {NEG_LOG2E:#x}, v{76+j}")
    o(f"v_cvt_pk_bf16_f32 v{CW}, v76, v77")
    o(f"v_cvt_pk_bf16_f32 v{CW+1}, v78, v79")
    o.lab("L2_tag")
    o("v_readfirstlane_b32 s74, v72")
    o("v_readfirstlane_b32 s75, v73")
    o("s_sub_u32 s87, s87, 1")
    o("s_cmp_lg_u32 s75, 0")
    o("s_cbranch_scc1 L2_tagok")
    o("s_cmp_eq_u32 s87, 0")
    o("s_cbranch_scc1 L2_tagok")
    o("buffer_load_dwordx2 v[72:73], v74, s[68:71], 0 offen sc1")
    o("s_waitcnt vmcnt(0)")
    o("s_branch L2_tag")
    o.lab("L2_tagok")
    for j in (81, 83, 85, 87): o(f"v_mov_b32 v{j}, s75")
    for j in range(4): o(f"v_or_b32 v{80+2*j}, s74, v{64+j}")
    T(o, 9)
    o("s_barrier")
    o("s_cmp_lg_u32 s3, 15")
    o("s_cbranch_scc1 L2_f")
    o("buffer_store_dwordx4 v[80:83], v1, s[12:15], s85 offen sc1")
    o("buffer_store_dwordx4 v[84:87], v1, s[12:15], s85 offen offset:16 sc1")
    o("s_waitcnt vmcnt(0)")
    o.lab("L2_f")
    o("s_barrier")
    o("s_cmp_lg_u32 s3, 0")
    o("s_cbranch_scc1 L2_nn")
    o(f"v_mov_b32 v1, {NULLSLOT*4}")
    o(f"v_mov_b32 v5, {NULLSLOT*8}")
    o(f"v_mov_b32 v6, {NULLROW}")
    o("v_mov_b32 v2, 0")
    o("v_mov_b32 v3, 0")
    o(f"ds_write_b32 v1, v6 offset:{LS}")
    o(f"ds_write_b64 v5, v[2:3] offset:{LE}")
    o.lab("L2_nn")
    T(o, 10)
    for i in range(cfg.get("we", 0)):
        o(f"buffer_load_dwordx4 {vr(DUM,4)}, v{V_T16}, s[12:15], s82 offen sc1")
        o("s_add_u32 s82, s82, 16384")
    o.lab("L2_poll")
    o("buffer_load_dwordx2 v[2:3], v4, s[12:15], s72 offen sc1")
    o("s_sub_u32 s87, s87, 1")
    o("s_waitcnt vmcnt(0)")
    o("v_xor_b32 v2, s74, v2")
    o("v_cmp_ne_u32 vcc, s75, v3")
    o("v_lshrrev_b32 v3, 24, v2")
    o("v_cmp_ne_u32 s[84:85], 0, v3")
    o("s_or_b64 vcc, vcc, s[84:85]")
    o("s_cbranch_scc0 L2_g")
    o("s_cmp_eq_u32 s87, 0")
    o("s_cbranch_scc1 L2_g")
    o(f"s_sleep {cfg['sleep']}")
    o("s_branch L2_poll")
    o.lab("L2_g")
    o("v_and_b32 v3, 0xfff, v2")
    o("v_bfe_u32 v2, v2, 12, 12")
    o("v_mul_u32_u24 v3, 12, v3")
    o(f"v_lshl_or_b32 v{V_DESC}, v2, 16, v3")
    T(o, 11)

def offsets(o, reg, batch):
    for q in range(4): o(f"ds_read_b128 {vr(reg+4*q,4)}, v{V_SA} offset:{batch*64+16*q}")
def rowload(o, r, cfg): o(f"buffer_load_dword v{r}, v{r}, s[8:11], 0 offen {cfg['ldt']}")

def prefetch(o, cfg):
    o.c("pull part of the table into this XCD's L2 while the records are being placed")
    if cfg.get("wfew", 0):
        o(f"s_cmp_ge_u32 s3, {cfg['wfew']}")
        o("s_cbranch_scc1 L2_nwb")
        o(f"s_mul_i32 s84, s3, {cfg['wb']*1024}")
        o("s_add_u32 s84, s84, s82")
        o(f"v_lshlrev_b32 v{DUM+4}, 4, v{L}")
        for i in range(cfg["wb"]):
            o(f"buffer_load_dwordx4 {vr(DUM,4)}, v{DUM+4}, s[12:15], s84 offen sc1")
            o("s_add_u32 s84, s84, 1024")
        o.lab("L2_nwb")
        return
    o("s_mov_b32 s84, s82")
    for i in range(cfg["wb"]):
        o(f"buffer_load_dwordx4 {vr(DUM,4)}, v{V_T16}, s[12:15], s84 offen sc1")
        o("s_add_u32 s84, s84, 16384")

def sort(o, tail, T, cfg):
    o.lab("L2_pass")
    o(f"v_and_b32 v3, 15, v{L}")
    o(f"v_add_u32 v1, s{S_OFF}, v3")
    o("v_add_u32 v2, 16, v1")
    o(f"s_add_u32 s83, s{S_OFF}, 32")
    o(f"v_lshrrev_b32 v4, 16, v{V_DESC}")
    o("v_cmp_lt_u32 vcc, s83, v4")
    o("s_cmp_lg_u64 vcc, 0")
    o(f"s_cselect_b32 s{S_MORE}, 1, 0")
    for i in range(4):
        o(f"v_mov_b32_dpp v{BS}, v4 row_newbcast:{i} row_mask:0xf bank_mask:0xf")
        o(f"v_cmp_lt_u32 {sr(MASK+2*i,2)}, v1, v{BS}")
        o(f"v_cmp_lt_u32 {sr(MASK+8+2*i,2)}, v2, v{BS}")
    o.lab("L2_again")
    o(f"s_mul_i32 s84, s{S_OFF}, 12")
    o(f"v_add_u32 v6, s84, v{V_LB}")
    o(f"v_and_b32 v5, 0xffff, v{V_DESC}")
    o("s_nop 1")
    for i in range(4):
        o(f"v_add_u32_dpp v{BS+1+i}, v5, v6 row_newbcast:{i} row_mask:0xf bank_mask:0xf")
    for i in range(4):
        o(f"s_mov_b64 exec, {sr(MASK+8+2*i,2)}")
        o(f"s_cbranch_execz L2_r2_{i}")
        o(f"buffer_load_dwordx3 {vr(REC+16+4*i,3)}, v{BS+1+i}, s[12:15], s{SOFF+i} offen offset:192 sc1")
        o.lab(f"L2_r2_{i}")
    for i in range(4):
        o(f"s_mov_b64 exec, {sr(MASK+2*i,2)}")
        o(f"buffer_load_dwordx3 {vr(REC+4*i,3)}, v{BS+1+i}, s[12:15], s{SOFF+i} offen sc1")
    o("s_mov_b64 exec, -1")
    o("v_mov_b32 v1, 4")
    o(f"v_mov_b32 v2, {CNT}")
    o(f"s_cmp_eq_u32 s{S_MORE}, 0")
    o("s_cbranch_scc1 L2_nomore")
    o("ds_write_b32 v2, v1 offset:256")
    o.lab("L2_nomore")
    o(f"v_cmp_gt_u32 s[92:93], 49, v{L}")
    o("v_mov_b32 v6, 16")
    o(f"v_mov_b32 v5, {CAPN*4}")
    o("v_cndmask_b32 v6, 0, v6, s[92:93]")
    def rank(i):
        o(f"v_add_u32_sdwa v{CA+i}, v{REC+4*i+2}, v2 dst_sel:DWORD dst_unused:UNUSED_PAD src0_sel:BYTE_3 src1_sel:DWORD")
        o(f"ds_add_rtn_u32 v{REC+4*i+3}, v{CA+i}, v1")
        o(f"v_lshrrev_b32 v{CA+i}, 26, v{REC+4*i+2}")
        o(f"v_and_b32 v{REC+4*i+2}, 0xffffff, v{REC+4*i+2}")
    def scat(i):
        o(f"v_lshl_add_u32 v{CA+i}, v{CA+i}, 9, v{REC+4*i+3}")
        o(f"v_cmpx_lt_u32 vcc, v{REC+4*i+3}, v5")
        o(f"v_add_u32 v{BS+i}, v{CA+i}, v{CA+i}")
        o(f"ds_write_b32 v{CA+i}, v{REC+4*i+2} offset:{LS}")
        o(f"ds_write_b64 v{BS+i}, {vr(REC+4*i,2)} offset:{LE}")
    for i in range(4):
        o(f"s_waitcnt vmcnt({3-i})")
        o(f"s_mov_b64 exec, {sr(MASK+2*i,2)}")
        rank(i)
    for i in range(4, 8):
        o(f"s_mov_b64 exec, {sr(MASK+2*i,2)}")
        o(f"s_cbranch_execz L2_rk{i}")
        rank(i)
        o.lab(f"L2_rk{i}")
    o("s_waitcnt lgkmcnt(0)")
    T(o, 12)
    for i in range(4):
        o(f"s_mov_b64 exec, {sr(MASK+2*i,2)}")
        scat(i)
    for i in range(4, 8):
        o(f"s_mov_b64 exec, {sr(MASK+2*i,2)}")
        o(f"s_cbranch_execz L2_sc{i}")
        scat(i)
        o.lab(f"L2_sc{i}")
    o("s_mov_b64 exec, -1")
    o(f"v_lshl_add_u32 v1, v{L}, 2, v2")
    if cfg["wpos"] == "P": prefetch(o, cfg)
    o("s_waitcnt lgkmcnt(0)")
    T(o, 13)
    o("s_setprio 3")
    o("s_barrier")
    T(o, 14)
    o("ds_read_b32 v3, v1")
    o("ds_read_b32 v4, v2 offset:256")
    if cfg["wpos"] == "A": prefetch(o, cfg)
    o(f"s_movk_i32 s84, {CAPN*4}")
    o("s_waitcnt lgkmcnt(0)")
    o(f"v_readfirstlane_b32 s{S_MORE}, v4")
    o.lab("L2_cap")
    o("v_cmp_lt_u32 vcc, s84, v3")
    o("v_min_u32 v4, s84, v3")
    o("v_add_u32 v5, 15, v4")
    o("v_and_b32 v5, -16, v5")
    o("v_max_u32 v5, v5, v6")
    o(f"v_mov_b32 v{BS}, v5")
    o("s_cmp_lg_u64 vcc, 0")
    o(f"s_cselect_b32 s{S_PEND}, 1, 0")
    wave_scan(o, BS)
    o("s_nop 0")
    o(f"v_readlane_b32 s{S_TOT}, v{BS}, 63")
    o(f"v_sub_u32 v5, v{BS}, v5")
    o(f"s_cmp_gt_u32 s{S_TOT}, {CAPU*4}")
    o("s_cbranch_scc1 L2_over")
    tail.lab("L2_over")
    tail(f"s_movk_i32 s84, {CAPL*4}")
    tail("s_branch L2_cap")
    o(f"s_cmp_lg_u32 s{S_PEND}, 0")
    o("s_cbranch_scc1 L2_pend")
    o.lab("L2_pendb")
    tail.lab("L2_pend")
    tail.c("records ranked past the cap stay pending for another pass over the same window")
    for i in range(8):
        tail(f"v_cmp_le_u32 vcc, s84, v{REC+4*i+3}")
        tail(f"s_and_b64 {sr(MASK+2*i,2)}, {sr(MASK+2*i,2)}, vcc")
    tail("s_branch L2_pendb")
    T(o, 21)
    o("v_lshl_or_b32 v4, v4, 16, v5")
    o.c("this wave's range of batches (16 slots each)")
    o(f"s_add_u32 s86, s{S_TOT}, 63")
    o("s_lshr_b32 s86, s86, 6")
    o("s_mul_i32 s87, s86, s3")
    o("s_add_u32 s88, s87, s86")
    o("s_lshr_b32 s87, s87, 4")
    o("s_lshr_b32 s88, s88, 4")
    o(f"s_sub_u32 s{S_NB}, s88, s87")
    o("s_lshl_b32 s89, s87, 6")
    o("s_lshl_b32 s90, s88, 6")
    o("v_cmp_ge_u32 vcc, s89, v5")
    o("s_and_b64 s[94:95], vcc, s[92:93]")
    o("s_bcnt1_i32_b64 s91, s[94:95]")
    o("s_sub_u32 s91, s91, 1")
    o("v_cmp_gt_u32 vcc, s90, v5")
    o("s_andn2_b64 s[94:95], vcc, s[94:95]")
    o("s_and_b64 s[94:95], s[94:95], s[92:93]")
    o("s_lshl_b32 s96, s91, 8")
    o(f"v_lshl_add_u32 v{V_PA}, v{L}, 2, s96")
    o(f"ds_read_b32 v{PC}, v{V_PA} offset:{PT}")
    o(f"ds_read_b32 v{PN}, v{V_PA} offset:{PT+256}")
    o.c("one bit per group (4 slots) that starts a new node")
    o(f"s_mov_b64 {sr(MK,2)}, 0")
    o("v_subrev_u32 v5, s89, v5")
    o("v_lshrrev_b32 v5, 4, v5")
    o.lab("L2_mloop")
    o("s_cmp_eq_u64 s[94:95], 0")
    o("s_cbranch_scc1 L2_mdone")
    o("s_ff1_i32_b64 s96, s[94:95]")
    o("s_bitset0_b64 s[94:95], s96")
    o("v_readlane_b32 s97, v5, s96")
    o("s_nop 0")
    o(f"s_bitset1_b64 {sr(MK,2)}, s97")
    o("s_branch L2_mloop")
    o.lab("L2_mdone")
    T(o, 22)
    o.c("build the wave's stream: for every slot its node, then source row and edge attributes from the node's list")
    N_, B_, X_ = 64, 68, 72
    o(f"s_mov_b64 s[84:85], {sr(MK,2)}")
    o("s_mov_b32 s86, s91")
    for j in range(4):
        o(f"v_and_b32 v{N_+j}, s84, v{V_LM}")
        o(f"v_bcnt_u32_b32 v{N_+j}, v{N_+j}, s86") if False else None
        o(f"v_bcnt_u32_b32 v{N_+j}, v{N_+j}, 0")
        o(f"v_add_lshl_u32 v{N_+j}, v{N_+j}, s86, 2")
        o(f"ds_bpermute_b32 v{B_+j}, v{N_+j}, v4")
        if j < 3:
            o("s_and_b32 s87, s84, 0xffff")
            o("s_bcnt1_i32_b32 s87, s87")
            o("s_add_u32 s86, s86, s87")
            o("s_lshr_b64 s[84:85], s[84:85], 16")
    o(f"v_lshl_add_u32 v3, v{V_SG}, 2, s89")
    o(f"v_mov_b32 v5, {NULLSLOT*4}")
    o("s_lshl_b32 s96, s3, 10")
    o(f"s_add_u32 s96, s96, {CS}")
    o(f"v_mov_b32 v{V_SA}, s96")
    o(f"v_lshl_add_u32 v6, v{L}, 2, s96")
    for j in range(4):
        o(f"s_waitcnt lgkmcnt({3-j + 2*j})")
        o(f"v_sub_u32_sdwa v{X_+j}, v3, v{B_+j} dst_sel:DWORD dst_unused:UNUSED_PAD src0_sel:DWORD src1_sel:WORD_0")
        o(f"v_lshrrev_b32 v{B_+j}, 16, v{B_+j}")
        o(f"v_cmp_lt_u32 vcc, v{X_+j}, v{B_+j}")
        o(f"v_lshl_add_u32 v{X_+j}, v{N_+j}, 7, v{X_+j}")
        if j < 3: o("v_add_u32 v3, 0x100, v3")
        else: o("s_nop 0")
        o(f"v_cndmask_b32 v{X_+j}, v5, v{X_+j}, vcc")
        o(f"ds_read_b32 v{N_+j}, v{X_+j} offset:{LS}")
        o(f"v_add_u32 v{X_+j}, v{X_+j}, v{X_+j}")
        o(f"ds_read_b64 {vr(EAR if j == 0 else EW+2*j-2, 2)}, v{X_+j} offset:{LE}")
    if cfg.get("nomask", 0): o(f"s_mov_b64 {sr(MK,2)}, 0")
    o.c("per-stage flags, one nibble each: 1 slow head, 2 flush, 4 no more loads, 8 past the last batch")
    o(f"s_lshr_b64 s[84:85], {sr(MK,2)}, 1")
    o(f"s_or_b64 s[84:85], s[84:85], {sr(MK,2)}")
    o("s_lshr_b64 s[86:87], s[84:85], 2")
    o("s_or_b64 s[84:85], s[84:85], s[86:87]")
    o("s_mov_b32 s86, 0x11111111")
    o("s_mov_b32 s87, 0x11111111")
    o("s_and_b64 s[84:85], s[84:85], s[86:87]")
    for j in range(4):
        o(f"s_waitcnt lgkmcnt({7-2*j + j})")
        o(f"ds_write_b32 v6, v{N_+j} offset:{256*j}")
    offsets(o, R[0], 0)
    o(f"s_lshl_b64 {sr(FL,2)}, s[84:85], 5")
    o(f"s_or_b64 {sr(FL,2)}, {sr(FL,2)}, s[84:85]")
    o(f"s_lshl_b64 {sr(MF,2)}, {sr(MK,2)}, 4")
    o(f"s_lshl_b32 s88, s{S_NB}, 2")
    o("s_max_u32 s90, s88, 4")
    o("s_sub_u32 s90, s90, 4")
    o(f"s_lshr_b64 s[84:85], {sr(MK,2)}, s90")
    o(f"s_and_b32 s{S_LF}, s84, 15")
    o(f"s_cmp_eq_u32 s{S_NB}, 0")
    o("s_cbranch_scc1 L2_done")
    o("s_waitcnt lgkmcnt(0)")
    T(o, 23)
    for r in range(16): rowload(o, R[0] + r, cfg)
    if cfg["wpos"] == "C": prefetch(o, cfg)
    offsets(o, R[1], 1)
    o("s_mov_b32 s84, 0x55555555")
    o("s_mov_b32 s85, 0x55555555")
    o("s_lshl_b64 s[84:85], s[84:85], s90")
    o(f"s_or_b64 {sr(FL,2)}, {sr(FL,2)}, s[84:85]")
    o("s_mov_b64 s[84:85], 8")
    o("s_lshl_b64 s[84:85], s[84:85], s88")
    o(f"s_or_b64 {sr(FL,2)}, {sr(FL,2)}, s[84:85]")
    o.c("the wave lowers its priority as it nears its end so that the waves of a SIMD finish together")
    o(f"s_mov_b32 s{S_PL}, 0")
    o(f"s_mov_b32 s{S_LV}, 3")
    for i, rem in enumerate(int(x) for x in str(cfg["pp"])):
        o(f"s_cmp_gt_u32 s{S_NB}, {rem}")
        o(f"s_cbranch_scc0 L3_np{i}")
        o(f"s_sub_u32 s90, s{S_NB}, {rem}")
        o(f"s_bitset1_b32 s{S_PL}, s90")
        o("s_lshl_b32 s90, s90, 2")
        o(f"s_bitset1_b64 {sr(FL,2)}, s90")
        o.lab(f"L3_np{i}")
    o(f"v_add_u32 v{V_FA}, v{V_PA}, v{V_PA}")
    o(f"v_add_u32 v{V_PA}, 0x100, v{V_PA}")
    o(f"v_mov_b32 v{ACC}, 0")
    o(f"v_mov_b32 v{ACC+1}, 0")
    for c in range(1, 4): o(f"v_mov_b32 v{PC+c}, v{PC}")

def flush(o):
    o(f"v_add_f32 v{FT}, v{ACC}, v{ACC+1}")
    o(f"v_mul_f32 v{FT}, {QC:#x}, v{FT}")
    o(f"v_cvt_f64_f32 {vr(F64,2)}, v{FT}")
    o(f"ds_add_f64 v{V_FA}, {vr(F64,2)} offset:{AGG}")

def head(oo, late, u, cfg, slow):
    rc = R[u]; rl = R[(u + 1) & 3]; rp = R[(u + 3) & 3]
    if slow:
        oo(f"s_bitcmp1_b32 s{FL}, {4*u+2}")
        oo(f"s_cbranch_scc1 L3_nl{u}")
        if not cfg.get("noload", 0):
            for r in range(16): rowload(oo, rl + r, cfg)
        oo("s_waitcnt vmcnt(16)")
        oo.lab(f"L3_lb{u}")
        late.lab(f"L3_nl{u}")
        late("s_waitcnt vmcnt(0)")
        late(f"s_branch L3_lb{u}")
        oo(f"s_bitcmp1_b32 s{S_PL}, {u}")
        oo(f"s_cbranch_scc1 L3_pd{u}")
        oo.lab(f"L3_pe{u}")
        late.lab(f"L3_pd{u}")
        late(f"s_sub_u32 s{S_LV}, s{S_LV}, 1")
        late("s_setprio 0")
        late(f"s_cmp_eq_u32 s{S_LV}, 0")
        late(f"s_cbranch_scc1 L3_pe{u}")
        late("s_setprio 1")
        late(f"s_cmp_eq_u32 s{S_LV}, 1")
        late(f"s_cbranch_scc1 L3_pe{u}")
        late("s_setprio 2")
        late(f"s_branch L3_pe{u}")
    else:
        oo("s_waitcnt vmcnt(0)")
    E = lambda t: oo(m4(G+4*t, EAR, CW, PC, f" cbsz:4 abid:{4*u+t}"))
    QA = lambda g: oo(m4(G+4*g, SELA, rc+4*g, G+4*g))
    QB = lambda g: oo(m4(G+4*g, SELB, rc+4*g+2, G+4*g))
    rr = [rp+2, rp+3, rp+10, rp+11]
    rcp = lambda i: oo(f"v_rcp_f32 v{rr[i]}, v{rr[i]}")
    def block(b):
        for j in range(2):
            n = f"{u}_{2*b+j}"
            oo(f"s_bitcmp1_b32 s{MK}, {4*u+2*b+j}")
            oo(f"s_cbranch_scc1 L3_ps{n}")
            oo.lab(f"L3_pb{n}")
            late.lab(f"L3_ps{n}")
            late("s_waitcnt lgkmcnt(0)")
            late(f"v_mov_b32 v{PC+1}, v{PN}")
            late(f"v_add_u32 v{V_PA}, 0x100, v{V_PA}")
            late(f"ds_read_b32 v{PN}, v{V_PA} offset:{PT}")
            late(f"s_branch L3_pb{n}")
            if j == 0:
                oo(f"v_mov_b32 v{PC}, v{PC+1}")
                oo(f"v_mov_b32 v{PC+2}, v{PC+1}")
            else:
                oo(f"v_mov_b32 v{PC+3}, v{PC+1}")
                oo("s_nop 1")
    if slow: block(0)
    E(0); rcp(0); E(1); rcp(1); QA(0); rcp(2)
    if slow: block(1)
    E(2); rcp(3); QB(0); E(3); QA(1); QA(2)
    if slow:
        oo(f"v_mov_b32 v{PC}, v{PC+1}")
        oo(f"v_mov_b32 v{PC+2}, v{PC+1}")
    if not slow: oo("s_nop 0")
    QB(1)
    for r in range(16):
        oo(f"v_exp_f32_e64 v{G+r}, v{G+r} clamp")
        if not slow and not cfg.get("noload", 0): rowload(oo, rl + r, cfg)
        if r == 0: QA(3)
        if r == 1: QB(2)
        if r == 2: QB(3)
        if r == 14: oo(f"s_bitcmp1_b32 s{FL}, {4*u+1}")

def accum(o, tail, name, rp, reg, bit0):
    o(f"s_cbranch_scc1 L3_sf{name}")
    for b in range(2): o(pk("fma", ACC, rp+8*b, rp+8*b+2, ACC))
    o.lab(f"L3_fb{name}")
    tail.lab(f"L3_sf{name}")
    for g in range(4):
        b, j = g >> 1, g & 1
        tail(f"s_bitcmp1_b32 s{reg}, {bit0+g}")
        tail(f"s_cbranch_scc0 L3_sk{name}_{g}")
        flush(tail)
        tail(f"v_add_u32 v{V_FA}, 0x200, v{V_FA}")
        tail(f"v_mov_b32 v{ACC}, 0")
        tail(f"v_mov_b32 v{ACC+1}, 0")
        tail.lab(f"L3_sk{name}_{g}")
        tail(f"v_fmac_f32 v{ACC+j}, v{rp+8*b+j}, v{rp+8*b+2+j}")
    tail(f"s_branch L3_fb{name}")

def stage(o, tail, u, cfg):
    rc = R[u]; rp = R[(u + 3) & 3]; ro = R[(u + 2) & 3]
    o(f"s_bitcmp1_b32 s{FL}, {4*u}")
    o(f"s_cbranch_scc1 L3_se{u}")
    head(o, None, u, cfg, False)
    o.lab(f"L3_xb{u}")
    tail.lab(f"L3_se{u}")
    tail(f"s_bitcmp1_b32 s{FL}, {4*u+3}")
    tail(f"s_cbranch_scc1 L3_last{(u+3)&3}")
    late = Asm()
    head(tail, late, u, cfg, True)
    tail(f"s_branch L3_xb{u}")
    tail.l += late.l
    accum(o, tail, str(u), rp, MF, 4*u)
    offsets(o, ro, u + 2)
    for r in range(0, 16, 2): o(pk("add", G+r, G+r, VC2))
    seq = [lambda d, h: pk("mul", h, h, d+2), lambda d, h: pk("mul", h+4, h+4, d+6),
           lambda d, h: pk("fma", h, h+2, d, h), lambda d, h: pk("fma", h+4, h+6, d+4, h+4),
           lambda d, h: pk("mul", d, d, d+2), lambda d, h: pk("mul", d+4, d+4, d+6),
           lambda d, h: pk("mul", h, h, d+4), lambda d, h: pk("mul", h+2, d, d+4),
           lambda d, h: pk("fma", h, h+4, d, h)]
    for f in seq:
        for b in range(2): o(f(G+8*b, rc+8*b))
    if u == 3:
        o(f"v_add_u32 v{V_SA}, 0x100, v{V_SA}")
        o(f"v_mov_b64 {vr(EAR,2)}, {vr(EW,2)}")
        o(f"v_mov_b64 {vr(EW,2)}, {vr(EW+2,2)}")
        o(f"v_mov_b64 {vr(EW+2,2)}, {vr(EW+4,2)}")
        for r in (FL, MK, MF): o(f"s_lshr_b64 {sr(r,2)}, {sr(r,2)}, 16")
        o(f"s_lshr_b32 s{S_PL}, s{S_PL}, 4")
    o("s_waitcnt lgkmcnt(0)")
    if u == 3: o("s_branch L2_loop")

def mainloop(o, tail, T, cfg):
    o(f"s_waitcnt vmcnt({16 if cfg['wpos'] != 'C' else 0}) lgkmcnt(0)")
    for b in range(2):
        for j in range(2):
            o(f"v_mov_b32 v{R[3]+8*b+j}, 0")
            o(f"v_mov_b32 v{R[3]+8*b+2+j}, 1.0")
    T(o, 15); T(o, 16, True)
    o(".p2align 3")
    o.lab("L2_loop")
    o.c("per block of two groups: sum h_i / d_i = N / D with d_i = 2^-31 + min(1, 2^(t_i - 31)); one reciprocal per group")
    for u in range(4): stage(o, tail, u, cfg)
    for u in range(4):
        oo = o if u == 0 else tail
        oo.lab(f"L3_last{u}")
        for r in (2, 3, 10, 11): oo(f"v_rcp_f32 v{R[u]+r}, v{R[u]+r}")
        oo(f"s_cmp_lg_u32 s{S_LF}, 0")
        t2 = Asm()
        accum(oo, t2, f"e{u}", R[u], S_LF, 0)
        if u != 0: oo("s_branch L2_last")
        tail.l += t2.l
    o.lab("L2_last")
    flush(o)
    o.lab("L2_done")
    o("s_waitcnt vmcnt(0) lgkmcnt(0)")
    T(o, 17); T(o, 18, True)
    o("s_barrier")
    o(f"s_or_b32 s84, s{S_MORE}, s{S_PEND}")
    o("s_cbranch_scc1 L2_next")
    tail.lab("L2_next")
    tail("v_mov_b32 v3, 0")
    tail("ds_write_b32 v1, v3")
    tail("ds_write_b32 v2, v3 offset:256")
    tail("s_waitcnt lgkmcnt(0)")
    tail("s_barrier")
    tail(f"s_cmp_lg_u32 s{S_PEND}, 0")
    tail("s_cbranch_scc1 L2_again")
    tail(f"s_add_u32 s{S_OFF}, s{S_OFF}, 32")
    tail("s_branch L2_pass")
    o("v_cmp_gt_u32 vcc, 392, v0")
    o("s_and_saveexec_b64 s[94:95], vcc")
    o("s_cbranch_execz L2_fin")
    o("v_lshlrev_b32 v1, 6, v0")
    for c in range(4): o(f"ds_read_b128 {vr(80+4*c,4)}, v1 offset:{AGG+16*c}")
    o("s_lshl_b32 s93, s78, 7")
    o(f"v_add_u32 v2, s93, v{V_T16}")
    o("s_waitcnt lgkmcnt(0)")
    for r in range(8): o(f"v_cvt_f32_f64 v{64+r}, {vr(80+2*r,2)}")
    for r in range(8): o(f"v_mul_f32 v{72+r}, {NEG_LOG2E:#x}, v{64+r}")
    for r in range(8): o(f"v_exp_f32 v{72+r}, v{72+r}")
    for r in range(8): o(f"v_add_f32 v{72+r}, 1.0, v{72+r}")
    for r in range(8): o(f"v_rcp_f32 v{72+r}, v{72+r}")
    for r in range(8): o(f"v_mul_f32 v{64+r}, v{64+r}, v{72+r}")
    for r in range(4): o(f"v_cvt_pk_bf16_f32 v{72+r}, v{64+2*r}, v{65+2*r}")
    o(f"buffer_store_dwordx4 v[72:75], v2, s[16:19], 0 offen {cfg['sto']}")
    o.lab("L2_fin")
    if T.on:
        o("s_waitcnt vmcnt(0)"); T(o, 19); T(o, 20, True); T.dump(o)

HEADER = """; Edge-gated MPNN layer: out = silu(x@U + sum over edges with dst=i of sigmoid(x[dst]@A + x[src]@B + e@C) * (x[src]@V))
; @launch grid=(256,1,1) block=(1024,1,1) lds={l}
.amdgcn_target "amdgcn-amd-amdhsa--gfx950"
.text
.globl {n}
.p2align 8
.type {n},@function
"""
FOOTER = """.section .rodata,"a"
.p2align 6
.amdhsa_kernel {n}
  .amdhsa_next_free_vgpr 128
  .amdhsa_next_free_sgpr 102
  .amdhsa_accum_offset 128
  .amdhsa_group_segment_fixed_size 0
  .amdhsa_kernarg_size 80
  .amdhsa_user_sgpr_count 2
  .amdhsa_user_sgpr_kernarg_segment_ptr 1
  .amdhsa_system_sgpr_workgroup_id_x 1
  .amdhsa_float_denorm_mode_32 3
  .amdhsa_dx10_clamp 0
.end_amdhsa_kernel
"""
DEFAULTS = dict(st="sc1", ld1="nt", ldt="", sto="", wb=1, wpos="A", early=0, pp=631, sleep=2, spin=400000, stamp=0)
def build(cfg):
    cfg = dict(DEFAULTS, **cfg)
    o = Asm(); tail = Asm(); T = Stamper(cfg["stamp"])
    o.lab(NAME)
    o("s_cmp_ge_u32 s2, 256")
    o("s_cbranch_scc1 L_end")
    T(o, 0, True); T(o, 1)
    phase1(o, tail, T, cfg); handoff(o, tail, T, cfg); sort(o, tail, T, cfg); mainloop(o, tail, T, cfg)
    o.lab("L_end")
    o("s_endpgm")
    return HEADER.format(l=LDS, n=NAME) + o.text() + tail.text() + FOOTER.format(n=NAME)

if __name__ == "__main__":
    cfg = {}
    for a in sys.argv[2:]:
        k, v = a.split("=")
        cfg[k] = int(v) if v.lstrip("-").isdigit() else v
    open(sys.argv[1], "w").write(build(cfg))
```

```python
import sys

class Asm:
    def __init__(self): self.l = []
    def __call__(self, s): self.l.append("    " + s)
    def lab(self, s): self.l.append(s + ":")
    def c(self, s): self.l.append("    ; " + s)
    def text(self): return "\n".join(self.l) + "\n"
def vr(a, n=1): return f"v{a}" if n == 1 else f"v[{a}:{a+n-1}]"
def sr(a, n=1): return f"s{a}" if n == 1 else f"s[{a}:{a+n-1}]"

N = 12500; E = 800000; NPB = 49; CH = 3128; CHB = CH * 12
WS_DESC = 0x00A00000; STAMP_BASE = 0x00B00000; WS_T = 0x00C00000; T_BYTES = 256 * NPB * 256
NULLROW = N * 256; NEG_LOG2E = 0xBFB8AA3B; MAGIC49 = 21400; QC = 0x30000000
assert all(((d * MAGIC49) >> 20) == d // 49 for d in range(N))
NAME = "standalone__edge_featured_mpnn_egc__graph_kernel"

CAPN = 128; CAPU = 3840; CAPL = 74
PT = 0; AGG = 13312; OV = 38912
LS = OV; LE = LS + 50 * CAPN * 4; CS = LE + 50 * CAPN * 8
HIST = OV; STAGE = OV + 1024; PB = OV + 38912
XS = 93696; WL = XS + 8192; TS = WL + 16384; AU = TS + 16384
CNT = AU + 16384; DSV = CNT + 512; LDS = DSV + 1024
NULLSLOT = 49 * CAPN
assert STAGE + CHB <= PB and PB + 13 * 1024 <= XS and CNT % 256 == 0 and CS + 16 * 1024 + 256 <= CNT and LE < 65536
assert NPB * ((CAPL + 3) // 4 * 4) + 15 <= CAPU and LDS <= 163840

R = [64, 80, 96, 112]; G = 32
EAR = 30; CW = 28; SELA = 26; SELB = 24; PC = 20; ACC = 18; F64 = 16
V_SA = 15; V_PA = 13; V_FA = 12; V_ST = 11; L = 10; V_DESC = 9; V_LB = 8; V_T16 = 7
PN = 48; VC2 = 50; FT = 52; EW = 54; V_LM = 14; V_SG = 60
REC = 64; CA = 96; BS = 104; DUM = 112
S_PEND = 20; S_OFF = 21; S_NB = 22; S_LF = 23; S_MORE = 25; S_TOT = 26
FL = 28; MF = 4; S_PL = 6; S_LV = 7; MK = 76; MASK = 32; SOFF = 64

class Stamper:
    def __init__(self, on): self.on = on
    def __call__(self, o, i, real=False):
        if not self.on: return
        o(f"{'s_memrealtime' if real else 's_memtime'} s[100:101]")
        o("s_waitcnt lgkmcnt(0)")
        o(f"v_writelane_b32 v{V_ST}, s100, {i}")
    def dump(self, o):
        if not self.on: return
        o("s_mov_b32 exec_hi, 0"); o("s_mov_b32 exec_lo, -1")
        o("s_lshl_b32 s4, s2, 4"); o("s_add_u32 s4, s4, s3"); o("s_lshl_b32 s4, s4, 7")
        o(f"s_add_u32 s4, s4, {STAMP_BASE}")
        o(f"v_lshl_add_u32 v1, v{L}, 2, s4")
        o(f"buffer_store_dword v{V_ST}, v1, s[12:15], 0 offen")

def srd(o, d, p, size):
    o(f"s_mov_b32 s{d}, s{p}"); o(f"s_and_b32 s{d+1}, s{p+1}, 0xffff")
    o(f"s_mov_b32 s{d+2}, {size}"); o(f"s_mov_b32 s{d+3}, 0x00020000")
def wave_scan(o, v):
    for sh in (1, 2, 4, 8):
        o(f"v_add_u32_dpp v{v}, v{v}, v{v} row_shr:{sh} row_mask:0xf bank_mask:0xf bound_ctrl:0")
        o("s_nop 1")
    o(f"v_add_u32_dpp v{v}, v{v}, v{v} row_bcast:15 row_mask:0xa bank_mask:0xf")
    o("s_nop 1")
    o(f"v_add_u32_dpp v{v}, v{v}, v{v} row_bcast:31 row_mask:0xc bank_mask:0xf")
def mfma16(d, a, b, first):
    return f"v_mfma_f32_32x32x16_bf16 {vr(d,16)}, {vr(a,4)}, {vr(b,4)}, {'0' if first else vr(d,16)}"
def m4(d, a, b, c, extra=""):
    return f"v_mfma_f32_4x4x4_16b_bf16 {vr(d,4)}, {vr(a,2)}, {vr(b,2)}, {vr(c,4)}{extra}"
def pk(op, d, a, b, c=None):
    return f"v_pk_{op}_f32 {vr(d,2)}, {vr(a,2)}, {vr(b,2)}" + (f", {vr(c,2)}" if c is not None else "")
def trbase(o, d, h, t):
    o(f"v_bfe_u32 v{t}, v{L}, 2, 2")
    o(f"v_lshl_add_u32 v{d}, v{h}, 3, v{t}")
    o(f"v_lshlrev_b32 v{d}, 7, v{d}")
    o(f"v_bfe_u32 v{t}, v{L}, 4, 1")
    o(f"v_lshl_add_u32 v{d}, v{t}, 5, v{d}")
    o(f"v_and_b32 v{t}, 3, v{L}")
    o(f"v_lshl_add_u32 v{d}, v{t}, 3, v{d}")

def phase1(o, tail, T, cfg):
    ST = cfg["st"]; LD = cfg["ld1"]
    def misc():
        o("s_cmp_lg_u32 s3, 1")
        o("s_cbranch_scc1 L1_nn")
        o("s_cmp_lg_u32 s2, 0")
        o("s_cbranch_scc1 L1_nn")
        o.c("launch tag: tells this launch's descriptors from whatever an earlier launch left in ws")
        o("s_memrealtime s[84:85]")
        o("s_waitcnt lgkmcnt(0)")
        o("s_lshl_b32 s86, s84, 24")
        o("s_lshr_b64 s[84:85], s[84:85], 8")
        o("s_bitset1_b32 s84, 31")
        o("v_mov_b32 v32, s86")
        o("v_mov_b32 v33, s84")
        o("v_mov_b32 v34, 0")
        o("s_mov_b64 exec, 1")
        o("buffer_store_dwordx2 v[32:33], v34, s[68:71], 0 offen sc1")
        o("s_mov_b64 exec, -1")
        o.lab("L1_nn")
        o("s_cmp_lg_u32 s3, 2")
        o("s_cbranch_scc1 L1_nz")
        o.c("touch the pages stored to later (address translation only, data unused)")
        o("v_mov_b32 v32, 0")
        o(f"s_mul_i32 s84, s2, {CHB}")
        o("s_lshl_b32 s85, s78, 8")
        o(f"s_add_u32 s85, s85, {WS_T}")
        o(f"s_mov_b32 s86, {WS_DESC}")
        for sreg in (84, 85, 86): o(f"buffer_load_dword v33, v32, s[12:15], s{sreg} offen sc1")
        o(f"s_add_u32 s84, s84, {CHB-4}")
        o("buffer_load_dword v33, v32, s[12:15], s84 offen sc1")
        o("buffer_load_dword v33, v32, s[16:19], 0 offen sc1")
        o.lab("L1_nz")
    o("s_load_dwordx16 s[80:95], s[0:1], 0")
    o("s_load_dwordx4 s[96:99], s[0:1], 64")
    if cfg["cpf"]:
        o.c("read this kernel's code once per XCD so that later instruction fetches find it in L2 (data unused)")
        o("s_getpc_b64 s[8:9]")
        o.lab("L_pc")
        o("s_and_b32 s9, s9, 0xffff")
        o("s_mov_b32 s10, L_codeend-L_pc")
        o("s_mov_b32 s11, 0x00020000")
        if cfg["cpf"] == 1:
            o("s_lshr_b32 s4, s2, 3")
            o("s_lshl_b32 s4, s4, 10")
            o("v_lshl_add_u32 v1, v0, 4, s4")
            o("v_cmp_gt_u32 vcc, 64, v0")
            o("s_and_saveexec_b64 s[4:5], vcc")
            o("s_cbranch_execz L_npf")
            o("buffer_load_dwordx4 v[120:123], v1, s[8:11], 0 offen")
            o.lab("L_npf")
            o("s_mov_b64 exec, -1")
        else:
            o("v_lshlrev_b32 v1, 7, v0")
            o("v_cmp_gt_u32 vcc, 256, v0")
            o("s_and_saveexec_b64 s[4:5], vcc")
            o("s_cbranch_execz L_npf")
            o("buffer_load_dword v120, v1, s[8:11], 0 offen")
            o.lab("L_npf")
            o("s_mov_b64 exec, -1")
    o("v_lshrrev_b32 v1, 6, v0")
    o(f"v_and_b32 v{L}, 63, v0")
    o("s_movk_i32 s4, 768")
    o("s_cmp_eq_u32 s2, 255")
    o("s_cselect_b32 s4, 590, s4")
    o("s_cselect_b32 s6, 0, 56")
    o("v_readfirstlane_b32 s3, v1")
    o("s_mul_i32 s5, s2, 12512")
    o("v_subrev_u32 v4, 256, v0")
    o("v_lshl_add_u32 v2, v4, 4, s5")
    o("v_lshlrev_b32 v3, 1, v2")
    o("v_cmp_gt_u32 s[72:73], s4, v4")
    o("v_cmp_gt_u32 s[74:75], s6, v4")
    o("s_and_b32 s30, s2, 7")
    o("s_lshl_b32 s30, s30, 5")
    o("s_lshr_b32 s31, s2, 3")
    o("s_add_u32 s30, s30, s31")
    o("s_mul_i32 s78, s30, 49")
    o(f"v_lshlrev_b32 v{V_T16}, 4, v0")
    o("s_add_u32 s5, s5, 12288")
    o("v_lshl_add_u32 v5, v4, 2, s5")
    o(f"s_mov_b32 s38, {E*4}"); o("s_mov_b32 s39, 0x00020000")
    o("s_waitcnt lgkmcnt(0)")
    o("s_mov_b32 s36, s86"); o("s_and_b32 s37, s87, 0xffff")
    o("s_mov_b64 exec, s[72:73]")
    o("s_cbranch_execz L1_noload")
    o(f"buffer_load_dwordx4 v[64:67], v2, s[36:39], 0 offen {LD}")
    o("s_mov_b64 exec, s[74:75]")
    o("s_cbranch_execz L1_noload")
    o(f"buffer_load_dword v80, v5, s[36:39], 0 offen {LD}")
    o.lab("L1_noload")
    o("s_mov_b64 exec, -1")
    o("s_cmp_gt_u32 s3, 3")
    o("s_cbranch_scc1 L1_a")
    o.c("table waves 0..3, unit (rt = w>>1, hh = w&1): LDS-DMA of the block's 64 x rows and the raw B / V weights")
    srd(o, 48, 80, N * 128)
    o(f"v_lshlrev_b32 v25, 4, v{L}")
    o("s_lshl_b32 s4, s3, 11")
    o("s_lshl_b32 s5, s78, 7")
    o("s_add_u32 s5, s5, s4")
    o(f"s_add_u32 s4, s4, {XS}")
    o("s_mov_b32 m0, s4")
    o("v_add_u32 v20, s5, v25")
    o("s_and_b32 s6, s3, 1")
    o("s_lshr_b32 s7, s3, 1")
    o("buffer_load_dwordx4 v20, s[48:51], 0 offen lds")
    o("buffer_load_dwordx4 v20, s[48:51], 0 offen offset:1024 lds")
    o("s_cmp_eq_u32 s7, 0")
    o("s_cselect_b32 s52, s92, s90")
    o("s_cselect_b32 s53, s93, s91")
    o("s_cselect_b32 s5, 8192, 0")
    o("s_and_b32 s53, s53, 0xffff")
    o("s_add_u32 s54, s5, 8192")
    o("s_mov_b32 s55, 0x00020000")
    o("s_lshl_b32 s4, s6, 12")
    o("s_add_u32 s5, s5, s4")
    o("s_lshl_b32 s4, s3, 12")
    o(f"s_add_u32 s4, s4, {WL}")
    o("s_mov_b32 m0, s4")
    o("s_cmp_lg_u32 s3, 2")
    for i in range(4): o(f"buffer_load_dwordx4 v25, s[52:55], s5 offen offset:{1024*i} lds")
    o("s_cbranch_scc1 L1_a")
    for i in range(4): o(f"v_mov_b32 v{32+i}, 0")
    o(f"ds_write_b128 v25, v[32:35] offset:{HIST}")
    o(f"v_lshlrev_b32 v26, 2, v{L}")
    o(f"v_add_u32 v26, {CNT}, v26")
    o("ds_write_b32 v26, v32")
    o("ds_write_b32 v26, v32 offset:64")
    o("s_waitcnt lgkmcnt(0)")
    o.lab("L1_a")
    srd(o, 40, 84, E * 4); srd(o, 44, 82, E * 8)
    T(o, 2)
    o("s_barrier")
    o("s_mov_b64 exec, s[72:73]")
    o("s_cbranch_execz L1_noload2")
    o(f"buffer_load_dwordx4 v[68:71], v2, s[40:43], 0 offen {LD}")
    o(f"buffer_load_dwordx4 v[72:75], v3, s[44:47], 0 offen {LD}")
    o(f"buffer_load_dwordx4 v[76:79], v3, s[44:47], 0 offen offset:16 {LD}")
    o("s_mov_b64 exec, s[74:75]")
    o("s_cbranch_execz L1_noload2")
    o("v_lshlrev_b32 v3, 1, v5")
    o(f"buffer_load_dword v81, v5, s[40:43], 0 offen {LD}")
    o(f"buffer_load_dwordx2 v[82:83], v3, s[44:47], 0 offen {LD}")
    o.lab("L1_noload2")
    o("s_mov_b64 exec, -1")
    srd(o, 12, 98, WS_T + T_BYTES); srd(o, 16, 94, N * 128); srd(o, 68, 96, 256)
    srd(o, 52, 92, 132 * 128); srd(o, 60, 88, 64 * 128)
    o.c("table descriptor: stride 4 with thread-id addressing, so one uniform row offset reads the 64 channels")
    o(f"s_add_u32 s8, s98, {WS_T}"); o("s_addc_u32 s9, s99, 0")
    o("s_and_b32 s9, s9, 0xffff"); o("s_or_b32 s9, s9, 0x40000")
    o(f"s_mov_b32 s10, {T_BYTES}"); o("s_mov_b32 s11, 0x00800000")
    o("s_cmp_gt_u32 s3, 3")
    o("s_cbranch_scc1 L1_edge")
    o("s_lshl_b32 s29, s3, 12")
    o(f"s_add_u32 s29, s29, {TS}")
    o(f"v_and_b32 v24, 31, v{L}")
    o(f"v_lshrrev_b32 v25, 5, v{L}")
    o("s_lshl_b32 s84, s7, 12")
    o(f"s_add_u32 s84, s84, {XS}")
    o("v_lshl_add_u32 v20, v25, 4, s84")
    o("v_lshl_add_u32 v20, v24, 7, v20")
    o("v_lshlrev_b32 v27, 9, v25")
    o("v_lshl_add_u32 v27, v24, 2, v27")
    o("v_add_u32 v27, s29, v27")
    trbase(o, 26, 25, 28)
    o("s_lshl_b32 s84, s6, 6")
    o(f"s_add_u32 s84, s84, {WL}")
    o("v_add_u32 v26, s84, v26")
    o(f"v_lshrrev_b32 v21, 3, v{L}")
    o(f"v_and_b32 v22, 7, v{L}")
    o("v_lshlrev_b32 v22, 4, v22")
    o("s_lshl_b32 s84, s7, 5")
    o("v_add_u32 v23, s84, v21")
    o("v_lshl_add_u32 v29, v23, 8, v22")
    o("v_lshl_add_u32 v21, v21, 7, v22")
    o("v_add_u32 v21, s29, v21")
    o("s_lshl_b32 s84, s3, 12")
    o(f"s_add_u32 s85, s84, {AU}")
    o("s_mov_b32 m0, s85")
    o(f"v_lshlrev_b32 v28, 4, v{L}")
    if cfg["early"]:
        o.c("the four table waves meet through an LDS counter once their staging loads have landed")
        o(f"v_mov_b32 v32, {CNT+272}")
        o("v_mov_b32 v33, 1")
        o("s_setprio 2")
        o("s_waitcnt vmcnt(0)")
        o("s_mov_b64 exec, 1")
        o("ds_add_u32 v32, v33")
        o("s_mov_b64 exec, -1")
        o.lab("L1_tw")
        o("ds_read_b32 v33, v32")
        o("s_waitcnt lgkmcnt(0)")
        o("v_readfirstlane_b32 s84, v33")
        o("s_cmp_lt_u32 s84, 4")
        o("s_cbranch_scc1 L1_tw")
        T(o, 4)
    else:
        o("s_waitcnt vmcnt(0)")
        misc()
        T(o, 4)
        o("s_barrier")
        o("s_setprio 2")
    for s in range(4): o(f"ds_read_b128 {vr(40+4*s,4)}, v20 offset:{32*s}")
    for m in range(2):
        for s in range(4):
            for t in range(2):
                o(f"ds_read_b64_tr_b16 {vr(64+16*m+4*s+2*t,2)}, v26 offset:{8192*m+2048*s+512*t}")
    def au():
        o.c("raw A (waves 0,1) and U (waves 2,3) weights for the P and x@U products")
        o("s_lshl_b32 s87, s6, 12")
        o("s_cmp_eq_u32 s7, 0")
        o("s_cbranch_scc0 L1_ldu")
        for i in range(4): o(f"buffer_load_dwordx4 v28, s[52:55], s87 offen offset:{1024*i} lds")
        o("s_branch L1_ldd")
        o.lab("L1_ldu")
        for i in range(4): o(f"buffer_load_dwordx4 v28, s[60:63], s87 offen offset:{1024*i} lds")
        o.lab("L1_ldd")
    if not cfg["early"]: au()
    o("s_mov_b32 s84, 0xffff0000")
    o(f"s_mov_b32 s85, {NEG_LOG2E:#x}")
    o("s_brev_b32 s86, 1")
    o("s_waitcnt lgkmcnt(8)")
    for s in range(4): o(mfma16(96, 40+4*s, 64+4*s, s == 0))
    o("s_waitcnt lgkmcnt(0)")
    for s in range(4): o(mfma16(112, 40+4*s, 80+4*s, s == 0))
    o("s_nop 6")
    o.c("row entry = bf16(-log2e * x@B) in the low half; the high half is chosen so the whole dword is nearest to x@V")
    for r in range(16): o(f"v_mul_f32 v{96+r}, s85, v{96+r}")
    for r in range(0, 16, 2):
        o(f"v_cvt_pk_bf16_f32 v{96+r}, v{96+r}, v{97+r}")
        o(f"v_lshrrev_b32 v{97+r}, 16, v{96+r}")
        o(f"v_and_b32 v{96+r}, 0xffff, v{96+r}")
    for r in range(16):
        t = 56 + (r & 3); t2 = 60 + (r & 3)
        if cfg["early"] and r == cfg["early"] - 1:
            T(o, 5)
            o("s_barrier")
            au()
        o(f"v_add_u32 v{t}, 0x8000, v{112+r}")
        o(f"v_and_b32 v{t2}, s86, v{112+r}")
        o(f"v_sub_u32_e64 v{t}, v{t}, v{96+r} clamp")
        o(f"v_max_u32 v{t}, v{t}, v{t2}")
        o(f"v_and_or_b32 v{t}, v{t}, s84, v{96+r}")
        o(f"ds_write_b32 v27, v{t} offset:{(8*(r>>2) + (r&3))*128}")
    for i in range(4): o(f"ds_read_b128 {vr(64+4*i,4)}, v21 offset:{1024*i}")
    o("s_lshl_b32 s84, s78, 8")
    o("s_lshl_b32 s85, s6, 7")
    o("s_add_u32 s84, s84, s85")
    o(f"s_add_u32 s84, s84, {WS_T}")
    if not cfg["early"]: o("s_waitcnt vmcnt(0)")
    for i in range(4):
        o(f"v_cmp_gt_u32 vcc, {49-8*i}, v23")
        o(f"s_waitcnt lgkmcnt({3-i})")
        o("s_mov_b64 exec, vcc")
        o(f"buffer_store_dwordx4 {vr(64+4*i,4)}, v29, s[12:15], s84 offen {ST}")
        o("s_add_u32 s84, s84, 2048")
        o("s_mov_b64 exec, -1")
    o("s_setprio 0")
    T(o, 6)
    if cfg["early"]:
        o("s_waitcnt vmcnt(4)")
        misc()
    o("s_branch L1_d")
    o.lab("L1_edge")
    o("s_mov_b64 exec, s[72:73]")
    o("s_cbranch_execz L1_histdone")
    o(f"s_movk_i32 s84, {MAGIC49}")
    o("v_mov_b32 v20, 1")
    def hist(regs):
        for d, b, a, r in regs: o(f"v_mul_u32_u24 v{b}, s84, v{d}")
        for d, b, a, r in regs: o(f"v_lshrrev_b32 v{b}, 20, v{b}")
        for d, b, a, r in regs:
            o(f"v_lshlrev_b32 v{a}, 2, v{b}")
            o(f"ds_add_rtn_u32 v{r}, v{a}, v20 offset:{HIST}")
        for d, b, a, r in regs: o(f"v_mul_u32_u24 v{b}, 49, v{b}")
        for d, b, a, r in regs: o(f"v_sub_u32 v{d}, v{d}, v{b}")
        for d, b, a, r in regs: o(f"v_lshlrev_b32 v{d}, 26, v{d}")
    o("s_cmp_eq_u64 s[74:75], 0")
    o("s_cbranch_scc1 L1_h4")
    o("s_mov_b64 exec, s[74:75]")
    o("s_waitcnt vmcnt(5)")
    hist([(80, 88, 93, 98)])
    o("s_mov_b64 exec, s[72:73]")
    o("s_branch L1_h5")
    o.lab("L1_h4")
    o("s_waitcnt vmcnt(3)")
    o.lab("L1_h5")
    T(o, 3)
    hist([(64+i, 84+i, 89+i, 94+i) for i in range(4)])
    o("s_waitcnt lgkmcnt(0)")
    o.lab("L1_histdone")
    o("s_mov_b64 exec, -1")
    o(f"v_lshlrev_b32 v104, 4, v{L}")
    o("s_sub_u32 s85, s3, 3")
    o("s_lshl_b32 s85, s85, 10")
    o(f"s_add_u32 s85, s85, {PB}")
    o("v_add_u32 v105, s85, v104")
    for i in range(5): o(f"v_add_u32 v{89+i}, s85, v{89+i}")
    T(o, 4)
    o("s_barrier")
    T(o, 5)
    o.c("every edge wave scans the 256 bucket counts for itself")
    o(f"ds_read_b128 v[108:111], v104 offset:{HIST}")
    o("s_waitcnt lgkmcnt(0)")
    o("v_add_u32 v106, v108, v109")
    o("v_add_u32 v107, v106, v110")
    o("v_add_u32 v116, v107, v111")
    o("v_mov_b32 v112, v116")
    o("s_nop 1")
    wave_scan(o, 112)
    o("v_sub_u32 v112, v112, v116")
    o("v_add_u32 v113, v112, v108")
    o("v_add_u32 v114, v112, v106")
    o("v_add_u32 v115, v112, v107")
    o("s_cmp_lg_u32 s3, 15")
    o("s_cbranch_scc1 L1_scat")
    for j in range(4): o(f"v_lshl_or_b32 v{108+j}, v{108+j}, 12, v{112+j}")
    o(f"v_add_u32 v104, {DSV}, v104")
    o("ds_write_b128 v104, v[108:111]")
    o.lab("L1_scat")
    for j in range(4): o(f"v_mul_u32_u24 v{112+j}, 12, v{112+j}")
    o("ds_write_b128 v105, v[112:115]")
    o("s_mov_b64 exec, s[72:73]")
    o("s_cbranch_execz L1_scatdone")
    for i in range(5): o(f"ds_read_b32 v{84+i}, v{89+i}")
    o("s_waitcnt lgkmcnt(0)")
    for i in range(5): o(f"v_mad_u32_u24 v{84+i}, v{94+i}, 12, v{84+i}")
    o("s_waitcnt vmcnt(2)")
    for i in range(4): o(f"v_lshl_or_b32 v{68+i}, v{68+i}, 8, v{64+i}")
    for i in range(4): o(f"ds_write_b32 v{84+i}, v{68+i} offset:{STAGE+8}")
    for i in range(5): o(f"v_add_u32 v{84+i}, {STAGE}, v{84+i}")
    o("s_waitcnt vmcnt(0)")
    T(o, 6)
    for i in range(4): o(f"ds_write2_b32 v{84+i}, v{72+2*i}, v{73+2*i} offset0:0 offset1:1")
    o("s_mov_b64 exec, s[74:75]")
    o("s_cbranch_execz L1_scatdone")
    o("v_lshl_or_b32 v81, v81, 8, v80")
    o("ds_write_b32 v88, v81 offset:8")
    o("ds_write2_b32 v88, v82, v83 offset0:0 offset1:1")
    o.lab("L1_scatdone")
    o("s_mov_b64 exec, -1")
    o.lab("L1_d")
    o(f"s_mul_i32 s85, s2, {CHB}")
    o(f"v_add_u32 v4, {STAGE}, v{V_T16}")
    o(f"v_add_u32 v5, 16384, v{V_T16}")
    o(f"v_add_u32 v6, 32768, v{V_T16}")
    o("v_cmp_gt_u32 vcc, 298, v0")
    o("s_waitcnt lgkmcnt(0)")
    o("s_barrier")
    T(o, 7)
    o("ds_read_b128 v[80:83], v4")
    o("ds_read_b128 v[84:87], v4 offset:16384")
    o("ds_read_b128 v[88:91], v4 offset:32768")
    o("s_waitcnt lgkmcnt(2)")
    o(f"buffer_store_dwordx4 v[80:83], v{V_T16}, s[12:15], s85 offen {ST}")
    o("s_waitcnt lgkmcnt(1)")
    o(f"buffer_store_dwordx4 v[84:87], v5, s[12:15], s85 offen {ST}")
    o("s_mov_b64 exec, vcc")
    o("s_cbranch_execz L1_c3")
    o("s_waitcnt lgkmcnt(0)")
    o(f"buffer_store_dwordx4 v[88:91], v6, s[12:15], s85 offen {ST}")
    o.lab("L1_c3")
    o("s_mov_b64 exec, -1")
    T(o, 8)

def handoff(o, tail, T, cfg):
    o(f"v_lshlrev_b32 v1, 1, v{L}")
    o("v_add_u32 v1, 0x4000, v1")
    for j in range(4): o(f"buffer_load_ushort v{76+j}, v1, s[52:55], 0 offen offset:{128*j}")
    o("v_mov_b32 v74, 0")
    o("buffer_load_dwordx2 v[72:73], v74, s[68:71], 0 offen sc1")
    o.c("selector operands of the 4x4x4 MFMAs that add the gathered gate term")
    o(f"v_and_b32 v1, 3, v{L}")
    o("v_mov_b32 v2, 0x3f80")
    for idx, reg in enumerate((SELA, SELA+1, SELB, SELB+1)):
        o(f"v_cmp_eq_u32 vcc, {idx}, v1")
        o("s_nop 1")
        o(f"v_cndmask_b32 v{reg}, 0, v2, vcc")
    o("s_cmp_lt_u32 s3, 8")
    o("s_cbranch_scc1 L2_pdone")
    o.c("waves 8..15: P = -log2e * x@A - 31 (gate term of the destination node) and x@U (start value of the sums)")
    o("s_and_b32 s86, s3, 1")
    o("s_bfe_u32 s91, s3, 0x10001")
    o("s_bfe_u32 s88, s3, 0x10002")
    o("s_lshl_b32 s89, s91, 12")
    o(f"s_add_u32 s89, s89, {XS}")
    o(f"v_and_b32 v3, 31, v{L}")
    o(f"v_lshrrev_b32 v2, 5, v{L}")
    o("v_lshl_add_u32 v1, v2, 4, s89")
    o("v_lshl_add_u32 v1, v3, 7, v1")
    for s in range(4): o(f"ds_read_b128 {vr(32+4*s,4)}, v1 offset:{32*s}")
    o("s_lshl_b32 s90, s88, 5")
    o("v_add_u32 v3, s90, v3")
    trbase(o, 1, 2, 20)
    o("s_lshl_b32 s89, s86, 13")
    o("s_lshl_b32 s90, s88, 6")
    o("s_add_u32 s89, s89, s90")
    o(f"s_add_u32 s89, s89, {AU}")
    o("v_add_u32 v1, s89, v1")
    for s in range(4):
        for t in range(2):
            o(f"ds_read_b64_tr_b16 {vr(48+4*s+2*t,2)}, v1 offset:{2048*s+512*t}")
    o("v_lshlrev_b32 v2, 2, v2")
    o("s_lshl_b32 s90, s91, 5")
    o("v_add_u32 v2, s90, v2")
    o("v_lshl_add_u32 v2, v2, 6, v3")
    o("s_waitcnt lgkmcnt(0)")
    PD = 96
    for s in range(4): o(mfma16(PD, 32+4*s, 48+4*s, s == 0))
    o("s_cmp_eq_u32 s86, 1")
    o("s_cbranch_scc1 L2_xu")
    o("v_lshlrev_b32 v2, 2, v2")
    o(f"v_mov_b32 v3, {NEG_LOG2E:#x}")
    o("s_nop 8")
    def pwrite(r):
        o(f"v_fmaak_f32 v{PD+r}, v3, v{PD+r}, 0xc1f80000")
        o(f"ds_write_b32 v2, v{PD+r} offset:{PT + (8*(r>>2)+(r&3))*256}")
    def uwrite(r):
        t = 32 + 2 * (r & 7)
        o(f"v_cvt_f64_f32 {vr(t,2)}, v{PD+r}")
        o(f"ds_write_b64 v2, {vr(t,2)} offset:{AGG + (8*(r>>2)+(r&3))*512}")
    for wr, lab in ((pwrite, None), (uwrite, "L2_xu")):
        if lab:
            o.lab(lab); o("v_lshlrev_b32 v2, 3, v2"); o("s_nop 9")
        for r in range(8): wr(r)
        o("s_cmp_eq_u32 s91, 1")
        o("s_cselect_b32 exec_hi, 0, -1")
        for r in range(8, 10): wr(r)
        o("s_mov_b64 exec, -1")
        o("s_cbranch_scc1 L2_pdone")
        for r in range(10, 16): wr(r)
        if not lab: o("s_branch L2_pdone")
    o.lab("L2_pdone")
    o.c("record addressing: wave w, lane group g, step i reads chunk (w&7) + 8*(16*(w>>3) + 4*g + i)")
    o(f"v_lshrrev_b32 v2, 4, v{L}")
    o(f"v_and_b32 v3, 15, v{L}")
    o("v_and_b32 v4, 3, v3")
    o("s_lshr_b32 s27, s3, 3")
    o("s_lshl_b32 s27, s27, 7")
    o("s_and_b32 s81, s3, 7")
    o("s_add_u32 s27, s27, s81")
    o("v_lshl_add_u32 v2, v2, 5, s27")
    o("v_lshl_add_u32 v4, v4, 3, v2")
    o("v_lshlrev_b32 v4, 11, v4")
    o(f"s_mov_b32 s81, {CHB}")
    o(f"v_mul_lo_u32 v{V_LB}, v2, s81")
    o(f"v_mad_u32_u24 v{V_LB}, v3, 12, v{V_LB}")
    for i in range(4): o(f"s_mov_b32 s{SOFF+i}, {8*i*CHB}")
    o("s_lshl_b32 s72, s30, 3")
    o(f"s_add_u32 s72, s72, {WS_DESC}")
    o("s_mul_i32 s82, s31, 100000")
    o(f"s_add_u32 s82, s82, {WS_T}")
    o(f"s_mov_b32 s{S_OFF}, 0")
    o(f"v_mov_b32 v{VC2}, {QC:#x}")
    o(f"v_mov_b32 v{VC2+1}, {QC:#x}")
    o(f"s_mov_b32 s87, {cfg['spin']}")
    o.c("lane l of a 64-slot window takes slot (l & ~7) | ((l & 1) << 2) | ((l >> 1) & 3): two groups interleaved per block")
    o(f"v_and_b32 v3, 1, v{L}")
    o(f"v_bfe_u32 v5, v{L}, 1, 2")
    o("v_lshl_or_b32 v3, v3, 2, v5")
    o(f"v_and_b32 v5, 56, v{L}")
    o(f"v_or_b32 v{V_SG}, v3, v5")
    o(f"v_lshrrev_b32 v3, 2, v{V_SG}")
    o(f"v_lshlrev_b32 v{V_LM}, v3, 2")
    o(f"v_subrev_u32 v{V_LM}, 1, v{V_LM}")
    o("s_cmp_lg_u32 s3, 15")
    o("s_cbranch_scc1 L2_nd")
    o(f"v_lshlrev_b32 v1, 4, v{L}")
    o(f"v_add_u32 v2, {DSV}, v1")
    o("ds_read_b128 v[64:67], v2")
    o("v_lshlrev_b32 v1, 1, v1")
    o("s_lshl_b32 s85, s2, 11")
    o(f"s_add_u32 s85, s85, {WS_DESC}")
    o.lab("L2_nd")
    for i in range(cfg.get("wd", 0)):
        o(f"buffer_load_dwordx4 {vr(DUM,4)}, v{V_T16}, s[12:15], s82 offen sc1")
        o("s_add_u32 s82, s82, 16384")
    o(f"s_waitcnt vmcnt({cfg.get('wd', 0)}) lgkmcnt(0)")
    for j in range(4): o(f"v_lshlrev_b32 v{76+j}, 16, v{76+j}")
    for j in range(4): o(f"v_mul_f32 v{76+j}, {NEG_LOG2E:#x}, v{76+j}")
    o(f"v_cvt_pk_bf16_f32 v{CW}, v76, v77")
    o(f"v_cvt_pk_bf16_f32 v{CW+1}, v78, v79")
    o.lab("L2_tag")
    o("v_readfirstlane_b32 s74, v72")
    o("v_readfirstlane_b32 s75, v73")
    o("s_sub_u32 s87, s87, 1")
    o("s_cmp_lg_u32 s75, 0")
    o("s_cbranch_scc1 L2_tagok")
    o("s_cmp_eq_u32 s87, 0")
    o("s_cbranch_scc1 L2_tagok")
    o("buffer_load_dwordx2 v[72:73], v74, s[68:71], 0 offen sc1")
    o("s_waitcnt vmcnt(0)")
    o("s_branch L2_tag")
    o.lab("L2_tagok")
    for j in (81, 83, 85, 87): o(f"v_mov_b32 v{j}, s75")
    for j in range(4): o(f"v_or_b32 v{80+2*j}, s74, v{64+j}")
    T(o, 9)
    o("s_barrier")
    o("s_cmp_lg_u32 s3, 15")
    o("s_cbranch_scc1 L2_f")
    o("buffer_store_dwordx4 v[80:83], v1, s[12:15], s85 offen sc1")
    o("buffer_store_dwordx4 v[84:87], v1, s[12:15], s85 offen offset:16 sc1")
    o("s_waitcnt vmcnt(0)")
    o.lab("L2_f")
    o("s_barrier")
    o("s_cmp_lg_u32 s3, 0")
    o("s_cbranch_scc1 L2_nn")
    o(f"v_mov_b32 v1, {NULLSLOT*4}")
    o(f"v_mov_b32 v5, {NULLSLOT*8}")
    o(f"v_mov_b32 v6, {NULLROW}")
    o("v_mov_b32 v2, 0")
    o("v_mov_b32 v3, 0")
    o(f"ds_write_b32 v1, v6 offset:{LS}")
    o(f"ds_write_b64 v5, v[2:3] offset:{LE}")
    o.lab("L2_nn")
    T(o, 10)
    for i in range(cfg.get("we", 0)):
        o(f"buffer_load_dwordx4 {vr(DUM,4)}, v{V_T16}, s[12:15], s82 offen sc1")
        o("s_add_u32 s82, s82, 16384")
    o.lab("L2_poll")
    o("buffer_load_dwordx2 v[2:3], v4, s[12:15], s72 offen sc1")
    o("s_sub_u32 s87, s87, 1")
    o("s_waitcnt vmcnt(0)")
    o("v_xor_b32 v2, s74, v2")
    o("v_cmp_ne_u32 vcc, s75, v3")
    o("v_lshrrev_b32 v3, 24, v2")
    o("v_cmp_ne_u32 s[84:85], 0, v3")
    o("s_or_b64 vcc, vcc, s[84:85]")
    o("s_cbranch_scc0 L2_g")
    o("s_cmp_eq_u32 s87, 0")
    o("s_cbranch_scc1 L2_g")
    o(f"s_sleep {cfg['sleep']}")
    o("s_branch L2_poll")
    o.lab("L2_g")
    o("v_and_b32 v3, 0xfff, v2")
    o("v_bfe_u32 v2, v2, 12, 12")
    o("v_mul_u32_u24 v3, 12, v3")
    o(f"v_lshl_or_b32 v{V_DESC}, v2, 16, v3")
    T(o, 11)

def offsets(o, reg, batch):
    for q in range(4): o(f"ds_read_b128 {vr(reg+4*q,4)}, v{V_SA} offset:{batch*64+16*q}")
def rowload(o, r, cfg): o(f"buffer_load_dword v{r}, v{r}, s[8:11], 0 offen {cfg['ldt']}")

def prefetch(o, cfg):
    o.c("pull part of the table into this XCD's L2 while the records are being placed")
    if cfg.get("wfew", 0):
        o(f"s_cmp_ge_u32 s3, {cfg['wfew']}")
        o("s_cbranch_scc1 L2_nwb")
        o(f"s_mul_i32 s84, s3, {cfg['wb']*1024}")
        o("s_add_u32 s84, s84, s82")
        o(f"v_lshlrev_b32 v{DUM+4}, 4, v{L}")
        for i in range(cfg["wb"]):
            o(f"buffer_load_dwordx4 {vr(DUM,4)}, v{DUM+4}, s[12:15], s84 offen sc1")
            o("s_add_u32 s84, s84, 1024")
        o.lab("L2_nwb")
        return
    o("s_mov_b32 s84, s82")
    for i in range(cfg["wb"]):
        o(f"buffer_load_dwordx4 {vr(DUM,4)}, v{V_T16}, s[12:15], s84 offen sc1")
        o("s_add_u32 s84, s84, 16384")

def sort(o, tail, T, cfg):
    o.lab("L2_pass")
    o(f"v_and_b32 v3, 15, v{L}")
    o(f"v_add_u32 v1, s{S_OFF}, v3")
    o("v_add_u32 v2, 16, v1")
    o(f"s_add_u32 s83, s{S_OFF}, 32")
    o(f"v_lshrrev_b32 v4, 16, v{V_DESC}")
    o("v_cmp_lt_u32 vcc, s83, v4")
    o("s_cmp_lg_u64 vcc, 0")
    o(f"s_cselect_b32 s{S_MORE}, 1, 0")
    for i in range(4):
        o(f"v_mov_b32_dpp v{BS}, v4 row_newbcast:{i} row_mask:0xf bank_mask:0xf")
        o(f"v_cmp_lt_u32 {sr(MASK+2*i,2)}, v1, v{BS}")
        o(f"v_cmp_lt_u32 {sr(MASK+8+2*i,2)}, v2, v{BS}")
    o.lab("L2_again")
    o(f"s_mul_i32 s84, s{S_OFF}, 12")
    o(f"v_add_u32 v6, s84, v{V_LB}")
    o(f"v_and_b32 v5, 0xffff, v{V_DESC}")
    o("s_nop 1")
    for i in range(4):
        o(f"v_add_u32_dpp v{BS+1+i}, v5, v6 row_newbcast:{i} row_mask:0xf bank_mask:0xf")
    for i in range(4):
        o(f"s_mov_b64 exec, {sr(MASK+8+2*i,2)}")
        o(f"s_cbranch_execz L2_r2_{i}")
        o(f"buffer_load_dwordx3 {vr(REC+16+4*i,3)}, v{BS+1+i}, s[12:15], s{SOFF+i} offen offset:192 sc1")
        o.lab(f"L2_r2_{i}")
    for i in range(4):
        o(f"s_mov_b64 exec, {sr(MASK+2*i,2)}")
        o(f"buffer_load_dwordx3 {vr(REC+4*i,3)}, v{BS+1+i}, s[12:15], s{SOFF+i} offen sc1")
    o("s_mov_b64 exec, -1")
    o("v_mov_b32 v1, 4")
    o(f"v_mov_b32 v2, {CNT}")
    o(f"s_cmp_eq_u32 s{S_MORE}, 0")
    o("s_cbranch_scc1 L2_nomore")
    o("ds_write_b32 v2, v1 offset:256")
    o.lab("L2_nomore")
    o(f"v_cmp_gt_u32 s[92:93], 49, v{L}")
    o("v_mov_b32 v6, 16")
    o(f"v_mov_b32 v5, {CAPN*4}")
    o("v_cndmask_b32 v6, 0, v6, s[92:93]")
    def rank(i):
        o(f"v_add_u32_sdwa v{CA+i}, v{REC+4*i+2}, v2 dst_sel:DWORD dst_unused:UNUSED_PAD src0_sel:BYTE_3 src1_sel:DWORD")
        o(f"ds_add_rtn_u32 v{REC+4*i+3}, v{CA+i}, v1")
        o(f"v_lshrrev_b32 v{CA+i}, 26, v{REC+4*i+2}")
        o(f"v_and_b32 v{REC+4*i+2}, 0xffffff, v{REC+4*i+2}")
    def scat(i):
        o(f"v_lshl_add_u32 v{CA+i}, v{CA+i}, 9, v{REC+4*i+3}")
        o(f"v_cmpx_lt_u32 vcc, v{REC+4*i+3}, v5")
        o(f"v_add_u32 v{BS+i}, v{CA+i}, v{CA+i}")
        o(f"ds_write_b32 v{CA+i}, v{REC+4*i+2} offset:{LS}")
        o(f"ds_write_b64 v{BS+i}, {vr(REC+4*i,2)} offset:{LE}")
    for i in range(4):
        o(f"s_waitcnt vmcnt({3-i})")
        o(f"s_mov_b64 exec, {sr(MASK+2*i,2)}")
        rank(i)
    for i in range(4, 8):
        o(f"s_mov_b64 exec, {sr(MASK+2*i,2)}")
        o(f"s_cbranch_execz L2_rk{i}")
        rank(i)
        o.lab(f"L2_rk{i}")
    o("s_waitcnt lgkmcnt(0)")
    T(o, 12)
    for i in range(4):
        o(f"s_mov_b64 exec, {sr(MASK+2*i,2)}")
        scat(i)
    for i in range(4, 8):
        o(f"s_mov_b64 exec, {sr(MASK+2*i,2)}")
        o(f"s_cbranch_execz L2_sc{i}")
        scat(i)
        o.lab(f"L2_sc{i}")
    o("s_mov_b64 exec, -1")
    o(f"v_lshl_add_u32 v1, v{L}, 2, v2")
    if cfg["wpos"] == "P": prefetch(o, cfg)
    o("s_waitcnt lgkmcnt(0)")
    T(o, 13)
    o("s_setprio 3")
    o("s_barrier")
    T(o, 14)
    o("ds_read_b32 v3, v1")
    o("ds_read_b32 v4, v2 offset:256")
    if cfg["wpos"] == "A": prefetch(o, cfg)
    o(f"s_movk_i32 s84, {CAPN*4}")
    o("s_waitcnt lgkmcnt(0)")
    o(f"v_readfirstlane_b32 s{S_MORE}, v4")
    o.lab("L2_cap")
    o("v_cmp_lt_u32 vcc, s84, v3")
    o("v_min_u32 v4, s84, v3")
    o("v_add_u32 v5, 15, v4")
    o("v_and_b32 v5, -16, v5")
    o("v_max_u32 v5, v5, v6")
    o(f"v_mov_b32 v{BS}, v5")
    o("s_cmp_lg_u64 vcc, 0")
    o(f"s_cselect_b32 s{S_PEND}, 1, 0")
    wave_scan(o, BS)
    o("s_nop 0")
    o(f"v_readlane_b32 s{S_TOT}, v{BS}, 63")
    o(f"v_sub_u32 v5, v{BS}, v5")
    o(f"s_cmp_gt_u32 s{S_TOT}, {CAPU*4}")
    o("s_cbranch_scc1 L2_over")
    tail.lab("L2_over")
    tail(f"s_movk_i32 s84, {CAPL*4}")
    tail("s_branch L2_cap")
    o(f"s_cmp_lg_u32 s{S_PEND}, 0")
    o("s_cbranch_scc1 L2_pend")
    o.lab("L2_pendb")
    tail.lab("L2_pend")
    tail.c("records ranked past the cap stay pending for another pass over the same window")
    for i in range(8):
        tail(f"v_cmp_le_u32 vcc, s84, v{REC+4*i+3}")
        tail(f"s_and_b64 {sr(MASK+2*i,2)}, {sr(MASK+2*i,2)}, vcc")
    tail("s_branch L2_pendb")
    T(o, 21)
    o("v_lshl_or_b32 v4, v4, 16, v5")
    o.c("this wave's range of batches (16 slots each)")
    o(f"s_add_u32 s86, s{S_TOT}, 63")
    o("s_lshr_b32 s86, s86, 6")
    o("s_mul_i32 s87, s86, s3")
    o("s_add_u32 s88, s87, s86")
    o("s_lshr_b32 s87, s87, 4")
    o("s_lshr_b32 s88, s88, 4")
    o(f"s_sub_u32 s{S_NB}, s88, s87")
    o("s_lshl_b32 s89, s87, 6")
    o("s_lshl_b32 s90, s88, 6")
    o("v_cmp_ge_u32 vcc, s89, v5")
    o("s_and_b64 s[94:95], vcc, s[92:93]")
    o("s_bcnt1_i32_b64 s91, s[94:95]")
    o("s_sub_u32 s91, s91, 1")
    o("v_cmp_gt_u32 vcc, s90, v5")
    o("s_andn2_b64 s[94:95], vcc, s[94:95]")
    o("s_and_b64 s[94:95], s[94:95], s[92:93]")
    o("s_lshl_b32 s96, s91, 8")
    o(f"v_lshl_add_u32 v{V_PA}, v{L}, 2, s96")
    o(f"ds_read_b32 v{PC}, v{V_PA} offset:{PT}")
    o(f"ds_read_b32 v{PN}, v{V_PA} offset:{PT+256}")
    o.c("one bit per group (4 slots) that starts a new node")
    o(f"s_mov_b64 {sr(MK,2)}, 0")
    o("v_subrev_u32 v5, s89, v5")
    o("v_lshrrev_b32 v5, 4, v5")
    o.lab("L2_mloop")
    o("s_cmp_eq_u64 s[94:95], 0")
    o("s_cbranch_scc1 L2_mdone")
    o("s_ff1_i32_b64 s96, s[94:95]")
    o("s_bitset0_b64 s[94:95], s96")
    o("v_readlane_b32 s97, v5, s96")
    o("s_nop 0")
    o(f"s_bitset1_b64 {sr(MK,2)}, s97")
    o("s_branch L2_mloop")
    o.lab("L2_mdone")
    T(o, 22)
    o.c("build the wave's stream: for every slot its node, then source row and edge attributes from the node's list")
    N_, B_, X_ = 64, 68, 72
    o(f"s_mov_b64 s[84:85], {sr(MK,2)}")
    o("s_mov_b32 s86, s91")
    for j in range(4):
        o(f"v_and_b32 v{N_+j}, s84, v{V_LM}")
        o(f"v_bcnt_u32_b32 v{N_+j}, v{N_+j}, s86") if False else None
        o(f"v_bcnt_u32_b32 v{N_+j}, v{N_+j}, 0")
        o(f"v_add_lshl_u32 v{N_+j}, v{N_+j}, s86, 2")
        o(f"ds_bpermute_b32 v{B_+j}, v{N_+j}, v4")
        if j < 3:
            o("s_and_b32 s87, s84, 0xffff")
            o("s_bcnt1_i32_b32 s87, s87")
            o("s_add_u32 s86, s86, s87")
            o("s_lshr_b64 s[84:85], s[84:85], 16")
    o(f"v_lshl_add_u32 v3, v{V_SG}, 2, s89")
    o(f"v_mov_b32 v5, {NULLSLOT*4}")
    o("s_lshl_b32 s96, s3, 10")
    o(f"s_add_u32 s96, s96, {CS}")
    o(f"v_mov_b32 v{V_SA}, s96")
    o(f"v_lshl_add_u32 v6, v{L}, 2, s96")
    for j in range(4):
        o(f"s_waitcnt lgkmcnt({3-j + 2*j})")
        o(f"v_sub_u32_sdwa v{X_+j}, v3, v{B_+j} dst_sel:DWORD dst_unused:UNUSED_PAD src0_sel:DWORD src1_sel:WORD_0")
        o(f"v_lshrrev_b32 v{B_+j}, 16, v{B_+j}")
        o(f"v_cmp_lt_u32 vcc, v{X_+j}, v{B_+j}")
        o(f"v_lshl_add_u32 v{X_+j}, v{N_+j}, 7, v{X_+j}")
        if j < 3: o("v_add_u32 v3, 0x100, v3")
        else: o("s_nop 0")
        o(f"v_cndmask_b32 v{X_+j}, v5, v{X_+j}, vcc")
        o(f"ds_read_b32 v{N_+j}, v{X_+j} offset:{LS}")
        o(f"v_add_u32 v{X_+j}, v{X_+j}, v{X_+j}")
        o(f"ds_read_b64 {vr(EAR if j == 0 else EW+2*j-2, 2)}, v{X_+j} offset:{LE}")
    if cfg.get("nomask", 0): o(f"s_mov_b64 {sr(MK,2)}, 0")
    o.c("per-stage flags, one nibble each: 1 slow head, 2 flush, 4 no more loads, 8 past the last batch")
    o(f"s_lshr_b64 s[84:85], {sr(MK,2)}, 1")
    o(f"s_or_b64 s[84:85], s[84:85], {sr(MK,2)}")
    o("s_lshr_b64 s[86:87], s[84:85], 2")
    o("s_or_b64 s[84:85], s[84:85], s[86:87]")
    o("s_mov_b32 s86, 0x11111111")
    o("s_mov_b32 s87, 0x11111111")
    o("s_and_b64 s[84:85], s[84:85], s[86:87]")
    for j in range(4):
        o(f"s_waitcnt lgkmcnt({7-2*j + j})")
        o(f"ds_write_b32 v6, v{N_+j} offset:{256*j}")
    offsets(o, R[0], 0)
    o(f"s_lshl_b64 {sr(FL,2)}, s[84:85], 5")
    o(f"s_or_b64 {sr(FL,2)}, {sr(FL,2)}, s[84:85]")
    o(f"s_lshl_b64 {sr(MF,2)}, {sr(MK,2)}, 4")
    o(f"s_lshl_b32 s88, s{S_NB}, 2")
    o("s_max_u32 s90, s88, 4")
    o("s_sub_u32 s90, s90, 4")
    o(f"s_lshr_b64 s[84:85], {sr(MK,2)}, s90")
    o(f"s_and_b32 s{S_LF}, s84, 15")
    o(f"s_cmp_eq_u32 s{S_NB}, 0")
    o("s_cbranch_scc1 L2_done")
    o("s_waitcnt lgkmcnt(0)")
    T(o, 23)
    for r in range(16): rowload(o, R[0] + r, cfg)
    if cfg["wpos"] == "C": prefetch(o, cfg)
    offsets(o, R[1], 1)
    o("s_mov_b32 s84, 0x55555555")
    o("s_mov_b32 s85, 0x55555555")
    o("s_lshl_b64 s[84:85], s[84:85], s90")
    o(f"s_or_b64 {sr(FL,2)}, {sr(FL,2)}, s[84:85]")
    o("s_mov_b64 s[84:85], 8")
    o("s_lshl_b64 s[84:85], s[84:85], s88")
    o(f"s_or_b64 {sr(FL,2)}, {sr(FL,2)}, s[84:85]")
    o.c("the wave lowers its priority as it nears its end so that the waves of a SIMD finish together")
    o(f"s_mov_b32 s{S_PL}, 0")
    o(f"s_mov_b32 s{S_LV}, 3")
    for i, rem in enumerate(int(x) for x in str(cfg["pp"])):
        o(f"s_cmp_gt_u32 s{S_NB}, {rem}")
        o(f"s_cbranch_scc0 L3_np{i}")
        o(f"s_sub_u32 s90, s{S_NB}, {rem}")
        o(f"s_bitset1_b32 s{S_PL}, s90")
        o("s_lshl_b32 s90, s90, 2")
        o(f"s_bitset1_b64 {sr(FL,2)}, s90")
        o.lab(f"L3_np{i}")
    o(f"v_add_u32 v{V_FA}, v{V_PA}, v{V_PA}")
    o(f"v_add_u32 v{V_PA}, 0x100, v{V_PA}")
    o(f"v_mov_b32 v{ACC}, 0")
    o(f"v_mov_b32 v{ACC+1}, 0")
    for c in range(1, 4): o(f"v_mov_b32 v{PC+c}, v{PC}")

def flush(o):
    o(f"v_add_f32 v{FT}, v{ACC}, v{ACC+1}")
    o(f"v_mul_f32 v{FT}, {QC:#x}, v{FT}")
    o(f"v_cvt_f64_f32 {vr(F64,2)}, v{FT}")
    o(f"ds_add_f64 v{V_FA}, {vr(F64,2)} offset:{AGG}")

def head(oo, late, u, cfg, slow):
    rc = R[u]; rl = R[(u + 1) & 3]; rp = R[(u + 3) & 3]
    if slow:
        oo(f"s_bitcmp1_b32 s{FL}, {4*u+2}")
        oo(f"s_cbranch_scc1 L3_nl{u}")
        if not cfg.get("noload", 0):
            for r in range(16): rowload(oo, rl + r, cfg)
        oo("s_waitcnt vmcnt(16)")
        oo.lab(f"L3_lb{u}")
        late.lab(f"L3_nl{u}")
        late("s_waitcnt vmcnt(0)")
        late(f"s_branch L3_lb{u}")
        oo(f"s_bitcmp1_b32 s{S_PL}, {u}")
        oo(f"s_cbranch_scc1 L3_pd{u}")
        oo.lab(f"L3_pe{u}")
        late.lab(f"L3_pd{u}")
        late(f"s_sub_u32 s{S_LV}, s{S_LV}, 1")
        late("s_setprio 0")
        late(f"s_cmp_eq_u32 s{S_LV}, 0")
        late(f"s_cbranch_scc1 L3_pe{u}")
        late("s_setprio 1")
        late(f"s_cmp_eq_u32 s{S_LV}, 1")
        late(f"s_cbranch_scc1 L3_pe{u}")
        late("s_setprio 2")
        late(f"s_branch L3_pe{u}")
    else:
        oo("s_waitcnt vmcnt(0)")
    E = lambda t: oo(m4(G+4*t, EAR, CW, PC, f" cbsz:4 abid:{4*u+t}"))
    QA = lambda g: oo(m4(G+4*g, SELA, rc+4*g, G+4*g))
    QB = lambda g: oo(m4(G+4*g, SELB, rc+4*g+2, G+4*g))
    rr = [rp+2, rp+3, rp+10, rp+11]
    rcp = lambda i: oo(f"v_rcp_f32 v{rr[i]}, v{rr[i]}")
    def block(b):
        for j in range(2):
            n = f"{u}_{2*b+j}"
            oo(f"s_bitcmp1_b32 s{MK}, {4*u+2*b+j}")
            oo(f"s_cbranch_scc1 L3_ps{n}")
            oo.lab(f"L3_pb{n}")
            late.lab(f"L3_ps{n}")
            late("s_waitcnt lgkmcnt(0)")
            late(f"v_mov_b32 v{PC+1}, v{PN}")
            late(f"v_add_u32 v{V_PA}, 0x100, v{V_PA}")
            late(f"ds_read_b32 v{PN}, v{V_PA} offset:{PT}")
            late(f"s_branch L3_pb{n}")
            if j == 0:
                oo(f"v_mov_b32 v{PC}, v{PC+1}")
                oo(f"v_mov_b32 v{PC+2}, v{PC+1}")
            else:
                oo(f"v_mov_b32 v{PC+3}, v{PC+1}")
                oo("s_nop 1")
    if slow: block(0)
    E(0); rcp(0); E(1); rcp(1); QA(0); rcp(2)
    if slow: block(1)
    E(2); rcp(3); QB(0); E(3); QA(1); QA(2)
    if slow:
        oo(f"v_mov_b32 v{PC}, v{PC+1}")
        oo(f"v_mov_b32 v{PC+2}, v{PC+1}")
    if not slow: oo("s_nop 0")
    QB(1)
    for r in range(16):
        oo(f"v_exp_f32_e64 v{G+r}, v{G+r} clamp")
        if not slow and not cfg.get("noload", 0): rowload(oo, rl + r, cfg)
        if r == 0: QA(3)
        if r == 1: QB(2)
        if r == 2: QB(3)
        if r == 14: oo(f"s_bitcmp1_b32 s{FL}, {4*u+1}")

def accum(o, tail, name, rp, reg, bit0):
    o(f"s_cbranch_scc1 L3_sf{name}")
    for b in range(2): o(pk("fma", ACC, rp+8*b, rp+8*b+2, ACC))
    o.lab(f"L3_fb{name}")
    tail.lab(f"L3_sf{name}")
    for g in range(4):
        b, j = g >> 1, g & 1
        tail(f"s_bitcmp1_b32 s{reg}, {bit0+g}")
        tail(f"s_cbranch_scc0 L3_sk{name}_{g}")
        flush(tail)
        tail(f"v_add_u32 v{V_FA}, 0x200, v{V_FA}")
        tail(f"v_mov_b32 v{ACC}, 0")
        tail(f"v_mov_b32 v{ACC+1}, 0")
        tail.lab(f"L3_sk{name}_{g}")
        tail(f"v_fmac_f32 v{ACC+j}, v{rp+8*b+j}, v{rp+8*b+2+j}")
    tail(f"s_branch L3_fb{name}")

def stage(o, tail, u, cfg):
    rc = R[u]; rp = R[(u + 3) & 3]; ro = R[(u + 2) & 3]
    o(f"s_bitcmp1_b32 s{FL}, {4*u}")
    o(f"s_cbranch_scc1 L3_se{u}")
    head(o, None, u, cfg, False)
    o.lab(f"L3_xb{u}")
    tail.lab(f"L3_se{u}")
    tail(f"s_bitcmp1_b32 s{FL}, {4*u+3}")
    tail(f"s_cbranch_scc1 L3_last{(u+3)&3}")
    late = Asm()
    head(tail, late, u, cfg, True)
    tail(f"s_branch L3_xb{u}")
    tail.l += late.l
    accum(o, tail, str(u), rp, MF, 4*u)
    offsets(o, ro, u + 2)
    for r in range(0, 16, 2): o(pk("add", G+r, G+r, VC2))
    seq = [lambda d, h: pk("mul", h, h, d+2), lambda d, h: pk("mul", h+4, h+4, d+6),
           lambda d, h: pk("fma", h, h+2, d, h), lambda d, h: pk("fma", h+4, h+6, d+4, h+4),
           lambda d, h: pk("mul", d, d, d+2), lambda d, h: pk("mul", d+4, d+4, d+6),
           lambda d, h: pk("mul", h, h, d+4), lambda d, h: pk("mul", h+2, d, d+4),
           lambda d, h: pk("fma", h, h+4, d, h)]
    for f in seq:
        for b in range(2): o(f(G+8*b, rc+8*b))
    if u == 3:
        o(f"v_add_u32 v{V_SA}, 0x100, v{V_SA}")
        o(f"v_mov_b64 {vr(EAR,2)}, {vr(EW,2)}")
        o(f"v_mov_b64 {vr(EW,2)}, {vr(EW+2,2)}")
        o(f"v_mov_b64 {vr(EW+2,2)}, {vr(EW+4,2)}")
        for r in (FL, MK, MF): o(f"s_lshr_b64 {sr(r,2)}, {sr(r,2)}, 16")
        o(f"s_lshr_b32 s{S_PL}, s{S_PL}, 4")
    o("s_waitcnt lgkmcnt(0)")
    if u == 3: o("s_branch L2_loop")

def mainloop(o, tail, T, cfg):
    o(f"s_waitcnt vmcnt({16 if cfg['wpos'] != 'C' else 0}) lgkmcnt(0)")
    for b in range(2):
        for j in range(2):
            o(f"v_mov_b32 v{R[3]+8*b+j}, 0")
            o(f"v_mov_b32 v{R[3]+8*b+2+j}, 1.0")
    T(o, 15); T(o, 16, True)
    o(".p2align 3")
    o.lab("L2_loop")
    o.c("per block of two groups: sum h_i / d_i = N / D with d_i = 2^-31 + min(1, 2^(t_i - 31)); one reciprocal per group")
    for u in range(4): stage(o, tail, u, cfg)
    for u in range(4):
        oo = o if u == 0 else tail
        oo.lab(f"L3_last{u}")
        for r in (2, 3, 10, 11): oo(f"v_rcp_f32 v{R[u]+r}, v{R[u]+r}")
        oo(f"s_cmp_lg_u32 s{S_LF}, 0")
        t2 = Asm()
        accum(oo, t2, f"e{u}", R[u], S_LF, 0)
        if u != 0: oo("s_branch L2_last")
        tail.l += t2.l
    o.lab("L2_last")
    flush(o)
    o.lab("L2_done")
    o("s_waitcnt vmcnt(0) lgkmcnt(0)")
    T(o, 17); T(o, 18, True)
    o("s_barrier")
    o(f"s_or_b32 s84, s{S_MORE}, s{S_PEND}")
    o("s_cbranch_scc1 L2_next")
    tail.lab("L2_next")
    tail("v_mov_b32 v3, 0")
    tail("ds_write_b32 v1, v3")
    tail("ds_write_b32 v2, v3 offset:256")
    tail("s_waitcnt lgkmcnt(0)")
    tail("s_barrier")
    tail(f"s_cmp_lg_u32 s{S_PEND}, 0")
    tail("s_cbranch_scc1 L2_again")
    tail(f"s_add_u32 s{S_OFF}, s{S_OFF}, 32")
    tail("s_branch L2_pass")
    o("v_cmp_gt_u32 vcc, 392, v0")
    o("s_and_saveexec_b64 s[94:95], vcc")
    o("s_cbranch_execz L2_fin")
    o("v_lshlrev_b32 v1, 6, v0")
    for c in range(4): o(f"ds_read_b128 {vr(80+4*c,4)}, v1 offset:{AGG+16*c}")
    o("s_lshl_b32 s93, s78, 7")
    o(f"v_add_u32 v2, s93, v{V_T16}")
    o("s_waitcnt lgkmcnt(0)")
    for r in range(8): o(f"v_cvt_f32_f64 v{64+r}, {vr(80+2*r,2)}")
    for r in range(8): o(f"v_mul_f32 v{72+r}, {NEG_LOG2E:#x}, v{64+r}")
    for r in range(8): o(f"v_exp_f32 v{72+r}, v{72+r}")
    for r in range(8): o(f"v_add_f32 v{72+r}, 1.0, v{72+r}")
    for r in range(8): o(f"v_rcp_f32 v{72+r}, v{72+r}")
    for r in range(8): o(f"v_mul_f32 v{64+r}, v{64+r}, v{72+r}")
    for r in range(4): o(f"v_cvt_pk_bf16_f32 v{72+r}, v{64+2*r}, v{65+2*r}")
    o(f"buffer_store_dwordx4 v[72:75], v2, s[16:19], 0 offen {cfg['sto']}")
    o.lab("L2_fin")
    if T.on:
        o("s_waitcnt vmcnt(0)"); T(o, 19); T(o, 20, True); T.dump(o)

HEADER = """; Edge-gated MPNN layer: out = silu(x@U + sum over edges with dst=i of sigmoid(x[dst]@A + x[src]@B + e@C) * (x[src]@V))
; @launch grid=(256,1,1) block=(1024,1,1) lds={l}
.amdgcn_target "amdgcn-amd-amdhsa--gfx950"
.text
.globl {n}
.p2align 8
.type {n},@function
"""
FOOTER = """.section .rodata,"a"
.p2align 6
.amdhsa_kernel {n}
  .amdhsa_next_free_vgpr 128
  .amdhsa_next_free_sgpr 102
  .amdhsa_accum_offset 128
  .amdhsa_group_segment_fixed_size 0
  .amdhsa_kernarg_size 80
  .amdhsa_user_sgpr_count 2
  .amdhsa_user_sgpr_kernarg_segment_ptr 1
  .amdhsa_system_sgpr_workgroup_id_x 1
  .amdhsa_float_denorm_mode_32 3
  .amdhsa_dx10_clamp 0
.end_amdhsa_kernel
"""
DEFAULTS = dict(st="sc1", ld1="nt", ldt="", sto="", wb=1, wpos="A", early=0, cpf=0, pp=631, sleep=2, spin=400000, stamp=0)
def build(cfg):
    cfg = dict(DEFAULTS, **cfg)
    o = Asm(); tail = Asm(); T = Stamper(cfg["stamp"])
    o.lab(NAME)
    o("s_cmp_ge_u32 s2, 256")
    o("s_cbranch_scc1 L_end")
    T(o, 0, True); T(o, 1)
    phase1(o, tail, T, cfg); handoff(o, tail, T, cfg); sort(o, tail, T, cfg); mainloop(o, tail, T, cfg)
    o.lab("L_end")
    o("s_endpgm")
    return HEADER.format(l=LDS, n=NAME) + o.text() + tail.text() + "L_codeend:\n" + FOOTER.format(n=NAME)

if __name__ == "__main__":
    cfg = {}
    for a in sys.argv[2:]:
        k, v = a.split("=")
        cfg[k] = int(v) if v.lstrip("-").isdigit() else v
    open(sys.argv[1], "w").write(build(cfg))
```

```python
import sys

class Asm:
    def __init__(self): self.l = []
    def __call__(self, s): self.l.append("    " + s)
    def lab(self, s): self.l.append(s + ":")
    def c(self, s): self.l.append("    ; " + s)
    def text(self): return "\n".join(self.l) + "\n"
def vr(a, n=1): return f"v{a}" if n == 1 else f"v[{a}:{a+n-1}]"
def sr(a, n=1): return f"s{a}" if n == 1 else f"s[{a}:{a+n-1}]"

N = 12500; E = 800000; NPB = 49; CH = 3128; CHB = CH * 12
WS_DESC = 0x00A00000; WS_TF = 0x00A80000; STAMP_BASE = 0x00B00000; WS_T = 0x00C00000; T_BYTES = 256 * NPB * 256
NULLROW = N * 256; NEG_LOG2E = 0xBFB8AA3B; MAGIC49 = 21400; QC = 0x30000000
assert all(((d * MAGIC49) >> 20) == d // 49 for d in range(N))
NAME = "standalone__edge_featured_mpnn_egc__graph_kernel"

CAPN = 128; CAPU = 3840; CAPL = 74
PT = 0; AGG = 13312; OV = 38912
LS = OV; LE = LS + 50 * CAPN * 4; CS = LE + 50 * CAPN * 8
HIST = OV; STAGE = OV + 1024; PB = OV + 38912
XS = 93696; WL = XS + 8192; TS = WL + 16384; AU = TS + 16384
CNT = AU + 16384; DSV = CNT + 512; LDS = DSV + 1024
NULLSLOT = 49 * CAPN
assert STAGE + CHB <= PB and PB + 13 * 1024 <= XS and CNT % 256 == 0 and CS + 16 * 1024 + 256 <= CNT and LE < 65536
assert NPB * ((CAPL + 3) // 4 * 4) + 15 <= CAPU and LDS <= 163840

R = [64, 80, 96, 112]; G = 32
EAR = 30; CW = 28; SELA = 26; SELB = 24; PC = 20; ACC = 18; F64 = 16
V_SA = 15; V_PA = 13; V_FA = 12; V_ST = 11; L = 10; V_DESC = 9; V_LB = 8; V_T16 = 7
PN = 48; VC2 = 50; FT = 52; EW = 54; V_LM = 14; V_SG = 60
REC = 64; CA = 96; BS = 104; DUM = 112
S_PEND = 20; S_OFF = 21; S_NB = 22; S_LF = 23; S_MORE = 25; S_TOT = 26
FL = 28; MF = 4; S_PL = 6; S_LV = 7; MK = 76; MASK = 32; SOFF = 64

class Stamper:
    def __init__(self, on): self.on = on
    def __call__(self, o, i, real=False):
        if not self.on: return
        o(f"{'s_memrealtime' if real else 's_memtime'} s[100:101]")
        o("s_waitcnt lgkmcnt(0)")
        o(f"v_writelane_b32 v{V_ST}, s100, {i}")
    def dump(self, o):
        if not self.on: return
        o("s_mov_b32 exec_hi, 0"); o("s_mov_b32 exec_lo, -1")
        o("s_lshl_b32 s4, s2, 4"); o("s_add_u32 s4, s4, s3"); o("s_lshl_b32 s4, s4, 7")
        o(f"s_add_u32 s4, s4, {STAMP_BASE}")
        o(f"v_lshl_add_u32 v1, v{L}, 2, s4")
        o(f"buffer_store_dword v{V_ST}, v1, s[12:15], 0 offen")

def srd(o, d, p, size):
    o(f"s_mov_b32 s{d}, s{p}"); o(f"s_and_b32 s{d+1}, s{p+1}, 0xffff")
    o(f"s_mov_b32 s{d+2}, {size}"); o(f"s_mov_b32 s{d+3}, 0x00020000")
def wave_scan(o, v):
    for sh in (1, 2, 4, 8):
        o(f"v_add_u32_dpp v{v}, v{v}, v{v} row_shr:{sh} row_mask:0xf bank_mask:0xf bound_ctrl:0")
        o("s_nop 1")
    o(f"v_add_u32_dpp v{v}, v{v}, v{v} row_bcast:15 row_mask:0xa bank_mask:0xf")
    o("s_nop 1")
    o(f"v_add_u32_dpp v{v}, v{v}, v{v} row_bcast:31 row_mask:0xc bank_mask:0xf")
def mfma16(d, a, b, first):
    return f"v_mfma_f32_32x32x16_bf16 {vr(d,16)}, {vr(a,4)}, {vr(b,4)}, {'0' if first else vr(d,16)}"
def m4(d, a, b, c, extra=""):
    return f"v_mfma_f32_4x4x4_16b_bf16 {vr(d,4)}, {vr(a,2)}, {vr(b,2)}, {vr(c,4)}{extra}"
def pk(op, d, a, b, c=None):
    return f"v_pk_{op}_f32 {vr(d,2)}, {vr(a,2)}, {vr(b,2)}" + (f", {vr(c,2)}" if c is not None else "")
def trbase(o, d, h, t):
    o(f"v_bfe_u32 v{t}, v{L}, 2, 2")
    o(f"v_lshl_add_u32 v{d}, v{h}, 3, v{t}")
    o(f"v_lshlrev_b32 v{d}, 7, v{d}")
    o(f"v_bfe_u32 v{t}, v{L}, 4, 1")
    o(f"v_lshl_add_u32 v{d}, v{t}, 5, v{d}")
    o(f"v_and_b32 v{t}, 3, v{L}")
    o(f"v_lshl_add_u32 v{d}, v{t}, 3, v{d}")

def phase1(o, tail, T, cfg):
    ST = cfg["st"]; LD = cfg["ld1"]
    def misc():
        o("s_cmp_lg_u32 s3, 1")
        o("s_cbranch_scc1 L1_nn")
        o("s_cmp_lg_u32 s2, 0")
        o("s_cbranch_scc1 L1_nn")
        o.c("launch tag: tells this launch's descriptors from whatever an earlier launch left in ws")
        o("s_memrealtime s[84:85]")
        o("s_waitcnt lgkmcnt(0)")
        o("s_lshl_b32 s86, s84, 24")
        o("s_lshr_b64 s[84:85], s[84:85], 8")
        o("s_bitset1_b32 s84, 31")
        o("v_mov_b32 v32, s86")
        o("v_mov_b32 v33, s84")
        o("v_mov_b32 v34, 0")
        o("s_mov_b64 exec, 1")
        o("buffer_store_dwordx2 v[32:33], v34, s[68:71], 0 offen sc1")
        o("s_mov_b64 exec, -1")
        o.lab("L1_nn")
        o("s_cmp_lg_u32 s3, 2")
        o("s_cbranch_scc1 L1_nz")
        o.c("touch the pages stored to later (address translation only, data unused)")
        o("v_mov_b32 v32, 0")
        o(f"s_mul_i32 s84, s2, {CHB}")
        o("s_lshl_b32 s85, s78, 8")
        o(f"s_add_u32 s85, s85, {WS_T}")
        o(f"s_mov_b32 s86, {WS_DESC}")
        for sreg in (84, 85, 86): o(f"buffer_load_dword v33, v32, s[12:15], s{sreg} offen sc1")
        o(f"s_add_u32 s84, s84, {CHB-4}")
        o("buffer_load_dword v33, v32, s[12:15], s84 offen sc1")
        o("buffer_load_dword v33, v32, s[16:19], 0 offen sc1")
        o.lab("L1_nz")
    o("s_load_dwordx16 s[80:95], s[0:1], 0")
    o("s_load_dwordx4 s[96:99], s[0:1], 64")
    if cfg["cpf"]:
        o.c("read this kernel's code once per XCD so that later instruction fetches find it in L2 (data unused)")
        o("s_getpc_b64 s[8:9]")
        o.lab("L_pc")
        o("s_and_b32 s9, s9, 0xffff")
        o("s_mov_b32 s10, L_codeend-L_pc")
        o("s_mov_b32 s11, 0x00020000")
        if cfg["cpf"] == 1:
            o("s_lshr_b32 s4, s2, 3")
            o("s_lshl_b32 s4, s4, 10")
            o("v_lshl_add_u32 v1, v0, 4, s4")
            o("v_cmp_gt_u32 vcc, 64, v0")
            o("s_and_saveexec_b64 s[4:5], vcc")
            o("s_cbranch_execz L_npf")
            o("buffer_load_dwordx4 v[120:123], v1, s[8:11], 0 offen")
            o.lab("L_npf")
            o("s_mov_b64 exec, -1")
        else:
            o("v_lshlrev_b32 v1, 7, v0")
            o("v_cmp_gt_u32 vcc, 256, v0")
            o("s_and_saveexec_b64 s[4:5], vcc")
            o("s_cbranch_execz L_npf")
            o("buffer_load_dword v120, v1, s[8:11], 0 offen")
            o.lab("L_npf")
            o("s_mov_b64 exec, -1")
    o("v_lshrrev_b32 v1, 6, v0")
    o(f"v_and_b32 v{L}, 63, v0")
    o("s_movk_i32 s4, 768")
    o("s_cmp_eq_u32 s2, 255")
    o("s_cselect_b32 s4, 590, s4")
    o("s_cselect_b32 s6, 0, 56")
    o("v_readfirstlane_b32 s3, v1")
    o("s_mul_i32 s5, s2, 12512")
    o("v_subrev_u32 v4, 256, v0")
    o("v_lshl_add_u32 v2, v4, 4, s5")
    o("v_lshlrev_b32 v3, 1, v2")
    o("v_cmp_gt_u32 s[72:73], s4, v4")
    o("v_cmp_gt_u32 s[74:75], s6, v4")
    o("s_and_b32 s30, s2, 7")
    o("s_lshl_b32 s30, s30, 5")
    o("s_lshr_b32 s31, s2, 3")
    o("s_add_u32 s30, s30, s31")
    o("s_mul_i32 s78, s30, 49")
    o(f"v_lshlrev_b32 v{V_T16}, 4, v0")
    o("s_add_u32 s5, s5, 12288")
    o("v_lshl_add_u32 v5, v4, 2, s5")
    o(f"s_mov_b32 s38, {E*4}"); o("s_mov_b32 s39, 0x00020000")
    o("s_waitcnt lgkmcnt(0)")
    o("s_mov_b32 s36, s86"); o("s_and_b32 s37, s87, 0xffff")
    o("s_mov_b64 exec, s[72:73]")
    o("s_cbranch_execz L1_noload")
    o(f"buffer_load_dwordx4 v[64:67], v2, s[36:39], 0 offen {LD}")
    o("s_mov_b64 exec, s[74:75]")
    o("s_cbranch_execz L1_noload")
    o(f"buffer_load_dword v80, v5, s[36:39], 0 offen {LD}")
    o.lab("L1_noload")
    o("s_mov_b64 exec, -1")
    o("s_cmp_gt_u32 s3, 3")
    o("s_cbranch_scc1 L1_a")
    o.c("table waves 0..3, unit (rt = w>>1, hh = w&1): LDS-DMA of the block's 64 x rows and the raw B / V weights")
    srd(o, 48, 80, N * 128)
    o(f"v_lshlrev_b32 v25, 4, v{L}")
    o("s_lshl_b32 s4, s3, 11")
    o("s_lshl_b32 s5, s78, 7")
    o("s_add_u32 s5, s5, s4")
    o(f"s_add_u32 s4, s4, {XS}")
    o("s_mov_b32 m0, s4")
    o("v_add_u32 v20, s5, v25")
    o("s_and_b32 s6, s3, 1")
    o("s_lshr_b32 s7, s3, 1")
    o("buffer_load_dwordx4 v20, s[48:51], 0 offen lds")
    o("buffer_load_dwordx4 v20, s[48:51], 0 offen offset:1024 lds")
    o("s_cmp_eq_u32 s7, 0")
    o("s_cselect_b32 s52, s92, s90")
    o("s_cselect_b32 s53, s93, s91")
    o("s_cselect_b32 s5, 8192, 0")
    o("s_and_b32 s53, s53, 0xffff")
    o("s_add_u32 s54, s5, 8192")
    o("s_mov_b32 s55, 0x00020000")
    o("s_lshl_b32 s4, s6, 12")
    o("s_add_u32 s5, s5, s4")
    o("s_lshl_b32 s4, s3, 12")
    o(f"s_add_u32 s4, s4, {WL}")
    o("s_mov_b32 m0, s4")
    o("s_cmp_lg_u32 s3, 2")
    for i in range(4): o(f"buffer_load_dwordx4 v25, s[52:55], s5 offen offset:{1024*i} lds")
    o("s_cbranch_scc1 L1_a")
    for i in range(4): o(f"v_mov_b32 v{32+i}, 0")
    o(f"ds_write_b128 v25, v[32:35] offset:{HIST}")
    o(f"v_lshlrev_b32 v26, 2, v{L}")
    o(f"v_add_u32 v26, {CNT}, v26")
    o("ds_write_b32 v26, v32")
    o("ds_write_b32 v26, v32 offset:64")
    o("s_waitcnt lgkmcnt(0)")
    o.lab("L1_a")
    srd(o, 40, 84, E * 4); srd(o, 44, 82, E * 8)
    T(o, 2)
    o("s_barrier")
    o("s_mov_b64 exec, s[72:73]")
    o("s_cbranch_execz L1_noload2")
    o(f"buffer_load_dwordx4 v[68:71], v2, s[40:43], 0 offen {LD}")
    o(f"buffer_load_dwordx4 v[72:75], v3, s[44:47], 0 offen {LD}")
    o(f"buffer_load_dwordx4 v[76:79], v3, s[44:47], 0 offen offset:16 {LD}")
    o("s_mov_b64 exec, s[74:75]")
    o("s_cbranch_execz L1_noload2")
    o("v_lshlrev_b32 v3, 1, v5")
    o(f"buffer_load_dword v81, v5, s[40:43], 0 offen {LD}")
    o(f"buffer_load_dwordx2 v[82:83], v3, s[44:47], 0 offen {LD}")
    o.lab("L1_noload2")
    o("s_mov_b64 exec, -1")
    srd(o, 12, 98, WS_T + T_BYTES); srd(o, 16, 94, N * 128); srd(o, 68, 96, 256)
    srd(o, 52, 92, 132 * 128); srd(o, 60, 88, 64 * 128)
    o.c("table descriptor: stride 4 with thread-id addressing, so one uniform row offset reads the 64 channels")
    o(f"s_add_u32 s8, s98, {WS_T}"); o("s_addc_u32 s9, s99, 0")
    o("s_and_b32 s9, s9, 0xffff"); o("s_or_b32 s9, s9, 0x40000")
    o(f"s_mov_b32 s10, {T_BYTES}"); o("s_mov_b32 s11, 0x00800000")
    o("s_cmp_gt_u32 s3, 3")
    o("s_cbranch_scc1 L1_edge")
    o("s_lshl_b32 s29, s3, 12")
    o(f"s_add_u32 s29, s29, {TS}")
    o(f"v_and_b32 v24, 31, v{L}")
    o(f"v_lshrrev_b32 v25, 5, v{L}")
    o("s_lshl_b32 s84, s7, 12")
    o(f"s_add_u32 s84, s84, {XS}")
    o("v_lshl_add_u32 v20, v25, 4, s84")
    o("v_lshl_add_u32 v20, v24, 7, v20")
    o("v_lshlrev_b32 v27, 9, v25")
    o("v_lshl_add_u32 v27, v24, 2, v27")
    o("v_add_u32 v27, s29, v27")
    trbase(o, 26, 25, 28)
    o("s_lshl_b32 s84, s6, 6")
    o(f"s_add_u32 s84, s84, {WL}")
    o("v_add_u32 v26, s84, v26")
    o(f"v_lshrrev_b32 v21, 3, v{L}")
    o(f"v_and_b32 v22, 7, v{L}")
    o("v_lshlrev_b32 v22, 4, v22")
    o("s_lshl_b32 s84, s7, 5")
    o("v_add_u32 v23, s84, v21")
    o("v_lshl_add_u32 v29, v23, 8, v22")
    o("v_lshl_add_u32 v21, v21, 7, v22")
    o("v_add_u32 v21, s29, v21")
    o("s_lshl_b32 s84, s3, 12")
    o(f"s_add_u32 s85, s84, {AU}")
    o("s_mov_b32 m0, s85")
    o(f"v_lshlrev_b32 v28, 4, v{L}")
    if cfg["early"]:
        o.c("the four table waves meet through an LDS counter once their staging loads have landed")
        o(f"v_mov_b32 v32, {CNT+272}")
        o("v_mov_b32 v33, 1")
        o("s_setprio 2")
        o("s_waitcnt vmcnt(0)")
        o("s_mov_b64 exec, 1")
        o("ds_add_u32 v32, v33")
        o("s_mov_b64 exec, -1")
        o.lab("L1_tw")
        o("ds_read_b32 v33, v32")
        o("s_waitcnt lgkmcnt(0)")
        o("v_readfirstlane_b32 s84, v33")
        o("s_cmp_lt_u32 s84, 4")
        o("s_cbranch_scc1 L1_tw")
        T(o, 4)
    else:
        o("s_waitcnt vmcnt(0)")
        misc()
        T(o, 4)
        o("s_barrier")
        o("s_setprio 2")
    for s in range(4): o(f"ds_read_b128 {vr(40+4*s,4)}, v20 offset:{32*s}")
    for m in range(2):
        for s in range(4):
            for t in range(2):
                o(f"ds_read_b64_tr_b16 {vr(64+16*m+4*s+2*t,2)}, v26 offset:{8192*m+2048*s+512*t}")
    def au():
        o.c("raw A (waves 0,1) and U (waves 2,3) weights for the P and x@U products")
        o("s_lshl_b32 s87, s6, 12")
        o("s_cmp_eq_u32 s7, 0")
        o("s_cbranch_scc0 L1_ldu")
        for i in range(4): o(f"buffer_load_dwordx4 v28, s[52:55], s87 offen offset:{1024*i} lds")
        o("s_branch L1_ldd")
        o.lab("L1_ldu")
        for i in range(4): o(f"buffer_load_dwordx4 v28, s[60:63], s87 offen offset:{1024*i} lds")
        o.lab("L1_ldd")
    if not cfg["early"]: au()
    o("s_mov_b32 s84, 0xffff0000")
    o(f"s_mov_b32 s85, {NEG_LOG2E:#x}")
    o("s_brev_b32 s86, 1")
    o("s_waitcnt lgkmcnt(8)")
    for s in range(4): o(mfma16(96, 40+4*s, 64+4*s, s == 0))
    o("s_waitcnt lgkmcnt(0)")
    for s in range(4): o(mfma16(112, 40+4*s, 80+4*s, s == 0))
    o("s_nop 6")
    o.c("row entry = bf16(-log2e * x@B) in the low half; the high half is chosen so the whole dword is nearest to x@V")
    for r in range(16): o(f"v_mul_f32 v{96+r}, s85, v{96+r}")
    for r in range(0, 16, 2):
        o(f"v_cvt_pk_bf16_f32 v{96+r}, v{96+r}, v{97+r}")
        o(f"v_lshrrev_b32 v{97+r}, 16, v{96+r}")
        o(f"v_and_b32 v{96+r}, 0xffff, v{96+r}")
    for r in range(16):
        t = 56 + (r & 3); t2 = 60 + (r & 3)
        if cfg["early"] and r == cfg["early"] - 1:
            T(o, 5)
            o("s_barrier")
            au()
        o(f"v_add_u32 v{t}, 0x8000, v{112+r}")
        o(f"v_and_b32 v{t2}, s86, v{112+r}")
        o(f"v_sub_u32_e64 v{t}, v{t}, v{96+r} clamp")
        o(f"v_max_u32 v{t}, v{t}, v{t2}")
        o(f"v_and_or_b32 v{t}, v{t}, s84, v{96+r}")
        o(f"ds_write_b32 v27, v{t} offset:{(8*(r>>2) + (r&3))*128}")
    if cfg["tdef"]:
        o("s_waitcnt vmcnt(0)")
    else:
        for i in range(4): o(f"ds_read_b128 {vr(64+4*i,4)}, v21 offset:{1024*i}")
        o("s_lshl_b32 s84, s78, 8")
        o("s_lshl_b32 s85, s6, 7")
        o("s_add_u32 s84, s84, s85")
        o(f"s_add_u32 s84, s84, {WS_T}")
        if not cfg["early"]: o("s_waitcnt vmcnt(0)")
        for i in range(4):
            o(f"v_cmp_gt_u32 vcc, {49-8*i}, v23")
            o(f"s_waitcnt lgkmcnt({3-i})")
            o("s_mov_b64 exec, vcc")
            o(f"buffer_store_dwordx4 {vr(64+4*i,4)}, v29, s[12:15], s84 offen {cfg.get('stt', ST)}")
            o("s_add_u32 s84, s84, 2048")
            o("s_mov_b64 exec, -1")
    o("s_setprio 0")
    T(o, 6)
    if cfg["early"]:
        o("s_waitcnt vmcnt(4)")
        misc()
    o("s_branch L1_d")
    o.lab("L1_edge")
    o("s_mov_b64 exec, s[72:73]")
    o("s_cbranch_execz L1_histdone")
    o(f"s_movk_i32 s84, {MAGIC49}")
    o("v_mov_b32 v20, 1")
    def hist(regs):
        for d, b, a, r in regs: o(f"v_mul_u32_u24 v{b}, s84, v{d}")
        for d, b, a, r in regs: o(f"v_lshrrev_b32 v{b}, 20, v{b}")
        for d, b, a, r in regs:
            o(f"v_lshlrev_b32 v{a}, 2, v{b}")
            o(f"ds_add_rtn_u32 v{r}, v{a}, v20 offset:{HIST}")
        for d, b, a, r in regs: o(f"v_mul_u32_u24 v{b}, 49, v{b}")
        for d, b, a, r in regs: o(f"v_sub_u32 v{d}, v{d}, v{b}")
        for d, b, a, r in regs: o(f"v_lshlrev_b32 v{d}, 26, v{d}")
    o("s_cmp_eq_u64 s[74:75], 0")
    o("s_cbranch_scc1 L1_h4")
    o("s_mov_b64 exec, s[74:75]")
    o("s_waitcnt vmcnt(5)")
    hist([(80, 88, 93, 98)])
    o("s_mov_b64 exec, s[72:73]")
    o("s_branch L1_h5")
    o.lab("L1_h4")
    o("s_waitcnt vmcnt(3)")
    o.lab("L1_h5")
    T(o, 3)
    hist([(64+i, 84+i, 89+i, 94+i) for i in range(4)])
    o("s_waitcnt lgkmcnt(0)")
    o.lab("L1_histdone")
    o("s_mov_b64 exec, -1")
    o(f"v_lshlrev_b32 v104, 4, v{L}")
    o("s_sub_u32 s85, s3, 3")
    o("s_lshl_b32 s85, s85, 10")
    o(f"s_add_u32 s85, s85, {PB}")
    o("v_add_u32 v105, s85, v104")
    for i in range(5): o(f"v_add_u32 v{89+i}, s85, v{89+i}")
    T(o, 4)
    o("s_barrier")
    T(o, 5)
    o.c("every edge wave scans the 256 bucket counts for itself")
    o(f"ds_read_b128 v[108:111], v104 offset:{HIST}")
    o("s_waitcnt lgkmcnt(0)")
    o("v_add_u32 v106, v108, v109")
    o("v_add_u32 v107, v106, v110")
    o("v_add_u32 v116, v107, v111")
    o("v_mov_b32 v112, v116")
    o("s_nop 1")
    wave_scan(o, 112)
    o("v_sub_u32 v112, v112, v116")
    o("v_add_u32 v113, v112, v108")
    o("v_add_u32 v114, v112, v106")
    o("v_add_u32 v115, v112, v107")
    o("s_cmp_lg_u32 s3, 15")
    o("s_cbranch_scc1 L1_scat")
    for j in range(4): o(f"v_lshl_or_b32 v{108+j}, v{108+j}, 12, v{112+j}")
    o(f"v_add_u32 v104, {DSV}, v104")
    o("ds_write_b128 v104, v[108:111]")
    o.lab("L1_scat")
    for j in range(4): o(f"v_mul_u32_u24 v{112+j}, 12, v{112+j}")
    o("ds_write_b128 v105, v[112:115]")
    o("s_mov_b64 exec, s[72:73]")
    o("s_cbranch_execz L1_scatdone")
    for i in range(5): o(f"ds_read_b32 v{84+i}, v{89+i}")
    o("s_waitcnt lgkmcnt(0)")
    for i in range(5): o(f"v_mad_u32_u24 v{84+i}, v{94+i}, 12, v{84+i}")
    o("s_waitcnt vmcnt(2)")
    for i in range(4): o(f"v_lshl_or_b32 v{68+i}, v{68+i}, 8, v{64+i}")
    for i in range(4): o(f"ds_write_b32 v{84+i}, v{68+i} offset:{STAGE+8}")
    for i in range(5): o(f"v_add_u32 v{84+i}, {STAGE}, v{84+i}")
    o("s_waitcnt vmcnt(0)")
    T(o, 6)
    for i in range(4): o(f"ds_write2_b32 v{84+i}, v{72+2*i}, v{73+2*i} offset0:0 offset1:1")
    o("s_mov_b64 exec, s[74:75]")
    o("s_cbranch_execz L1_scatdone")
    o("v_lshl_or_b32 v81, v81, 8, v80")
    o("ds_write_b32 v88, v81 offset:8")
    o("ds_write2_b32 v88, v82, v83 offset0:0 offset1:1")
    o.lab("L1_scatdone")
    o("s_mov_b64 exec, -1")
    o.lab("L1_d")
    o(f"s_mul_i32 s85, s2, {CHB}")
    o(f"v_add_u32 v4, {STAGE}, v{V_T16}")
    o(f"v_add_u32 v5, 16384, v{V_T16}")
    o(f"v_add_u32 v6, 32768, v{V_T16}")
    o("v_cmp_gt_u32 vcc, 298, v0")
    o("s_waitcnt lgkmcnt(0)")
    o("s_barrier")
    T(o, 7); T(o, 26, True)
    o("ds_read_b128 v[80:83], v4")
    o("ds_read_b128 v[84:87], v4 offset:16384")
    o("ds_read_b128 v[88:91], v4 offset:32768")
    o("s_waitcnt lgkmcnt(2)")
    o(f"buffer_store_dwordx4 v[80:83], v{V_T16}, s[12:15], s85 offen {ST}")
    o("s_waitcnt lgkmcnt(1)")
    o(f"buffer_store_dwordx4 v[84:87], v5, s[12:15], s85 offen {ST}")
    o("s_mov_b64 exec, vcc")
    o("s_cbranch_execz L1_c3")
    o("s_waitcnt lgkmcnt(0)")
    o(f"buffer_store_dwordx4 v[88:91], v6, s[12:15], s85 offen {ST}")
    o.lab("L1_c3")
    o("s_mov_b64 exec, -1")
    T(o, 8)

def handoff(o, tail, T, cfg):
    o(f"v_lshlrev_b32 v1, 1, v{L}")
    o("v_add_u32 v1, 0x4000, v1")
    for j in range(4): o(f"buffer_load_ushort v{76+j}, v1, s[52:55], 0 offen offset:{128*j}")
    o("v_mov_b32 v74, 0")
    o("buffer_load_dwordx2 v[72:73], v74, s[68:71], 0 offen sc1")
    o.c("selector operands of the 4x4x4 MFMAs that add the gathered gate term")
    o(f"v_and_b32 v1, 3, v{L}")
    o("v_mov_b32 v2, 0x3f80")
    for idx, reg in enumerate((SELA, SELA+1, SELB, SELB+1)):
        o(f"v_cmp_eq_u32 vcc, {idx}, v1")
        o("s_nop 1")
        o(f"v_cndmask_b32 v{reg}, 0, v2, vcc")
    o("s_cmp_lt_u32 s3, 8")
    o("s_cbranch_scc1 L2_pdone")
    o.c("waves 8..15: P = -log2e * x@A - 31 (gate term of the destination node) and x@U (start value of the sums)")
    o("s_and_b32 s86, s3, 1")
    o("s_bfe_u32 s91, s3, 0x10001")
    o("s_bfe_u32 s88, s3, 0x10002")
    o("s_lshl_b32 s89, s91, 12")
    o(f"s_add_u32 s89, s89, {XS}")
    o(f"v_and_b32 v3, 31, v{L}")
    o(f"v_lshrrev_b32 v2, 5, v{L}")
    o("v_lshl_add_u32 v1, v2, 4, s89")
    o("v_lshl_add_u32 v1, v3, 7, v1")
    for s in range(4): o(f"ds_read_b128 {vr(32+4*s,4)}, v1 offset:{32*s}")
    o("s_lshl_b32 s90, s88, 5")
    o("v_add_u32 v3, s90, v3")
    trbase(o, 1, 2, 20)
    o("s_lshl_b32 s89, s86, 13")
    o("s_lshl_b32 s90, s88, 6")
    o("s_add_u32 s89, s89, s90")
    o(f"s_add_u32 s89, s89, {AU}")
    o("v_add_u32 v1, s89, v1")
    for s in range(4):
        for t in range(2):
            o(f"ds_read_b64_tr_b16 {vr(48+4*s+2*t,2)}, v1 offset:{2048*s+512*t}")
    o("v_lshlrev_b32 v2, 2, v2")
    o("s_lshl_b32 s90, s91, 5")
    o("v_add_u32 v2, s90, v2")
    o("v_lshl_add_u32 v2, v2, 6, v3")
    o("s_waitcnt lgkmcnt(0)")
    PD = 96
    for s in range(4): o(mfma16(PD, 32+4*s, 48+4*s, s == 0))
    o("s_cmp_eq_u32 s86, 1")
    o("s_cbranch_scc1 L2_xu")
    o("v_lshlrev_b32 v2, 2, v2")
    o(f"v_mov_b32 v3, {NEG_LOG2E:#x}")
    o("s_nop 8")
    def pwrite(r):
        o(f"v_fmaak_f32 v{PD+r}, v3, v{PD+r}, 0xc1f80000")
        o(f"ds_write_b32 v2, v{PD+r} offset:{PT + (8*(r>>2)+(r&3))*256}")
    def uwrite(r):
        t = 32 + 2 * (r & 7)
        o(f"v_cvt_f64_f32 {vr(t,2)}, v{PD+r}")
        o(f"ds_write_b64 v2, {vr(t,2)} offset:{AGG + (8*(r>>2)+(r&3))*512}")
    for wr, lab in ((pwrite, None), (uwrite, "L2_xu")):
        if lab:
            o.lab(lab); o("v_lshlrev_b32 v2, 3, v2"); o("s_nop 9")
        for r in range(8): wr(r)
        o("s_cmp_eq_u32 s91, 1")
        o("s_cselect_b32 exec_hi, 0, -1")
        for r in range(8, 10): wr(r)
        o("s_mov_b64 exec, -1")
        o("s_cbranch_scc1 L2_pdone")
        for r in range(10, 16): wr(r)
        if not lab: o("s_branch L2_pdone")
    o.lab("L2_pdone")
    o.c("record addressing: wave w, lane group g, step i reads chunk (w&7) + 8*(16*(w>>3) + 4*g + i)")
    o(f"v_lshrrev_b32 v2, 4, v{L}")
    o(f"v_and_b32 v3, 15, v{L}")
    o("v_and_b32 v4, 3, v3")
    o("s_lshr_b32 s27, s3, 3")
    o("s_lshl_b32 s27, s27, 7")
    o("s_and_b32 s81, s3, 7")
    o("s_add_u32 s27, s27, s81")
    o("v_lshl_add_u32 v2, v2, 5, s27")
    o("v_lshl_add_u32 v4, v4, 3, v2")
    o("v_lshlrev_b32 v4, 11, v4")
    o(f"s_mov_b32 s81, {CHB}")
    o(f"v_mul_lo_u32 v{V_LB}, v2, s81")
    o(f"v_mad_u32_u24 v{V_LB}, v3, 12, v{V_LB}")
    for i in range(4): o(f"s_mov_b32 s{SOFF+i}, {8*i*CHB}")
    o("s_lshl_b32 s72, s30, 3")
    o(f"s_add_u32 s72, s72, {WS_DESC}")
    o("s_mul_i32 s82, s31, 100000")
    o(f"s_add_u32 s82, s82, {WS_T}")
    o(f"s_mov_b32 s{S_OFF}, 0")
    o(f"v_mov_b32 v{VC2}, {QC:#x}")
    o(f"v_mov_b32 v{VC2+1}, {QC:#x}")
    o(f"s_mov_b32 s87, {cfg['spin']}")
    o.c("lane l of a 64-slot window takes slot (l & ~7) | ((l & 1) << 2) | ((l >> 1) & 3): two groups interleaved per block")
    o(f"v_and_b32 v3, 1, v{L}")
    o(f"v_bfe_u32 v5, v{L}, 1, 2")
    o("v_lshl_or_b32 v3, v3, 2, v5")
    o(f"v_and_b32 v5, 56, v{L}")
    o(f"v_or_b32 v{V_SG}, v3, v5")
    o(f"v_lshrrev_b32 v3, 2, v{V_SG}")
    o(f"v_lshlrev_b32 v{V_LM}, v3, 2")
    o(f"v_subrev_u32 v{V_LM}, 1, v{V_LM}")
    if cfg["tdef"]:
        o.c("this wave's share of the table stage: unit w>>2 (rt, hh), rows 8*(w&3) .. +7")
        o("s_lshl_b32 s84, s3, 10")
        o(f"s_add_u32 s84, s84, {TS}")
        o(f"v_lshl_add_u32 v5, v{L}, 4, s84")
        o("ds_read_b128 v[92:95], v5")
        o(f"v_lshrrev_b32 v5, 3, v{L}")
        o("s_and_b32 s84, s3, 3")
        o("s_lshl_b32 s84, s84, 3")
        o("s_lshr_b32 s86, s3, 3")
        o("s_lshl_b32 s86, s86, 5")
        o("s_add_u32 s84, s84, s86")
        o("v_add_u32 v5, s84, v5")
        o("v_cmp_gt_u32 s[94:95], 49, v5")
        o(f"v_and_b32 v6, 7, v{L}")
        o("v_lshlrev_b32 v6, 4, v6")
        o("v_lshl_add_u32 v75, v5, 8, v6")
        o("s_bfe_u32 s84, s3, 0x10002")
        o("s_lshl_b32 s84, s84, 7")
        o("s_lshl_b32 s86, s78, 8")
        o("s_add_u32 s84, s84, s86")
        o(f"s_add_u32 s79, s84, {WS_T}")
    o("s_cmp_lg_u32 s3, 15")
    o("s_cbranch_scc1 L2_nd")
    o(f"v_lshlrev_b32 v1, 4, v{L}")
    o(f"v_add_u32 v2, {DSV}, v1")
    o("ds_read_b128 v[64:67], v2")
    o("v_lshlrev_b32 v1, 1, v1")
    o("s_lshl_b32 s85, s2, 11")
    o(f"s_add_u32 s85, s85, {WS_DESC}")
    o.lab("L2_nd")
    for i in range(cfg.get("wd", 0)):
        o(f"buffer_load_dwordx4 {vr(DUM,4)}, v{V_T16}, s[12:15], s82 offen sc1")
        o("s_add_u32 s82, s82, 16384")
    o(f"s_waitcnt vmcnt({cfg.get('wd', 0)}) lgkmcnt(0)")
    for j in range(4): o(f"v_lshlrev_b32 v{76+j}, 16, v{76+j}")
    for j in range(4): o(f"v_mul_f32 v{76+j}, {NEG_LOG2E:#x}, v{76+j}")
    o(f"v_cvt_pk_bf16_f32 v{CW}, v76, v77")
    o(f"v_cvt_pk_bf16_f32 v{CW+1}, v78, v79")
    o.lab("L2_tag")
    o("v_readfirstlane_b32 s74, v72")
    o("v_readfirstlane_b32 s75, v73")
    o("s_sub_u32 s87, s87, 1")
    o("s_cmp_lg_u32 s75, 0")
    o("s_cbranch_scc1 L2_tagok")
    o("s_cmp_le_i32 s87, 0")
    o("s_cbranch_scc1 L2_tagno")
    tail.lab("L2_tagno")
    tail(f"v_mov_b32 v5, {CNT+280}")
    tail("ds_write_b32 v5, v5")
    tail("s_mov_b32 s87, 1")
    tail("s_branch L2_tagok")
    o("buffer_load_dwordx2 v[72:73], v74, s[68:71], 0 offen sc1")
    o("s_waitcnt vmcnt(0)")
    o("s_branch L2_tag")
    o.lab("L2_tagok")
    for j in (81, 83, 85, 87): o(f"v_mov_b32 v{j}, s75")
    for j in range(4): o(f"v_or_b32 v{80+2*j}, s74, v{64+j}")
    T(o, 9); T(o, 27, True)
    o("s_barrier")
    o("s_cmp_lg_u32 s3, 15")
    o("s_cbranch_scc1 L2_f")
    o("buffer_store_dwordx4 v[80:83], v1, s[12:15], s85 offen sc1")
    o("buffer_store_dwordx4 v[84:87], v1, s[12:15], s85 offen offset:16 sc1")
    o("s_waitcnt vmcnt(0)")
    o.lab("L2_f")
    o("s_barrier")
    if cfg["tdef"]:
        o("s_mov_b64 exec, s[94:95]")
        o(f"buffer_store_dwordx4 v[92:95], v75, s[12:15], s79 offen {cfg['st']}")
        o("s_mov_b64 exec, -1")
    o("s_cmp_lg_u32 s3, 0")
    o("s_cbranch_scc1 L2_nn")
    o(f"v_mov_b32 v1, {NULLSLOT*4}")
    o(f"v_mov_b32 v5, {NULLSLOT*8}")
    o(f"v_mov_b32 v6, {NULLROW}")
    o("v_mov_b32 v2, 0")
    o("v_mov_b32 v3, 0")
    o(f"ds_write_b32 v1, v6 offset:{LS}")
    o(f"ds_write_b64 v5, v[2:3] offset:{LE}")
    o.lab("L2_nn")
    T(o, 10); T(o, 28, True)
    for i in range(cfg.get("we", 0)):
        o(f"buffer_load_dwordx4 {vr(DUM,4)}, v{V_T16}, s[12:15], s82 offen sc1")
        o("s_add_u32 s82, s82, 16384")
    if cfg["tdef"]:
        o("buffer_load_dwordx2 v[2:3], v4, s[12:15], s72 offen sc1")
        o(f"v_mov_b32 v5, {CNT+272}")
        o("v_mov_b32 v6, 1")
        o("s_lshl_b32 s84, s2, 3")
        o("v_mov_b32 v64, s84")
        o("v_mov_b32 v66, s74")
        o("v_mov_b32 v67, s75")
        o(f"s_mov_b32 s73, {WS_TF}")
        o("s_waitcnt vmcnt(0)")
        o.c("the wave whose table store is the last to complete publishes the block's flag")
        o("s_mov_b64 exec, 1")
        o("ds_add_rtn_u32 v65, v5, v6")
        o("s_waitcnt lgkmcnt(0)")
        o("v_cmpx_eq_u32 vcc, 15, v65")
        o("s_cbranch_execz L2_ntf")
        o("buffer_store_dwordx2 v[66:67], v64, s[12:15], s73 offen sc1")
        o.lab("L2_ntf")
        o("s_mov_b64 exec, -1")
        o("s_branch L2_pc")
    o.lab("L2_poll")
    o("buffer_load_dwordx2 v[2:3], v4, s[12:15], s72 offen sc1")
    o("s_sub_u32 s87, s87, 1")
    o("s_waitcnt vmcnt(0)")
    o.lab("L2_pc")
    o("v_xor_b32 v2, s74, v2")
    o("v_cmp_ne_u32 vcc, s75, v3")
    o("v_lshrrev_b32 v3, 24, v2")
    o("v_cmp_ne_u32 s[84:85], 0, v3")
    o("s_or_b64 vcc, vcc, s[84:85]")
    o("s_cbranch_scc0 L2_g")
    o("s_cmp_le_i32 s87, 0")
    o("s_cbranch_scc1 L2_gno")
    tail.lab("L2_gno")
    tail(f"v_mov_b32 v5, {CNT+280}")
    tail("ds_write_b32 v5, v5")
    tail("v_mov_b32 v2, 0")
    tail("s_branch L2_g")
    o(f"s_sleep {cfg['sleep']}")
    o("s_branch L2_poll")
    o.lab("L2_g")
    o("v_and_b32 v3, 0xfff, v2")
    o("v_bfe_u32 v2, v2, 12, 12")
    o("v_mul_u32_u24 v3, 12, v3")
    o(f"v_lshl_or_b32 v{V_DESC}, v2, 16, v3")
    if cfg["tdef"]: o(f"s_mov_b32 s79, {cfg['spin']}")
    T(o, 11); T(o, 29, True)

def offsets(o, reg, batch):
    for q in range(4): o(f"ds_read_b128 {vr(reg+4*q,4)}, v{V_SA} offset:{batch*64+16*q}")
def rowload(o, r, cfg): o(f"buffer_load_dword v{r}, v{r}, s[8:11], 0 offen {cfg['ldt']}")

def prefetch(o, cfg):
    o.c("pull part of the table into this XCD's L2 while the records are being placed")
    if cfg.get("wfew", 0):
        o(f"s_cmp_ge_u32 s3, {cfg['wfew']}")
        o("s_cbranch_scc1 L2_nwb")
        o(f"s_mul_i32 s84, s3, {cfg['wb']*1024}")
        o("s_add_u32 s84, s84, s82")
        o(f"v_lshlrev_b32 v{DUM+4}, 4, v{L}")
        for i in range(cfg["wb"]):
            o(f"buffer_load_dwordx4 {vr(DUM,4)}, v{DUM+4}, s[12:15], s84 offen sc1")
            o("s_add_u32 s84, s84, 1024")
        o.lab("L2_nwb")
        return
    o("s_mov_b32 s84, s82")
    for i in range(cfg["wb"]):
        o(f"buffer_load_dwordx4 {vr(DUM,4)}, v{V_T16}, s[12:15], s84 offen sc1")
        o("s_add_u32 s84, s84, 16384")

def alone(o, cfg):
    o.lab("L9_alone")
    o("s_load_dwordx8 s[84:91], s[0:1], 0")
    o("s_load_dwordx2 s[92:93], s[0:1], 40")
    o("s_waitcnt vmcnt(0) lgkmcnt(0)")
    srd(o, 32, 84, N * 128); srd(o, 36, 86, E * 8); srd(o, 40, 88, E * 4); srd(o, 44, 90, E * 4); srd(o, 56, 92, 8192)
    o(f"v_lshlrev_b32 v32, 1, v{L}")
    o(f"v_lshlrev_b32 v33, 16, v{CW}")
    o(f"v_and_b32 v34, 0xffff0000, v{CW}")
    o(f"v_lshlrev_b32 v35, 16, v{CW+1}")
    o(f"v_and_b32 v36, 0xffff0000, v{CW+1}")
    o("v_lshlrev_b32 v37, 2, v0")
    o(f"s_mov_b32 s84, {(E + 1023) // 1024}")
    o.lab("L9_scan")
    o("v_lshlrev_b32 v38, 1, v37")
    o("buffer_load_dword v40, v37, s[44:47], 0 offen")
    o("buffer_load_dword v41, v37, s[40:43], 0 offen")
    o("buffer_load_dwordx2 v[42:43], v38, s[36:39], 0 offen")
    o(f"s_mov_b32 s85, {E*4}")
    o("v_cmp_gt_u32 s[86:87], s85, v37")
    o("s_waitcnt vmcnt(0)")
    o("v_subrev_u32 v40, s78, v40")
    o("v_cmp_gt_u32 vcc, 49, v40")
    o("s_and_b64 s[86:87], s[86:87], vcc")
    o.lab("L9_edge")
    o("s_cmp_eq_u64 s[86:87], 0")
    o("s_cbranch_scc1 L9_next")
    o("s_ff1_i32_b64 s85, s[86:87]")
    o("s_bitset0_b64 s[86:87], s85")
    o("v_readlane_b32 s88, v40, s85")
    o("v_readlane_b32 s89, v41, s85")
    o("v_readlane_b32 s90, v42, s85")
    o("v_readlane_b32 s91, v43, s85")
    o("s_lshl_b32 s89, s89, 7")
    o("v_add_u32 v44, s89, v32")
    o("buffer_load_ushort v45, v44, s[32:35], 0 offen")
    o("s_lshl_b32 s88, s88, 8")
    o(f"v_lshl_add_u32 v44, v{L}, 2, s88")
    o(f"ds_read_b32 v46, v44 offset:{PT}")
    o("v_mov_b32 v52, 0")
    o("v_mov_b32 v53, 0")
    o("s_mov_b32 s92, 0")
    o("s_waitcnt vmcnt(0)")
    o("v_lshlrev_b32 v45, 16, v45")
    o.lab("L9_k")
    o("s_lshl_b32 s93, s92, 7")
    o("s_add_u32 s94, s93, 8192")
    o("buffer_load_ushort v54, v32, s[52:55], s94 offen")
    o("buffer_load_ushort v55, v32, s[56:59], s93 offen")
    o("v_readlane_b32 s95, v45, s92")
    o("s_waitcnt vmcnt(0)")
    o("v_lshlrev_b32 v54, 16, v54")
    o("v_lshlrev_b32 v55, 16, v55")
    o("v_fmac_f32 v52, s95, v54")
    o("v_fmac_f32 v53, s95, v55")
    o("s_add_u32 s92, s92, 1")
    o("s_cmp_lt_u32 s92, 64")
    o("s_cbranch_scc1 L9_k")
    o("s_lshl_b32 s92, s90, 16")
    o("s_and_b32 s93, s90, 0xffff0000")
    o("s_lshl_b32 s94, s91, 16")
    o("s_and_b32 s95, s91, 0xffff0000")
    o("s_waitcnt lgkmcnt(0)")
    o("v_add_f32 v46, 0x41f80000, v46")
    o(f"v_fmac_f32 v46, {NEG_LOG2E:#x}, v52")
    for i in range(4): o(f"v_fmac_f32 v46, s{92+i}, v{33+i}")
    o("v_exp_f32 v46, v46")
    o("s_nop 0")
    o("v_add_f32 v46, 1.0, v46")
    o("v_rcp_f32 v46, v46")
    o("v_add_u32 v44, v44, v44")
    o("v_mul_f32 v46, v46, v53")
    o("v_cvt_f64_f32 v[54:55], v46")
    o(f"ds_add_f64 v44, v[54:55] offset:{AGG}")
    o("s_branch L9_edge")
    o.lab("L9_next")
    o("v_add_u32 v37, 0x1000, v37")
    o("s_sub_u32 s84, s84, 1")
    o("s_cmp_lg_u32 s84, 0")
    o("s_cbranch_scc1 L9_scan")
    o(f"s_mov_b32 s{S_MORE}, 0")
    o(f"s_mov_b32 s{S_PEND}, 0")
    o("s_branch L2_done")

def sort(o, tail, T, cfg):
    o.lab("L2_pass")
    o(f"v_and_b32 v3, 15, v{L}")
    o(f"v_add_u32 v1, s{S_OFF}, v3")
    o("v_add_u32 v2, 16, v1")
    o(f"s_add_u32 s83, s{S_OFF}, 32")
    o(f"v_lshrrev_b32 v4, 16, v{V_DESC}")
    o("v_cmp_lt_u32 vcc, s83, v4")
    o("s_cmp_lg_u64 vcc, 0")
    o(f"s_cselect_b32 s{S_MORE}, 1, 0")
    for i in range(4):
        o(f"v_mov_b32_dpp v{BS}, v4 row_newbcast:{i} row_mask:0xf bank_mask:0xf")
        o(f"v_cmp_lt_u32 {sr(MASK+2*i,2)}, v1, v{BS}")
        o(f"v_cmp_lt_u32 {sr(MASK+8+2*i,2)}, v2, v{BS}")
    o.lab("L2_again")
    o(f"s_mul_i32 s84, s{S_OFF}, 12")
    o(f"v_add_u32 v6, s84, v{V_LB}")
    o(f"v_and_b32 v5, 0xffff, v{V_DESC}")
    o("s_nop 1")
    for i in range(4):
        o(f"v_add_u32_dpp v{BS+1+i}, v5, v6 row_newbcast:{i} row_mask:0xf bank_mask:0xf")
    for i in range(4):
        o(f"s_mov_b64 exec, {sr(MASK+8+2*i,2)}")
        o(f"s_cbranch_execz L2_r2_{i}")
        o(f"buffer_load_dwordx3 {vr(REC+16+4*i,3)}, v{BS+1+i}, s[12:15], s{SOFF+i} offen offset:192 {cfg['ldr']}")
        o.lab(f"L2_r2_{i}")
    for i in range(4):
        o(f"s_mov_b64 exec, {sr(MASK+2*i,2)}")
        o(f"buffer_load_dwordx3 {vr(REC+4*i,3)}, v{BS+1+i}, s[12:15], s{SOFF+i} offen {cfg['ldr']}")
    o("s_mov_b64 exec, -1")
    o("v_mov_b32 v1, 4")
    o(f"v_mov_b32 v2, {CNT}")
    o(f"s_cmp_eq_u32 s{S_MORE}, 0")
    o("s_cbranch_scc1 L2_nomore")
    o("ds_write_b32 v2, v1 offset:256")
    o.lab("L2_nomore")
    o(f"v_cmp_gt_u32 s[92:93], 49, v{L}")
    o("v_mov_b32 v6, 16")
    o(f"v_mov_b32 v5, {CAPN*4}")
    o("v_cndmask_b32 v6, 0, v6, s[92:93]")
    def rank(i):
        o(f"v_add_u32_sdwa v{CA+i}, v{REC+4*i+2}, v2 dst_sel:DWORD dst_unused:UNUSED_PAD src0_sel:BYTE_3 src1_sel:DWORD")
        o(f"ds_add_rtn_u32 v{REC+4*i+3}, v{CA+i}, v1")
        o(f"v_lshrrev_b32 v{CA+i}, 26, v{REC+4*i+2}")
        o(f"v_and_b32 v{REC+4*i+2}, 0xffffff, v{REC+4*i+2}")
    def scat(i):
        o(f"v_lshl_add_u32 v{CA+i}, v{CA+i}, 9, v{REC+4*i+3}")
        o(f"v_cmpx_lt_u32 vcc, v{REC+4*i+3}, v5")
        o(f"v_add_u32 v{BS+i}, v{CA+i}, v{CA+i}")
        o(f"ds_write_b32 v{CA+i}, v{REC+4*i+2} offset:{LS}")
        o(f"ds_write_b64 v{BS+i}, {vr(REC+4*i,2)} offset:{LE}")
    for i in range(4):
        o(f"s_waitcnt vmcnt({3-i})")
        o(f"s_mov_b64 exec, {sr(MASK+2*i,2)}")
        rank(i)
    for i in range(4, 8):
        o(f"s_mov_b64 exec, {sr(MASK+2*i,2)}")
        o(f"s_cbranch_execz L2_rk{i}")
        rank(i)
        o.lab(f"L2_rk{i}")
    o("s_waitcnt lgkmcnt(0)")
    T(o, 12)
    for i in range(4):
        o(f"s_mov_b64 exec, {sr(MASK+2*i,2)}")
        scat(i)
    for i in range(4, 8):
        o(f"s_mov_b64 exec, {sr(MASK+2*i,2)}")
        o(f"s_cbranch_execz L2_sc{i}")
        scat(i)
        o.lab(f"L2_sc{i}")
    o("s_mov_b64 exec, -1")
    o(f"v_lshl_add_u32 v1, v{L}, 2, v2")
    if cfg["wpos"] == "P": prefetch(o, cfg)
    o("s_waitcnt lgkmcnt(0)")
    T(o, 13)
    o("s_setprio 3")
    o("s_barrier")
    T(o, 14)
    o("ds_read_b32 v3, v1")
    o("ds_read2_b32 v[4:5], v2 offset0:64 offset1:70")
    if cfg["tdef"]:
        o(f"v_lshlrev_b32 v61, 5, v{L}")
        o("buffer_load_dwordx4 v[116:119], v61, s[12:15], s73 offen sc1")
        o("buffer_load_dwordx4 v[120:123], v61, s[12:15], s73 offen offset:16 sc1")
    if cfg["wpos"] == "A": prefetch(o, cfg)
    o(f"s_movk_i32 s84, {CAPN*4}")
    o("s_waitcnt lgkmcnt(0)")
    o(f"v_readfirstlane_b32 s{S_MORE}, v4")
    o("v_readfirstlane_b32 s85, v5")
    o("s_cmp_lg_u32 s85, 0" if not cfg.get("force", 0) else "s_cmp_eq_u32 s85, s85")
    o("s_cbranch_scc1 L9_alone")
    alone(tail, cfg)
    o.lab("L2_cap")
    o("v_cmp_lt_u32 vcc, s84, v3")
    o("v_min_u32 v4, s84, v3")
    o("v_add_u32 v5, 15, v4")
    o("v_and_b32 v5, -16, v5")
    o("v_max_u32 v5, v5, v6")
    o(f"v_mov_b32 v{BS}, v5")
    o("s_cmp_lg_u64 vcc, 0")
    o(f"s_cselect_b32 s{S_PEND}, 1, 0")
    wave_scan(o, BS)
    o("s_nop 0")
    o(f"v_readlane_b32 s{S_TOT}, v{BS}, 63")
    o(f"v_sub_u32 v5, v{BS}, v5")
    o(f"s_cmp_gt_u32 s{S_TOT}, {CAPU*4}")
    o("s_cbranch_scc1 L2_over")
    tail.lab("L2_over")
    tail(f"s_movk_i32 s84, {CAPL*4}")
    tail("s_branch L2_cap")
    o(f"s_cmp_lg_u32 s{S_PEND}, 0")
    o("s_cbranch_scc1 L2_pend")
    o.lab("L2_pendb")
    tail.lab("L2_pend")
    tail.c("records ranked past the cap stay pending for another pass over the same window")
    for i in range(8):
        tail(f"v_cmp_le_u32 vcc, s84, v{REC+4*i+3}")
        tail(f"s_and_b64 {sr(MASK+2*i,2)}, {sr(MASK+2*i,2)}, vcc")
    tail("s_branch L2_pendb")
    T(o, 21)
    o("v_lshl_or_b32 v4, v4, 16, v5")
    o.c("this wave's range of batches (16 slots each)")
    o(f"s_add_u32 s86, s{S_TOT}, 63")
    o("s_lshr_b32 s86, s86, 6")
    o(f"s_lshr_b32 s{S_NB}, s86, 4")
    o("s_and_b32 s88, s86, 15")
    o(f"s_mul_i32 s87, s{S_NB}, s3")
    o("s_min_u32 s89, s3, s88")
    o("s_add_u32 s87, s87, s89")
    o("s_cmp_lt_u32 s3, s88")
    o(f"s_addc_u32 s{S_NB}, s{S_NB}, 0")
    o(f"s_add_u32 s88, s87, s{S_NB}")
    o("s_lshl_b32 s89, s87, 6")
    o("s_lshl_b32 s90, s88, 6")
    o("v_cmp_ge_u32 vcc, s89, v5")
    o("s_and_b64 s[94:95], vcc, s[92:93]")
    o("s_bcnt1_i32_b64 s91, s[94:95]")
    o("s_sub_u32 s91, s91, 1")
    o("v_cmp_gt_u32 vcc, s90, v5")
    o("s_andn2_b64 s[94:95], vcc, s[94:95]")
    o("s_and_b64 s[94:95], s[94:95], s[92:93]")
    o("s_lshl_b32 s96, s91, 8")
    o(f"v_lshl_add_u32 v{V_PA}, v{L}, 2, s96")
    o(f"ds_read_b32 v{PC}, v{V_PA} offset:{PT}")
    o(f"ds_read_b32 v{PN}, v{V_PA} offset:{PT+256}")
    o.c("one bit per group (4 slots) that starts a new node: every such node pushes a one to the lane of its group")
    o("v_subrev_u32 v5, s89, v5")
    o("v_lshrrev_b32 v5, 2, v5")
    o("v_cndmask_b32 v5, 0, v5, s[94:95]")
    o("v_mov_b32 v3, 1")
    o("ds_permute_b32 v76, v5, v3")
    o("s_waitcnt lgkmcnt(0)")
    o(f"v_cmp_ne_u32 {sr(MK,2)}, 0, v76")
    o(f"s_and_b32 s{MK}, s{MK}, -2")
    T(o, 22)
    o.c("build the wave's stream: for every slot its node, then source row and edge attributes from the node's list")
    N_, B_, X_ = 64, 68, 72
    o(f"s_mov_b64 s[84:85], {sr(MK,2)}")
    o("s_mov_b32 s86, s91")
    for j in range(4):
        o(f"v_and_b32 v{N_+j}, s84, v{V_LM}")
        o(f"v_bcnt_u32_b32 v{N_+j}, v{N_+j}, s86") if False else None
        o(f"v_bcnt_u32_b32 v{N_+j}, v{N_+j}, 0")
        o(f"v_add_lshl_u32 v{N_+j}, v{N_+j}, s86, 2")
        o(f"ds_bpermute_b32 v{B_+j}, v{N_+j}, v4")
        if j < 3:
            o("s_and_b32 s87, s84, 0xffff")
            o("s_bcnt1_i32_b32 s87, s87")
            o("s_add_u32 s86, s86, s87")
            o("s_lshr_b64 s[84:85], s[84:85], 16")
    o(f"v_lshl_add_u32 v3, v{V_SG}, 2, s89")
    o(f"v_mov_b32 v5, {NULLSLOT*4}")
    o("s_lshl_b32 s96, s3, 10")
    o(f"s_add_u32 s96, s96, {CS}")
    o(f"v_mov_b32 v{V_SA}, s96")
    o(f"v_lshl_add_u32 v6, v{L}, 2, s96")
    for j in range(4):
        o(f"s_waitcnt lgkmcnt({3-j + 2*j})")
        o(f"v_sub_u32_sdwa v{X_+j}, v3, v{B_+j} dst_sel:DWORD dst_unused:UNUSED_PAD src0_sel:DWORD src1_sel:WORD_0")
        o(f"v_lshrrev_b32 v{B_+j}, 16, v{B_+j}")
        o(f"v_cmp_lt_u32 vcc, v{X_+j}, v{B_+j}")
        o(f"v_lshl_add_u32 v{X_+j}, v{N_+j}, 7, v{X_+j}")
        if j < 3: o("v_add_u32 v3, 0x100, v3")
        else: o("s_nop 0")
        o(f"v_cndmask_b32 v{X_+j}, v5, v{X_+j}, vcc")
        o(f"ds_read_b32 v{N_+j}, v{X_+j} offset:{LS}")
        o(f"v_add_u32 v{X_+j}, v{X_+j}, v{X_+j}")
        o(f"ds_read_b64 {vr(EAR if j == 0 else EW+2*j-2, 2)}, v{X_+j} offset:{LE}")
    if cfg.get("nomask", 0): o(f"s_mov_b64 {sr(MK,2)}, 0")
    o.c("per-stage flags, one nibble each: 1 slow head, 2 flush, 4 no more loads, 8 past the last batch")
    o(f"s_lshr_b64 s[84:85], {sr(MK,2)}, 1")
    o(f"s_or_b64 s[84:85], s[84:85], {sr(MK,2)}")
    o("s_lshr_b64 s[86:87], s[84:85], 2")
    o("s_or_b64 s[84:85], s[84:85], s[86:87]")
    o("s_mov_b32 s86, 0x11111111")
    o("s_mov_b32 s87, 0x11111111")
    o("s_and_b64 s[84:85], s[84:85], s[86:87]")
    for j in range(4):
        o(f"s_waitcnt lgkmcnt({7-2*j + j})")
        o(f"ds_write_b32 v6, v{N_+j} offset:{256*j}")
    offsets(o, R[0], 0)
    o(f"s_lshl_b64 {sr(FL,2)}, s[84:85], 5")
    o(f"s_or_b64 {sr(FL,2)}, {sr(FL,2)}, s[84:85]")
    o(f"s_lshl_b64 {sr(MF,2)}, {sr(MK,2)}, 4")
    o(f"s_lshl_b32 s88, s{S_NB}, 2")
    o("s_max_u32 s90, s88, 4")
    o("s_sub_u32 s90, s90, 4")
    o(f"s_lshr_b64 s[84:85], {sr(MK,2)}, s90")
    o(f"s_and_b32 s{S_LF}, s84, 15")
    o(f"s_cmp_eq_u32 s{S_NB}, 0")
    o("s_cbranch_scc1 L2_done")
    if cfg["tdef"]:
        o(f"s_waitcnt vmcnt({cfg['wb'] if cfg['wpos'] == 'A' else 0})")
        o.lab("L2_tfc")
        for j in range(4):
            o(f"v_xor_b32 v{116+2*j}, s74, v{116+2*j}")
            o(f"v_xor_b32 v{117+2*j}, s75, v{117+2*j}")
        o("v_or3_b32 v116, v116, v117, v118")
        o("v_or3_b32 v119, v119, v120, v121")
        o("v_or3_b32 v116, v116, v122, v123")
        o("v_or_b32 v116, v116, v119")
        o("v_cmp_ne_u32 vcc, 0, v116")
        o("s_cbranch_vccnz L2_tfw")
        o.lab("L2_tfd")
        tail.lab("L2_tfw")
        tail("s_sub_u32 s79, s79, 1")
        tail("s_cmp_eq_u32 s79, 0")
        tail("s_cbranch_scc1 L2_tfd")
        tail("s_sleep 2")
        tail("buffer_load_dwordx4 v[116:119], v61, s[12:15], s73 offen sc1")
        tail("buffer_load_dwordx4 v[120:123], v61, s[12:15], s73 offen offset:16 sc1")
        tail("s_waitcnt vmcnt(0)")
        tail("s_branch L2_tfc")
    o("s_waitcnt lgkmcnt(0)")
    if cfg.get("warmtest", 0):
        o("s_waitcnt vmcnt(0)")
        for i in range(cfg["warmtest"]): o("s_sleep 127")
    T(o, 23)
    for r in range(16): rowload(o, R[0] + r, cfg)
    if cfg["wpos"] == "C": prefetch(o, cfg)
    offsets(o, R[1], 1)
    o("s_mov_b32 s84, 0x55555555")
    o("s_mov_b32 s85, 0x55555555")
    o("s_lshl_b64 s[84:85], s[84:85], s90")
    o(f"s_or_b64 {sr(FL,2)}, {sr(FL,2)}, s[84:85]")
    o("s_mov_b64 s[84:85], 8")
    o("s_lshl_b64 s[84:85], s[84:85], s88")
    o(f"s_or_b64 {sr(FL,2)}, {sr(FL,2)}, s[84:85]")
    o.c("the wave lowers its priority as it nears its end so that the waves of a SIMD finish together")
    o(f"s_mov_b32 s{S_PL}, 0")
    o(f"s_mov_b32 s{S_LV}, 3")
    if cfg["pk"]:
        o.c("the first stages also pull the rest of this workgroup's table slice into L2 (landing in a dead LDS area)")
        o(f"s_mov_b32 s{S_PL}, {((1 << cfg['ps']) - 1) << 16:#x}")
        o(f"s_or_b32 s{FL}, s{FL}, {sum(1 << (4*i) for i in range(cfg['ps'])):#x}")
        o(f"s_add_u32 s24, s82, {16384*cfg['wb']}")
        o(f"s_mov_b32 m0, {DSV}")
    for i, rem in enumerate(int(x) for x in str(cfg["pp"])):
        o(f"s_cmp_gt_u32 s{S_NB}, {rem}")
        o(f"s_cbranch_scc0 L3_np{i}")
        o(f"s_sub_u32 s90, s{S_NB}, {rem}")
        o(f"s_bitset1_b32 s{S_PL}, s90")
        o("s_lshl_b32 s90, s90, 2")
        o(f"s_bitset1_b64 {sr(FL,2)}, s90")
        o.lab(f"L3_np{i}")
    o(f"v_add_u32 v{V_FA}, v{V_PA}, v{V_PA}")
    o(f"v_add_u32 v{V_PA}, 0x100, v{V_PA}")
    o(f"v_mov_b32 v{ACC}, 0")
    o(f"v_mov_b32 v{ACC+1}, 0")
    for c in range(1, 4): o(f"v_mov_b32 v{PC+c}, v{PC}")

def flush(o):
    o(f"v_add_f32 v{FT}, v{ACC}, v{ACC+1}")
    o(f"v_mul_f32 v{FT}, {QC:#x}, v{FT}")
    o(f"v_cvt_f64_f32 {vr(F64,2)}, v{FT}")
    o(f"ds_add_f64 v{V_FA}, {vr(F64,2)} offset:{AGG}")

def head(oo, late, u, cfg, slow):
    rc = R[u]; rl = R[(u + 1) & 3]; rp = R[(u + 3) & 3]
    if slow:
        oo(f"s_bitcmp1_b32 s{FL}, {4*u+2}")
        oo("s_waitcnt lgkmcnt(0)")
        oo(f"s_cbranch_scc1 L3_nl{u}")
        if not cfg.get("noload", 0):
            for r in range(16): rowload(oo, rl + r, cfg)
        if cfg["pk"]:
            oo(f"s_bitcmp1_b32 s{S_PL}, {16+u}")
            oo(f"s_cbranch_scc1 L3_pf{u}")
            late.lab(f"L3_pf{u}")
            for i in range(cfg["pk"]):
                late(f"buffer_load_dwordx4 v{V_T16}, s[12:15], s24 offen sc1 lds")
                late("s_add_u32 s24, s24, 16384")
            late(f"s_waitcnt vmcnt({16+cfg['pk']})")
            late(f"s_branch L3_lb{u}")
        oo("s_waitcnt vmcnt(16)")
        oo.lab(f"L3_lb{u}")
        late.lab(f"L3_nl{u}")
        late("s_waitcnt vmcnt(0)")
        late(f"s_branch L3_lb{u}")
        oo(f"s_bitcmp1_b32 s{S_PL}, {u}")
        oo(f"s_cbranch_scc1 L3_pd{u}")
        oo.lab(f"L3_pe{u}")
        late.lab(f"L3_pd{u}")
        late(f"s_sub_u32 s{S_LV}, s{S_LV}, 1")
        late("s_setprio 0")
        late(f"s_cmp_eq_u32 s{S_LV}, 0")
        late(f"s_cbranch_scc1 L3_pe{u}")
        late("s_setprio 1")
        late(f"s_cmp_eq_u32 s{S_LV}, 1")
        late(f"s_cbranch_scc1 L3_pe{u}")
        late("s_setprio 2")
        late(f"s_branch L3_pe{u}")
    else:
        oo("s_waitcnt vmcnt(0) lgkmcnt(0)")
    E = lambda t: oo(m4(G+4*t, EAR, CW, PC, f" cbsz:4 abid:{4*u+t}"))
    QA = lambda g: oo(m4(G+4*g, SELA, rc+4*g, G+4*g))
    QB = lambda g: oo(m4(G+4*g, SELB, rc+4*g+2, G+4*g))
    rr = [rp+2, rp+3, rp+10, rp+11]
    rcp = lambda i: oo(f"v_rcp_f32 v{rr[i]}, v{rr[i]}")
    def block(b):
        for j in range(2):
            n = f"{u}_{2*b+j}"
            oo(f"s_bitcmp1_b32 s{MK}, {4*u+2*b+j}")
            oo(f"s_cbranch_scc1 L3_ps{n}")
            oo.lab(f"L3_pb{n}")
            late.lab(f"L3_ps{n}")
            late("s_waitcnt lgkmcnt(0)")
            late(f"v_mov_b32 v{PC+1}, v{PN}")
            late(f"v_add_u32 v{V_PA}, 0x100, v{V_PA}")
            late(f"ds_read_b32 v{PN}, v{V_PA} offset:{PT}")
            late(f"s_branch L3_pb{n}")
            if j == 0:
                oo(f"v_mov_b32 v{PC}, v{PC+1}")
                oo(f"v_mov_b32 v{PC+2}, v{PC+1}")
            else:
                oo(f"v_mov_b32 v{PC+3}, v{PC+1}")
                oo("s_nop 1")
    if slow: block(0)
    E(0); rcp(0); E(1); rcp(1); QA(0); rcp(2)
    if slow: block(1)
    E(2); rcp(3); QB(0); E(3); QA(1); QA(2)
    if slow:
        oo(f"v_mov_b32 v{PC}, v{PC+1}")
        oo(f"v_mov_b32 v{PC+2}, v{PC+1}")
    oo(f"s_bitcmp1_b32 s{FL}, {4*u+1}")
    QB(1)
    for r in range(16):
        oo(f"v_exp_f32_e64 v{G+r}, v{G+r} clamp")
        if not slow and not cfg.get("noload", 0): rowload(oo, rl + r, cfg)
        if r == 0: QA(3)
        if r == 1: QB(2)
        if r == 2: QB(3)

def accum(o, tail, name, rp, reg, bit0):
    o(f"s_cbranch_scc1 L3_sf{name}")
    for b in range(2): o(pk("fma", ACC, rp+8*b, rp+8*b+2, ACC))
    o.lab(f"L3_fb{name}")
    tail.lab(f"L3_sf{name}")
    for g in range(4):
        b, j = g >> 1, g & 1
        tail(f"s_bitcmp1_b32 s{reg}, {bit0+g}")
        tail(f"s_cbranch_scc0 L3_sk{name}_{g}")
        flush(tail)
        tail(f"v_add_u32 v{V_FA}, 0x200, v{V_FA}")
        tail(f"v_mov_b32 v{ACC}, 0")
        tail(f"v_mov_b32 v{ACC+1}, 0")
        tail.lab(f"L3_sk{name}_{g}")
        tail(f"v_fmac_f32 v{ACC+j}, v{rp+8*b+j}, v{rp+8*b+2+j}")
    tail(f"s_branch L3_fb{name}")

def stage(o, tail, u, cfg):
    rc = R[u]; rp = R[(u + 3) & 3]; ro = R[(u + 2) & 3]
    o(f"s_bitcmp1_b32 s{FL}, {4*u}")
    o(f"s_cbranch_scc1 L3_se{u}")
    head(o, None, u, cfg, False)
    o.lab(f"L3_xb{u}")
    tail.lab(f"L3_se{u}")
    tail(f"s_bitcmp1_b32 s{FL}, {4*u+3}")
    tail(f"s_cbranch_scc1 L3_last{(u+3)&3}")
    late = Asm()
    head(tail, late, u, cfg, True)
    tail(f"s_branch L3_xb{u}")
    tail.l += late.l
    accum(o, tail, str(u), rp, MF, 4*u)
    offsets(o, ro, u + 2)
    for r in range(0, 16, 2): o(pk("add", G+r, G+r, VC2))
    seq = [lambda d, h: pk("mul", h, h, d+2), lambda d, h: pk("mul", h+4, h+4, d+6),
           lambda d, h: pk("fma", h, h+2, d, h), lambda d, h: pk("fma", h+4, h+6, d+4, h+4),
           lambda d, h: pk("mul", d, d, d+2), lambda d, h: pk("mul", d+4, d+4, d+6),
           lambda d, h: pk("mul", h, h, d+4), lambda d, h: pk("mul", h+2, d, d+4),
           lambda d, h: pk("fma", h, h+4, d, h)]
    for f in seq:
        for b in range(2): o(f(G+8*b, rc+8*b))
    if u == 3:
        o(f"v_add_u32 v{V_SA}, 0x100, v{V_SA}")
        o(f"v_mov_b64 {vr(EAR,2)}, {vr(EW,2)}")
        o(f"v_mov_b64 {vr(EW,2)}, {vr(EW+2,2)}")
        o(f"v_mov_b64 {vr(EW+2,2)}, {vr(EW+4,2)}")
        for r in (FL, MK, MF): o(f"s_lshr_b64 {sr(r,2)}, {sr(r,2)}, 16")
        if cfg["pk"]: o(f"s_and_b32 s{S_PL}, s{S_PL}, 0xffff")
        o(f"s_lshr_b32 s{S_PL}, s{S_PL}, 4")
        o("s_branch L2_loop")

def mainloop(o, tail, T, cfg):
    o(f"s_waitcnt vmcnt({16 if cfg['wpos'] != 'C' else 0}) lgkmcnt(0)")
    for b in range(2):
        for j in range(2):
            o(f"v_mov_b32 v{R[3]+8*b+j}, 0")
            o(f"v_mov_b32 v{R[3]+8*b+2+j}, 1.0")
    T(o, 15); T(o, 16, True)
    o(".p2align 3")
    if cfg.get("clk", 0): o("s_mov_b32 m0, 24")
    o.lab("L2_loop")
    if cfg.get("clk", 0):
        o("s_memtime s[100:101]"); o("s_memrealtime s[98:99]"); o("s_waitcnt lgkmcnt(0)")
        o(f"v_writelane_b32 v{V_ST}, s100, m0"); o("s_add_u32 m0, m0, 1"); o("s_nop 1"); o(f"v_writelane_b32 v{V_ST}, s98, m0"); o("s_add_u32 m0, m0, 1")
    o.c("per block of two groups: sum h_i / d_i = N / D with d_i = 2^-31 + min(1, 2^(t_i - 31)); one reciprocal per group")
    for u in range(4): stage(o, tail, u, cfg)
    for u in range(4):
        oo = o if u == 0 else tail
        oo.lab(f"L3_last{u}")
        for r in (2, 3, 10, 11): oo(f"v_rcp_f32 v{R[u]+r}, v{R[u]+r}")
        oo(f"s_cmp_lg_u32 s{S_LF}, 0")
        t2 = Asm()
        accum(oo, t2, f"e{u}", R[u], S_LF, 0)
        if u != 0: oo("s_branch L2_last")
        tail.l += t2.l
    o.lab("L2_last")
    flush(o)
    o.lab("L2_done")
    o("s_waitcnt vmcnt(0) lgkmcnt(0)")
    T(o, 17); T(o, 18, True)
    o("s_barrier")
    o(f"s_or_b32 s84, s{S_MORE}, s{S_PEND}")
    o("s_cbranch_scc1 L2_next")
    tail.lab("L2_next")
    tail("v_mov_b32 v3, 0")
    tail("ds_write_b32 v1, v3")
    tail("ds_write_b32 v2, v3 offset:256")
    tail("s_waitcnt lgkmcnt(0)")
    tail("s_barrier")
    tail(f"s_cmp_lg_u32 s{S_PEND}, 0")
    tail("s_cbranch_scc1 L2_again")
    tail(f"s_add_u32 s{S_OFF}, s{S_OFF}, 32")
    tail("s_branch L2_pass")
    o("v_lshlrev_b32 v1, 5, v0")
    o(f"ds_read_b128 v[80:83], v1 offset:{AGG}")
    o(f"ds_read_b128 v[84:87], v1 offset:{AGG+16}")
    o("v_cmp_gt_u32 vcc, 784, v0")
    o("s_lshl_b32 s93, s78, 7")
    o("v_lshl_add_u32 v2, v0, 3, s93")
    o("s_and_saveexec_b64 s[94:95], vcc")
    o("s_cbranch_execz L2_fin")
    o("s_waitcnt lgkmcnt(0)")
    for r in range(4): o(f"v_cvt_f32_f64 v{64+r}, {vr(80+2*r,2)}")
    for r in range(4): o(f"v_mul_f32 v{72+r}, {NEG_LOG2E:#x}, v{64+r}")
    for r in range(4): o(f"v_exp_f32 v{72+r}, v{72+r}")
    for r in range(4): o(f"v_add_f32 v{72+r}, 1.0, v{72+r}")
    for r in range(4): o(f"v_rcp_f32 v{72+r}, v{72+r}")
    for r in range(4): o(f"v_mul_f32 v{64+r}, v{64+r}, v{72+r}")
    for r in range(2): o(f"v_cvt_pk_bf16_f32 v{72+r}, v{64+2*r}, v{65+2*r}")
    o(f"buffer_store_dwordx2 v[72:73], v2, s[16:19], 0 offen {cfg['sto']}")
    o.lab("L2_fin")
    if T.on:
        o("s_waitcnt vmcnt(0)"); T(o, 19); T(o, 20, True); T.dump(o)

HEADER = """; Edge-gated MPNN layer: out = silu(x@U + sum over edges with dst=i of sigmoid(x[dst]@A + x[src]@B + e@C) * (x[src]@V))
; @launch grid=(256,1,1) block=(1024,1,1) lds={l}
.amdgcn_target "amdgcn-amd-amdhsa--gfx950"
.text
.globl {n}
.p2align 8
.type {n},@function
"""
FOOTER = """.section .rodata,"a"
.p2align 6
.amdhsa_kernel {n}
  .amdhsa_next_free_vgpr 128
  .amdhsa_next_free_sgpr 102
  .amdhsa_accum_offset 128
  .amdhsa_group_segment_fixed_size 0
  .amdhsa_kernarg_size 80
  .amdhsa_user_sgpr_count 2
  .amdhsa_user_sgpr_kernarg_segment_ptr 1
  .amdhsa_system_sgpr_workgroup_id_x 1
  .amdhsa_float_denorm_mode_32 3
  .amdhsa_dx10_clamp 0
.end_amdhsa_kernel
"""
DEFAULTS = dict(st="sc1", ld1="nt", ldt="", sto="", wb=1, wpos="A", early=0, cpf=1, pk=0, ps=3, tdef=0, we=0, ldr="sc1", mkp=1, pp=631, sleep=2, spin=50000, stamp=0)
def build(cfg):
    cfg = dict(DEFAULTS, **cfg)
    o = Asm(); tail = Asm(); T = Stamper(cfg["stamp"])
    o.lab(NAME)
    o("s_cmp_ge_u32 s2, 256")
    o("s_cbranch_scc1 L_end")
    T(o, 0, True); T(o, 1)
    phase1(o, tail, T, cfg); handoff(o, tail, T, cfg); sort(o, tail, T, cfg); mainloop(o, tail, T, cfg)
    o.lab("L_end")
    o("s_endpgm")
    return HEADER.format(l=LDS, n=NAME) + o.text() + tail.text() + "L_codeend:\n" + FOOTER.format(n=NAME)

if __name__ == "__main__":
    cfg = {}
    for a in sys.argv[2:]:
        k, v = a.split("=")
        cfg[k] = int(v) if v.lstrip("-").isdigit() else v
    open(sys.argv[1], "w").write(build(cfg))
```

```python
import sys

class Asm:
    def __init__(self): self.l = []
    def __call__(self, s): self.l.append("    " + s)
    def lab(self, s): self.l.append(s + ":")
    def c(self, s): self.l.append("    ; " + s)
    def text(self): return "\n".join(self.l) + "\n"
def vr(a, n=1): return f"v{a}" if n == 1 else f"v[{a}:{a+n-1}]"
def sr(a, n=1): return f"s{a}" if n == 1 else f"s[{a}:{a+n-1}]"

N = 12500; E = 800000; NPB = 49; CH = 3128; CHB = CH * 12
WS_DESC = 0x00A00000; WS_TF = 0x00A80000; STAMP_BASE = 0x00B00000; WS_T = 0x00C00000; T_BYTES = 256 * NPB * 256
NULLROW = N * 256; NEG_LOG2E = 0xBFB8AA3B; MAGIC49 = 21400; QC = 0x30000000
assert all(((d * MAGIC49) >> 20) == d // 49 for d in range(N))
NAME = "standalone__edge_featured_mpnn_egc__graph_kernel"

CAPN = 128; CAPU = 3840; CAPL = 74
PT = 0; AGG = 13312; OV = 38912
LS = OV; LE = LS + 50 * CAPN * 4; CS = LE + 50 * CAPN * 8
HIST = OV; STAGE = OV + 1024; PB = OV + 38912
XS = 93696; WL = XS + 8192; TS = WL + 16384; AU = TS + 16384
CNT = AU + 16384; DSV = CNT + 512; LDS = DSV + 1024
NULLSLOT = 49 * CAPN
assert STAGE + CHB <= PB and PB + 13 * 1024 <= XS and CNT % 256 == 0 and CS + 16 * 1024 + 256 <= CNT and LE < 65536
assert NPB * ((CAPL + 3) // 4 * 4) + 15 <= CAPU and LDS <= 163840

R = [64, 80, 96, 112]; G = 32
EAR = 30; CW = 28; SELA = 26; SELB = 24; PC = 20; ACC = 18; F64 = 16
V_SA = 15; V_PA = 13; V_FA = 12; V_ST = 11; L = 10; V_DESC = 9; V_LB = 8; V_T16 = 7
PN = 48; VC2 = 50; FT = 52; EW = 54; V_LM = 14; V_SG = 60
REC = 64; CA = 96; BS = 104; DUM = 112
S_PEND = 20; S_OFF = 21; S_NB = 22; S_LF = 23; S_MORE = 25; S_TOT = 26
FL = 28; MF = 4; S_PL = 6; S_LV = 7; MK = 76; MASK = 32; SOFF = 64

class Stamper:
    def __init__(self, on): self.on = on
    def __call__(self, o, i, real=False):
        if not self.on: return
        o(f"{'s_memrealtime' if real else 's_memtime'} s[100:101]")
        o("s_waitcnt lgkmcnt(0)")
        o(f"v_writelane_b32 v{V_ST}, s100, {i}")
    def dump(self, o):
        if not self.on: return
        o("s_mov_b32 exec_hi, 0"); o("s_mov_b32 exec_lo, -1")
        o("s_lshl_b32 s4, s2, 4"); o("s_add_u32 s4, s4, s3"); o("s_lshl_b32 s4, s4, 7")
        o(f"s_add_u32 s4, s4, {STAMP_BASE}")
        o(f"v_lshl_add_u32 v1, v{L}, 2, s4")
        o(f"buffer_store_dword v{V_ST}, v1, s[12:15], 0 offen")

def srd(o, d, p, size):
    o(f"s_mov_b32 s{d}, s{p}"); o(f"s_and_b32 s{d+1}, s{p+1}, 0xffff")
    o(f"s_mov_b32 s{d+2}, {size}"); o(f"s_mov_b32 s{d+3}, 0x00020000")
def wave_scan(o, v):
    for sh in (1, 2, 4, 8):
        o(f"v_add_u32_dpp v{v}, v{v}, v{v} row_shr:{sh} row_mask:0xf bank_mask:0xf bound_ctrl:0")
        o("s_nop 1")
    o(f"v_add_u32_dpp v{v}, v{v}, v{v} row_bcast:15 row_mask:0xa bank_mask:0xf")
    o("s_nop 1")
    o(f"v_add_u32_dpp v{v}, v{v}, v{v} row_bcast:31 row_mask:0xc bank_mask:0xf")
def mfma16(d, a, b, first):
    return f"v_mfma_f32_32x32x16_bf16 {vr(d,16)}, {vr(a,4)}, {vr(b,4)}, {'0' if first else vr(d,16)}"
def m4(d, a, b, c, extra=""):
    return f"v_mfma_f32_4x4x4_16b_bf16 {vr(d,4)}, {vr(a,2)}, {vr(b,2)}, {vr(c,4)}{extra}"
def pk(op, d, a, b, c=None):
    return f"v_pk_{op}_f32 {vr(d,2)}, {vr(a,2)}, {vr(b,2)}" + (f", {vr(c,2)}" if c is not None else "")
def trbase(o, d, h, t):
    o(f"v_bfe_u32 v{t}, v{L}, 2, 2")
    o(f"v_lshl_add_u32 v{d}, v{h}, 3, v{t}")
    o(f"v_lshlrev_b32 v{d}, 7, v{d}")
    o(f"v_bfe_u32 v{t}, v{L}, 4, 1")
    o(f"v_lshl_add_u32 v{d}, v{t}, 5, v{d}")
    o(f"v_and_b32 v{t}, 3, v{L}")
    o(f"v_lshl_add_u32 v{d}, v{t}, 3, v{d}")

def phase1(o, tail, T, cfg):
    ST = cfg["st"]; LD = cfg["ld1"]
    def misc():
        o("s_cmp_lg_u32 s3, 1")
        o("s_cbranch_scc1 L1_nn")
        o("s_cmp_lg_u32 s2, 0")
        o("s_cbranch_scc1 L1_nn")
        o.c("launch tag: tells this launch's descriptors from whatever an earlier launch left in ws")
        o("s_memrealtime s[84:85]")
        o("s_waitcnt lgkmcnt(0)")
        o("s_lshl_b32 s86, s84, 24")
        o("s_lshr_b64 s[84:85], s[84:85], 8")
        o("s_bitset1_b32 s84, 31")
        o("v_mov_b32 v32, s86")
        o("v_mov_b32 v33, s84")
        o("v_mov_b32 v34, 0")
        o("s_mov_b64 exec, 1")
        o("buffer_store_dwordx2 v[32:33], v34, s[68:71], 0 offen sc1")
        o("s_mov_b64 exec, -1")
        o.lab("L1_nn")
        o("s_cmp_lg_u32 s3, 2")
        o("s_cbranch_scc1 L1_nz")
        o.c("touch the pages stored to later (address translation only, data unused)")
        o("v_mov_b32 v32, 0")
        o(f"s_mul_i32 s84, s2, {CHB}")
        o("s_lshl_b32 s85, s78, 8")
        o(f"s_add_u32 s85, s85, {WS_T}")
        o(f"s_mov_b32 s86, {WS_DESC}")
        for sreg in (84, 85, 86): o(f"buffer_load_dword v33, v32, s[12:15], s{sreg} offen sc1")
        o(f"s_add_u32 s84, s84, {CHB-4}")
        o("buffer_load_dword v33, v32, s[12:15], s84 offen sc1")
        o("buffer_load_dword v33, v32, s[16:19], 0 offen sc1")
        o.lab("L1_nz")
    o("s_load_dwordx16 s[80:95], s[0:1], 0")
    o("s_load_dwordx4 s[96:99], s[0:1], 64")
    if cfg["cpf"]:
        o.c("read this kernel's code once per XCD so that later instruction fetches find it in L2 (data unused)")
        o("s_getpc_b64 s[8:9]")
        o.lab("L_pc")
        o("s_and_b32 s9, s9, 0xffff")
        o("s_mov_b32 s10, L_codeend-L_pc")
        o("s_mov_b32 s11, 0x00020000")
        if cfg["cpf"] == 1:
            o("s_lshr_b32 s4, s2, 3")
            o("s_lshl_b32 s4, s4, 10")
            o("v_lshl_add_u32 v1, v0, 4, s4")
            o("v_cmp_gt_u32 vcc, 64, v0")
            o("s_and_saveexec_b64 s[4:5], vcc")
            o("s_cbranch_execz L_npf")
            o("buffer_load_dwordx4 v[120:123], v1, s[8:11], 0 offen")
            o.lab("L_npf")
            o("s_mov_b64 exec, -1")
        else:
            o("v_lshlrev_b32 v1, 7, v0")
            o("v_cmp_gt_u32 vcc, 256, v0")
            o("s_and_saveexec_b64 s[4:5], vcc")
            o("s_cbranch_execz L_npf")
            o("buffer_load_dword v120, v1, s[8:11], 0 offen")
            o.lab("L_npf")
            o("s_mov_b64 exec, -1")
    o("v_lshrrev_b32 v1, 6, v0")
    o(f"v_and_b32 v{L}, 63, v0")
    o("s_movk_i32 s4, 768")
    o("s_cmp_eq_u32 s2, 255")
    o("s_cselect_b32 s4, 590, s4")
    o("s_cselect_b32 s6, 0, 56")
    o("v_readfirstlane_b32 s3, v1")
    o("s_mul_i32 s5, s2, 12512")
    o("v_subrev_u32 v4, 256, v0")
    o("v_lshl_add_u32 v2, v4, 4, s5")
    o("v_lshlrev_b32 v3, 1, v2")
    o("v_cmp_gt_u32 s[72:73], s4, v4")
    o("v_cmp_gt_u32 s[74:75], s6, v4")
    o("s_and_b32 s30, s2, 7")
    o("s_lshl_b32 s30, s30, 5")
    o("s_lshr_b32 s31, s2, 3")
    o("s_add_u32 s30, s30, s31")
    o("s_mul_i32 s78, s30, 49")
    o(f"v_lshlrev_b32 v{V_T16}, 4, v0")
    o("s_add_u32 s5, s5, 12288")
    o("v_lshl_add_u32 v5, v4, 2, s5")
    o(f"s_mov_b32 s38, {E*4}"); o("s_mov_b32 s39, 0x00020000")
    o("s_waitcnt lgkmcnt(0)")
    o("s_mov_b32 s36, s86"); o("s_and_b32 s37, s87, 0xffff")
    o("s_mov_b64 exec, s[72:73]")
    o("s_cbranch_execz L1_noload")
    o(f"buffer_load_dwordx4 v[64:67], v2, s[36:39], 0 offen {LD}")
    o("s_mov_b64 exec, s[74:75]")
    o("s_cbranch_execz L1_noload")
    o(f"buffer_load_dword v80, v5, s[36:39], 0 offen {LD}")
    o.lab("L1_noload")
    o("s_mov_b64 exec, -1")
    o("s_cmp_gt_u32 s3, 3")
    o("s_cbranch_scc1 L1_a")
    o.c("table waves 0..3, unit (rt = w>>1, hh = w&1): LDS-DMA of the block's 64 x rows and the raw B / V weights")
    srd(o, 48, 80, N * 128)
    o(f"v_lshlrev_b32 v25, 4, v{L}")
    o("s_lshl_b32 s4, s3, 11")
    o("s_lshl_b32 s5, s78, 7")
    o("s_add_u32 s5, s5, s4")
    o(f"s_add_u32 s4, s4, {XS}")
    o("s_mov_b32 m0, s4")
    o("v_add_u32 v20, s5, v25")
    o("s_and_b32 s6, s3, 1")
    o("s_lshr_b32 s7, s3, 1")
    o(f"buffer_load_dwordx4 v20, s[48:51], 0 offen {cfg.get('ldx', '')} lds")
    o(f"buffer_load_dwordx4 v20, s[48:51], 0 offen offset:1024 {cfg.get('ldx', '')} lds")
    o("s_cmp_eq_u32 s7, 0")
    o("s_cselect_b32 s52, s92, s90")
    o("s_cselect_b32 s53, s93, s91")
    o("s_cselect_b32 s5, 8192, 0")
    o("s_and_b32 s53, s53, 0xffff")
    o("s_add_u32 s54, s5, 8192")
    o("s_mov_b32 s55, 0x00020000")
    o("s_lshl_b32 s4, s6, 12")
    o("s_add_u32 s5, s5, s4")
    o("s_lshl_b32 s4, s3, 12")
    o(f"s_add_u32 s4, s4, {WL}")
    o("s_mov_b32 m0, s4")
    o("s_cmp_lg_u32 s3, 2")
    for i in range(4): o(f"buffer_load_dwordx4 v25, s[52:55], s5 offen offset:{1024*i} {cfg.get('ldw', '')} lds")
    o("s_cbranch_scc1 L1_a")
    for i in range(4): o(f"v_mov_b32 v{32+i}, 0")
    o(f"ds_write_b128 v25, v[32:35] offset:{HIST}")
    o(f"v_lshlrev_b32 v26, 2, v{L}")
    o(f"v_add_u32 v26, {CNT}, v26")
    o("ds_write_b32 v26, v32")
    o("ds_write_b32 v26, v32 offset:64")
    o("s_waitcnt lgkmcnt(0)")
    o.lab("L1_a")
    srd(o, 40, 84, E * 4); srd(o, 44, 82, E * 8)
    T(o, 2)
    o("s_barrier")
    o("s_mov_b64 exec, s[72:73]")
    o("s_cbranch_execz L1_noload2")
    o(f"buffer_load_dwordx4 v[68:71], v2, s[40:43], 0 offen {LD}")
    o(f"buffer_load_dwordx4 v[72:75], v3, s[44:47], 0 offen {LD}")
    o(f"buffer_load_dwordx4 v[76:79], v3, s[44:47], 0 offen offset:16 {LD}")
    o("s_mov_b64 exec, s[74:75]")
    o("s_cbranch_execz L1_noload2")
    o("v_lshlrev_b32 v3, 1, v5")
    o(f"buffer_load_dword v81, v5, s[40:43], 0 offen {LD}")
    o(f"buffer_load_dwordx2 v[82:83], v3, s[44:47], 0 offen {LD}")
    o.lab("L1_noload2")
    o("s_mov_b64 exec, -1")
    srd(o, 12, 98, WS_T + T_BYTES); srd(o, 16, 94, N * 128); srd(o, 68, 96, 256)
    srd(o, 52, 92, 132 * 128); srd(o, 60, 88, 64 * 128)
    o.c("table descriptor: stride 4 with thread-id addressing, so one uniform row offset reads the 64 channels")
    o(f"s_add_u32 s8, s98, {WS_T}"); o("s_addc_u32 s9, s99, 0")
    o("s_and_b32 s9, s9, 0xffff"); o("s_or_b32 s9, s9, 0x40000")
    o(f"s_mov_b32 s10, {T_BYTES}"); o("s_mov_b32 s11, 0x00800000")
    if cfg.get("stale", 0):
        o("s_mul_i32 s82, s31, 100352")
        o(f"s_add_u32 s82, s82, {WS_T}")
        for i in range(7):
            o(f"buffer_load_dwordx4 v[124:127], v{V_T16}, s[12:15], s82 offen sc1")
            o("s_add_u32 s82, s82, 16384")
        o("s_waitcnt vmcnt(0)")
    o("s_cmp_gt_u32 s3, 3")
    o("s_cbranch_scc1 L1_edge")
    o("s_lshl_b32 s29, s3, 12")
    o(f"s_add_u32 s29, s29, {TS}")
    o(f"v_and_b32 v24, 31, v{L}")
    o(f"v_lshrrev_b32 v25, 5, v{L}")
    o("s_lshl_b32 s84, s7, 12")
    o(f"s_add_u32 s84, s84, {XS}")
    o("v_lshl_add_u32 v20, v25, 4, s84")
    o("v_lshl_add_u32 v20, v24, 7, v20")
    o("v_lshlrev_b32 v27, 9, v25")
    o("v_lshl_add_u32 v27, v24, 2, v27")
    o("v_add_u32 v27, s29, v27")
    trbase(o, 26, 25, 28)
    o("s_lshl_b32 s84, s6, 6")
    o(f"s_add_u32 s84, s84, {WL}")
    o("v_add_u32 v26, s84, v26")
    o(f"v_lshrrev_b32 v21, 3, v{L}")
    o(f"v_and_b32 v22, 7, v{L}")
    o("v_lshlrev_b32 v22, 4, v22")
    o("s_lshl_b32 s84, s7, 5")
    o("v_add_u32 v23, s84, v21")
    o("v_lshl_add_u32 v29, v23, 8, v22")
    o("v_lshl_add_u32 v21, v21, 7, v22")
    o("v_add_u32 v21, s29, v21")
    o("s_lshl_b32 s84, s3, 12")
    o(f"s_add_u32 s85, s84, {AU}")
    o("s_mov_b32 m0, s85")
    o(f"v_lshlrev_b32 v28, 4, v{L}")
    if cfg["early"]:
        o.c("the four table waves meet through an LDS counter once their staging loads have landed")
        o(f"v_mov_b32 v32, {CNT+272}")
        o("v_mov_b32 v33, 1")
        o("s_setprio 2")
        o("s_waitcnt vmcnt(0)")
        o("s_mov_b64 exec, 1")
        o("ds_add_u32 v32, v33")
        o("s_mov_b64 exec, -1")
        o.lab("L1_tw")
        o("ds_read_b32 v33, v32")
        o("s_waitcnt lgkmcnt(0)")
        o("v_readfirstlane_b32 s84, v33")
        o("s_cmp_lt_u32 s84, 4")
        o("s_cbranch_scc1 L1_tw")
        T(o, 4)
    else:
        o("s_waitcnt vmcnt(0)")
        misc()
        T(o, 4)
        o("s_barrier")
        o("s_setprio 2")
    for s in range(4): o(f"ds_read_b128 {vr(40+4*s,4)}, v20 offset:{32*s}")
    for m in range(2):
        for s in range(4):
            for t in range(2):
                o(f"ds_read_b64_tr_b16 {vr(64+16*m+4*s+2*t,2)}, v26 offset:{8192*m+2048*s+512*t}")
    def au():
        o.c("raw A (waves 0,1) and U (waves 2,3) weights for the P and x@U products")
        o("s_lshl_b32 s87, s6, 12")
        o("s_cmp_eq_u32 s7, 0")
        o("s_cbranch_scc0 L1_ldu")
        for i in range(4): o(f"buffer_load_dwordx4 v28, s[52:55], s87 offen offset:{1024*i} lds")
        o("s_branch L1_ldd")
        o.lab("L1_ldu")
        for i in range(4): o(f"buffer_load_dwordx4 v28, s[60:63], s87 offen offset:{1024*i} lds")
        o.lab("L1_ldd")
    if not cfg["early"]: au()
    o("s_mov_b32 s84, 0xffff0000")
    o(f"s_mov_b32 s85, {NEG_LOG2E:#x}")
    o("s_brev_b32 s86, 1")
    o("s_waitcnt lgkmcnt(8)")
    for s in range(4): o(mfma16(96, 40+4*s, 64+4*s, s == 0))
    o("s_waitcnt lgkmcnt(0)")
    for s in range(4): o(mfma16(112, 40+4*s, 80+4*s, s == 0))
    o("s_nop 6")
    o.c("row entry = bf16(-log2e * x@B) in the low half; the high half is chosen so the whole dword is nearest to x@V")
    for r in range(16): o(f"v_mul_f32 v{96+r}, s85, v{96+r}")
    for r in range(0, 16, 2):
        o(f"v_cvt_pk_bf16_f32 v{96+r}, v{96+r}, v{97+r}")
        o(f"v_lshrrev_b32 v{97+r}, 16, v{96+r}")
        o(f"v_and_b32 v{96+r}, 0xffff, v{96+r}")
    for r in range(16):
        t = 56 + (r & 3); t2 = 60 + (r & 3)
        if cfg["early"] and r == cfg["early"] - 1:
            T(o, 5)
            o("s_barrier")
            au()
        o(f"v_add_u32 v{t}, 0x8000, v{112+r}")
        o(f"v_and_b32 v{t2}, s86, v{112+r}")
        o(f"v_sub_u32_e64 v{t}, v{t}, v{96+r} clamp")
        o(f"v_max_u32 v{t}, v{t}, v{t2}")
        o(f"v_and_or_b32 v{t}, v{t}, s84, v{96+r}")
        o(f"ds_write_b32 v27, v{t} offset:{(8*(r>>2) + (r&3))*128}")
    if cfg["tdef"]:
        o("s_waitcnt vmcnt(0)")
    else:
        for i in range(4): o(f"ds_read_b128 {vr(64+4*i,4)}, v21 offset:{1024*i}")
        o("s_lshl_b32 s84, s78, 8")
        o("s_lshl_b32 s85, s6, 7")
        o("s_add_u32 s84, s84, s85")
        o(f"s_add_u32 s84, s84, {WS_T}")
        if not cfg["early"]: o("s_waitcnt vmcnt(0)")
        for i in range(4):
            o(f"v_cmp_gt_u32 vcc, {49-8*i}, v23")
            o(f"s_waitcnt lgkmcnt({3-i})")
            o("s_mov_b64 exec, vcc")
            o(f"buffer_store_dwordx4 {vr(64+4*i,4)}, v29, s[12:15], s84 offen {cfg.get('stt', ST)}")
            o("s_add_u32 s84, s84, 2048")
            o("s_mov_b64 exec, -1")
    o("s_setprio 0")
    T(o, 6)
    if cfg["early"]:
        o("s_waitcnt vmcnt(4)")
        misc()
    o("s_branch L1_d")
    o.lab("L1_edge")
    o("s_mov_b64 exec, s[72:73]")
    o("s_cbranch_execz L1_histdone")
    o(f"s_movk_i32 s84, {MAGIC49}")
    o("v_mov_b32 v20, 1")
    def hist(regs):
        for d, b, a, r in regs: o(f"v_mul_u32_u24 v{b}, s84, v{d}")
        for d, b, a, r in regs: o(f"v_lshrrev_b32 v{b}, 20, v{b}")
        for d, b, a, r in regs:
            o(f"v_lshlrev_b32 v{a}, 2, v{b}")
            o(f"ds_add_rtn_u32 v{r}, v{a}, v20 offset:{HIST}")
        for d, b, a, r in regs: o(f"v_mul_u32_u24 v{b}, 49, v{b}")
        for d, b, a, r in regs: o(f"v_sub_u32 v{d}, v{d}, v{b}")
        for d, b, a, r in regs: o(f"v_lshlrev_b32 v{d}, 26, v{d}")
    o("s_cmp_eq_u64 s[74:75], 0")
    o("s_cbranch_scc1 L1_h4")
    o("s_mov_b64 exec, s[74:75]")
    o("s_waitcnt vmcnt(5)")
    hist([(80, 88, 93, 98)])
    o("s_mov_b64 exec, s[72:73]")
    o("s_branch L1_h5")
    o.lab("L1_h4")
    o("s_waitcnt vmcnt(3)")
    o.lab("L1_h5")
    T(o, 3)
    hist([(64+i, 84+i, 89+i, 94+i) for i in range(4)])
    o("s_waitcnt lgkmcnt(0)")
    o.lab("L1_histdone")
    o("s_mov_b64 exec, -1")
    o(f"v_lshlrev_b32 v104, 4, v{L}")
    o("s_sub_u32 s85, s3, 3")
    o("s_lshl_b32 s85, s85, 10")
    o(f"s_add_u32 s85, s85, {PB}")
    o("v_add_u32 v105, s85, v104")
    for i in range(5): o(f"v_add_u32 v{89+i}, s85, v{89+i}")
    T(o, 4)
    o("s_barrier")
    T(o, 5)
    o.c("every edge wave scans the 256 bucket counts for itself")
    o(f"ds_read_b128 v[108:111], v104 offset:{HIST}")
    o("s_waitcnt lgkmcnt(0)")
    o("v_add_u32 v106, v108, v109")
    o("v_add_u32 v107, v106, v110")
    o("v_add_u32 v116, v107, v111")
    o("v_mov_b32 v112, v116")
    o("s_nop 1")
    wave_scan(o, 112)
    o("v_sub_u32 v112, v112, v116")
    o("v_add_u32 v113, v112, v108")
    o("v_add_u32 v114, v112, v106")
    o("v_add_u32 v115, v112, v107")
    o("s_cmp_lg_u32 s3, 15")
    o("s_cbranch_scc1 L1_scat")
    for j in range(4): o(f"v_lshl_or_b32 v{108+j}, v{108+j}, 12, v{112+j}")
    o(f"v_add_u32 v104, {DSV}, v104")
    o("ds_write_b128 v104, v[108:111]")
    o.lab("L1_scat")
    for j in range(4): o(f"v_mul_u32_u24 v{112+j}, 12, v{112+j}")
    o("ds_write_b128 v105, v[112:115]")
    o("s_mov_b64 exec, s[72:73]")
    o("s_cbranch_execz L1_scatdone")
    for i in range(5): o(f"ds_read_b32 v{84+i}, v{89+i}")
    o("s_waitcnt lgkmcnt(0)")
    for i in range(5): o(f"v_mad_u32_u24 v{84+i}, v{94+i}, 12, v{84+i}")
    o("s_waitcnt vmcnt(2)")
    for i in range(4): o(f"v_lshl_or_b32 v{68+i}, v{68+i}, 8, v{64+i}")
    for i in range(4): o(f"ds_write_b32 v{84+i}, v{68+i} offset:{STAGE+8}")
    for i in range(5): o(f"v_add_u32 v{84+i}, {STAGE}, v{84+i}")
    o("s_waitcnt vmcnt(0)")
    T(o, 6)
    for i in range(4): o(f"ds_write2_b32 v{84+i}, v{72+2*i}, v{73+2*i} offset0:0 offset1:1")
    o("s_mov_b64 exec, s[74:75]")
    o("s_cbranch_execz L1_scatdone")
    o("v_lshl_or_b32 v81, v81, 8, v80")
    o("ds_write_b32 v88, v81 offset:8")
    o("ds_write2_b32 v88, v82, v83 offset0:0 offset1:1")
    o.lab("L1_scatdone")
    o("s_mov_b64 exec, -1")
    o.lab("L1_d")
    o(f"s_mul_i32 s85, s2, {CHB}")
    o(f"v_add_u32 v4, {STAGE}, v{V_T16}")
    o(f"v_add_u32 v5, 16384, v{V_T16}")
    o(f"v_add_u32 v6, 32768, v{V_T16}")
    o("v_cmp_gt_u32 vcc, 298, v0")
    o("s_waitcnt lgkmcnt(0)")
    o("s_barrier")
    T(o, 7); T(o, 26, True)
    o("ds_read_b128 v[80:83], v4")
    o("ds_read_b128 v[84:87], v4 offset:16384")
    o("ds_read_b128 v[88:91], v4 offset:32768")
    o("s_waitcnt lgkmcnt(2)")
    o(f"buffer_store_dwordx4 v[80:83], v{V_T16}, s[12:15], s85 offen {ST}")
    o("s_waitcnt lgkmcnt(1)")
    o(f"buffer_store_dwordx4 v[84:87], v5, s[12:15], s85 offen {ST}")
    o("s_mov_b64 exec, vcc")
    o("s_cbranch_execz L1_c3")
    o("s_waitcnt lgkmcnt(0)")
    o(f"buffer_store_dwordx4 v[88:91], v6, s[12:15], s85 offen {ST}")
    o.lab("L1_c3")
    o("s_mov_b64 exec, -1")
    T(o, 8)

def handoff(o, tail, T, cfg):
    o(f"v_lshlrev_b32 v1, 1, v{L}")
    o("v_add_u32 v1, 0x4000, v1")
    for j in range(4): o(f"buffer_load_ushort v{76+j}, v1, s[52:55], 0 offen offset:{128*j}")
    o("v_mov_b32 v74, 0")
    o("buffer_load_dwordx2 v[72:73], v74, s[68:71], 0 offen sc1")
    o.c("selector operands of the 4x4x4 MFMAs that add the gathered gate term")
    o(f"v_and_b32 v1, 3, v{L}")
    o("v_mov_b32 v2, 0x3f80")
    for idx, reg in enumerate((SELA, SELA+1, SELB, SELB+1)):
        o(f"v_cmp_eq_u32 vcc, {idx}, v1")
        o("s_nop 1")
        o(f"v_cndmask_b32 v{reg}, 0, v2, vcc")
    o("s_cmp_lt_u32 s3, 8")
    o("s_cbranch_scc1 L2_pdone")
    o.c("waves 8..15: P = -log2e * x@A - 31 (gate term of the destination node) and x@U (start value of the sums)")
    o("s_and_b32 s86, s3, 1")
    o("s_bfe_u32 s91, s3, 0x10001")
    o("s_bfe_u32 s88, s3, 0x10002")
    o("s_lshl_b32 s89, s91, 12")
    o(f"s_add_u32 s89, s89, {XS}")
    o(f"v_and_b32 v3, 31, v{L}")
    o(f"v_lshrrev_b32 v2, 5, v{L}")
    o("v_lshl_add_u32 v1, v2, 4, s89")
    o("v_lshl_add_u32 v1, v3, 7, v1")
    for s in range(4): o(f"ds_read_b128 {vr(32+4*s,4)}, v1 offset:{32*s}")
    o("s_lshl_b32 s90, s88, 5")
    o("v_add_u32 v3, s90, v3")
    trbase(o, 1, 2, 20)
    o("s_lshl_b32 s89, s86, 13")
    o("s_lshl_b32 s90, s88, 6")
    o("s_add_u32 s89, s89, s90")
    o(f"s_add_u32 s89, s89, {AU}")
    o("v_add_u32 v1, s89, v1")
    for s in range(4):
        for t in range(2):
            o(f"ds_read_b64_tr_b16 {vr(48+4*s+2*t,2)}, v1 offset:{2048*s+512*t}")
    o("v_lshlrev_b32 v2, 2, v2")
    o("s_lshl_b32 s90, s91, 5")
    o("v_add_u32 v2, s90, v2")
    o("v_lshl_add_u32 v2, v2, 6, v3")
    o("s_waitcnt lgkmcnt(0)")
    PD = 96
    for s in range(4): o(mfma16(PD, 32+4*s, 48+4*s, s == 0))
    o("s_cmp_eq_u32 s86, 1")
    o("s_cbranch_scc1 L2_xu")
    o("v_lshlrev_b32 v2, 2, v2")
    o(f"v_mov_b32 v3, {NEG_LOG2E:#x}")
    o("s_nop 8")
    def pwrite(r):
        o(f"v_fmaak_f32 v{PD+r}, v3, v{PD+r}, 0xc1f80000")
        o(f"ds_write_b32 v2, v{PD+r} offset:{PT + (8*(r>>2)+(r&3))*256}")
    def uwrite(r):
        t = 32 + 2 * (r & 7)
        o(f"v_cvt_f64_f32 {vr(t,2)}, v{PD+r}")
        o(f"ds_write_b64 v2, {vr(t,2)} offset:{AGG + (8*(r>>2)+(r&3))*512}")
    for wr, lab in ((pwrite, None), (uwrite, "L2_xu")):
        if lab:
            o.lab(lab); o("v_lshlrev_b32 v2, 3, v2"); o("s_nop 9")
        for r in range(8): wr(r)
        o("s_cmp_eq_u32 s91, 1")
        o("s_cselect_b32 exec_hi, 0, -1")
        for r in range(8, 10): wr(r)
        o("s_mov_b64 exec, -1")
        o("s_cbranch_scc1 L2_pdone")
        for r in range(10, 16): wr(r)
        if not lab: o("s_branch L2_pdone")
    o.lab("L2_pdone")
    o.c("record addressing: wave w, lane group g, step i reads chunk (w&7) + 8*(16*(w>>3) + 4*g + i)")
    o(f"v_lshrrev_b32 v2, 4, v{L}")
    o(f"v_and_b32 v3, 15, v{L}")
    o("v_and_b32 v4, 3, v3")
    o("s_lshr_b32 s27, s3, 3")
    o("s_lshl_b32 s27, s27, 7")
    o("s_and_b32 s81, s3, 7")
    o("s_add_u32 s27, s27, s81")
    o("v_lshl_add_u32 v2, v2, 5, s27")
    o("v_lshl_add_u32 v4, v4, 3, v2")
    o("v_lshlrev_b32 v4, 11, v4")
    o(f"s_mov_b32 s81, {CHB}")
    o(f"v_mul_lo_u32 v{V_LB}, v2, s81")
    o(f"v_mad_u32_u24 v{V_LB}, v3, 12, v{V_LB}")
    for i in range(4): o(f"s_mov_b32 s{SOFF+i}, {8*i*CHB}")
    o("s_lshl_b32 s72, s30, 3")
    o(f"s_add_u32 s72, s72, {WS_DESC}")
    o("s_mul_i32 s82, s31, 100000")
    o(f"s_add_u32 s82, s82, {WS_T}")
    o(f"s_mov_b32 s{S_OFF}, 0")
    o(f"v_mov_b32 v{VC2}, {QC:#x}")
    o(f"v_mov_b32 v{VC2+1}, {QC:#x}")
    o(f"s_mov_b32 s87, {cfg['spin']}")
    o.c("lane l of a 64-slot window takes slot (l & ~7) | ((l & 1) << 2) | ((l >> 1) & 3): two groups interleaved per block")
    o(f"v_and_b32 v3, 1, v{L}")
    o(f"v_bfe_u32 v5, v{L}, 1, 2")
    o("v_lshl_or_b32 v3, v3, 2, v5")
    o(f"v_and_b32 v5, 56, v{L}")
    o(f"v_or_b32 v{V_SG}, v3, v5")
    o(f"v_lshrrev_b32 v3, 2, v{V_SG}")
    o(f"v_lshlrev_b32 v{V_LM}, v3, 2")
    o(f"v_subrev_u32 v{V_LM}, 1, v{V_LM}")
    if cfg["tdef"]:
        o.c("this wave's share of the table stage: unit w>>2 (rt, hh), rows 8*(w&3) .. +7")
        o("s_lshl_b32 s84, s3, 10")
        o(f"s_add_u32 s84, s84, {TS}")
        o(f"v_lshl_add_u32 v5, v{L}, 4, s84")
        o("ds_read_b128 v[92:95], v5")
        o(f"v_lshrrev_b32 v5, 3, v{L}")
        o("s_and_b32 s84, s3, 3")
        o("s_lshl_b32 s84, s84, 3")
        o("s_lshr_b32 s86, s3, 3")
        o("s_lshl_b32 s86, s86, 5")
        o("s_add_u32 s84, s84, s86")
        o("v_add_u32 v5, s84, v5")
        o("v_cmp_gt_u32 s[94:95], 49, v5")
        o(f"v_and_b32 v6, 7, v{L}")
        o("v_lshlrev_b32 v6, 4, v6")
        o("v_lshl_add_u32 v75, v5, 8, v6")
        o("s_bfe_u32 s84, s3, 0x10002")
        o("s_lshl_b32 s84, s84, 7")
        o("s_lshl_b32 s86, s78, 8")
        o("s_add_u32 s84, s84, s86")
        o(f"s_add_u32 s79, s84, {WS_T}")
    o("s_cmp_lg_u32 s3, 15")
    o("s_cbranch_scc1 L2_nd")
    o(f"v_lshlrev_b32 v1, 4, v{L}")
    o(f"v_add_u32 v2, {DSV}, v1")
    o("ds_read_b128 v[64:67], v2")
    o("v_lshlrev_b32 v1, 1, v1")
    o("s_lshl_b32 s85, s2, 11")
    o(f"s_add_u32 s85, s85, {WS_DESC}")
    o.lab("L2_nd")
    for i in range(cfg.get("wd", 0)):
        o(f"buffer_load_dwordx4 {vr(DUM,4)}, v{V_T16}, s[12:15], s82 offen sc1")
        o("s_add_u32 s82, s82, 16384")
    o(f"s_waitcnt vmcnt({cfg.get('wd', 0)}) lgkmcnt(0)")
    for j in range(4): o(f"v_lshlrev_b32 v{76+j}, 16, v{76+j}")
    for j in range(4): o(f"v_mul_f32 v{76+j}, {NEG_LOG2E:#x}, v{76+j}")
    o(f"v_cvt_pk_bf16_f32 v{CW}, v76, v77")
    o(f"v_cvt_pk_bf16_f32 v{CW+1}, v78, v79")
    o.lab("L2_tag")
    o("v_readfirstlane_b32 s74, v72")
    o("v_readfirstlane_b32 s75, v73")
    o("s_sub_u32 s87, s87, 1")
    o("s_cmp_lg_u32 s75, 0")
    o("s_cbranch_scc1 L2_tagok")
    o("s_cmp_le_i32 s87, 0")
    o("s_cbranch_scc1 L2_tagno")
    tail.lab("L2_tagno")
    tail(f"v_mov_b32 v5, {CNT+280}")
    tail("ds_write_b32 v5, v5")
    tail("s_mov_b32 s87, 1")
    tail("s_branch L2_tagok")
    o("buffer_load_dwordx2 v[72:73], v74, s[68:71], 0 offen sc1")
    o("s_waitcnt vmcnt(0)")
    o("s_branch L2_tag")
    o.lab("L2_tagok")
    for j in (81, 83, 85, 87): o(f"v_mov_b32 v{j}, s75")
    for j in range(4): o(f"v_or_b32 v{80+2*j}, s74, v{64+j}")
    T(o, 9); T(o, 27, True)
    o("s_barrier")
    o("s_cmp_lg_u32 s3, 15")
    o("s_cbranch_scc1 L2_wf" if cfg["wf"] else "s_cbranch_scc1 L2_f")
    if cfg["wf"]:
        tail.lab("L2_wf")
        tail(f"s_nop {cfg.get('wfd', 15)}")
        for i in range(cfg["wf"]):
            tail(f"buffer_load_dwordx4 {vr(DUM,4)}, v{V_T16}, s[12:15], s82 offen sc1")
            tail("s_add_u32 s82, s82, 16384")
        tail("s_branch L2_f")
        o(f"s_add_u32 s82, s82, {16384*cfg['wf']}")
    o("buffer_store_dwordx4 v[80:83], v1, s[12:15], s85 offen sc1")
    o("buffer_store_dwordx4 v[84:87], v1, s[12:15], s85 offen offset:16 sc1")
    o("s_waitcnt vmcnt(0)")
    o.lab("L2_f")
    o("s_barrier")
    if cfg["tdef"]:
        o("s_mov_b64 exec, s[94:95]")
        o(f"buffer_store_dwordx4 v[92:95], v75, s[12:15], s79 offen {cfg['st']}")
        o("s_mov_b64 exec, -1")
    o("s_cmp_lg_u32 s3, 0")
    o("s_cbranch_scc1 L2_nn")
    o(f"v_mov_b32 v1, {NULLSLOT*4}")
    o(f"v_mov_b32 v5, {NULLSLOT*8}")
    o(f"v_mov_b32 v6, {NULLROW}")
    o("v_mov_b32 v2, 0")
    o("v_mov_b32 v3, 0")
    o(f"ds_write_b32 v1, v6 offset:{LS}")
    o(f"ds_write_b64 v5, v[2:3] offset:{LE}")
    o.lab("L2_nn")
    T(o, 10); T(o, 28, True)
    for i in range(cfg.get("we", 0)):
        o(f"buffer_load_dwordx4 {vr(DUM,4)}, v{V_T16}, s[12:15], s82 offen sc1")
        o("s_add_u32 s82, s82, 16384")
    if cfg["tdef"]:
        o("buffer_load_dwordx2 v[2:3], v4, s[12:15], s72 offen sc1")
        o(f"v_mov_b32 v5, {CNT+272}")
        o("v_mov_b32 v6, 1")
        o("s_lshl_b32 s84, s2, 3")
        o("v_mov_b32 v64, s84")
        o("v_mov_b32 v66, s74")
        o("v_mov_b32 v67, s75")
        o(f"s_mov_b32 s73, {WS_TF}")
        o("s_waitcnt vmcnt(0)")
        o.c("the wave whose table store is the last to complete publishes the block's flag")
        o("s_mov_b64 exec, 1")
        o("ds_add_rtn_u32 v65, v5, v6")
        o("s_waitcnt lgkmcnt(0)")
        o("v_cmpx_eq_u32 vcc, 15, v65")
        o("s_cbranch_execz L2_ntf")
        o("buffer_store_dwordx2 v[66:67], v64, s[12:15], s73 offen sc1")
        o.lab("L2_ntf")
        o("s_mov_b64 exec, -1")
        o("s_branch L2_pc")
    o.lab("L2_poll")
    o("buffer_load_dwordx2 v[2:3], v4, s[12:15], s72 offen sc1")
    o("s_sub_u32 s87, s87, 1")
    o("s_waitcnt vmcnt(0)")
    o.lab("L2_pc")
    o("v_xor_b32 v2, s74, v2")
    o("v_cmp_ne_u32 vcc, s75, v3")
    o("v_lshrrev_b32 v3, 24, v2")
    o("v_cmp_ne_u32 s[84:85], 0, v3")
    o("s_or_b64 vcc, vcc, s[84:85]")
    o("s_cbranch_scc0 L2_g")
    o("s_cmp_le_i32 s87, 0")
    o("s_cbranch_scc1 L2_gno")
    tail.lab("L2_gno")
    tail(f"v_mov_b32 v5, {CNT+280}")
    tail("ds_write_b32 v5, v5")
    tail("v_mov_b32 v2, 0")
    tail("s_branch L2_g")
    o(f"s_sleep {cfg['sleep']}")
    o("s_branch L2_poll")
    o.lab("L2_g")
    o("v_and_b32 v3, 0xfff, v2")
    o("v_bfe_u32 v2, v2, 12, 12")
    o("v_mul_u32_u24 v3, 12, v3")
    o(f"v_lshl_or_b32 v{V_DESC}, v2, 16, v3")
    if cfg["tdef"]: o(f"s_mov_b32 s79, {cfg['spin']}")
    T(o, 11); T(o, 29, True)

def offsets(o, reg, batch):
    for q in range(4): o(f"ds_read_b128 {vr(reg+4*q,4)}, v{V_SA} offset:{batch*64+16*q}")
def rowload(o, r, cfg): o(f"buffer_load_dword v{r}, v{r}, s[8:11], 0 offen {cfg['ldt']}")

def prefetch(o, cfg):
    o.c("pull part of the table into this XCD's L2 while the records are being placed")
    if cfg.get("wfew", 0):
        o(f"s_cmp_ge_u32 s3, {cfg['wfew']}")
        o("s_cbranch_scc1 L2_nwb")
        o(f"s_mul_i32 s84, s3, {cfg['wb']*1024}")
        o("s_add_u32 s84, s84, s82")
        o(f"v_lshlrev_b32 v{DUM+4}, 4, v{L}")
        for i in range(cfg["wb"]):
            o(f"buffer_load_dwordx4 {vr(DUM,4)}, v{DUM+4}, s[12:15], s84 offen sc1")
            o("s_add_u32 s84, s84, 1024")
        o.lab("L2_nwb")
        return
    o("s_mov_b32 s84, s82")
    for i in range(cfg["wb"]):
        o(f"buffer_load_dwordx4 {vr(DUM,4)}, v{V_T16}, s[12:15], s84 offen sc1")
        o("s_add_u32 s84, s84, 16384")

def alone(o, cfg):
    o.lab("L9_alone")
    o("s_load_dwordx8 s[84:91], s[0:1], 0")
    o("s_load_dwordx2 s[92:93], s[0:1], 40")
    o("s_waitcnt vmcnt(0) lgkmcnt(0)")
    srd(o, 32, 84, N * 128); srd(o, 36, 86, E * 8); srd(o, 40, 88, E * 4); srd(o, 44, 90, E * 4); srd(o, 56, 92, 8192)
    o(f"v_lshlrev_b32 v32, 1, v{L}")
    o(f"v_lshlrev_b32 v33, 16, v{CW}")
    o(f"v_and_b32 v34, 0xffff0000, v{CW}")
    o(f"v_lshlrev_b32 v35, 16, v{CW+1}")
    o(f"v_and_b32 v36, 0xffff0000, v{CW+1}")
    o("v_lshlrev_b32 v37, 2, v0")
    o(f"s_mov_b32 s84, {(E + 1023) // 1024}")
    o.lab("L9_scan")
    o("v_lshlrev_b32 v38, 1, v37")
    o("buffer_load_dword v40, v37, s[44:47], 0 offen")
    o("buffer_load_dword v41, v37, s[40:43], 0 offen")
    o("buffer_load_dwordx2 v[42:43], v38, s[36:39], 0 offen")
    o(f"s_mov_b32 s85, {E*4}")
    o("v_cmp_gt_u32 s[86:87], s85, v37")
    o("s_waitcnt vmcnt(0)")
    o("v_subrev_u32 v40, s78, v40")
    o("v_cmp_gt_u32 vcc, 49, v40")
    o("s_and_b64 s[86:87], s[86:87], vcc")
    o.lab("L9_edge")
    o("s_cmp_eq_u64 s[86:87], 0")
    o("s_cbranch_scc1 L9_next")
    o("s_ff1_i32_b64 s85, s[86:87]")
    o("s_bitset0_b64 s[86:87], s85")
    o("v_readlane_b32 s88, v40, s85")
    o("v_readlane_b32 s89, v41, s85")
    o("v_readlane_b32 s90, v42, s85")
    o("v_readlane_b32 s91, v43, s85")
    o("s_lshl_b32 s89, s89, 7")
    o("v_add_u32 v44, s89, v32")
    o("buffer_load_ushort v45, v44, s[32:35], 0 offen")
    o("s_lshl_b32 s88, s88, 8")
    o(f"v_lshl_add_u32 v44, v{L}, 2, s88")
    o(f"ds_read_b32 v46, v44 offset:{PT}")
    o("v_mov_b32 v52, 0")
    o("v_mov_b32 v53, 0")
    o("s_mov_b32 s92, 0")
    o("s_waitcnt vmcnt(0)")
    o("v_lshlrev_b32 v45, 16, v45")
    o.lab("L9_k")
    o("s_lshl_b32 s93, s92, 7")
    o("s_add_u32 s94, s93, 8192")
    o("buffer_load_ushort v54, v32, s[52:55], s94 offen")
    o("buffer_load_ushort v55, v32, s[56:59], s93 offen")
    o("v_readlane_b32 s95, v45, s92")
    o("s_waitcnt vmcnt(0)")
    o("v_lshlrev_b32 v54, 16, v54")
    o("v_lshlrev_b32 v55, 16, v55")
    o("v_fmac_f32 v52, s95, v54")
    o("v_fmac_f32 v53, s95, v55")
    o("s_add_u32 s92, s92, 1")
    o("s_cmp_lt_u32 s92, 64")
    o("s_cbranch_scc1 L9_k")
    o("s_lshl_b32 s92, s90, 16")
    o("s_and_b32 s93, s90, 0xffff0000")
    o("s_lshl_b32 s94, s91, 16")
    o("s_and_b32 s95, s91, 0xffff0000")
    o("s_waitcnt lgkmcnt(0)")
    o("v_add_f32 v46, 0x41f80000, v46")
    o(f"v_fmac_f32 v46, {NEG_LOG2E:#x}, v52")
    for i in range(4): o(f"v_fmac_f32 v46, s{92+i}, v{33+i}")
    o("v_exp_f32 v46, v46")
    o("s_nop 0")
    o("v_add_f32 v46, 1.0, v46")
    o("v_rcp_f32 v46, v46")
    o("v_add_u32 v44, v44, v44")
    o("v_mul_f32 v46, v46, v53")
    o("v_cvt_f64_f32 v[54:55], v46")
    o(f"ds_add_f64 v44, v[54:55] offset:{AGG}")
    o("s_branch L9_edge")
    o.lab("L9_next")
    o("v_add_u32 v37, 0x1000, v37")
    o("s_sub_u32 s84, s84, 1")
    o("s_cmp_lg_u32 s84, 0")
    o("s_cbranch_scc1 L9_scan")
    o(f"s_mov_b32 s{S_MORE}, 0")
    o(f"s_mov_b32 s{S_PEND}, 0")
    o("s_branch L2_done")

def sort(o, tail, T, cfg):
    o.lab("L2_pass")
    o(f"v_and_b32 v3, 15, v{L}")
    o(f"v_add_u32 v1, s{S_OFF}, v3")
    o("v_add_u32 v2, 16, v1")
    o(f"s_add_u32 s83, s{S_OFF}, 32")
    o(f"v_lshrrev_b32 v4, 16, v{V_DESC}")
    o("v_cmp_lt_u32 vcc, s83, v4")
    o("s_cmp_lg_u64 vcc, 0")
    o(f"s_cselect_b32 s{S_MORE}, 1, 0")
    for i in range(4):
        o(f"v_mov_b32_dpp v{BS}, v4 row_newbcast:{i} row_mask:0xf bank_mask:0xf")
        o(f"v_cmp_lt_u32 {sr(MASK+2*i,2)}, v1, v{BS}")
        o(f"v_cmp_lt_u32 {sr(MASK+8+2*i,2)}, v2, v{BS}")
    o.lab("L2_again")
    o(f"s_mul_i32 s84, s{S_OFF}, 12")
    o(f"v_add_u32 v6, s84, v{V_LB}")
    o(f"v_and_b32 v5, 0xffff, v{V_DESC}")
    o("s_nop 1")
    for i in range(4):
        o(f"v_add_u32_dpp v{BS+1+i}, v5, v6 row_newbcast:{i} row_mask:0xf bank_mask:0xf")
    for i in range(4):
        o(f"s_mov_b64 exec, {sr(MASK+8+2*i,2)}")
        o(f"s_cbranch_execz L2_r2_{i}")
        o(f"buffer_load_dwordx3 {vr(REC+16+4*i,3)}, v{BS+1+i}, s[12:15], s{SOFF+i} offen offset:192 {cfg['ldr']}")
        o.lab(f"L2_r2_{i}")
    for i in range(4):
        o(f"s_mov_b64 exec, {sr(MASK+2*i,2)}")
        o(f"buffer_load_dwordx3 {vr(REC+4*i,3)}, v{BS+1+i}, s[12:15], s{SOFF+i} offen {cfg['ldr']}")
    o("s_mov_b64 exec, -1")
    o("v_mov_b32 v1, 4")
    o(f"v_mov_b32 v2, {CNT}")
    o(f"s_cmp_eq_u32 s{S_MORE}, 0")
    o("s_cbranch_scc1 L2_nomore")
    o("ds_write_b32 v2, v1 offset:256")
    o.lab("L2_nomore")
    o(f"v_cmp_gt_u32 s[92:93], 49, v{L}")
    o("v_mov_b32 v6, 16")
    o(f"v_mov_b32 v5, {CAPN*4}")
    o("v_cndmask_b32 v6, 0, v6, s[92:93]")
    def rank(i):
        o(f"v_add_u32_sdwa v{CA+i}, v{REC+4*i+2}, v2 dst_sel:DWORD dst_unused:UNUSED_PAD src0_sel:BYTE_3 src1_sel:DWORD")
        o(f"ds_add_rtn_u32 v{REC+4*i+3}, v{CA+i}, v1")
        o(f"v_lshrrev_b32 v{CA+i}, 26, v{REC+4*i+2}")
        o(f"v_and_b32 v{REC+4*i+2}, 0xffffff, v{REC+4*i+2}")
    def scat(i):
        o(f"v_lshl_add_u32 v{CA+i}, v{CA+i}, 9, v{REC+4*i+3}")
        o(f"v_cmpx_lt_u32 vcc, v{REC+4*i+3}, v5")
        o(f"v_add_u32 v{BS+i}, v{CA+i}, v{CA+i}")
        o(f"ds_write_b32 v{CA+i}, v{REC+4*i+2} offset:{LS}")
        o(f"ds_write_b64 v{BS+i}, {vr(REC+4*i,2)} offset:{LE}")
    for i in range(4):
        o(f"s_waitcnt vmcnt({3-i})")
        o(f"s_mov_b64 exec, {sr(MASK+2*i,2)}")
        rank(i)
    for i in range(4, 8):
        o(f"s_mov_b64 exec, {sr(MASK+2*i,2)}")
        o(f"s_cbranch_execz L2_rk{i}")
        rank(i)
        o.lab(f"L2_rk{i}")
    o("s_waitcnt lgkmcnt(0)")
    T(o, 12)
    for i in range(4):
        o(f"s_mov_b64 exec, {sr(MASK+2*i,2)}")
        scat(i)
    for i in range(4, 8):
        o(f"s_mov_b64 exec, {sr(MASK+2*i,2)}")
        o(f"s_cbranch_execz L2_sc{i}")
        scat(i)
        o.lab(f"L2_sc{i}")
    o("s_mov_b64 exec, -1")
    o(f"v_lshl_add_u32 v1, v{L}, 2, v2")
    if cfg["wpos"] == "P": prefetch(o, cfg)
    if cfg.get("wq", 0):
        o.c("waves whose producers tend to finish first pull part of the table while the others still wait")
        o("s_bitcmp1_b32 s3, 0")
        o("s_cbranch_scc1 L2_nwq")
        o("s_lshr_b32 s84, s3, 1")
        o(f"s_mul_i32 s84, s84, {cfg['wq']*1024}")
        o("s_add_u32 s84, s84, s82")
        o(f"s_add_u32 s84, s84, {16384*cfg['wb']}")
        o(f"v_lshlrev_b32 v{DUM+4}, 4, v{L}")
        for i in range(cfg["wq"]):
            o(f"buffer_load_dwordx4 {vr(DUM,4)}, v{DUM+4}, s[12:15], s84 offen sc1")
            o("s_add_u32 s84, s84, 1024")
        o.lab("L2_nwq")
    o("s_waitcnt lgkmcnt(0)")
    T(o, 13)
    o("s_setprio 3")
    o("s_barrier")
    T(o, 14)
    o("ds_read_b32 v3, v1")
    o("ds_read2_b32 v[4:5], v2 offset0:64 offset1:70")
    if cfg["tdef"]:
        o(f"v_lshlrev_b32 v61, 5, v{L}")
        o("buffer_load_dwordx4 v[116:119], v61, s[12:15], s73 offen sc1")
        o("buffer_load_dwordx4 v[120:123], v61, s[12:15], s73 offen offset:16 sc1")
    if cfg["wpos"] == "A": prefetch(o, cfg)
    o(f"s_movk_i32 s84, {CAPN*4}")
    o("s_waitcnt lgkmcnt(0)")
    o(f"v_readfirstlane_b32 s{S_MORE}, v4")
    o("v_readfirstlane_b32 s85, v5")
    o("s_cmp_lg_u32 s85, 0" if not cfg.get("force", 0) else "s_cmp_eq_u32 s85, s85")
    o("s_cbranch_scc1 L9_alone")
    alone(tail, cfg)
    o.lab("L2_cap")
    o("v_cmp_lt_u32 vcc, s84, v3")
    o("v_min_u32 v4, s84, v3")
    o("v_add_u32 v5, 15, v4")
    o("v_and_b32 v5, -16, v5")
    o("v_max_u32 v5, v5, v6")
    o(f"v_mov_b32 v{BS}, v5")
    o("s_cmp_lg_u64 vcc, 0")
    o(f"s_cselect_b32 s{S_PEND}, 1, 0")
    wave_scan(o, BS)
    o("s_nop 0")
    o(f"v_readlane_b32 s{S_TOT}, v{BS}, 63")
    o(f"v_sub_u32 v5, v{BS}, v5")
    o(f"s_cmp_gt_u32 s{S_TOT}, {CAPU*4}")
    o("s_cbranch_scc1 L2_over")
    tail.lab("L2_over")
    tail(f"s_movk_i32 s84, {CAPL*4}")
    tail("s_branch L2_cap")
    o(f"s_cmp_lg_u32 s{S_PEND}, 0")
    o("s_cbranch_scc1 L2_pend")
    o.lab("L2_pendb")
    tail.lab("L2_pend")
    tail.c("records ranked past the cap stay pending for another pass over the same window")
    for i in range(8):
        tail(f"v_cmp_le_u32 vcc, s84, v{REC+4*i+3}")
        tail(f"s_and_b64 {sr(MASK+2*i,2)}, {sr(MASK+2*i,2)}, vcc")
    tail("s_branch L2_pendb")
    T(o, 21)
    o("v_lshl_or_b32 v4, v4, 16, v5")
    o.c("this wave's range of batches (16 slots each)")
    o(f"s_add_u32 s86, s{S_TOT}, 63")
    o("s_lshr_b32 s86, s86, 6")
    o(f"s_lshr_b32 s{S_NB}, s86, 4")
    o("s_and_b32 s88, s86, 15")
    o(f"s_mul_i32 s87, s{S_NB}, s3")
    o("s_min_u32 s89, s3, s88")
    o("s_add_u32 s87, s87, s89")
    o("s_cmp_lt_u32 s3, s88")
    o(f"s_addc_u32 s{S_NB}, s{S_NB}, 0")
    o(f"s_add_u32 s88, s87, s{S_NB}")
    o("s_lshl_b32 s89, s87, 6")
    o("s_lshl_b32 s90, s88, 6")
    o("v_cmp_ge_u32 vcc, s89, v5")
    o("s_and_b64 s[94:95], vcc, s[92:93]")
    o("s_bcnt1_i32_b64 s91, s[94:95]")
    o("s_sub_u32 s91, s91, 1")
    o("v_cmp_gt_u32 vcc, s90, v5")
    o("s_andn2_b64 s[94:95], vcc, s[94:95]")
    o("s_and_b64 s[94:95], s[94:95], s[92:93]")
    o("s_lshl_b32 s96, s91, 8")
    o(f"v_lshl_add_u32 v{V_PA}, v{L}, 2, s96")
    o(f"ds_read_b32 v{PC}, v{V_PA} offset:{PT}")
    o(f"ds_read_b32 v{PN}, v{V_PA} offset:{PT+256}")
    o.c("one bit per group (4 slots) that starts a new node: every such node pushes a one to the lane of its group")
    o("v_subrev_u32 v5, s89, v5")
    o("v_lshrrev_b32 v5, 2, v5")
    o("v_cndmask_b32 v5, 0, v5, s[94:95]")
    o("v_mov_b32 v3, 1")
    o("ds_permute_b32 v76, v5, v3")
    o("s_waitcnt lgkmcnt(0)")
    o(f"v_cmp_ne_u32 {sr(MK,2)}, 0, v76")
    o(f"s_and_b32 s{MK}, s{MK}, -2")
    T(o, 22)
    o.c("build the wave's stream: for every slot its node, then source row and edge attributes from the node's list")
    N_, B_, X_ = 64, 68, 72
    o(f"s_mov_b64 s[84:85], {sr(MK,2)}")
    o("s_mov_b32 s86, s91")
    for j in range(4):
        o(f"v_and_b32 v{N_+j}, s84, v{V_LM}")
        o(f"v_bcnt_u32_b32 v{N_+j}, v{N_+j}, s86") if False else None
        o(f"v_bcnt_u32_b32 v{N_+j}, v{N_+j}, 0")
        o(f"v_add_lshl_u32 v{N_+j}, v{N_+j}, s86, 2")
        o(f"ds_bpermute_b32 v{B_+j}, v{N_+j}, v4")
        if j < 3:
            o("s_and_b32 s87, s84, 0xffff")
            o("s_bcnt1_i32_b32 s87, s87")
            o("s_add_u32 s86, s86, s87")
            o("s_lshr_b64 s[84:85], s[84:85], 16")
    o(f"v_lshl_add_u32 v3, v{V_SG}, 2, s89")
    o(f"v_mov_b32 v5, {NULLSLOT*4}")
    o("s_lshl_b32 s96, s3, 10")
    o(f"s_add_u32 s96, s96, {CS}")
    o(f"v_mov_b32 v{V_SA}, s96")
    o(f"v_lshl_add_u32 v6, v{L}, 2, s96")
    for j in range(4):
        o(f"s_waitcnt lgkmcnt({3-j + 2*j})")
        o(f"v_sub_u32_sdwa v{X_+j}, v3, v{B_+j} dst_sel:DWORD dst_unused:UNUSED_PAD src0_sel:DWORD src1_sel:WORD_0")
        o(f"v_lshrrev_b32 v{B_+j}, 16, v{B_+j}")
        o(f"v_cmp_lt_u32 vcc, v{X_+j}, v{B_+j}")
        o(f"v_lshl_add_u32 v{X_+j}, v{N_+j}, 7, v{X_+j}")
        if j < 3: o("v_add_u32 v3, 0x100, v3")
        else: o("s_nop 0")
        o(f"v_cndmask_b32 v{X_+j}, v5, v{X_+j}, vcc")
        o(f"ds_read_b32 v{N_+j}, v{X_+j} offset:{LS}")
        o(f"v_add_u32 v{X_+j}, v{X_+j}, v{X_+j}")
        o(f"ds_read_b64 {vr(EAR if j == 0 else EW+2*j-2, 2)}, v{X_+j} offset:{LE}")
    if cfg.get("nomask", 0): o(f"s_mov_b64 {sr(MK,2)}, 0")
    o.c("per-stage flags, one nibble each: 1 slow head, 2 flush, 4 no more loads, 8 past the last batch")
    o(f"s_lshr_b64 s[84:85], {sr(MK,2)}, 1")
    o(f"s_or_b64 s[84:85], s[84:85], {sr(MK,2)}")
    o("s_lshr_b64 s[86:87], s[84:85], 2")
    o("s_or_b64 s[84:85], s[84:85], s[86:87]")
    o("s_mov_b32 s86, 0x11111111")
    o("s_mov_b32 s87, 0x11111111")
    o("s_and_b64 s[84:85], s[84:85], s[86:87]")
    for j in range(4):
        o(f"s_waitcnt lgkmcnt({7-2*j + j})")
        o(f"ds_write_b32 v6, v{N_+j} offset:{256*j}")
    offsets(o, R[0], 0)
    o(f"s_lshl_b64 {sr(FL,2)}, s[84:85], 5")
    o(f"s_or_b64 {sr(FL,2)}, {sr(FL,2)}, s[84:85]")
    o(f"s_lshl_b64 {sr(MF,2)}, {sr(MK,2)}, 4")
    o(f"s_lshl_b32 s88, s{S_NB}, 2")
    o("s_max_u32 s90, s88, 4")
    o("s_sub_u32 s90, s90, 4")
    o(f"s_lshr_b64 s[84:85], {sr(MK,2)}, s90")
    o(f"s_and_b32 s{S_LF}, s84, 15")
    o(f"s_cmp_eq_u32 s{S_NB}, 0")
    o("s_cbranch_scc1 L2_done")
    if cfg["tdef"]:
        o(f"s_waitcnt vmcnt({cfg['wb'] if cfg['wpos'] == 'A' else 0})")
        o.lab("L2_tfc")
        for j in range(4):
            o(f"v_xor_b32 v{116+2*j}, s74, v{116+2*j}")
            o(f"v_xor_b32 v{117+2*j}, s75, v{117+2*j}")
        o("v_or3_b32 v116, v116, v117, v118")
        o("v_or3_b32 v119, v119, v120, v121")
        o("v_or3_b32 v116, v116, v122, v123")
        o("v_or_b32 v116, v116, v119")
        o("v_cmp_ne_u32 vcc, 0, v116")
        o("s_cbranch_vccnz L2_tfw")
        o.lab("L2_tfd")
        tail.lab("L2_tfw")
        tail("s_sub_u32 s79, s79, 1")
        tail("s_cmp_eq_u32 s79, 0")
        tail("s_cbranch_scc1 L2_tfd")
        tail("s_sleep 2")
        tail("buffer_load_dwordx4 v[116:119], v61, s[12:15], s73 offen sc1")
        tail("buffer_load_dwordx4 v[120:123], v61, s[12:15], s73 offen offset:16 sc1")
        tail("s_waitcnt vmcnt(0)")
        tail("s_branch L2_tfc")
    o("s_waitcnt lgkmcnt(0)")
    if cfg.get("warmtest", 0):
        o("s_waitcnt vmcnt(0)")
        for i in range(cfg["warmtest"]): o("s_sleep 127")
    T(o, 23)
    for r in range(16): rowload(o, R[0] + r, cfg)
    if cfg["wpos"] == "C": prefetch(o, cfg)
    offsets(o, R[1], 1)
    o("s_mov_b32 s84, 0x55555555")
    o("s_mov_b32 s85, 0x55555555")
    o("s_lshl_b64 s[84:85], s[84:85], s90")
    o(f"s_or_b64 {sr(FL,2)}, {sr(FL,2)}, s[84:85]")
    o("s_mov_b64 s[84:85], 8")
    o("s_lshl_b64 s[84:85], s[84:85], s88")
    o(f"s_or_b64 {sr(FL,2)}, {sr(FL,2)}, s[84:85]")
    o.c("the wave lowers its priority as it nears its end so that the waves of a SIMD finish together")
    o(f"s_mov_b32 s{S_PL}, 0")
    o(f"s_mov_b32 s{S_LV}, 3")
    if cfg["pk"]:
        o.c("the first stages also pull the rest of this workgroup's table slice into L2 (landing in a dead LDS area)")
        o(f"s_mov_b32 s{S_PL}, {((1 << cfg['ps']) - 1) << 16:#x}")
        o(f"s_or_b32 s{FL}, s{FL}, {sum(1 << (4*i) for i in range(cfg['ps'])):#x}")
        o(f"s_add_u32 s24, s82, {16384*cfg['wb']}")
        o(f"s_mov_b32 m0, {DSV}")
    for i, rem in enumerate(int(x) for x in str(cfg["pp"])):
        o(f"s_cmp_gt_u32 s{S_NB}, {rem}")
        o(f"s_cbranch_scc0 L3_np{i}")
        o(f"s_sub_u32 s90, s{S_NB}, {rem}")
        o(f"s_bitset1_b32 s{S_PL}, s90")
        o("s_lshl_b32 s90, s90, 2")
        o(f"s_bitset1_b64 {sr(FL,2)}, s90")
        o.lab(f"L3_np{i}")
    o(f"v_add_u32 v{V_FA}, v{V_PA}, v{V_PA}")
    o(f"v_add_u32 v{V_PA}, 0x100, v{V_PA}")
    o(f"v_mov_b32 v{ACC}, 0")
    o(f"v_mov_b32 v{ACC+1}, 0")
    for c in range(1, 4): o(f"v_mov_b32 v{PC+c}, v{PC}")

def flush(o):
    o(f"v_add_f32 v{FT}, v{ACC}, v{ACC+1}")
    o(f"v_mul_f32 v{FT}, {QC:#x}, v{FT}")
    o(f"v_cvt_f64_f32 {vr(F64,2)}, v{FT}")
    o(f"ds_add_f64 v{V_FA}, {vr(F64,2)} offset:{AGG}")

def head(oo, late, u, cfg, slow):
    rc = R[u]; rl = R[(u + 1) & 3]; rp = R[(u + 3) & 3]
    if slow:
        oo(f"s_bitcmp1_b32 s{FL}, {4*u+2}")
        oo("s_waitcnt lgkmcnt(0)")
        oo(f"s_cbranch_scc1 L3_nl{u}")
        if not cfg.get("noload", 0):
            for r in range(16): rowload(oo, rl + r, cfg)
        if cfg["pk"]:
            oo(f"s_bitcmp1_b32 s{S_PL}, {16+u}")
            oo(f"s_cbranch_scc1 L3_pf{u}")
            late.lab(f"L3_pf{u}")
            for i in range(cfg["pk"]):
                late(f"buffer_load_dwordx4 v{V_T16}, s[12:15], s24 offen sc1 lds")
                late("s_add_u32 s24, s24, 16384")
            late(f"s_waitcnt vmcnt({16+cfg['pk']})")
            late(f"s_branch L3_lb{u}")
        oo("s_waitcnt vmcnt(16)")
        oo.lab(f"L3_lb{u}")
        late.lab(f"L3_nl{u}")
        late("s_waitcnt vmcnt(0)")
        late(f"s_branch L3_lb{u}")
        oo(f"s_bitcmp1_b32 s{S_PL}, {u}")
        oo(f"s_cbranch_scc1 L3_pd{u}")
        oo.lab(f"L3_pe{u}")
        late.lab(f"L3_pd{u}")
        late(f"s_sub_u32 s{S_LV}, s{S_LV}, 1")
        late("s_setprio 0")
        late(f"s_cmp_eq_u32 s{S_LV}, 0")
        late(f"s_cbranch_scc1 L3_pe{u}")
        late("s_setprio 1")
        late(f"s_cmp_eq_u32 s{S_LV}, 1")
        late(f"s_cbranch_scc1 L3_pe{u}")
        late("s_setprio 2")
        late(f"s_branch L3_pe{u}")
    else:
        oo("s_waitcnt vmcnt(0) lgkmcnt(0)")
    E = lambda t: oo(m4(G+4*t, EAR, CW, PC, f" cbsz:4 abid:{4*u+t}"))
    QA = lambda g: oo(m4(G+4*g, SELA, rc+4*g, G+4*g))
    QB = lambda g: oo(m4(G+4*g, SELB, rc+4*g+2, G+4*g))
    rr = [rp+2, rp+3, rp+10, rp+11]
    rcp = lambda i: oo(f"v_rcp_f32 v{rr[i]}, v{rr[i]}")
    def block(b):
        for j in range(2):
            n = f"{u}_{2*b+j}"
            oo(f"s_bitcmp1_b32 s{MK}, {4*u+2*b+j}")
            oo(f"s_cbranch_scc1 L3_ps{n}")
            oo.lab(f"L3_pb{n}")
            late.lab(f"L3_ps{n}")
            late("s_waitcnt lgkmcnt(0)")
            late(f"v_mov_b32 v{PC+1}, v{PN}")
            late(f"v_add_u32 v{V_PA}, 0x100, v{V_PA}")
            late(f"ds_read_b32 v{PN}, v{V_PA} offset:{PT}")
            late(f"s_branch L3_pb{n}")
            if j == 0:
                oo(f"v_mov_b32 v{PC}, v{PC+1}")
                oo(f"v_mov_b32 v{PC+2}, v{PC+1}")
            else:
                oo(f"v_mov_b32 v{PC+3}, v{PC+1}")
                oo("s_nop 1")
    if slow: block(0)
    E(0); rcp(0); E(1); rcp(1); QA(0); rcp(2)
    if slow: block(1)
    E(2); rcp(3); QB(0); E(3); QA(1); QA(2)
    if slow:
        oo(f"v_mov_b32 v{PC}, v{PC+1}")
        oo(f"v_mov_b32 v{PC+2}, v{PC+1}")
    oo(f"s_bitcmp1_b32 s{FL}, {4*u+1}")
    QB(1)
    for r in range(16):
        oo(f"v_exp_f32_e64 v{G+r}, v{G+r} clamp")
        if not slow and not cfg.get("noload", 0): rowload(oo, rl + r, cfg)
        if r == 0: QA(3)
        if r == 1: QB(2)
        if r == 2: QB(3)

def accum(o, tail, name, rp, reg, bit0):
    o(f"s_cbranch_scc1 L3_sf{name}")
    for b in range(2): o(pk("fma", ACC, rp+8*b, rp+8*b+2, ACC))
    o.lab(f"L3_fb{name}")
    tail.lab(f"L3_sf{name}")
    for g in range(4):
        b, j = g >> 1, g & 1
        tail(f"s_bitcmp1_b32 s{reg}, {bit0+g}")
        tail(f"s_cbranch_scc0 L3_sk{name}_{g}")
        flush(tail)
        tail(f"v_add_u32 v{V_FA}, 0x200, v{V_FA}")
        tail(f"v_mov_b32 v{ACC}, 0")
        tail(f"v_mov_b32 v{ACC+1}, 0")
        tail.lab(f"L3_sk{name}_{g}")
        tail(f"v_fmac_f32 v{ACC+j}, v{rp+8*b+j}, v{rp+8*b+2+j}")
    tail(f"s_branch L3_fb{name}")

def stage(o, tail, u, cfg):
    rc = R[u]; rp = R[(u + 3) & 3]; ro = R[(u + 2) & 3]
    o(f"s_bitcmp1_b32 s{FL}, {4*u}")
    o(f"s_cbranch_scc1 L3_se{u}")
    head(o, None, u, cfg, False)
    o.lab(f"L3_xb{u}")
    tail.lab(f"L3_se{u}")
    tail(f"s_bitcmp1_b32 s{FL}, {4*u+3}")
    tail(f"s_cbranch_scc1 L3_last{(u+3)&3}")
    late = Asm()
    head(tail, late, u, cfg, True)
    tail(f"s_branch L3_xb{u}")
    tail.l += late.l
    accum(o, tail, str(u), rp, MF, 4*u)
    offsets(o, ro, u + 2)
    for r in range(0, 16, 2): o(pk("add", G+r, G+r, VC2))
    seq = [lambda d, h: pk("mul", h, h, d+2), lambda d, h: pk("mul", h+4, h+4, d+6),
           lambda d, h: pk("fma", h, h+2, d, h), lambda d, h: pk("fma", h+4, h+6, d+4, h+4),
           lambda d, h: pk("mul", d, d, d+2), lambda d, h: pk("mul", d+4, d+4, d+6),
           lambda d, h: pk("mul", h, h, d+4), lambda d, h: pk("mul", h+2, d, d+4),
           lambda d, h: pk("fma", h, h+4, d, h)]
    for f in seq:
        for b in range(2): o(f(G+8*b, rc+8*b))
    if u == 3:
        o(f"v_add_u32 v{V_SA}, 0x100, v{V_SA}")
        o(f"v_mov_b64 {vr(EAR,2)}, {vr(EW,2)}")
        o(f"v_mov_b64 {vr(EW,2)}, {vr(EW+2,2)}")
        o(f"v_mov_b64 {vr(EW+2,2)}, {vr(EW+4,2)}")
        for r in (FL, MK, MF): o(f"s_lshr_b64 {sr(r,2)}, {sr(r,2)}, 16")
        if cfg["pk"]: o(f"s_and_b32 s{S_PL}, s{S_PL}, 0xffff")
        o(f"s_lshr_b32 s{S_PL}, s{S_PL}, 4")
        o("s_branch L2_loop")

def mainloop(o, tail, T, cfg):
    o(f"s_waitcnt vmcnt({16 if cfg['wpos'] != 'C' else 0}) lgkmcnt(0)")
    for b in range(2):
        for j in range(2):
            o(f"v_mov_b32 v{R[3]+8*b+j}, 0")
            o(f"v_mov_b32 v{R[3]+8*b+2+j}, 1.0")
    T(o, 15); T(o, 16, True)
    o(".p2align 3")
    if cfg.get("clk", 0): o("s_mov_b32 m0, 24")
    o.lab("L2_loop")
    if cfg.get("clk", 0):
        o("s_memtime s[100:101]"); o("s_memrealtime s[98:99]"); o("s_waitcnt lgkmcnt(0)")
        o(f"v_writelane_b32 v{V_ST}, s100, m0"); o("s_add_u32 m0, m0, 1"); o("s_nop 1"); o(f"v_writelane_b32 v{V_ST}, s98, m0"); o("s_add_u32 m0, m0, 1")
    o.c("per block of two groups: sum h_i / d_i = N / D with d_i = 2^-31 + min(1, 2^(t_i - 31)); one reciprocal per group")
    for u in range(4): stage(o, tail, u, cfg)
    for u in range(4):
        oo = o if u == 0 else tail
        oo.lab(f"L3_last{u}")
        for r in (2, 3, 10, 11): oo(f"v_rcp_f32 v{R[u]+r}, v{R[u]+r}")
        oo(f"s_cmp_lg_u32 s{S_LF}, 0")
        t2 = Asm()
        accum(oo, t2, f"e{u}", R[u], S_LF, 0)
        if u != 0: oo("s_branch L2_last")
        tail.l += t2.l
    o.lab("L2_last")
    flush(o)
    o.lab("L2_done")
    o("s_waitcnt vmcnt(0) lgkmcnt(0)")
    T(o, 17); T(o, 18, True)
    o("s_barrier")
    o(f"s_or_b32 s84, s{S_MORE}, s{S_PEND}")
    o("s_cbranch_scc1 L2_next")
    tail.lab("L2_next")
    tail("v_mov_b32 v3, 0")
    tail("ds_write_b32 v1, v3")
    tail("ds_write_b32 v2, v3 offset:256")
    tail("s_waitcnt lgkmcnt(0)")
    tail("s_barrier")
    tail(f"s_cmp_lg_u32 s{S_PEND}, 0")
    tail("s_cbranch_scc1 L2_again")
    tail(f"s_add_u32 s{S_OFF}, s{S_OFF}, 32")
    tail("s_branch L2_pass")
    o("v_lshlrev_b32 v1, 5, v0")
    o(f"ds_read_b128 v[80:83], v1 offset:{AGG}")
    o(f"ds_read_b128 v[84:87], v1 offset:{AGG+16}")
    o("v_cmp_gt_u32 vcc, 784, v0")
    o("s_lshl_b32 s93, s78, 7")
    o("v_lshl_add_u32 v2, v0, 3, s93")
    o("s_and_saveexec_b64 s[94:95], vcc")
    o("s_cbranch_execz L2_fin")
    o("s_waitcnt lgkmcnt(0)")
    for r in range(4): o(f"v_cvt_f32_f64 v{64+r}, {vr(80+2*r,2)}")
    for r in range(4): o(f"v_mul_f32 v{72+r}, {NEG_LOG2E:#x}, v{64+r}")
    for r in range(4): o(f"v_exp_f32 v{72+r}, v{72+r}")
    for r in range(4): o(f"v_add_f32 v{72+r}, 1.0, v{72+r}")
    for r in range(4): o(f"v_rcp_f32 v{72+r}, v{72+r}")
    for r in range(4): o(f"v_mul_f32 v{64+r}, v{64+r}, v{72+r}")
    for r in range(2): o(f"v_cvt_pk_bf16_f32 v{72+r}, v{64+2*r}, v{65+2*r}")
    o(f"buffer_store_dwordx2 v[72:73], v2, s[16:19], 0 offen {cfg['sto']}")
    o.lab("L2_fin")
    if T.on:
        o("s_waitcnt vmcnt(0)"); T(o, 19); T(o, 20, True); T.dump(o)

HEADER = """; Edge-gated MPNN layer: out = silu(x@U + sum over edges with dst=i of sigmoid(x[dst]@A + x[src]@B + e@C) * (x[src]@V))
; @launch grid=(256,1,1) block=(1024,1,1) lds={l}
.amdgcn_target "amdgcn-amd-amdhsa--gfx950"
.text
.globl {n}
.p2align 8
.type {n},@function
"""
FOOTER = """.section .rodata,"a"
.p2align 6
.amdhsa_kernel {n}
  .amdhsa_next_free_vgpr 128
  .amdhsa_next_free_sgpr 102
  .amdhsa_accum_offset 128
  .amdhsa_group_segment_fixed_size 0
  .amdhsa_kernarg_size 80
  .amdhsa_user_sgpr_count 2
  .amdhsa_user_sgpr_kernarg_segment_ptr 1
  .amdhsa_system_sgpr_workgroup_id_x 1
  .amdhsa_float_denorm_mode_32 3
  .amdhsa_dx10_clamp 0
.end_amdhsa_kernel
"""
DEFAULTS = dict(st="sc1", ld1="nt", ldt="", sto="", wb=1, wpos="A", early=0, cpf=1, ldx='nt', wf=1, wq=1, pk=0, ps=3, tdef=0, we=0, ldr="sc1", mkp=1, pp=631, sleep=2, spin=50000, stamp=0)
def build(cfg):
    cfg = dict(DEFAULTS, **cfg)
    o = Asm(); tail = Asm(); T = Stamper(cfg["stamp"])
    o.lab(NAME)
    o("s_cmp_ge_u32 s2, 256")
    o("s_cbranch_scc1 L_end")
    T(o, 0, True); T(o, 1)
    phase1(o, tail, T, cfg); handoff(o, tail, T, cfg); sort(o, tail, T, cfg); mainloop(o, tail, T, cfg)
    o.lab("L_end")
    o("s_endpgm")
    return HEADER.format(l=LDS, n=NAME) + o.text() + tail.text() + "L_codeend:\n" + FOOTER.format(n=NAME)

if __name__ == "__main__":
    cfg = {}
    for a in sys.argv[2:]:
        k, v = a.split("=")
        cfg[k] = int(v) if v.lstrip("-").isdigit() else v
    open(sys.argv[1], "w").write(build(cfg))
```

```python
import sys

class Asm:
    def __init__(self): self.l = []
    def __call__(self, s): self.l.append("    " + s)
    def lab(self, s): self.l.append(s + ":")
    def c(self, s): self.l.append("    ; " + s)
    def text(self): return "\n".join(self.l) + "\n"
def vr(a, n=1): return f"v{a}" if n == 1 else f"v[{a}:{a+n-1}]"
def sr(a, n=1): return f"s{a}" if n == 1 else f"s[{a}:{a+n-1}]"

N = 12500; E = 800000; NPB = 49; CH = 3128; CHB = CH * 12
WS_DESC = 0x00A00000; WS_TF = 0x00A80000; STAMP_BASE = 0x00B00000; WS_T = 0x00C00000; T_BYTES = 256 * NPB * 256
NULLROW = N * 256; NEG_LOG2E = 0xBFB8AA3B; MAGIC49 = 21400; QC = 0x30000000
assert all(((d * MAGIC49) >> 20) == d // 49 for d in range(N))
NAME = "standalone__edge_featured_mpnn_egc__graph_kernel"

CAPN = 128; CAPU = 3840; CAPL = 74
PT = 0; AGG = 13312; OV = 38912
LS = OV; LE = LS + 50 * CAPN * 4; CS = LE + 50 * CAPN * 8
HIST = OV; STAGE = OV + 1024; PB = OV + 38912
XS = 93696; WL = XS + 8192; TS = WL + 16384; AU = TS + 16384
CNT = AU + 16384; DSV = CNT + 512; LDS = DSV + 1024
NULLSLOT = 49 * CAPN
assert STAGE + CHB <= PB and PB + 13 * 1024 <= XS and CNT % 256 == 0 and CS + 16 * 1024 + 256 <= CNT and LE < 65536
assert NPB * ((CAPL + 3) // 4 * 4) + 15 <= CAPU and LDS <= 163840

R = [64, 80, 96, 112]; G = 32
EAR = 30; CW = 28; SELA = 26; SELB = 24; PC = 20; ACC = 18; F64 = 16
V_SA = 15; V_PA = 13; V_FA = 12; V_ST = 11; L = 10; V_DESC = 9; V_LB = 8; V_T16 = 7
PN = 48; VC2 = 50; FT = 52; EW = 54; V_LM = 14; V_SG = 60
REC = 64; CA = 96; BS = 104; DUM = 112
S_PEND = 20; S_OFF = 21; S_NB = 22; S_LF = 23; S_MORE = 25; S_TOT = 26
FL = 28; MF = 4; S_PL = 6; S_LV = 7; MK = 76; MASK = 32; SOFF = 64

class Stamper:
    def __init__(self, on): self.on = on
    def __call__(self, o, i, real=False):
        if not self.on: return
        o(f"{'s_memrealtime' if real else 's_memtime'} s[100:101]")
        o("s_waitcnt lgkmcnt(0)")
        o(f"v_writelane_b32 v{V_ST}, s100, {i}")
    def dump(self, o):
        if not self.on: return
        o("s_mov_b32 exec_hi, 0"); o("s_mov_b32 exec_lo, -1")
        o("s_lshl_b32 s4, s2, 4"); o("s_add_u32 s4, s4, s3"); o("s_lshl_b32 s4, s4, 7")
        o(f"s_add_u32 s4, s4, {STAMP_BASE}")
        o(f"v_lshl_add_u32 v1, v{L}, 2, s4")
        o(f"buffer_store_dword v{V_ST}, v1, s[12:15], 0 offen")

def srd(o, d, p, size):
    o(f"s_mov_b32 s{d}, s{p}"); o(f"s_and_b32 s{d+1}, s{p+1}, 0xffff")
    o(f"s_mov_b32 s{d+2}, {size}"); o(f"s_mov_b32 s{d+3}, 0x00020000")
def wave_scan(o, v):
    for sh in (1, 2, 4, 8):
        o(f"v_add_u32_dpp v{v}, v{v}, v{v} row_shr:{sh} row_mask:0xf bank_mask:0xf bound_ctrl:0")
        o("s_nop 1")
    o(f"v_add_u32_dpp v{v}, v{v}, v{v} row_bcast:15 row_mask:0xa bank_mask:0xf")
    o("s_nop 1")
    o(f"v_add_u32_dpp v{v}, v{v}, v{v} row_bcast:31 row_mask:0xc bank_mask:0xf")
def mfma16(d, a, b, first):
    return f"v_mfma_f32_32x32x16_bf16 {vr(d,16)}, {vr(a,4)}, {vr(b,4)}, {'0' if first else vr(d,16)}"
def m4(d, a, b, c, extra=""):
    return f"v_mfma_f32_4x4x4_16b_bf16 {vr(d,4)}, {vr(a,2)}, {vr(b,2)}, {vr(c,4)}{extra}"
def pk(op, d, a, b, c=None):
    return f"v_pk_{op}_f32 {vr(d,2)}, {vr(a,2)}, {vr(b,2)}" + (f", {vr(c,2)}" if c is not None else "")
def trbase(o, d, h, t):
    o(f"v_bfe_u32 v{t}, v{L}, 2, 2")
    o(f"v_lshl_add_u32 v{d}, v{h}, 3, v{t}")
    o(f"v_lshlrev_b32 v{d}, 7, v{d}")
    o(f"v_bfe_u32 v{t}, v{L}, 4, 1")
    o(f"v_lshl_add_u32 v{d}, v{t}, 5, v{d}")
    o(f"v_and_b32 v{t}, 3, v{L}")
    o(f"v_lshl_add_u32 v{d}, v{t}, 3, v{d}")

def phase1(o, tail, T, cfg):
    ST = cfg["st"]; LD = cfg["ld1"]
    def misc():
        o("s_cmp_lg_u32 s3, 1")
        o("s_cbranch_scc1 L1_nn")
        o("s_cmp_lg_u32 s2, 0")
        o("s_cbranch_scc1 L1_nn")
        o.c("launch tag: tells this launch's descriptors from whatever an earlier launch left in ws")
        o("s_memrealtime s[84:85]")
        o("s_waitcnt lgkmcnt(0)")
        o("s_lshl_b32 s86, s84, 24")
        o("s_lshr_b64 s[84:85], s[84:85], 8")
        o("s_bitset1_b32 s84, 31")
        o("v_mov_b32 v32, s86")
        o("v_mov_b32 v33, s84")
        o("v_mov_b32 v34, 0")
        o("s_mov_b64 exec, 1")
        o("buffer_store_dwordx2 v[32:33], v34, s[68:71], 0 offen sc1")
        o("s_mov_b64 exec, -1")
        o.lab("L1_nn")
        o("s_cmp_lg_u32 s3, 2")
        o("s_cbranch_scc1 L1_nz")
        o.c("touch the pages stored to later (address translation only, data unused)")
        o("v_mov_b32 v32, 0")
        o(f"s_mul_i32 s84, s2, {CHB}")
        o("s_lshl_b32 s85, s78, 8")
        o(f"s_add_u32 s85, s85, {WS_T}")
        o(f"s_mov_b32 s86, {WS_DESC}")
        for sreg in (84, 85, 86): o(f"buffer_load_dword v33, v32, s[12:15], s{sreg} offen sc1")
        o(f"s_add_u32 s84, s84, {CHB-4}")
        o("buffer_load_dword v33, v32, s[12:15], s84 offen sc1")
        o("buffer_load_dword v33, v32, s[16:19], 0 offen sc1")
        o.lab("L1_nz")
    o("s_load_dwordx16 s[80:95], s[0:1], 0")
    o("s_load_dwordx4 s[96:99], s[0:1], 64")
    if cfg["cpf"]:
        o.c("read this kernel's code once per XCD so that later instruction fetches find it in L2 (data unused)")
        o("s_getpc_b64 s[8:9]")
        o.lab("L_pc")
        o("s_and_b32 s9, s9, 0xffff")
        o("s_mov_b32 s10, L_codeend-L_pc")
        o("s_mov_b32 s11, 0x00020000")
        if cfg["cpf"] == 1:
            o("s_lshr_b32 s4, s2, 3")
            o("s_lshl_b32 s4, s4, 10")
            o("v_lshl_add_u32 v1, v0, 4, s4")
            o("v_cmp_gt_u32 vcc, 64, v0")
            o("s_and_saveexec_b64 s[4:5], vcc")
            o("s_cbranch_execz L_npf")
            o("buffer_load_dwordx4 v[120:123], v1, s[8:11], 0 offen")
            o.lab("L_npf")
            o("s_mov_b64 exec, -1")
        else:
            o("v_lshlrev_b32 v1, 7, v0")
            o("v_cmp_gt_u32 vcc, 256, v0")
            o("s_and_saveexec_b64 s[4:5], vcc")
            o("s_cbranch_execz L_npf")
            o("buffer_load_dword v120, v1, s[8:11], 0 offen")
            o.lab("L_npf")
            o("s_mov_b64 exec, -1")
    o("v_lshrrev_b32 v1, 6, v0")
    o(f"v_and_b32 v{L}, 63, v0")
    o("s_movk_i32 s4, 768")
    o("s_cmp_eq_u32 s2, 255")
    o("s_cselect_b32 s4, 590, s4")
    o("s_cselect_b32 s6, 0, 56")
    o("v_readfirstlane_b32 s3, v1")
    o("s_mul_i32 s5, s2, 12512")
    o("v_subrev_u32 v4, 256, v0")
    o("v_lshl_add_u32 v2, v4, 4, s5")
    o("v_lshlrev_b32 v3, 1, v2")
    o("v_cmp_gt_u32 s[72:73], s4, v4")
    o("v_cmp_gt_u32 s[74:75], s6, v4")
    o("s_and_b32 s30, s2, 7")
    o("s_lshl_b32 s30, s30, 5")
    o("s_lshr_b32 s31, s2, 3")
    o("s_add_u32 s30, s30, s31")
    o("s_mul_i32 s78, s30, 49")
    o(f"v_lshlrev_b32 v{V_T16}, 4, v0")
    o("s_add_u32 s5, s5, 12288")
    o("v_lshl_add_u32 v5, v4, 2, s5")
    o(f"s_mov_b32 s38, {E*4}"); o("s_mov_b32 s39, 0x00020000")
    o("s_waitcnt lgkmcnt(0)")
    o("s_mov_b32 s36, s86"); o("s_and_b32 s37, s87, 0xffff")
    o("s_mov_b64 exec, s[72:73]")
    o("s_cbranch_execz L1_noload")
    o(f"buffer_load_dwordx4 v[64:67], v2, s[36:39], 0 offen {LD}")
    o("s_mov_b64 exec, s[74:75]")
    o("s_cbranch_execz L1_noload")
    o(f"buffer_load_dword v80, v5, s[36:39], 0 offen {LD}")
    o.lab("L1_noload")
    o("s_mov_b64 exec, -1")
    o("s_cmp_gt_u32 s3, 3")
    o("s_cbranch_scc1 L1_a")
    o.c("table waves 0..3, unit (rt = w>>1, hh = w&1): LDS-DMA of the block's 64 x rows and the raw B / V weights")
    srd(o, 48, 80, N * 128)
    o(f"v_lshlrev_b32 v25, 4, v{L}")
    o("s_lshl_b32 s4, s3, 11")
    o("s_lshl_b32 s5, s78, 7")
    o("s_add_u32 s5, s5, s4")
    o(f"s_add_u32 s4, s4, {XS}")
    o("s_mov_b32 m0, s4")
    o("v_add_u32 v20, s5, v25")
    o("s_and_b32 s6, s3, 1")
    o("s_lshr_b32 s7, s3, 1")
    o(f"buffer_load_dwordx4 v20, s[48:51], 0 offen {cfg.get('ldx', '')} lds")
    o(f"buffer_load_dwordx4 v20, s[48:51], 0 offen offset:1024 {cfg.get('ldx', '')} lds")
    o("s_cmp_eq_u32 s7, 0")
    o("s_cselect_b32 s52, s92, s90")
    o("s_cselect_b32 s53, s93, s91")
    o("s_cselect_b32 s5, 8192, 0")
    o("s_and_b32 s53, s53, 0xffff")
    o("s_add_u32 s54, s5, 8192")
    o("s_mov_b32 s55, 0x00020000")
    o("s_lshl_b32 s4, s6, 12")
    o("s_add_u32 s5, s5, s4")
    o("s_lshl_b32 s4, s3, 12")
    o(f"s_add_u32 s4, s4, {WL}")
    o("s_mov_b32 m0, s4")
    o("s_cmp_lg_u32 s3, 2")
    for i in range(4): o(f"buffer_load_dwordx4 v25, s[52:55], s5 offen offset:{1024*i} {cfg.get('ldw', '')} lds")
    o("s_cbranch_scc1 L1_a")
    for i in range(4): o(f"v_mov_b32 v{32+i}, 0")
    o(f"ds_write_b128 v25, v[32:35] offset:{HIST}")
    o(f"v_lshlrev_b32 v26, 2, v{L}")
    o(f"v_add_u32 v26, {CNT}, v26")
    o("ds_write_b32 v26, v32")
    o("ds_write_b32 v26, v32 offset:64")
    o("s_waitcnt lgkmcnt(0)")
    o.lab("L1_a")
    srd(o, 40, 84, E * 4); srd(o, 44, 82, E * 8)
    T(o, 2)
    o("s_barrier")
    o("s_mov_b64 exec, s[72:73]")
    o("s_cbranch_execz L1_noload2")
    o(f"buffer_load_dwordx4 v[68:71], v2, s[40:43], 0 offen {LD}")
    o(f"buffer_load_dwordx4 v[72:75], v3, s[44:47], 0 offen {LD}")
    o(f"buffer_load_dwordx4 v[76:79], v3, s[44:47], 0 offen offset:16 {LD}")
    o("s_mov_b64 exec, s[74:75]")
    o("s_cbranch_execz L1_noload2")
    o("v_lshlrev_b32 v3, 1, v5")
    o(f"buffer_load_dword v81, v5, s[40:43], 0 offen {LD}")
    o(f"buffer_load_dwordx2 v[82:83], v3, s[44:47], 0 offen {LD}")
    o.lab("L1_noload2")
    o("s_mov_b64 exec, -1")
    srd(o, 12, 98, WS_T + T_BYTES); srd(o, 16, 94, N * 128); srd(o, 68, 96, 256)
    srd(o, 52, 92, 132 * 128); srd(o, 60, 88, 64 * 128)
    o.c("table descriptor: stride 4 with thread-id addressing, so one uniform row offset reads the 64 channels")
    o(f"s_add_u32 s8, s98, {WS_T}"); o("s_addc_u32 s9, s99, 0")
    o("s_and_b32 s9, s9, 0xffff"); o("s_or_b32 s9, s9, 0x40000")
    o(f"s_mov_b32 s10, {T_BYTES}"); o("s_mov_b32 s11, 0x00800000")
    if cfg.get("stale", 0):
        o("s_mul_i32 s82, s31, 100352")
        o(f"s_add_u32 s82, s82, {WS_T}")
        for i in range(7):
            o(f"buffer_load_dwordx4 v[124:127], v{V_T16}, s[12:15], s82 offen sc1")
            o("s_add_u32 s82, s82, 16384")
        o("s_waitcnt vmcnt(0)")
    o("s_cmp_gt_u32 s3, 3")
    o("s_cbranch_scc1 L1_edge")
    o("s_lshl_b32 s29, s3, 12")
    o(f"s_add_u32 s29, s29, {TS}")
    o(f"v_and_b32 v24, 31, v{L}")
    o(f"v_lshrrev_b32 v25, 5, v{L}")
    o("s_lshl_b32 s84, s7, 12")
    o(f"s_add_u32 s84, s84, {XS}")
    o("v_lshl_add_u32 v20, v25, 4, s84")
    o("v_lshl_add_u32 v20, v24, 7, v20")
    o("v_lshlrev_b32 v27, 9, v25")
    o("v_lshl_add_u32 v27, v24, 2, v27")
    o("v_add_u32 v27, s29, v27")
    trbase(o, 26, 25, 28)
    o("s_lshl_b32 s84, s6, 6")
    o(f"s_add_u32 s84, s84, {WL}")
    o("v_add_u32 v26, s84, v26")
    o(f"v_lshrrev_b32 v21, 3, v{L}")
    o(f"v_and_b32 v22, 7, v{L}")
    o("v_lshlrev_b32 v22, 4, v22")
    o("s_lshl_b32 s84, s7, 5")
    o("v_add_u32 v23, s84, v21")
    o("v_lshl_add_u32 v29, v23, 8, v22")
    o("v_lshl_add_u32 v21, v21, 7, v22")
    o("v_add_u32 v21, s29, v21")
    o("s_lshl_b32 s84, s3, 12")
    o(f"s_add_u32 s85, s84, {AU}")
    o("s_mov_b32 m0, s85")
    o(f"v_lshlrev_b32 v28, 4, v{L}")
    if cfg["early"]:
        o.c("the four table waves meet through an LDS counter once their staging loads have landed")
        o(f"v_mov_b32 v32, {CNT+272}")
        o("v_mov_b32 v33, 1")
        o("s_setprio 2")
        o("s_waitcnt vmcnt(0)")
        o("s_mov_b64 exec, 1")
        o("ds_add_u32 v32, v33")
        o("s_mov_b64 exec, -1")
        o.lab("L1_tw")
        o("ds_read_b32 v33, v32")
        o("s_waitcnt lgkmcnt(0)")
        o("v_readfirstlane_b32 s84, v33")
        o("s_cmp_lt_u32 s84, 4")
        o("s_cbranch_scc1 L1_tw")
        T(o, 4)
    else:
        o("s_waitcnt vmcnt(0)")
        misc()
        T(o, 4)
        o("s_barrier")
        o("s_setprio 2")
    for s in range(4): o(f"ds_read_b128 {vr(40+4*s,4)}, v20 offset:{32*s}")
    for m in range(2):
        for s in range(4):
            for t in range(2):
                o(f"ds_read_b64_tr_b16 {vr(64+16*m+4*s+2*t,2)}, v26 offset:{8192*m+2048*s+512*t}")
    def au():
        o.c("raw A (waves 0,1) and U (waves 2,3) weights for the P and x@U products")
        o("s_lshl_b32 s87, s6, 12")
        o("s_cmp_eq_u32 s7, 0")
        o("s_cbranch_scc0 L1_ldu")
        for i in range(4): o(f"buffer_load_dwordx4 v28, s[52:55], s87 offen offset:{1024*i} lds")
        o("s_branch L1_ldd")
        o.lab("L1_ldu")
        for i in range(4): o(f"buffer_load_dwordx4 v28, s[60:63], s87 offen offset:{1024*i} lds")
        o.lab("L1_ldd")
    if not cfg["early"]: au()
    o("s_mov_b32 s84, 0xffff0000")
    o(f"s_mov_b32 s85, {NEG_LOG2E:#x}")
    o("s_brev_b32 s86, 1")
    o("s_waitcnt lgkmcnt(8)")
    for s in range(4): o(mfma16(96, 40+4*s, 64+4*s, s == 0))
    o("s_waitcnt lgkmcnt(0)")
    for s in range(4): o(mfma16(112, 40+4*s, 80+4*s, s == 0))
    o("s_nop 6")
    o.c("row entry = bf16(-log2e * x@B) in the low half; the high half is chosen so the whole dword is nearest to x@V")
    for r in range(16): o(f"v_mul_f32 v{96+r}, s85, v{96+r}")
    for r in range(0, 16, 2):
        o(f"v_cvt_pk_bf16_f32 v{96+r}, v{96+r}, v{97+r}")
        o(f"v_lshrrev_b32 v{97+r}, 16, v{96+r}")
        o(f"v_and_b32 v{96+r}, 0xffff, v{96+r}")
    for r in range(16):
        t = 56 + (r & 3); t2 = 60 + (r & 3)
        if cfg["early"] and r == cfg["early"] - 1:
            T(o, 5)
            o("s_barrier")
            au()
        o(f"v_add_u32 v{t}, 0x8000, v{112+r}")
        o(f"v_and_b32 v{t2}, s86, v{112+r}")
        o(f"v_sub_u32_e64 v{t}, v{t}, v{96+r} clamp")
        o(f"v_max_u32 v{t}, v{t}, v{t2}")
        o(f"v_and_or_b32 v{t}, v{t}, s84, v{96+r}")
        o(f"ds_write_b32 v27, v{t} offset:{(8*(r>>2) + (r&3))*128}")
    if cfg["tdef"]:
        o("s_waitcnt vmcnt(0)")
    else:
        for i in range(4): o(f"ds_read_b128 {vr(64+4*i,4)}, v21 offset:{1024*i}")
        o("s_lshl_b32 s84, s78, 8")
        o("s_lshl_b32 s85, s6, 7")
        o("s_add_u32 s84, s84, s85")
        o(f"s_add_u32 s84, s84, {WS_T}")
        if not cfg["early"]: o("s_waitcnt vmcnt(0)")
        for i in range(4):
            o(f"v_cmp_gt_u32 vcc, {49-8*i}, v23")
            o(f"s_waitcnt lgkmcnt({3-i})")
            o("s_mov_b64 exec, vcc")
            o(f"buffer_store_dwordx4 {vr(64+4*i,4)}, v29, s[12:15], s84 offen {cfg.get('stt', ST)}")
            o("s_add_u32 s84, s84, 2048")
            o("s_mov_b64 exec, -1")
    o("s_setprio 0")
    T(o, 6)
    if cfg["early"]:
        o("s_waitcnt vmcnt(4)")
        misc()
    o("s_branch L1_d")
    o.lab("L1_edge")
    o("s_mov_b64 exec, s[72:73]")
    o("s_cbranch_execz L1_histdone")
    o(f"s_movk_i32 s84, {MAGIC49}")
    o("v_mov_b32 v20, 1")
    def hist(regs):
        for d, b, a, r in regs: o(f"v_mul_u32_u24 v{b}, s84, v{d}")
        for d, b, a, r in regs: o(f"v_lshrrev_b32 v{b}, 20, v{b}")
        for d, b, a, r in regs:
            o(f"v_lshlrev_b32 v{a}, 2, v{b}")
            o(f"ds_add_rtn_u32 v{r}, v{a}, v20 offset:{HIST}")
        for d, b, a, r in regs: o(f"v_mul_u32_u24 v{b}, 49, v{b}")
        for d, b, a, r in regs: o(f"v_sub_u32 v{d}, v{d}, v{b}")
        for d, b, a, r in regs: o(f"v_lshlrev_b32 v{d}, 26, v{d}")
    o("s_cmp_eq_u64 s[74:75], 0")
    o("s_cbranch_scc1 L1_h4")
    o("s_mov_b64 exec, s[74:75]")
    o("s_waitcnt vmcnt(5)")
    hist([(80, 88, 93, 98)])
    o("s_mov_b64 exec, s[72:73]")
    o("s_branch L1_h5")
    o.lab("L1_h4")
    o("s_waitcnt vmcnt(3)")
    o.lab("L1_h5")
    T(o, 3)
    hist([(64+i, 84+i, 89+i, 94+i) for i in range(4)])
    o("s_waitcnt lgkmcnt(0)")
    o.lab("L1_histdone")
    o("s_mov_b64 exec, -1")
    o(f"v_lshlrev_b32 v104, 4, v{L}")
    o("s_sub_u32 s85, s3, 3")
    o("s_lshl_b32 s85, s85, 10")
    o(f"s_add_u32 s85, s85, {PB}")
    o("v_add_u32 v105, s85, v104")
    for i in range(5): o(f"v_add_u32 v{89+i}, s85, v{89+i}")
    T(o, 4)
    o("s_barrier")
    T(o, 5)
    o.c("every edge wave scans the 256 bucket counts for itself")
    o(f"ds_read_b128 v[108:111], v104 offset:{HIST}")
    o("s_waitcnt lgkmcnt(0)")
    o("v_add_u32 v106, v108, v109")
    o("v_add_u32 v107, v106, v110")
    o("v_add_u32 v116, v107, v111")
    o("v_mov_b32 v112, v116")
    o("s_nop 1")
    wave_scan(o, 112)
    o("v_sub_u32 v112, v112, v116")
    o("v_add_u32 v113, v112, v108")
    o("v_add_u32 v114, v112, v106")
    o("v_add_u32 v115, v112, v107")
    o("s_cmp_lg_u32 s3, 15")
    o("s_cbranch_scc1 L1_scat")
    for j in range(4): o(f"v_lshl_or_b32 v{108+j}, v{108+j}, 12, v{112+j}")
    o(f"v_add_u32 v104, {DSV}, v104")
    o("ds_write_b128 v104, v[108:111]")
    o.lab("L1_scat")
    for j in range(4): o(f"v_mul_u32_u24 v{112+j}, 12, v{112+j}")
    o("ds_write_b128 v105, v[112:115]")
    o("s_mov_b64 exec, s[72:73]")
    o("s_cbranch_execz L1_scatdone")
    for i in range(5): o(f"ds_read_b32 v{84+i}, v{89+i}")
    o("s_waitcnt lgkmcnt(0)")
    for i in range(5): o(f"v_mad_u32_u24 v{84+i}, v{94+i}, 12, v{84+i}")
    o("s_waitcnt vmcnt(2)")
    for i in range(4): o(f"v_lshl_or_b32 v{68+i}, v{68+i}, 8, v{64+i}")
    for i in range(4): o(f"ds_write_b32 v{84+i}, v{68+i} offset:{STAGE+8}")
    for i in range(5): o(f"v_add_u32 v{84+i}, {STAGE}, v{84+i}")
    o("s_waitcnt vmcnt(0)")
    T(o, 6)
    for i in range(4): o(f"ds_write2_b32 v{84+i}, v{72+2*i}, v{73+2*i} offset0:0 offset1:1")
    o("s_mov_b64 exec, s[74:75]")
    o("s_cbranch_execz L1_scatdone")
    o("v_lshl_or_b32 v81, v81, 8, v80")
    o("ds_write_b32 v88, v81 offset:8")
    o("ds_write2_b32 v88, v82, v83 offset0:0 offset1:1")
    o.lab("L1_scatdone")
    o("s_mov_b64 exec, -1")
    o.lab("L1_d")
    o(f"s_mul_i32 s85, s2, {CHB}")
    o(f"v_add_u32 v4, {STAGE}, v{V_T16}")
    o(f"v_add_u32 v5, 16384, v{V_T16}")
    o(f"v_add_u32 v6, 32768, v{V_T16}")
    o("v_cmp_gt_u32 vcc, 298, v0")
    o("s_waitcnt lgkmcnt(0)")
    o("s_barrier")
    T(o, 7); T(o, 26, True)
    o("ds_read_b128 v[80:83], v4")
    o("ds_read_b128 v[84:87], v4 offset:16384")
    o("ds_read_b128 v[88:91], v4 offset:32768")
    o("s_waitcnt lgkmcnt(2)")
    o(f"buffer_store_dwordx4 v[80:83], v{V_T16}, s[12:15], s85 offen {ST}")
    o("s_waitcnt lgkmcnt(1)")
    o(f"buffer_store_dwordx4 v[84:87], v5, s[12:15], s85 offen {ST}")
    o("s_mov_b64 exec, vcc")
    o("s_cbranch_execz L1_c3")
    o("s_waitcnt lgkmcnt(0)")
    o(f"buffer_store_dwordx4 v[88:91], v6, s[12:15], s85 offen {ST}")
    o.lab("L1_c3")
    o("s_mov_b64 exec, -1")
    T(o, 8)

def handoff(o, tail, T, cfg):
    o(f"v_lshlrev_b32 v1, 1, v{L}")
    o("v_add_u32 v1, 0x4000, v1")
    for j in range(4): o(f"buffer_load_ushort v{76+j}, v1, s[52:55], 0 offen offset:{128*j}")
    o("v_mov_b32 v74, 0")
    o("buffer_load_dwordx2 v[72:73], v74, s[68:71], 0 offen sc1")
    o.c("selector operands of the 4x4x4 MFMAs that add the gathered gate term")
    o(f"v_and_b32 v1, 3, v{L}")
    o("v_mov_b32 v2, 0x3f80")
    for idx, reg in enumerate((SELA, SELA+1, SELB, SELB+1)):
        o(f"v_cmp_eq_u32 vcc, {idx}, v1")
        o("s_nop 1")
        o(f"v_cndmask_b32 v{reg}, 0, v2, vcc")
    o("s_cmp_lt_u32 s3, 8")
    o("s_cbranch_scc1 L2_pdone")
    o.c("waves 8..15: P = -log2e * x@A - 31 (gate term of the destination node) and x@U (start value of the sums)")
    o("s_and_b32 s86, s3, 1")
    o("s_bfe_u32 s91, s3, 0x10001")
    o("s_bfe_u32 s88, s3, 0x10002")
    o("s_lshl_b32 s89, s91, 12")
    o(f"s_add_u32 s89, s89, {XS}")
    o(f"v_and_b32 v3, 31, v{L}")
    o(f"v_lshrrev_b32 v2, 5, v{L}")
    o("v_lshl_add_u32 v1, v2, 4, s89")
    o("v_lshl_add_u32 v1, v3, 7, v1")
    for s in range(4): o(f"ds_read_b128 {vr(32+4*s,4)}, v1 offset:{32*s}")
    o("s_lshl_b32 s90, s88, 5")
    o("v_add_u32 v3, s90, v3")
    trbase(o, 1, 2, 20)
    o("s_lshl_b32 s89, s86, 13")
    o("s_lshl_b32 s90, s88, 6")
    o("s_add_u32 s89, s89, s90")
    o(f"s_add_u32 s89, s89, {AU}")
    o("v_add_u32 v1, s89, v1")
    for s in range(4):
        for t in range(2):
            o(f"ds_read_b64_tr_b16 {vr(48+4*s+2*t,2)}, v1 offset:{2048*s+512*t}")
    o("v_lshlrev_b32 v2, 2, v2")
    o("s_lshl_b32 s90, s91, 5")
    o("v_add_u32 v2, s90, v2")
    o("v_lshl_add_u32 v2, v2, 6, v3")
    o("s_waitcnt lgkmcnt(0)")
    PD = 96
    for s in range(4): o(mfma16(PD, 32+4*s, 48+4*s, s == 0))
    o("s_cmp_eq_u32 s86, 1")
    o("s_cbranch_scc1 L2_xu")
    o("v_lshlrev_b32 v2, 2, v2")
    o(f"v_mov_b32 v3, {NEG_LOG2E:#x}")
    o("s_nop 8")
    def pwrite(r):
        o(f"v_fmaak_f32 v{PD+r}, v3, v{PD+r}, 0xc1f80000")
        o(f"ds_write_b32 v2, v{PD+r} offset:{PT + (8*(r>>2)+(r&3))*256}")
    def uwrite(r):
        t = 32 + 2 * (r & 7)
        o(f"v_cvt_f64_f32 {vr(t,2)}, v{PD+r}")
        o(f"ds_write_b64 v2, {vr(t,2)} offset:{AGG + (8*(r>>2)+(r&3))*512}")
    for wr, lab in ((pwrite, None), (uwrite, "L2_xu")):
        if lab:
            o.lab(lab); o("v_lshlrev_b32 v2, 3, v2"); o("s_nop 9")
        for r in range(8): wr(r)
        o("s_cmp_eq_u32 s91, 1")
        o("s_cselect_b32 exec_hi, 0, -1")
        for r in range(8, 10): wr(r)
        o("s_mov_b64 exec, -1")
        o("s_cbranch_scc1 L2_pdone")
        for r in range(10, 16): wr(r)
        if not lab: o("s_branch L2_pdone")
    o.lab("L2_pdone")
    o.c("record addressing: wave w, lane group g, step i reads chunk (w&7) + 8*(16*(w>>3) + 4*g + i)")
    o(f"v_lshrrev_b32 v2, 4, v{L}")
    o(f"v_and_b32 v3, 15, v{L}")
    o("v_and_b32 v4, 3, v3")
    o("s_lshr_b32 s27, s3, 3")
    o("s_lshl_b32 s27, s27, 7")
    o("s_and_b32 s81, s3, 7")
    o("s_add_u32 s27, s27, s81")
    o("v_lshl_add_u32 v2, v2, 5, s27")
    o("v_lshl_add_u32 v4, v4, 3, v2")
    o("v_lshlrev_b32 v4, 11, v4")
    o(f"s_mov_b32 s81, {CHB}")
    o(f"v_mul_lo_u32 v{V_LB}, v2, s81")
    o(f"v_mad_u32_u24 v{V_LB}, v3, 12, v{V_LB}")
    for i in range(4): o(f"s_mov_b32 s{SOFF+i}, {8*i*CHB}")
    o("s_lshl_b32 s72, s30, 3")
    o(f"s_add_u32 s72, s72, {WS_DESC}")
    o("s_mul_i32 s82, s31, 100000")
    o(f"s_add_u32 s82, s82, {WS_T}")
    o(f"s_mov_b32 s{S_OFF}, 0")
    o(f"v_mov_b32 v{VC2}, {QC:#x}")
    o(f"v_mov_b32 v{VC2+1}, {QC:#x}")
    o(f"s_mov_b32 s87, {cfg['spin']}")
    o.c("lane l of a 64-slot window takes slot (l & ~7) | ((l & 1) << 2) | ((l >> 1) & 3): two groups interleaved per block")
    o(f"v_and_b32 v3, 1, v{L}")
    o(f"v_bfe_u32 v5, v{L}, 1, 2")
    o("v_lshl_or_b32 v3, v3, 2, v5")
    o(f"v_and_b32 v5, 56, v{L}")
    o(f"v_or_b32 v{V_SG}, v3, v5")
    o(f"v_lshrrev_b32 v3, 2, v{V_SG}")
    o(f"v_lshlrev_b32 v{V_LM}, v3, 2")
    o(f"v_subrev_u32 v{V_LM}, 1, v{V_LM}")
    if cfg["tdef"]:
        o.c("this wave's share of the table stage: unit w>>2 (rt, hh), rows 8*(w&3) .. +7")
        o("s_lshl_b32 s84, s3, 10")
        o(f"s_add_u32 s84, s84, {TS}")
        o(f"v_lshl_add_u32 v5, v{L}, 4, s84")
        o("ds_read_b128 v[92:95], v5")
        o(f"v_lshrrev_b32 v5, 3, v{L}")
        o("s_and_b32 s84, s3, 3")
        o("s_lshl_b32 s84, s84, 3")
        o("s_lshr_b32 s86, s3, 3")
        o("s_lshl_b32 s86, s86, 5")
        o("s_add_u32 s84, s84, s86")
        o("v_add_u32 v5, s84, v5")
        o("v_cmp_gt_u32 s[94:95], 49, v5")
        o(f"v_and_b32 v6, 7, v{L}")
        o("v_lshlrev_b32 v6, 4, v6")
        o("v_lshl_add_u32 v75, v5, 8, v6")
        o("s_bfe_u32 s84, s3, 0x10002")
        o("s_lshl_b32 s84, s84, 7")
        o("s_lshl_b32 s86, s78, 8")
        o("s_add_u32 s84, s84, s86")
        o(f"s_add_u32 s79, s84, {WS_T}")
    o("s_cmp_lg_u32 s3, 15")
    o("s_cbranch_scc1 L2_nd")
    o(f"v_lshlrev_b32 v1, 4, v{L}")
    o(f"v_add_u32 v2, {DSV}, v1")
    o("ds_read_b128 v[64:67], v2")
    o("v_lshlrev_b32 v1, 1, v1")
    o("s_lshl_b32 s85, s2, 11")
    o(f"s_add_u32 s85, s85, {WS_DESC}")
    o.lab("L2_nd")
    for i in range(cfg.get("wd", 0)):
        o(f"buffer_load_dwordx4 {vr(DUM,4)}, v{V_T16}, s[12:15], s82 offen sc1")
        o("s_add_u32 s82, s82, 16384")
    o(f"s_waitcnt vmcnt({cfg.get('wd', 0)}) lgkmcnt(0)")
    for j in range(4): o(f"v_lshlrev_b32 v{76+j}, 16, v{76+j}")
    for j in range(4): o(f"v_mul_f32 v{76+j}, {NEG_LOG2E:#x}, v{76+j}")
    o(f"v_cvt_pk_bf16_f32 v{CW}, v76, v77")
    o(f"v_cvt_pk_bf16_f32 v{CW+1}, v78, v79")
    o.lab("L2_tag")
    o("v_readfirstlane_b32 s74, v72")
    o("v_readfirstlane_b32 s75, v73")
    o("s_sub_u32 s87, s87, 1")
    o("s_cmp_lg_u32 s75, 0")
    o("s_cbranch_scc1 L2_tagok")
    o("s_cmp_le_i32 s87, 0")
    o("s_cbranch_scc1 L2_tagno")
    tail.lab("L2_tagno")
    tail(f"v_mov_b32 v5, {CNT+280}")
    tail("ds_write_b32 v5, v5")
    tail("s_mov_b32 s87, 1")
    tail("s_branch L2_tagok")
    o("buffer_load_dwordx2 v[72:73], v74, s[68:71], 0 offen sc1")
    o("s_waitcnt vmcnt(0)")
    o("s_branch L2_tag")
    o.lab("L2_tagok")
    for j in (81, 83, 85, 87): o(f"v_mov_b32 v{j}, s75")
    for j in range(4): o(f"v_or_b32 v{80+2*j}, s74, v{64+j}")
    T(o, 9); T(o, 27, True)
    o("s_barrier")
    o("s_cmp_lg_u32 s3, 15")
    o("s_cbranch_scc1 L2_wf" if cfg["wf"] else "s_cbranch_scc1 L2_f")
    if cfg["wf"]:
        tail.lab("L2_wf")
        tail(f"s_nop {cfg.get('wfd', 15)}")
        for i in range(cfg["wf"]):
            tail(f"buffer_load_dwordx4 {vr(DUM,4)}, v{V_T16}, s[12:15], s82 offen sc1")
            tail("s_add_u32 s82, s82, 16384")
        tail("s_branch L2_f")
        o(f"s_add_u32 s82, s82, {16384*cfg['wf']}")
    o("buffer_store_dwordx4 v[80:83], v1, s[12:15], s85 offen sc1")
    o("buffer_store_dwordx4 v[84:87], v1, s[12:15], s85 offen offset:16 sc1")
    o("s_waitcnt vmcnt(0)")
    o.lab("L2_f")
    o("s_barrier")
    if cfg["tdef"]:
        o("s_mov_b64 exec, s[94:95]")
        o(f"buffer_store_dwordx4 v[92:95], v75, s[12:15], s79 offen {cfg['st']}")
        o("s_mov_b64 exec, -1")
    o("s_cmp_lg_u32 s3, 0")
    o("s_cbranch_scc1 L2_nn")
    o(f"v_mov_b32 v1, {NULLSLOT*4}")
    o(f"v_mov_b32 v5, {NULLSLOT*8}")
    o(f"v_mov_b32 v6, {NULLROW}")
    o("v_mov_b32 v2, 0")
    o("v_mov_b32 v3, 0")
    o(f"ds_write_b32 v1, v6 offset:{LS}")
    o(f"ds_write_b64 v5, v[2:3] offset:{LE}")
    o.lab("L2_nn")
    T(o, 10); T(o, 28, True)
    for i in range(cfg.get("we", 0)):
        o(f"buffer_load_dwordx4 {vr(DUM,4)}, v{V_T16}, s[12:15], s82 offen sc1")
        o("s_add_u32 s82, s82, 16384")
    if cfg["tdef"]:
        o("buffer_load_dwordx2 v[2:3], v4, s[12:15], s72 offen sc1")
        o(f"v_mov_b32 v5, {CNT+272}")
        o("v_mov_b32 v6, 1")
        o("s_lshl_b32 s84, s2, 3")
        o("v_mov_b32 v64, s84")
        o("v_mov_b32 v66, s74")
        o("v_mov_b32 v67, s75")
        o(f"s_mov_b32 s73, {WS_TF}")
        o("s_waitcnt vmcnt(0)")
        o.c("the wave whose table store is the last to complete publishes the block's flag")
        o("s_mov_b64 exec, 1")
        o("ds_add_rtn_u32 v65, v5, v6")
        o("s_waitcnt lgkmcnt(0)")
        o("v_cmpx_eq_u32 vcc, 15, v65")
        o("s_cbranch_execz L2_ntf")
        o("buffer_store_dwordx2 v[66:67], v64, s[12:15], s73 offen sc1")
        o.lab("L2_ntf")
        o("s_mov_b64 exec, -1")
        o("s_branch L2_pc")
    o.lab("L2_poll")
    o("buffer_load_dwordx2 v[2:3], v4, s[12:15], s72 offen sc1")
    o("s_sub_u32 s87, s87, 1")
    o("s_waitcnt vmcnt(0)")
    o.lab("L2_pc")
    o("v_xor_b32 v2, s74, v2")
    o("v_cmp_ne_u32 vcc, s75, v3")
    o("v_lshrrev_b32 v3, 24, v2")
    o("v_cmp_ne_u32 s[84:85], 0, v3")
    o("s_or_b64 vcc, vcc, s[84:85]")
    o("s_cbranch_scc0 L2_g")
    o("s_cmp_le_i32 s87, 0")
    o("s_cbranch_scc1 L2_gno")
    tail.lab("L2_gno")
    tail(f"v_mov_b32 v5, {CNT+280}")
    tail("ds_write_b32 v5, v5")
    tail("v_mov_b32 v2, 0")
    tail("s_branch L2_g")
    o(f"s_sleep {cfg['sleep']}")
    o("s_branch L2_poll")
    o.lab("L2_g")
    o("v_and_b32 v3, 0xfff, v2")
    o("v_bfe_u32 v2, v2, 12, 12")
    o("v_mul_u32_u24 v3, 12, v3")
    o(f"v_lshl_or_b32 v{V_DESC}, v2, 16, v3")
    if cfg["tdef"]: o(f"s_mov_b32 s79, {cfg['spin']}")
    T(o, 11); T(o, 29, True)

def offsets(o, reg, batch):
    for q in range(4): o(f"ds_read_b128 {vr(reg+4*q,4)}, v{V_SA} offset:{batch*64+16*q}")
def rowload(o, r, cfg): o(f"buffer_load_dword v{r}, v{r}, s[8:11], 0 offen {cfg['ldt']}")

def prefetch(o, cfg):
    o.c("pull part of the table into this XCD's L2 while the records are being placed")
    if cfg.get("wfew", 0):
        o(f"s_cmp_ge_u32 s3, {cfg['wfew']}")
        o("s_cbranch_scc1 L2_nwb")
        o(f"s_mul_i32 s84, s3, {cfg['wb']*1024}")
        o("s_add_u32 s84, s84, s82")
        o(f"v_lshlrev_b32 v{DUM+4}, 4, v{L}")
        for i in range(cfg["wb"]):
            o(f"buffer_load_dwordx4 {vr(DUM,4)}, v{DUM+4}, s[12:15], s84 offen sc1")
            o("s_add_u32 s84, s84, 1024")
        o.lab("L2_nwb")
        return
    o("s_mov_b32 s84, s82")
    for i in range(cfg["wb"]):
        o(f"buffer_load_dwordx4 {vr(DUM,4)}, v{V_T16}, s[12:15], s84 offen sc1")
        o("s_add_u32 s84, s84, 16384")

def alone(o, cfg):
    o.lab("L9_alone")
    o("s_load_dwordx8 s[84:91], s[0:1], 0")
    o("s_load_dwordx2 s[92:93], s[0:1], 40")
    o("s_waitcnt vmcnt(0) lgkmcnt(0)")
    srd(o, 32, 84, N * 128); srd(o, 36, 86, E * 8); srd(o, 40, 88, E * 4); srd(o, 44, 90, E * 4); srd(o, 56, 92, 8192)
    o(f"v_lshlrev_b32 v32, 1, v{L}")
    o(f"v_lshlrev_b32 v33, 16, v{CW}")
    o(f"v_and_b32 v34, 0xffff0000, v{CW}")
    o(f"v_lshlrev_b32 v35, 16, v{CW+1}")
    o(f"v_and_b32 v36, 0xffff0000, v{CW+1}")
    o("v_lshlrev_b32 v37, 2, v0")
    o(f"s_mov_b32 s84, {(E + 1023) // 1024}")
    o.lab("L9_scan")
    o("v_lshlrev_b32 v38, 1, v37")
    o("buffer_load_dword v40, v37, s[44:47], 0 offen")
    o("buffer_load_dword v41, v37, s[40:43], 0 offen")
    o("buffer_load_dwordx2 v[42:43], v38, s[36:39], 0 offen")
    o(f"s_mov_b32 s85, {E*4}")
    o("v_cmp_gt_u32 s[86:87], s85, v37")
    o("s_waitcnt vmcnt(0)")
    o("v_subrev_u32 v40, s78, v40")
    o("v_cmp_gt_u32 vcc, 49, v40")
    o("s_and_b64 s[86:87], s[86:87], vcc")
    o.lab("L9_edge")
    o("s_cmp_eq_u64 s[86:87], 0")
    o("s_cbranch_scc1 L9_next")
    o("s_ff1_i32_b64 s85, s[86:87]")
    o("s_bitset0_b64 s[86:87], s85")
    o("v_readlane_b32 s88, v40, s85")
    o("v_readlane_b32 s89, v41, s85")
    o("v_readlane_b32 s90, v42, s85")
    o("v_readlane_b32 s91, v43, s85")
    o("s_lshl_b32 s89, s89, 7")
    o("v_add_u32 v44, s89, v32")
    o("buffer_load_ushort v45, v44, s[32:35], 0 offen")
    o("s_lshl_b32 s88, s88, 8")
    o(f"v_lshl_add_u32 v44, v{L}, 2, s88")
    o(f"ds_read_b32 v46, v44 offset:{PT}")
    o("v_mov_b32 v52, 0")
    o("v_mov_b32 v53, 0")
    o("s_mov_b32 s92, 0")
    o("s_waitcnt vmcnt(0)")
    o("v_lshlrev_b32 v45, 16, v45")
    o.lab("L9_k")
    o("s_lshl_b32 s93, s92, 7")
    o("s_add_u32 s94, s93, 8192")
    o("buffer_load_ushort v54, v32, s[52:55], s94 offen")
    o("buffer_load_ushort v55, v32, s[56:59], s93 offen")
    o("v_readlane_b32 s95, v45, s92")
    o("s_waitcnt vmcnt(0)")
    o("v_lshlrev_b32 v54, 16, v54")
    o("v_lshlrev_b32 v55, 16, v55")
    o("v_fmac_f32 v52, s95, v54")
    o("v_fmac_f32 v53, s95, v55")
    o("s_add_u32 s92, s92, 1")
    o("s_cmp_lt_u32 s92, 64")
    o("s_cbranch_scc1 L9_k")
    o("s_lshl_b32 s92, s90, 16")
    o("s_and_b32 s93, s90, 0xffff0000")
    o("s_lshl_b32 s94, s91, 16")
    o("s_and_b32 s95, s91, 0xffff0000")
    o("s_waitcnt lgkmcnt(0)")
    o("v_add_f32 v46, 0x41f80000, v46")
    o(f"v_fmac_f32 v46, {NEG_LOG2E:#x}, v52")
    for i in range(4): o(f"v_fmac_f32 v46, s{92+i}, v{33+i}")
    o("v_exp_f32 v46, v46")
    o("s_nop 0")
    o("v_add_f32 v46, 1.0, v46")
    o("v_rcp_f32 v46, v46")
    o("v_add_u32 v44, v44, v44")
    o("v_mul_f32 v46, v46, v53")
    o("v_cvt_f64_f32 v[54:55], v46")
    o(f"ds_add_f64 v44, v[54:55] offset:{AGG}")
    o("s_branch L9_edge")
    o.lab("L9_next")
    o("v_add_u32 v37, 0x1000, v37")
    o("s_sub_u32 s84, s84, 1")
    o("s_cmp_lg_u32 s84, 0")
    o("s_cbranch_scc1 L9_scan")
    o(f"s_mov_b32 s{S_MORE}, 0")
    o(f"s_mov_b32 s{S_PEND}, 0")
    o("s_branch L2_done")

def sort(o, tail, T, cfg):
    o.lab("L2_pass")
    o(f"v_and_b32 v3, 15, v{L}")
    o(f"v_add_u32 v1, s{S_OFF}, v3")
    o("v_add_u32 v2, 16, v1")
    o(f"s_add_u32 s83, s{S_OFF}, 32")
    o(f"v_lshrrev_b32 v4, 16, v{V_DESC}")
    o("v_cmp_lt_u32 vcc, s83, v4")
    o("s_cmp_lg_u64 vcc, 0")
    o(f"s_cselect_b32 s{S_MORE}, 1, 0")
    for i in range(4):
        o(f"v_mov_b32_dpp v{BS}, v4 row_newbcast:{i} row_mask:0xf bank_mask:0xf")
        o(f"v_cmp_lt_u32 {sr(MASK+2*i,2)}, v1, v{BS}")
        o(f"v_cmp_lt_u32 {sr(MASK+8+2*i,2)}, v2, v{BS}")
    o.lab("L2_again")
    o(f"s_mul_i32 s84, s{S_OFF}, 12")
    o(f"v_add_u32 v6, s84, v{V_LB}")
    o(f"v_and_b32 v5, 0xffff, v{V_DESC}")
    o("s_nop 1")
    for i in range(4):
        o(f"v_add_u32_dpp v{BS+1+i}, v5, v6 row_newbcast:{i} row_mask:0xf bank_mask:0xf")
    for i in range(4):
        o(f"s_mov_b64 exec, {sr(MASK+8+2*i,2)}")
        o(f"s_cbranch_execz L2_r2_{i}")
        o(f"buffer_load_dwordx3 {vr(REC+16+4*i,3)}, v{BS+1+i}, s[12:15], s{SOFF+i} offen offset:192 {cfg['ldr']}")
        o.lab(f"L2_r2_{i}")
    for i in range(4):
        o(f"s_mov_b64 exec, {sr(MASK+2*i,2)}")
        o(f"buffer_load_dwordx3 {vr(REC+4*i,3)}, v{BS+1+i}, s[12:15], s{SOFF+i} offen {cfg['ldr']}")
    o("s_mov_b64 exec, -1")
    o("v_mov_b32 v1, 4")
    o(f"v_mov_b32 v2, {CNT}")
    o(f"s_cmp_eq_u32 s{S_MORE}, 0")
    o("s_cbranch_scc1 L2_nomore")
    o("ds_write_b32 v2, v1 offset:256")
    o.lab("L2_nomore")
    o(f"v_cmp_gt_u32 s[92:93], 49, v{L}")
    o("v_mov_b32 v6, 16")
    o(f"v_mov_b32 v5, {CAPN*4}")
    o("v_cndmask_b32 v6, 0, v6, s[92:93]")
    def rank(i):
        o(f"v_add_u32_sdwa v{CA+i}, v{REC+4*i+2}, v2 dst_sel:DWORD dst_unused:UNUSED_PAD src0_sel:BYTE_3 src1_sel:DWORD")
        o(f"ds_add_rtn_u32 v{REC+4*i+3}, v{CA+i}, v1")
        o(f"v_lshrrev_b32 v{CA+i}, 26, v{REC+4*i+2}")
        o(f"v_and_b32 v{REC+4*i+2}, 0xffffff, v{REC+4*i+2}")
    def scat(i):
        o(f"v_lshl_add_u32 v{CA+i}, v{CA+i}, 9, v{REC+4*i+3}")
        o(f"v_cmpx_lt_u32 vcc, v{REC+4*i+3}, v5")
        o(f"v_add_u32 v{BS+i}, v{CA+i}, v{CA+i}")
        o(f"ds_write_b32 v{CA+i}, v{REC+4*i+2} offset:{LS}")
        o(f"ds_write_b64 v{BS+i}, {vr(REC+4*i,2)} offset:{LE}")
    for i in range(4):
        o(f"s_waitcnt vmcnt({3-i})")
        o(f"s_mov_b64 exec, {sr(MASK+2*i,2)}")
        rank(i)
    for i in range(4, 8):
        o(f"s_mov_b64 exec, {sr(MASK+2*i,2)}")
        o(f"s_cbranch_execz L2_rk{i}")
        rank(i)
        o.lab(f"L2_rk{i}")
    o("s_waitcnt lgkmcnt(0)")
    T(o, 12)
    for i in range(4):
        o(f"s_mov_b64 exec, {sr(MASK+2*i,2)}")
        scat(i)
    for i in range(4, 8):
        o(f"s_mov_b64 exec, {sr(MASK+2*i,2)}")
        o(f"s_cbranch_execz L2_sc{i}")
        scat(i)
        o.lab(f"L2_sc{i}")
    o("s_mov_b64 exec, -1")
    o(f"v_lshl_add_u32 v1, v{L}, 2, v2")
    if cfg["wpos"] == "P": prefetch(o, cfg)
    if cfg.get("wq", 0):
        o.c("waves whose producers tend to finish first pull part of the table while the others still wait")
        o("s_bitcmp1_b32 s3, 0")
        o("s_cbranch_scc1 L2_nwq")
        o("s_lshr_b32 s84, s3, 1")
        o(f"s_mul_i32 s84, s84, {cfg['wq']*1024}")
        o("s_add_u32 s84, s84, s82")
        o(f"s_add_u32 s84, s84, {16384*cfg['wb']}")
        o(f"v_lshlrev_b32 v{DUM+4}, 4, v{L}")
        for i in range(cfg["wq"]):
            o(f"buffer_load_dwordx4 {vr(DUM,4)}, v{DUM+4}, s[12:15], s84 offen sc1")
            o("s_add_u32 s84, s84, 1024")
        o.lab("L2_nwq")
    o("s_waitcnt lgkmcnt(0)")
    T(o, 13)
    o("s_setprio 3")
    o("s_barrier")
    T(o, 14)
    o("ds_read_b32 v3, v1")
    o("ds_read2_b32 v[4:5], v2 offset0:64 offset1:70")
    if cfg["tdef"]:
        o(f"v_lshlrev_b32 v61, 5, v{L}")
        o("buffer_load_dwordx4 v[116:119], v61, s[12:15], s73 offen sc1")
        o("buffer_load_dwordx4 v[120:123], v61, s[12:15], s73 offen offset:16 sc1")
    if cfg["wpos"] == "A": prefetch(o, cfg)
    o(f"s_movk_i32 s84, {CAPN*4}")
    o("s_waitcnt lgkmcnt(0)")
    o(f"v_readfirstlane_b32 s{S_MORE}, v4")
    o("v_readfirstlane_b32 s85, v5")
    o("s_cmp_lg_u32 s85, 0" if not cfg.get("force", 0) else "s_cmp_eq_u32 s85, s85")
    o("s_cbranch_scc1 L9_alone")
    alone(tail, cfg)
    o.lab("L2_cap")
    o("v_cmp_lt_u32 vcc, s84, v3")
    o("v_min_u32 v4, s84, v3")
    o("v_add_u32 v5, 15, v4")
    o("v_and_b32 v5, -16, v5")
    o("v_max_u32 v5, v5, v6")
    o(f"v_mov_b32 v{BS}, v5")
    o("s_cmp_lg_u64 vcc, 0")
    o(f"s_cselect_b32 s{S_PEND}, 1, 0")
    wave_scan(o, BS)
    o("s_nop 0")
    o(f"v_readlane_b32 s{S_TOT}, v{BS}, 63")
    o(f"v_sub_u32 v5, v{BS}, v5")
    o(f"s_cmp_gt_u32 s{S_TOT}, {CAPU*4}")
    o("s_cbranch_scc1 L2_over")
    tail.lab("L2_over")
    tail(f"s_movk_i32 s84, {CAPL*4}")
    tail("s_branch L2_cap")
    o(f"s_cmp_lg_u32 s{S_PEND}, 0")
    o("s_cbranch_scc1 L2_pend")
    o.lab("L2_pendb")
    tail.lab("L2_pend")
    tail.c("records ranked past the cap stay pending for another pass over the same window")
    for i in range(8):
        tail(f"v_cmp_le_u32 vcc, s84, v{REC+4*i+3}")
        tail(f"s_and_b64 {sr(MASK+2*i,2)}, {sr(MASK+2*i,2)}, vcc")
    tail("s_branch L2_pendb")
    T(o, 21)
    o("v_lshl_or_b32 v4, v4, 16, v5")
    o.c("this wave's range of batches (16 slots each)")
    o(f"s_add_u32 s86, s{S_TOT}, 63")
    o("s_lshr_b32 s86, s86, 6")
    o(f"s_lshr_b32 s{S_NB}, s86, 4")
    o("s_and_b32 s88, s86, 15")
    o(f"s_mul_i32 s87, s{S_NB}, s3")
    o("s_min_u32 s89, s3, s88")
    o("s_add_u32 s87, s87, s89")
    o("s_cmp_lt_u32 s3, s88")
    o(f"s_addc_u32 s{S_NB}, s{S_NB}, 0")
    o(f"s_add_u32 s88, s87, s{S_NB}")
    o("s_lshl_b32 s89, s87, 6")
    o("s_lshl_b32 s90, s88, 6")
    o("v_cmp_ge_u32 vcc, s89, v5")
    o("s_and_b64 s[94:95], vcc, s[92:93]")
    o("s_bcnt1_i32_b64 s91, s[94:95]")
    o("s_sub_u32 s91, s91, 1")
    o("v_cmp_gt_u32 vcc, s90, v5")
    o("s_andn2_b64 s[94:95], vcc, s[94:95]")
    o("s_and_b64 s[94:95], s[94:95], s[92:93]")
    o("s_lshl_b32 s96, s91, 8")
    o(f"v_lshl_add_u32 v{V_PA}, v{L}, 2, s96")
    o(f"ds_read_b32 v{PC}, v{V_PA} offset:{PT}")
    o(f"ds_read_b32 v{PN}, v{V_PA} offset:{PT+256}")
    o.c("one bit per group (4 slots) that starts a new node: every such node pushes a one to the lane of its group")
    o("v_subrev_u32 v5, s89, v5")
    o("v_lshrrev_b32 v5, 2, v5")
    o("v_cndmask_b32 v5, 0, v5, s[94:95]")
    o("v_mov_b32 v3, 1")
    o("ds_permute_b32 v76, v5, v3")
    o("s_waitcnt lgkmcnt(0)")
    o(f"v_cmp_ne_u32 {sr(MK,2)}, 0, v76")
    o(f"s_and_b32 s{MK}, s{MK}, -2")
    T(o, 22)
    o.c("build the wave's stream: for every slot its node, then source row and edge attributes from the node's list")
    N_, B_, X_ = 64, 68, 72
    o(f"s_mov_b64 s[84:85], {sr(MK,2)}")
    o("s_mov_b32 s86, s91")
    for j in range(4):
        o(f"v_and_b32 v{N_+j}, s84, v{V_LM}")
        o(f"v_bcnt_u32_b32 v{N_+j}, v{N_+j}, s86") if False else None
        o(f"v_bcnt_u32_b32 v{N_+j}, v{N_+j}, 0")
        o(f"v_add_lshl_u32 v{N_+j}, v{N_+j}, s86, 2")
        o(f"ds_bpermute_b32 v{B_+j}, v{N_+j}, v4")
        if j < 3:
            o("s_and_b32 s87, s84, 0xffff")
            o("s_bcnt1_i32_b32 s87, s87")
            o("s_add_u32 s86, s86, s87")
            o("s_lshr_b64 s[84:85], s[84:85], 16")
    o(f"v_lshl_add_u32 v3, v{V_SG}, 2, s89")
    o(f"v_mov_b32 v5, {NULLSLOT*4}")
    o("s_lshl_b32 s96, s3, 10")
    o(f"s_add_u32 s96, s96, {CS}")
    o(f"v_mov_b32 v{V_SA}, s96")
    o(f"v_lshl_add_u32 v6, v{L}, 2, s96")
    for j in range(4):
        o(f"s_waitcnt lgkmcnt({3-j + 2*j})")
        o(f"v_sub_u32_sdwa v{X_+j}, v3, v{B_+j} dst_sel:DWORD dst_unused:UNUSED_PAD src0_sel:DWORD src1_sel:WORD_0")
        o(f"v_lshrrev_b32 v{B_+j}, 16, v{B_+j}")
        o(f"v_cmp_lt_u32 vcc, v{X_+j}, v{B_+j}")
        o(f"v_lshl_add_u32 v{X_+j}, v{N_+j}, 7, v{X_+j}")
        if j < 3: o("v_add_u32 v3, 0x100, v3")
        else: o("s_nop 0")
        o(f"v_cndmask_b32 v{X_+j}, v5, v{X_+j}, vcc")
        o(f"ds_read_b32 v{N_+j}, v{X_+j} offset:{LS}")
        o(f"v_add_u32 v{X_+j}, v{X_+j}, v{X_+j}")
        o(f"ds_read_b64 {vr(EAR if j == 0 else EW+2*j-2, 2)}, v{X_+j} offset:{LE}")
    if cfg.get("nomask", 0): o(f"s_mov_b64 {sr(MK,2)}, 0")
    o.c("per-stage flags, one nibble each: 1 slow head, 2 flush, 4 no more loads, 8 past the last batch")
    o(f"s_lshr_b64 s[84:85], {sr(MK,2)}, 1")
    o(f"s_or_b64 s[84:85], s[84:85], {sr(MK,2)}")
    o("s_lshr_b64 s[86:87], s[84:85], 2")
    o("s_or_b64 s[84:85], s[84:85], s[86:87]")
    o("s_mov_b32 s86, 0x11111111")
    o("s_mov_b32 s87, 0x11111111")
    o("s_and_b64 s[84:85], s[84:85], s[86:87]")
    for j in range(4):
        o(f"s_waitcnt lgkmcnt({7-2*j + j})")
        o(f"ds_write_b32 v6, v{N_+j} offset:{256*j}")
    offsets(o, R[0], 0)
    o(f"s_lshl_b64 {sr(FL,2)}, s[84:85], 5")
    o(f"s_or_b64 {sr(FL,2)}, {sr(FL,2)}, s[84:85]")
    o(f"s_lshl_b64 {sr(MF,2)}, {sr(MK,2)}, 4")
    o(f"s_lshl_b32 s88, s{S_NB}, 2")
    o("s_max_u32 s90, s88, 4")
    o("s_sub_u32 s90, s90, 4")
    o(f"s_lshr_b64 s[84:85], {sr(MK,2)}, s90")
    o(f"s_and_b32 s{S_LF}, s84, 15")
    o(f"s_cmp_eq_u32 s{S_NB}, 0")
    o("s_cbranch_scc1 L2_done")
    if cfg["tdef"]:
        o(f"s_waitcnt vmcnt({cfg['wb'] if cfg['wpos'] == 'A' else 0})")
        o.lab("L2_tfc")
        for j in range(4):
            o(f"v_xor_b32 v{116+2*j}, s74, v{116+2*j}")
            o(f"v_xor_b32 v{117+2*j}, s75, v{117+2*j}")
        o("v_or3_b32 v116, v116, v117, v118")
        o("v_or3_b32 v119, v119, v120, v121")
        o("v_or3_b32 v116, v116, v122, v123")
        o("v_or_b32 v116, v116, v119")
        o("v_cmp_ne_u32 vcc, 0, v116")
        o("s_cbranch_vccnz L2_tfw")
        o.lab("L2_tfd")
        tail.lab("L2_tfw")
        tail("s_sub_u32 s79, s79, 1")
        tail("s_cmp_eq_u32 s79, 0")
        tail("s_cbranch_scc1 L2_tfd")
        tail("s_sleep 2")
        tail("buffer_load_dwordx4 v[116:119], v61, s[12:15], s73 offen sc1")
        tail("buffer_load_dwordx4 v[120:123], v61, s[12:15], s73 offen offset:16 sc1")
        tail("s_waitcnt vmcnt(0)")
        tail("s_branch L2_tfc")
    o("s_waitcnt lgkmcnt(0)")
    if cfg.get("warmtest", 0):
        o("s_waitcnt vmcnt(0)")
        for i in range(cfg["warmtest"]): o("s_sleep 127")
    T(o, 23)
    for r in range(16): rowload(o, R[0] + r, cfg)
    if cfg["wpos"] == "C": prefetch(o, cfg)
    offsets(o, R[1], 1)
    o("s_mov_b32 s84, 0x55555555")
    o("s_mov_b32 s85, 0x55555555")
    o("s_lshl_b64 s[84:85], s[84:85], s90")
    o(f"s_or_b64 {sr(FL,2)}, {sr(FL,2)}, s[84:85]")
    o("s_mov_b64 s[84:85], 8")
    o("s_lshl_b64 s[84:85], s[84:85], s88")
    o(f"s_or_b64 {sr(FL,2)}, {sr(FL,2)}, s[84:85]")
    o.c("the wave lowers its priority as it nears its end so that the waves of a SIMD finish together")
    o(f"s_mov_b32 s{S_PL}, 0")
    o(f"s_mov_b32 s{S_LV}, 3")
    if cfg["pk"]:
        o.c("the first stages also pull the rest of this workgroup's table slice into L2 (landing in a dead LDS area)")
        o(f"s_mov_b32 s{S_PL}, {((1 << cfg['ps']) - 1) << 16:#x}")
        o(f"s_or_b32 s{FL}, s{FL}, {sum(1 << (4*i) for i in range(cfg['ps'])):#x}")
        o(f"s_add_u32 s24, s82, {16384*cfg['wb']}")
        o(f"s_mov_b32 m0, {DSV}")
    for i, rem in enumerate(int(x) for x in str(cfg["pp"])):
        o(f"s_cmp_gt_u32 s{S_NB}, {rem}")
        o(f"s_cbranch_scc0 L3_np{i}")
        o(f"s_sub_u32 s90, s{S_NB}, {rem}")
        o(f"s_bitset1_b32 s{S_PL}, s90")
        o("s_lshl_b32 s90, s90, 2")
        o(f"s_bitset1_b64 {sr(FL,2)}, s90")
        o.lab(f"L3_np{i}")
    o(f"v_add_u32 v{V_FA}, v{V_PA}, v{V_PA}")
    o(f"v_add_u32 v{V_PA}, 0x100, v{V_PA}")
    o(f"v_mov_b32 v{ACC}, 0")
    o(f"v_mov_b32 v{ACC+1}, 0")
    for c in range(1, 4): o(f"v_mov_b32 v{PC+c}, v{PC}")

def flush(o):
    o(f"v_add_f32 v{FT}, v{ACC}, v{ACC+1}")
    o(f"v_mul_f32 v{FT}, {QC:#x}, v{FT}")
    o(f"v_cvt_f64_f32 {vr(F64,2)}, v{FT}")
    o(f"ds_add_f64 v{V_FA}, {vr(F64,2)} offset:{AGG}")

def head(oo, late, u, cfg, slow):
    rc = R[u]; rl = R[(u + 1) & 3]; rp = R[(u + 3) & 3]
    if slow:
        oo(f"s_bitcmp1_b32 s{FL}, {4*u+2}")
        oo("s_waitcnt lgkmcnt(0)")
        oo(f"s_cbranch_scc1 L3_nl{u}")
        if not cfg.get("noload", 0):
            for r in range(16): rowload(oo, rl + r, cfg)
        if cfg["pk"]:
            oo(f"s_bitcmp1_b32 s{S_PL}, {16+u}")
            oo(f"s_cbranch_scc1 L3_pf{u}")
            late.lab(f"L3_pf{u}")
            for i in range(cfg["pk"]):
                late(f"buffer_load_dwordx4 v{V_T16}, s[12:15], s24 offen sc1 lds")
                late("s_add_u32 s24, s24, 16384")
            late(f"s_waitcnt vmcnt({16+cfg['pk']})")
            late(f"s_branch L3_lb{u}")
        oo("s_waitcnt vmcnt(16)")
        oo.lab(f"L3_lb{u}")
        late.lab(f"L3_nl{u}")
        late("s_waitcnt vmcnt(0)")
        late(f"s_branch L3_lb{u}")
        oo(f"s_bitcmp1_b32 s{S_PL}, {u}")
        oo(f"s_cbranch_scc1 L3_pd{u}")
        oo.lab(f"L3_pe{u}")
        late.lab(f"L3_pd{u}")
        late(f"s_sub_u32 s{S_LV}, s{S_LV}, 1")
        late("s_setprio 0")
        late(f"s_cmp_eq_u32 s{S_LV}, 0")
        late(f"s_cbranch_scc1 L3_pe{u}")
        late("s_setprio 1")
        late(f"s_cmp_eq_u32 s{S_LV}, 1")
        late(f"s_cbranch_scc1 L3_pe{u}")
        late("s_setprio 2")
        late(f"s_branch L3_pe{u}")
    else:
        oo("s_waitcnt vmcnt(0) lgkmcnt(0)")
    E = lambda t: oo(m4(G+4*t, EAR, CW, PC, f" cbsz:4 abid:{4*u+t}"))
    QA = lambda g: oo(m4(G+4*g, SELA, rc+4*g, G+4*g))
    QB = lambda g: oo(m4(G+4*g, SELB, rc+4*g+2, G+4*g))
    rr = [rp+2, rp+3, rp+10, rp+11]
    rcp = lambda i: oo(f"v_rcp_f32 v{rr[i]}, v{rr[i]}")
    def block(b):
        for j in range(2):
            n = f"{u}_{2*b+j}"
            oo(f"s_bitcmp1_b32 s{MK}, {4*u+2*b+j}")
            oo(f"s_cbranch_scc1 L3_ps{n}")
            oo.lab(f"L3_pb{n}")
            late.lab(f"L3_ps{n}")
            late("s_waitcnt lgkmcnt(0)")
            late(f"v_mov_b32 v{PC+1}, v{PN}")
            late(f"v_add_u32 v{V_PA}, 0x100, v{V_PA}")
            late(f"ds_read_b32 v{PN}, v{V_PA} offset:{PT}")
            late(f"s_branch L3_pb{n}")
            if j == 0:
                oo(f"v_mov_b32 v{PC}, v{PC+1}")
                oo(f"v_mov_b32 v{PC+2}, v{PC+1}")
            else:
                oo(f"v_mov_b32 v{PC+3}, v{PC+1}")
                oo("s_nop 1")
    if slow: block(0)
    E(0); rcp(0); E(1); rcp(1); QA(0); rcp(2)
    if slow: block(1)
    E(2); rcp(3); QB(0); E(3); QA(1); QA(2)
    if slow:
        oo(f"v_mov_b32 v{PC}, v{PC+1}")
        oo(f"v_mov_b32 v{PC+2}, v{PC+1}")
    oo(f"s_bitcmp1_b32 s{FL}, {4*u+1}")
    QB(1)
    for r in range(16):
        oo(f"v_exp_f32_e64 v{G+r}, v{G+r} clamp")
        if not slow and not cfg.get("noload", 0): rowload(oo, rl + r, cfg)
        if r == 0: QA(3)
        if r == 1: QB(2)
        if r == 2: QB(3)

def accum(o, tail, name, rp, reg, bit0):
    o(f"s_cbranch_scc1 L3_sf{name}")
    for b in range(2): o(pk("fma", ACC, rp+8*b, rp+8*b+2, ACC))
    o.lab(f"L3_fb{name}")
    tail.lab(f"L3_sf{name}")
    for g in range(4):
        b, j = g >> 1, g & 1
        tail(f"s_bitcmp1_b32 s{reg}, {bit0+g}")
        tail(f"s_cbranch_scc0 L3_sk{name}_{g}")
        flush(tail)
        tail(f"v_add_u32 v{V_FA}, 0x200, v{V_FA}")
        tail(f"v_mov_b32 v{ACC}, 0")
        tail(f"v_mov_b32 v{ACC+1}, 0")
        tail.lab(f"L3_sk{name}_{g}")
        tail(f"v_fmac_f32 v{ACC+j}, v{rp+8*b+j}, v{rp+8*b+2+j}")
    tail(f"s_branch L3_fb{name}")

def stage(o, tail, u, cfg):
    rc = R[u]; rp = R[(u + 3) & 3]; ro = R[(u + 2) & 3]
    o(f"s_bitcmp1_b32 s{FL}, {4*u}")
    o(f"s_cbranch_scc1 L3_se{u}")
    head(o, None, u, cfg, False)
    o.lab(f"L3_xb{u}")
    tail.lab(f"L3_se{u}")
    tail(f"s_bitcmp1_b32 s{FL}, {4*u+3}")
    tail(f"s_cbranch_scc1 L3_last{(u+3)&3}")
    late = Asm()
    head(tail, late, u, cfg, True)
    tail(f"s_branch L3_xb{u}")
    tail.l += late.l
    accum(o, tail, str(u), rp, MF, 4*u)
    offsets(o, ro, u + 2)
    for r in range(0, 16, 2): o(pk("add", G+r, G+r, VC2))
    seq = [lambda d, h: pk("mul", h, h, d+2), lambda d, h: pk("mul", h+4, h+4, d+6),
           lambda d, h: pk("fma", h, h+2, d, h), lambda d, h: pk("fma", h+4, h+6, d+4, h+4),
           lambda d, h: pk("mul", d, d, d+2), lambda d, h: pk("mul", d+4, d+4, d+6),
           lambda d, h: pk("mul", h, h, d+4), lambda d, h: pk("mul", h+2, d, d+4),
           lambda d, h: pk("fma", h, h+4, d, h)]
    for f in seq:
        for b in range(2): o(f(G+8*b, rc+8*b))
    if u == 3:
        o(f"v_add_u32 v{V_SA}, 0x100, v{V_SA}")
        o(f"v_mov_b64 {vr(EAR,2)}, {vr(EW,2)}")
        o(f"v_mov_b64 {vr(EW,2)}, {vr(EW+2,2)}")
        o(f"v_mov_b64 {vr(EW+2,2)}, {vr(EW+4,2)}")
        for r in (FL, MK, MF): o(f"s_lshr_b64 {sr(r,2)}, {sr(r,2)}, 16")
        if cfg["pk"]: o(f"s_and_b32 s{S_PL}, s{S_PL}, 0xffff")
        o(f"s_lshr_b32 s{S_PL}, s{S_PL}, 4")
        o("s_branch L2_loop")

def mainloop(o, tail, T, cfg):
    o(f"s_waitcnt vmcnt({16 if cfg['wpos'] != 'C' else 0}) lgkmcnt(0)")
    for b in range(2):
        for j in range(2):
            o(f"v_mov_b32 v{R[3]+8*b+j}, 0")
            o(f"v_mov_b32 v{R[3]+8*b+2+j}, 1.0")
    T(o, 15); T(o, 16, True)
    o(".p2align 3")
    if cfg.get("clk", 0): o("s_mov_b32 m0, 24")
    o.lab("L2_loop")
    if cfg.get("clk", 0):
        o("s_memtime s[100:101]"); o("s_memrealtime s[98:99]"); o("s_waitcnt lgkmcnt(0)")
        o(f"v_writelane_b32 v{V_ST}, s100, m0"); o("s_add_u32 m0, m0, 1"); o("s_nop 1"); o(f"v_writelane_b32 v{V_ST}, s98, m0"); o("s_add_u32 m0, m0, 1")
    o.c("per block of two groups: sum h_i / d_i = N / D with d_i = 2^-31 + min(1, 2^(t_i - 31)); one reciprocal per group")
    for u in range(4): stage(o, tail, u, cfg)
    for u in range(4):
        oo = o if u == 0 else tail
        oo.lab(f"L3_last{u}")
        for r in (2, 3, 10, 11): oo(f"v_rcp_f32 v{R[u]+r}, v{R[u]+r}")
        oo(f"s_cmp_lg_u32 s{S_LF}, 0")
        t2 = Asm()
        accum(oo, t2, f"e{u}", R[u], S_LF, 0)
        if u != 0: oo("s_branch L2_last")
        tail.l += t2.l
    o.lab("L2_last")
    flush(o)
    o.lab("L2_done")
    o("s_waitcnt vmcnt(0) lgkmcnt(0)")
    T(o, 17); T(o, 18, True)
    o("s_barrier")
    o(f"s_or_b32 s84, s{S_MORE}, s{S_PEND}")
    o("s_cbranch_scc1 L2_next")
    tail.lab("L2_next")
    tail("v_mov_b32 v3, 0")
    tail("ds_write_b32 v1, v3")
    tail("ds_write_b32 v2, v3 offset:256")
    tail("s_waitcnt lgkmcnt(0)")
    tail("s_barrier")
    tail(f"s_cmp_lg_u32 s{S_PEND}, 0")
    tail("s_cbranch_scc1 L2_again")
    tail(f"s_add_u32 s{S_OFF}, s{S_OFF}, 32")
    tail("s_branch L2_pass")
    o("v_lshlrev_b32 v1, 5, v0")
    o(f"ds_read_b128 v[80:83], v1 offset:{AGG}")
    o(f"ds_read_b128 v[84:87], v1 offset:{AGG+16}")
    o("v_cmp_gt_u32 vcc, 784, v0")
    o("s_lshl_b32 s93, s78, 7")
    o("v_lshl_add_u32 v2, v0, 3, s93")
    o("s_and_saveexec_b64 s[94:95], vcc")
    o("s_cbranch_execz L2_fin")
    o("s_waitcnt lgkmcnt(0)")
    for r in range(4): o(f"v_cvt_f32_f64 v{64+r}, {vr(80+2*r,2)}")
    for r in range(4): o(f"v_mul_f32 v{72+r}, {NEG_LOG2E:#x}, v{64+r}")
    for r in range(4): o(f"v_exp_f32 v{72+r}, v{72+r}")
    for r in range(4): o(f"v_add_f32 v{72+r}, 1.0, v{72+r}")
    for r in range(4): o(f"v_rcp_f32 v{72+r}, v{72+r}")
    for r in range(4): o(f"v_mul_f32 v{64+r}, v{64+r}, v{72+r}")
    for r in range(2): o(f"v_cvt_pk_bf16_f32 v{72+r}, v{64+2*r}, v{65+2*r}")
    o(f"buffer_store_dwordx2 v[72:73], v2, s[16:19], 0 offen {cfg['sto']}")
    o.lab("L2_fin")
    if T.on:
        o("s_waitcnt vmcnt(0)"); T(o, 19); T(o, 20, True); T.dump(o)
        if cfg.get("gdbg", 0):
            o("s_mov_b64 exec, 1")
            for k, (lane, inv) in enumerate([(0, 1), (0, 0), (26, 0), (27, 0), (28, 0), (29, 0), (16, 1), (16, 0), (18, 1), (18, 0), (20, 0)]):
                o(f"v_readlane_b32 s4, v{V_ST}, {lane}")
                if inv: o("s_not_b32 s4, s4")
                o("s_nop 1")
                o("v_mov_b32 v2, s4")
                o(f"v_mov_b32 v1, {8+4*k}")
                o("buffer_atomic_umax v2, v1, s[68:71], 0 offen")
                o("s_nop 1")

HEADER = """; Edge-gated MPNN layer: out = silu(x@U + sum over edges with dst=i of sigmoid(x[dst]@A + x[src]@B + e@C) * (x[src]@V))
; @launch grid=(256,1,1) block=(1024,1,1) lds={l}
.amdgcn_target "amdgcn-amd-amdhsa--gfx950"
.text
.globl {n}
.p2align 8
.type {n},@function
"""
FOOTER = """.section .rodata,"a"
.p2align 6
.amdhsa_kernel {n}
  .amdhsa_next_free_vgpr 128
  .amdhsa_next_free_sgpr 102
  .amdhsa_accum_offset 128
  .amdhsa_group_segment_fixed_size 0
  .amdhsa_kernarg_size 80
  .amdhsa_user_sgpr_count 2
  .amdhsa_user_sgpr_kernarg_segment_ptr 1
  .amdhsa_system_sgpr_workgroup_id_x 1
  .amdhsa_float_denorm_mode_32 3
  .amdhsa_dx10_clamp 0
.end_amdhsa_kernel
"""
DEFAULTS = dict(st="sc1", ld1="nt", ldt="", sto="", wb=1, wpos="A", early=0, cpf=1, ldx='nt', wf=1, wq=1, pk=0, ps=3, tdef=0, we=0, ldr="sc1", mkp=1, pp=631, sleep=2, spin=50000, stamp=0)
def build(cfg):
    cfg = dict(DEFAULTS, **cfg)
    o = Asm(); tail = Asm(); T = Stamper(cfg["stamp"])
    o.lab(NAME)
    o("s_cmp_ge_u32 s2, 256")
    o("s_cbranch_scc1 L_end")
    T(o, 0, True); T(o, 1)
    phase1(o, tail, T, cfg); handoff(o, tail, T, cfg); sort(o, tail, T, cfg); mainloop(o, tail, T, cfg)
    o.lab("L_end")
    o("s_endpgm")
    return HEADER.format(l=LDS, n=NAME) + o.text() + tail.text() + "L_codeend:\n" + FOOTER.format(n=NAME)

if __name__ == "__main__":
    cfg = {}
    for a in sys.argv[2:]:
        k, v = a.split("=")
        cfg[k] = int(v) if v.lstrip("-").isdigit() else v
    open(sys.argv[1], "w").write(build(cfg))
```

```python
import sys

class Asm:
    def __init__(self): self.l = []
    def __call__(self, s): self.l.append("    " + s)
    def lab(self, s): self.l.append(s + ":")
    def c(self, s): self.l.append("    ; " + s)
    def text(self): return "\n".join(self.l) + "\n"
def vr(a, n=1): return f"v{a}" if n == 1 else f"v[{a}:{a+n-1}]"
def sr(a, n=1): return f"s{a}" if n == 1 else f"s[{a}:{a+n-1}]"

N = 12500; E = 800000; NPB = 49; CH = 3128; CHB = CH * 12
WS_DESC = 0x00A00000; WS_TF = 0x00A80000; STAMP_BASE = 0x00B00000; WS_T = 0x00C00000; T_BYTES = 256 * NPB * 256
NULLROW = N * 256; NEG_LOG2E = 0xBFB8AA3B; MAGIC49 = 21400; QC = 0x30000000
assert all(((d * MAGIC49) >> 20) == d // 49 for d in range(N))
NAME = "standalone__edge_featured_mpnn_egc__graph_kernel"

CAPN = 128; CAPU = 3840; CAPL = 74
PT = 0; AGG = 13312; OV = 38912
LS = OV; LE = LS + 50 * CAPN * 4; CS = LE + 50 * CAPN * 8
HIST = OV; STAGE = OV + 1024; PB = OV + 38912
XS = 93696; WL = XS + 8192; TS = WL + 16384; AU = TS + 16384
CNT = AU + 16384; DSV = CNT + 512; LDS = DSV + 1024
NULLSLOT = 49 * CAPN
assert STAGE + CHB <= PB and PB + 13 * 1024 <= XS and CNT % 256 == 0 and CS + 16 * 1024 + 256 <= CNT and LE < 65536
assert NPB * ((CAPL + 3) // 4 * 4) + 15 <= CAPU and LDS <= 163840

R = [64, 80, 96, 112]; G = 32
EAR = 30; CW = 28; SELA = 26; SELB = 24; PC = 20; ACC = 18; F64 = 16
V_SA = 15; V_PA = 13; V_FA = 12; V_ST = 11; L = 10; V_DESC = 9; V_LB = 8; V_T16 = 7
PN = 48; VC2 = 50; FT = 52; EW = 54; V_LM = 14; V_SG = 60
REC = 64; CA = 96; BS = 104; DUM = 112
S_PEND = 20; S_OFF = 21; S_NB = 22; S_LF = 23; S_MORE = 25; S_TOT = 26
FL = 28; MF = 4; S_PL = 6; S_LV = 7; MK = 76; MASK = 32; SOFF = 64

class Stamper:
    def __init__(self, on): self.on = on
    def __call__(self, o, i, real=False):
        if not self.on: return
        o(f"{'s_memrealtime' if real else 's_memtime'} s[100:101]")
        o("s_waitcnt lgkmcnt(0)")
        o(f"v_writelane_b32 v{V_ST}, s100, {i}")
    def dump(self, o):
        if not self.on: return
        o("s_mov_b32 exec_hi, 0"); o("s_mov_b32 exec_lo, -1")
        o("s_lshl_b32 s4, s2, 4"); o("s_add_u32 s4, s4, s3"); o("s_lshl_b32 s4, s4, 7")
        o(f"s_add_u32 s4, s4, {STAMP_BASE}")
        o(f"v_lshl_add_u32 v1, v{L}, 2, s4")
        o(f"buffer_store_dword v{V_ST}, v1, s[12:15], 0 offen")

def srd(o, d, p, size):
    o(f"s_mov_b32 s{d}, s{p}"); o(f"s_and_b32 s{d+1}, s{p+1}, 0xffff")
    o(f"s_mov_b32 s{d+2}, {size}"); o(f"s_mov_b32 s{d+3}, 0x00020000")
def wave_scan(o, v):
    for sh in (1, 2, 4, 8):
        o(f"v_add_u32_dpp v{v}, v{v}, v{v} row_shr:{sh} row_mask:0xf bank_mask:0xf bound_ctrl:0")
        o("s_nop 1")
    o(f"v_add_u32_dpp v{v}, v{v}, v{v} row_bcast:15 row_mask:0xa bank_mask:0xf")
    o("s_nop 1")
    o(f"v_add_u32_dpp v{v}, v{v}, v{v} row_bcast:31 row_mask:0xc bank_mask:0xf")
def mfma16(d, a, b, first):
    return f"v_mfma_f32_32x32x16_bf16 {vr(d,16)}, {vr(a,4)}, {vr(b,4)}, {'0' if first else vr(d,16)}"
def m4(d, a, b, c, extra=""):
    return f"v_mfma_f32_4x4x4_16b_bf16 {vr(d,4)}, {vr(a,2)}, {vr(b,2)}, {vr(c,4)}{extra}"
def pk(op, d, a, b, c=None):
    return f"v_pk_{op}_f32 {vr(d,2)}, {vr(a,2)}, {vr(b,2)}" + (f", {vr(c,2)}" if c is not None else "")
def trbase(o, d, h, t):
    o(f"v_bfe_u32 v{t}, v{L}, 2, 2")
    o(f"v_lshl_add_u32 v{d}, v{h}, 3, v{t}")
    o(f"v_lshlrev_b32 v{d}, 7, v{d}")
    o(f"v_bfe_u32 v{t}, v{L}, 4, 1")
    o(f"v_lshl_add_u32 v{d}, v{t}, 5, v{d}")
    o(f"v_and_b32 v{t}, 3, v{L}")
    o(f"v_lshl_add_u32 v{d}, v{t}, 3, v{d}")

def phase1(o, tail, T, cfg):
    ST = cfg["st"]; LD = cfg["ld1"]
    def touch():
        o.c("touch the pages stored to later (address translation only, data unused)")
        o("v_mov_b32 v32, 0")
        o(f"s_mul_i32 s88, s2, {CHB}")
        o("s_lshl_b32 s89, s78, 8")
        o(f"s_add_u32 s89, s89, {WS_T}")
        o(f"s_mov_b32 s90, {WS_DESC}")
        for sreg in (88, 89, 90): o(f"buffer_load_dword v33, v32, s[12:15], s{sreg} offen sc1")
        o(f"s_add_u32 s88, s88, {CHB-4}")
        o("buffer_load_dword v33, v32, s[12:15], s88 offen sc1")
        o("buffer_load_dword v33, v32, s[16:19], 0 offen sc1")
    def misc():
        o("s_cmp_lg_u32 s3, 1")
        o("s_cbranch_scc1 L1_nn")
        o("s_cmp_lg_u32 s2, 0")
        o("s_cbranch_scc1 L1_nn")
        o.c("launch tag: tells this launch's descriptors from whatever an earlier launch left in ws")
        o("s_memrealtime s[84:85]")
        o("s_waitcnt lgkmcnt(0)")
        o("s_lshl_b32 s86, s84, 24")
        o("s_lshr_b64 s[84:85], s[84:85], 8")
        o("s_bitset1_b32 s84, 31")
        o("v_mov_b32 v32, s86")
        o("v_mov_b32 v33, s84")
        o("v_mov_b32 v34, 0")
        o("s_mov_b64 exec, 1")
        o("buffer_store_dwordx2 v[32:33], v34, s[68:71], 0 offen sc1")
        o("s_mov_b64 exec, -1")
        o.lab("L1_nn")
        if not cfg["dfr"]:
            o("s_cmp_lg_u32 s3, 2")
            o("s_cbranch_scc1 L1_nz")
            touch()
            o.lab("L1_nz")
    o("s_load_dwordx16 s[80:95], s[0:1], 0")
    o("s_load_dwordx4 s[96:99], s[0:1], 64")
    if cfg["cpf"]:
        o.c("read this kernel's code once per XCD so that later instruction fetches find it in L2 (data unused)")
        o("s_getpc_b64 s[8:9]")
        o.lab("L_pc")
        o("s_and_b32 s9, s9, 0xffff")
        o("s_mov_b32 s10, L_codeend-L_pc")
        o("s_mov_b32 s11, 0x00020000")
        if cfg["cpf"] == 1:
            o("s_lshr_b32 s4, s2, 3")
            o("s_lshl_b32 s4, s4, 10")
            o("v_lshl_add_u32 v1, v0, 4, s4")
            o("v_cmp_gt_u32 vcc, 64, v0")
            o("s_and_saveexec_b64 s[4:5], vcc")
            o("s_cbranch_execz L_npf")
            o("buffer_load_dwordx4 v[120:123], v1, s[8:11], 0 offen")
            o.lab("L_npf")
            o("s_mov_b64 exec, -1")
        else:
            o("v_lshlrev_b32 v1, 7, v0")
            o("v_cmp_gt_u32 vcc, 256, v0")
            o("s_and_saveexec_b64 s[4:5], vcc")
            o("s_cbranch_execz L_npf")
            o("buffer_load_dword v120, v1, s[8:11], 0 offen")
            o.lab("L_npf")
            o("s_mov_b64 exec, -1")
    o("v_lshrrev_b32 v1, 6, v0")
    o(f"v_and_b32 v{L}, 63, v0")
    o("s_movk_i32 s4, 768")
    o("s_cmp_eq_u32 s2, 255")
    o("s_cselect_b32 s4, 590, s4")
    o("s_cselect_b32 s6, 0, 56")
    o("v_readfirstlane_b32 s3, v1")
    o("s_mul_i32 s5, s2, 12512")
    o("v_subrev_u32 v4, 256, v0")
    o("v_lshl_add_u32 v2, v4, 4, s5")
    o("v_lshlrev_b32 v3, 1, v2")
    o("v_cmp_gt_u32 s[72:73], s4, v4")
    o("v_cmp_gt_u32 s[74:75], s6, v4")
    o("s_and_b32 s30, s2, 7")
    o("s_lshl_b32 s30, s30, 5")
    o("s_lshr_b32 s31, s2, 3")
    o("s_add_u32 s30, s30, s31")
    o("s_mul_i32 s78, s30, 49")
    o(f"v_lshlrev_b32 v{V_T16}, 4, v0")
    o("s_add_u32 s5, s5, 12288")
    o("v_lshl_add_u32 v5, v4, 2, s5")
    o(f"s_mov_b32 s38, {E*4}"); o("s_mov_b32 s39, 0x00020000")
    o("s_waitcnt lgkmcnt(0)")
    o("s_mov_b32 s36, s86"); o("s_and_b32 s37, s87, 0xffff")
    o("s_mov_b64 exec, s[72:73]")
    o("s_cbranch_execz L1_noload")
    o(f"buffer_load_dwordx4 v[64:67], v2, s[36:39], 0 offen {LD}")
    o("s_mov_b64 exec, s[74:75]")
    o("s_cbranch_execz L1_noload")
    o(f"buffer_load_dword v80, v5, s[36:39], 0 offen {LD}")
    o.lab("L1_noload")
    o("s_mov_b64 exec, -1")
    o("s_cmp_gt_u32 s3, 3")
    o("s_cbranch_scc1 L1_a")
    o.c("table waves 0..3, unit (rt = w>>1, hh = w&1): LDS-DMA of the block's 64 x rows and the raw B / V weights")
    srd(o, 48, 80, N * 128)
    o(f"v_lshlrev_b32 v25, 4, v{L}")
    o("s_lshl_b32 s4, s3, 11")
    o("s_lshl_b32 s5, s78, 7")
    o("s_add_u32 s5, s5, s4")
    o(f"s_add_u32 s4, s4, {XS}")
    o("s_mov_b32 m0, s4")
    o("v_add_u32 v20, s5, v25")
    o("s_and_b32 s6, s3, 1")
    o("s_lshr_b32 s7, s3, 1")
    o(f"buffer_load_dwordx4 v20, s[48:51], 0 offen {cfg.get('ldx', '')} lds")
    o(f"buffer_load_dwordx4 v20, s[48:51], 0 offen offset:1024 {cfg.get('ldx', '')} lds")
    o("s_cmp_eq_u32 s7, 0")
    o("s_cselect_b32 s52, s92, s90")
    o("s_cselect_b32 s53, s93, s91")
    o("s_cselect_b32 s5, 8192, 0")
    o("s_and_b32 s53, s53, 0xffff")
    o("s_add_u32 s54, s5, 8192")
    o("s_mov_b32 s55, 0x00020000")
    o("s_lshl_b32 s4, s6, 12")
    o("s_add_u32 s5, s5, s4")
    o("s_lshl_b32 s4, s3, 12")
    o(f"s_add_u32 s4, s4, {WL}")
    o("s_mov_b32 m0, s4")
    o("s_cmp_lg_u32 s3, 2")
    for i in range(4): o(f"buffer_load_dwordx4 v25, s[52:55], s5 offen offset:{1024*i} {cfg.get('ldw', '')} lds")
    o("s_cbranch_scc1 L1_a")
    for i in range(4): o(f"v_mov_b32 v{32+i}, 0")
    o(f"ds_write_b128 v25, v[32:35] offset:{HIST}")
    o(f"v_lshlrev_b32 v26, 2, v{L}")
    o(f"v_add_u32 v26, {CNT}, v26")
    o("ds_write_b32 v26, v32")
    o("ds_write_b32 v26, v32 offset:64")
    o("s_waitcnt lgkmcnt(0)")
    o.lab("L1_a")
    srd(o, 40, 84, E * 4); srd(o, 44, 82, E * 8)
    T(o, 2)
    o("s_barrier")
    o("s_mov_b64 exec, s[72:73]")
    o("s_cbranch_execz L1_noload2")
    o(f"buffer_load_dwordx4 v[68:71], v2, s[40:43], 0 offen {LD}")
    if cfg["dfr"]:
        o(f"s_cmp_ge_u32 s3, {cfg['dfr']}")
        o("s_cbranch_scc1 L1_noload2")
    o(f"buffer_load_dwordx4 v[72:75], v3, s[44:47], 0 offen {LD}")
    o(f"buffer_load_dwordx4 v[76:79], v3, s[44:47], 0 offen offset:16 {LD}")
    o("s_mov_b64 exec, s[74:75]")
    o("s_cbranch_execz L1_noload2")
    o("v_lshlrev_b32 v3, 1, v5")
    o(f"buffer_load_dword v81, v5, s[40:43], 0 offen {LD}")
    o(f"buffer_load_dwordx2 v[82:83], v3, s[44:47], 0 offen {LD}")
    o.lab("L1_noload2")
    o("s_mov_b64 exec, -1")
    srd(o, 12, 98, WS_T + T_BYTES); srd(o, 16, 94, N * 128); srd(o, 68, 96, 256)
    srd(o, 52, 92, 132 * 128); srd(o, 60, 88, 64 * 128)
    o.c("table descriptor: stride 4 with thread-id addressing, so one uniform row offset reads the 64 channels")
    o(f"s_add_u32 s8, s98, {WS_T}"); o("s_addc_u32 s9, s99, 0")
    o("s_and_b32 s9, s9, 0xffff"); o("s_or_b32 s9, s9, 0x40000")
    o(f"s_mov_b32 s10, {T_BYTES}"); o("s_mov_b32 s11, 0x00800000")
    if cfg.get("stale", 0):
        o("s_mul_i32 s82, s31, 100352")
        o(f"s_add_u32 s82, s82, {WS_T}")
        for i in range(7):
            o(f"buffer_load_dwordx4 v[124:127], v{V_T16}, s[12:15], s82 offen sc1")
            o("s_add_u32 s82, s82, 16384")
        o("s_waitcnt vmcnt(0)")
    o("s_cmp_gt_u32 s3, 3")
    o("s_cbranch_scc1 L1_edge")
    o("s_lshl_b32 s29, s3, 12")
    o(f"s_add_u32 s29, s29, {TS}")
    o(f"v_and_b32 v24, 31, v{L}")
    o(f"v_lshrrev_b32 v25, 5, v{L}")
    o("s_lshl_b32 s84, s7, 12")
    o(f"s_add_u32 s84, s84, {XS}")
    o("v_lshl_add_u32 v20, v25, 4, s84")
    o("v_lshl_add_u32 v20, v24, 7, v20")
    o("v_lshlrev_b32 v27, 9, v25")
    o("v_lshl_add_u32 v27, v24, 2, v27")
    o("v_add_u32 v27, s29, v27")
    trbase(o, 26, 25, 28)
    o("s_lshl_b32 s84, s6, 6")
    o(f"s_add_u32 s84, s84, {WL}")
    o("v_add_u32 v26, s84, v26")
    o(f"v_lshrrev_b32 v21, 3, v{L}")
    o(f"v_and_b32 v22, 7, v{L}")
    o("v_lshlrev_b32 v22, 4, v22")
    o("s_lshl_b32 s84, s7, 5")
    o("v_add_u32 v23, s84, v21")
    o("v_lshl_add_u32 v29, v23, 8, v22")
    o("v_lshl_add_u32 v21, v21, 7, v22")
    o("v_add_u32 v21, s29, v21")
    o("s_lshl_b32 s84, s3, 12")
    o(f"s_add_u32 s85, s84, {AU}")
    o("s_mov_b32 m0, s85")
    o(f"v_lshlrev_b32 v28, 4, v{L}")
    if cfg["early"]:
        o.c("the four table waves meet through an LDS counter once their staging loads have landed")
        o(f"v_mov_b32 v32, {CNT+272}")
        o("v_mov_b32 v33, 1")
        o("s_setprio 2")
        o("s_waitcnt vmcnt(0)")
        o("s_mov_b64 exec, 1")
        o("ds_add_u32 v32, v33")
        o("s_mov_b64 exec, -1")
        o.lab("L1_tw")
        o("ds_read_b32 v33, v32")
        o("s_waitcnt lgkmcnt(0)")
        o("v_readfirstlane_b32 s84, v33")
        o("s_cmp_lt_u32 s84, 4")
        o("s_cbranch_scc1 L1_tw")
        T(o, 4)
    else:
        o("s_waitcnt vmcnt(0)")
        misc()
        T(o, 4)
        o("s_barrier")
        o("s_setprio 2")
    for s in range(4): o(f"ds_read_b128 {vr(40+4*s,4)}, v20 offset:{32*s}")
    for m in range(2):
        for s in range(4):
            for t in range(2):
                o(f"ds_read_b64_tr_b16 {vr(64+16*m+4*s+2*t,2)}, v26 offset:{8192*m+2048*s+512*t}")
    def au():
        o.c("raw A (waves 0,1) and U (waves 2,3) weights for the P and x@U products")
        o("s_lshl_b32 s87, s6, 12")
        o("s_cmp_eq_u32 s7, 0")
        o("s_cbranch_scc0 L1_ldu")
        for i in range(4): o(f"buffer_load_dwordx4 v28, s[52:55], s87 offen offset:{1024*i} lds")
        o("s_branch L1_ldd")
        o.lab("L1_ldu")
        for i in range(4): o(f"buffer_load_dwordx4 v28, s[60:63], s87 offen offset:{1024*i} lds")
        o.lab("L1_ldd")
    if not cfg["early"]: au()
    o("s_mov_b32 s84, 0xffff0000")
    o(f"s_mov_b32 s85, {NEG_LOG2E:#x}")
    o("s_brev_b32 s86, 1")
    o("s_waitcnt lgkmcnt(8)")
    for s in range(4): o(mfma16(96, 40+4*s, 64+4*s, s == 0))
    o("s_waitcnt lgkmcnt(0)")
    for s in range(4): o(mfma16(112, 40+4*s, 80+4*s, s == 0))
    o("s_nop 6")
    o.c("row entry = bf16(-log2e * x@B) in the low half; the high half is chosen so the whole dword is nearest to x@V")
    for r in range(16): o(f"v_mul_f32 v{96+r}, s85, v{96+r}")
    for r in range(0, 16, 2):
        o(f"v_cvt_pk_bf16_f32 v{96+r}, v{96+r}, v{97+r}")
        o(f"v_lshrrev_b32 v{97+r}, 16, v{96+r}")
        o(f"v_and_b32 v{96+r}, 0xffff, v{96+r}")
    for r in range(16):
        t = 56 + (r & 3); t2 = 60 + (r & 3)
        if cfg["early"] and r == cfg["early"] - 1:
            T(o, 5)
            o("s_barrier")
            au()
        o(f"v_add_u32 v{t}, 0x8000, v{112+r}")
        o(f"v_and_b32 v{t2}, s86, v{112+r}")
        o(f"v_sub_u32_e64 v{t}, v{t}, v{96+r} clamp")
        o(f"v_max_u32 v{t}, v{t}, v{t2}")
        o(f"v_and_or_b32 v{t}, v{t}, s84, v{96+r}")
        o(f"ds_write_b32 v27, v{t} offset:{(8*(r>>2) + (r&3))*128}")
    if cfg["tdef"]:
        o("s_waitcnt vmcnt(0)")
    else:
        for i in range(4): o(f"ds_read_b128 {vr(64+4*i,4)}, v21 offset:{1024*i}")
        o("s_lshl_b32 s84, s78, 8")
        o("s_lshl_b32 s85, s6, 7")
        o("s_add_u32 s84, s84, s85")
        o(f"s_add_u32 s84, s84, {WS_T}")
        if not cfg["early"]: o("s_waitcnt vmcnt(0)")
        for i in range(4):
            o(f"v_cmp_gt_u32 vcc, {49-8*i}, v23")
            o(f"s_waitcnt lgkmcnt({3-i})")
            o("s_mov_b64 exec, vcc")
            o(f"buffer_store_dwordx4 {vr(64+4*i,4)}, v29, s[12:15], s84 offen {cfg.get('stt', ST)}")
            o("s_add_u32 s84, s84, 2048")
            o("s_mov_b64 exec, -1")
    o("s_setprio 0")
    T(o, 6)
    if cfg["early"]:
        o("s_waitcnt vmcnt(4)")
        misc()
    o("s_branch L1_d")
    o.lab("L1_edge")
    o("s_mov_b64 exec, s[72:73]")
    o("s_cbranch_execz L1_histdone")
    o(f"s_movk_i32 s84, {MAGIC49}")
    o("v_mov_b32 v20, 1")
    def hist(regs):
        for d, b, a, r in regs: o(f"v_mul_u32_u24 v{b}, s84, v{d}")
        for d, b, a, r in regs: o(f"v_lshrrev_b32 v{b}, 20, v{b}")
        for d, b, a, r in regs:
            o(f"v_lshlrev_b32 v{a}, 2, v{b}")
            o(f"ds_add_rtn_u32 v{r}, v{a}, v20 offset:{HIST}")
        for d, b, a, r in regs: o(f"v_mul_u32_u24 v{b}, 49, v{b}")
        for d, b, a, r in regs: o(f"v_sub_u32 v{d}, v{d}, v{b}")
        for d, b, a, r in regs: o(f"v_lshlrev_b32 v{d}, 26, v{d}")
    o("s_cmp_eq_u64 s[74:75], 0")
    o("s_cbranch_scc1 L1_h4")
    o("s_mov_b64 exec, s[74:75]")
    o("s_waitcnt vmcnt(5)")
    hist([(80, 88, 93, 98)])
    o("s_mov_b64 exec, s[72:73]")
    o("s_branch L1_h5")
    o.lab("L1_h4")
    o("s_waitcnt vmcnt(3)")
    if cfg["dfr"]:
        o(f"s_cmp_lt_u32 s3, {cfg['dfr']}")
        o("s_cbranch_scc1 L1_h5")
        o("s_waitcnt vmcnt(1)")
    o.lab("L1_h5")
    T(o, 3)
    hist([(64+i, 84+i, 89+i, 94+i) for i in range(4)])
    o("s_waitcnt lgkmcnt(0)")
    o.lab("L1_histdone")
    o("s_mov_b64 exec, -1")
    o(f"v_lshlrev_b32 v104, 4, v{L}")
    o("s_sub_u32 s85, s3, 3")
    o("s_lshl_b32 s85, s85, 10")
    o(f"s_add_u32 s85, s85, {PB}")
    o("v_add_u32 v105, s85, v104")
    for i in range(5): o(f"v_add_u32 v{89+i}, s85, v{89+i}")
    T(o, 4)
    o("s_barrier")
    T(o, 5)
    if cfg["dfr"]:
        o.c("the youngest waves ask for their edge attributes only now, so that a full request queue cannot hold up the counts")
        o(f"s_cmp_lt_u32 s3, {cfg['dfr']}")
        o("s_cbranch_scc1 L1_nd")
        o("s_mov_b64 exec, s[72:73]")
        o("s_cbranch_execz L1_nd")
        o(f"buffer_load_dwordx4 v[72:75], v3, s[44:47], 0 offen {LD}")
        o(f"buffer_load_dwordx4 v[76:79], v3, s[44:47], 0 offen offset:16 {LD}")
        o.lab("L1_nd")
        o("s_mov_b64 exec, -1")
        o("s_cmp_lg_u32 s3, 15")
        o("s_cbranch_scc1 L1_nt")
        touch()
        o.lab("L1_nt")
    o.c("every edge wave scans the 256 bucket counts for itself")
    o(f"ds_read_b128 v[108:111], v104 offset:{HIST}")
    o("s_waitcnt lgkmcnt(0)")
    o("v_add_u32 v106, v108, v109")
    o("v_add_u32 v107, v106, v110")
    o("v_add_u32 v116, v107, v111")
    o("v_mov_b32 v112, v116")
    o("s_nop 1")
    wave_scan(o, 112)
    o("v_sub_u32 v112, v112, v116")
    o("v_add_u32 v113, v112, v108")
    o("v_add_u32 v114, v112, v106")
    o("v_add_u32 v115, v112, v107")
    o("s_cmp_lg_u32 s3, 15")
    o("s_cbranch_scc1 L1_scat")
    for j in range(4): o(f"v_lshl_or_b32 v{108+j}, v{108+j}, 12, v{112+j}")
    o(f"v_add_u32 v104, {DSV}, v104")
    o("ds_write_b128 v104, v[108:111]")
    o.lab("L1_scat")
    for j in range(4): o(f"v_mul_u32_u24 v{112+j}, 12, v{112+j}")
    o("ds_write_b128 v105, v[112:115]")
    o("s_mov_b64 exec, s[72:73]")
    o("s_cbranch_execz L1_scatdone")
    for i in range(5): o(f"ds_read_b32 v{84+i}, v{89+i}")
    o("s_waitcnt lgkmcnt(0)")
    for i in range(5): o(f"v_mad_u32_u24 v{84+i}, v{94+i}, 12, v{84+i}")
    o("s_waitcnt vmcnt(2)")
    for i in range(4): o(f"v_lshl_or_b32 v{68+i}, v{68+i}, 8, v{64+i}")
    for i in range(4): o(f"ds_write_b32 v{84+i}, v{68+i} offset:{STAGE+8}")
    for i in range(5): o(f"v_add_u32 v{84+i}, {STAGE}, v{84+i}")
    o("s_waitcnt vmcnt(0)")
    T(o, 6)
    for i in range(4): o(f"ds_write2_b32 v{84+i}, v{72+2*i}, v{73+2*i} offset0:0 offset1:1")
    o("s_mov_b64 exec, s[74:75]")
    o("s_cbranch_execz L1_scatdone")
    o("v_lshl_or_b32 v81, v81, 8, v80")
    o("ds_write_b32 v88, v81 offset:8")
    o("ds_write2_b32 v88, v82, v83 offset0:0 offset1:1")
    o.lab("L1_scatdone")
    o("s_mov_b64 exec, -1")
    o.lab("L1_d")
    o(f"s_mul_i32 s85, s2, {CHB}")
    o(f"v_add_u32 v4, {STAGE}, v{V_T16}")
    o(f"v_add_u32 v5, 16384, v{V_T16}")
    o(f"v_add_u32 v6, 32768, v{V_T16}")
    o("v_cmp_gt_u32 vcc, 298, v0")
    o("s_waitcnt lgkmcnt(0)")
    o("s_barrier")
    T(o, 7); T(o, 26, True)
    o("ds_read_b128 v[80:83], v4")
    o("ds_read_b128 v[84:87], v4 offset:16384")
    o("ds_read_b128 v[88:91], v4 offset:32768")
    o("s_waitcnt lgkmcnt(2)")
    o(f"buffer_store_dwordx4 v[80:83], v{V_T16}, s[12:15], s85 offen {ST}")
    o("s_waitcnt lgkmcnt(1)")
    o(f"buffer_store_dwordx4 v[84:87], v5, s[12:15], s85 offen {ST}")
    o("s_mov_b64 exec, vcc")
    o("s_cbranch_execz L1_c3")
    o("s_waitcnt lgkmcnt(0)")
    o(f"buffer_store_dwordx4 v[88:91], v6, s[12:15], s85 offen {ST}")
    o.lab("L1_c3")
    o("s_mov_b64 exec, -1")
    T(o, 8)

def handoff(o, tail, T, cfg):
    o(f"v_lshlrev_b32 v1, 1, v{L}")
    o("v_add_u32 v1, 0x4000, v1")
    for j in range(4): o(f"buffer_load_ushort v{76+j}, v1, s[52:55], 0 offen offset:{128*j}")
    o("v_mov_b32 v74, 0")
    o("buffer_load_dwordx2 v[72:73], v74, s[68:71], 0 offen sc1")
    o.c("selector operands of the 4x4x4 MFMAs that add the gathered gate term")
    o(f"v_and_b32 v1, 3, v{L}")
    o("v_mov_b32 v2, 0x3f80")
    for idx, reg in enumerate((SELA, SELA+1, SELB, SELB+1)):
        o(f"v_cmp_eq_u32 vcc, {idx}, v1")
        o("s_nop 1")
        o(f"v_cndmask_b32 v{reg}, 0, v2, vcc")
    o("s_cmp_lt_u32 s3, 8")
    o("s_cbranch_scc1 L2_pdone")
    o.c("waves 8..15: P = -log2e * x@A - 31 (gate term of the destination node) and x@U (start value of the sums)")
    o("s_and_b32 s86, s3, 1")
    o("s_bfe_u32 s91, s3, 0x10001")
    o("s_bfe_u32 s88, s3, 0x10002")
    o("s_lshl_b32 s89, s91, 12")
    o(f"s_add_u32 s89, s89, {XS}")
    o(f"v_and_b32 v3, 31, v{L}")
    o(f"v_lshrrev_b32 v2, 5, v{L}")
    o("v_lshl_add_u32 v1, v2, 4, s89")
    o("v_lshl_add_u32 v1, v3, 7, v1")
    for s in range(4): o(f"ds_read_b128 {vr(32+4*s,4)}, v1 offset:{32*s}")
    o("s_lshl_b32 s90, s88, 5")
    o("v_add_u32 v3, s90, v3")
    trbase(o, 1, 2, 20)
    o("s_lshl_b32 s89, s86, 13")
    o("s_lshl_b32 s90, s88, 6")
    o("s_add_u32 s89, s89, s90")
    o(f"s_add_u32 s89, s89, {AU}")
    o("v_add_u32 v1, s89, v1")
    for s in range(4):
        for t in range(2):
            o(f"ds_read_b64_tr_b16 {vr(48+4*s+2*t,2)}, v1 offset:{2048*s+512*t}")
    o("v_lshlrev_b32 v2, 2, v2")
    o("s_lshl_b32 s90, s91, 5")
    o("v_add_u32 v2, s90, v2")
    o("v_lshl_add_u32 v2, v2, 6, v3")
    o("s_waitcnt lgkmcnt(0)")
    PD = 96
    for s in range(4): o(mfma16(PD, 32+4*s, 48+4*s, s == 0))
    o("s_cmp_eq_u32 s86, 1")
    o("s_cbranch_scc1 L2_xu")
    o("v_lshlrev_b32 v2, 2, v2")
    o(f"v_mov_b32 v3, {NEG_LOG2E:#x}")
    o("s_nop 8")
    def pwrite(r):
        o(f"v_fmaak_f32 v{PD+r}, v3, v{PD+r}, 0xc1f80000")
        o(f"ds_write_b32 v2, v{PD+r} offset:{PT + (8*(r>>2)+(r&3))*256}")
    def uwrite(r):
        t = 32 + 2 * (r & 7)
        o(f"v_cvt_f64_f32 {vr(t,2)}, v{PD+r}")
        o(f"ds_write_b64 v2, {vr(t,2)} offset:{AGG + (8*(r>>2)+(r&3))*512}")
    for wr, lab in ((pwrite, None), (uwrite, "L2_xu")):
        if lab:
            o.lab(lab); o("v_lshlrev_b32 v2, 3, v2"); o("s_nop 9")
        for r in range(8): wr(r)
        o("s_cmp_eq_u32 s91, 1")
        o("s_cselect_b32 exec_hi, 0, -1")
        for r in range(8, 10): wr(r)
        o("s_mov_b64 exec, -1")
        o("s_cbranch_scc1 L2_pdone")
        for r in range(10, 16): wr(r)
        if not lab: o("s_branch L2_pdone")
    o.lab("L2_pdone")
    o.c("record addressing: wave w, lane group g, step i reads chunk (w&7) + 8*(16*(w>>3) + 4*g + i)")
    o(f"v_lshrrev_b32 v2, 4, v{L}")
    o(f"v_and_b32 v3, 15, v{L}")
    o("v_and_b32 v4, 3, v3")
    o("s_lshr_b32 s27, s3, 3")
    o("s_lshl_b32 s27, s27, 7")
    o("s_and_b32 s81, s3, 7")
    o("s_add_u32 s27, s27, s81")
    o("v_lshl_add_u32 v2, v2, 5, s27")
    o("v_lshl_add_u32 v4, v4, 3, v2")
    o("v_lshlrev_b32 v4, 11, v4")
    o(f"s_mov_b32 s81, {CHB}")
    o(f"v_mul_lo_u32 v{V_LB}, v2, s81")
    o(f"v_mad_u32_u24 v{V_LB}, v3, 12, v{V_LB}")
    for i in range(4): o(f"s_mov_b32 s{SOFF+i}, {8*i*CHB}")
    o("s_lshl_b32 s72, s30, 3")
    o(f"s_add_u32 s72, s72, {WS_DESC}")
    o("s_mul_i32 s82, s31, 100000")
    o(f"s_add_u32 s82, s82, {WS_T}")
    o(f"s_mov_b32 s{S_OFF}, 0")
    o(f"v_mov_b32 v{VC2}, {QC:#x}")
    o(f"v_mov_b32 v{VC2+1}, {QC:#x}")
    o(f"s_mov_b32 s87, {cfg['spin']}")
    o.c("lane l of a 64-slot window takes slot (l & ~7) | ((l & 1) << 2) | ((l >> 1) & 3): two groups interleaved per block")
    o(f"v_and_b32 v3, 1, v{L}")
    o(f"v_bfe_u32 v5, v{L}, 1, 2")
    o("v_lshl_or_b32 v3, v3, 2, v5")
    o(f"v_and_b32 v5, 56, v{L}")
    o(f"v_or_b32 v{V_SG}, v3, v5")
    o(f"v_lshrrev_b32 v3, 2, v{V_SG}")
    o(f"v_lshlrev_b32 v{V_LM}, v3, 2")
    o(f"v_subrev_u32 v{V_LM}, 1, v{V_LM}")
    if cfg["tdef"]:
        o.c("this wave's share of the table stage: unit w>>2 (rt, hh), rows 8*(w&3) .. +7")
        o("s_lshl_b32 s84, s3, 10")
        o(f"s_add_u32 s84, s84, {TS}")
        o(f"v_lshl_add_u32 v5, v{L}, 4, s84")
        o("ds_read_b128 v[92:95], v5")
        o(f"v_lshrrev_b32 v5, 3, v{L}")
        o("s_and_b32 s84, s3, 3")
        o("s_lshl_b32 s84, s84, 3")
        o("s_lshr_b32 s86, s3, 3")
        o("s_lshl_b32 s86, s86, 5")
        o("s_add_u32 s84, s84, s86")
        o("v_add_u32 v5, s84, v5")
        o("v_cmp_gt_u32 s[94:95], 49, v5")
        o(f"v_and_b32 v6, 7, v{L}")
        o("v_lshlrev_b32 v6, 4, v6")
        o("v_lshl_add_u32 v75, v5, 8, v6")
        o("s_bfe_u32 s84, s3, 0x10002")
        o("s_lshl_b32 s84, s84, 7")
        o("s_lshl_b32 s86, s78, 8")
        o("s_add_u32 s84, s84, s86")
        o(f"s_add_u32 s79, s84, {WS_T}")
    o("s_cmp_lg_u32 s3, 15")
    o("s_cbranch_scc1 L2_nd")
    o(f"v_lshlrev_b32 v1, 4, v{L}")
    o(f"v_add_u32 v2, {DSV}, v1")
    o("ds_read_b128 v[64:67], v2")
    o("v_lshlrev_b32 v1, 1, v1")
    o("s_lshl_b32 s85, s2, 11")
    o(f"s_add_u32 s85, s85, {WS_DESC}")
    o.lab("L2_nd")
    for i in range(cfg.get("wd", 0)):
        o(f"buffer_load_dwordx4 {vr(DUM,4)}, v{V_T16}, s[12:15], s82 offen sc1")
        o("s_add_u32 s82, s82, 16384")
    o(f"s_waitcnt vmcnt({cfg.get('wd', 0)}) lgkmcnt(0)")
    for j in range(4): o(f"v_lshlrev_b32 v{76+j}, 16, v{76+j}")
    for j in range(4): o(f"v_mul_f32 v{76+j}, {NEG_LOG2E:#x}, v{76+j}")
    o(f"v_cvt_pk_bf16_f32 v{CW}, v76, v77")
    o(f"v_cvt_pk_bf16_f32 v{CW+1}, v78, v79")
    o.lab("L2_tag")
    o("v_readfirstlane_b32 s74, v72")
    o("v_readfirstlane_b32 s75, v73")
    o("s_sub_u32 s87, s87, 1")
    o("s_cmp_lg_u32 s75, 0")
    o("s_cbranch_scc1 L2_tagok")
    o("s_cmp_le_i32 s87, 0")
    o("s_cbranch_scc1 L2_tagno")
    tail.lab("L2_tagno")
    tail(f"v_mov_b32 v5, {CNT+280}")
    tail("ds_write_b32 v5, v5")
    tail("s_mov_b32 s87, 1")
    tail("s_branch L2_tagok")
    o("buffer_load_dwordx2 v[72:73], v74, s[68:71], 0 offen sc1")
    o("s_waitcnt vmcnt(0)")
    o("s_branch L2_tag")
    o.lab("L2_tagok")
    for j in (81, 83, 85, 87): o(f"v_mov_b32 v{j}, s75")
    for j in range(4): o(f"v_or_b32 v{80+2*j}, s74, v{64+j}")
    T(o, 9); T(o, 27, True)
    o("s_barrier")
    o("s_cmp_lg_u32 s3, 15")
    o("s_cbranch_scc1 L2_wf" if cfg["wf"] else "s_cbranch_scc1 L2_f")
    if cfg["wf"]:
        tail.lab("L2_wf")
        for i in range(cfg["wf"]):
            tail(f"buffer_load_dwordx4 {vr(DUM,4)}, v{V_T16}, s[12:15], s82 offen sc1")
            tail("s_add_u32 s82, s82, 16384")
        tail("s_branch L2_f")
        o(f"s_add_u32 s82, s82, {16384*cfg['wf']}")
    o("buffer_store_dwordx4 v[80:83], v1, s[12:15], s85 offen sc1")
    o("buffer_store_dwordx4 v[84:87], v1, s[12:15], s85 offen offset:16 sc1")
    o("s_waitcnt vmcnt(0)")
    o.lab("L2_f")
    o("s_barrier")
    if cfg["tdef"]:
        o("s_mov_b64 exec, s[94:95]")
        o(f"buffer_store_dwordx4 v[92:95], v75, s[12:15], s79 offen {cfg['st']}")
        o("s_mov_b64 exec, -1")
    o("s_cmp_lg_u32 s3, 0")
    o("s_cbranch_scc1 L2_nn")
    o(f"v_mov_b32 v1, {NULLSLOT*4}")
    o(f"v_mov_b32 v5, {NULLSLOT*8}")
    o(f"v_mov_b32 v6, {NULLROW}")
    o("v_mov_b32 v2, 0")
    o("v_mov_b32 v3, 0")
    o(f"ds_write_b32 v1, v6 offset:{LS}")
    o(f"ds_write_b64 v5, v[2:3] offset:{LE}")
    o.lab("L2_nn")
    T(o, 10); T(o, 28, True)
    for i in range(cfg.get("we", 0)):
        o(f"buffer_load_dwordx4 {vr(DUM,4)}, v{V_T16}, s[12:15], s82 offen sc1")
        o("s_add_u32 s82, s82, 16384")
    if cfg["tdef"]:
        o("buffer_load_dwordx2 v[2:3], v4, s[12:15], s72 offen sc1")
        o(f"v_mov_b32 v5, {CNT+272}")
        o("v_mov_b32 v6, 1")
        o("s_lshl_b32 s84, s2, 3")
        o("v_mov_b32 v64, s84")
        o("v_mov_b32 v66, s74")
        o("v_mov_b32 v67, s75")
        o(f"s_mov_b32 s73, {WS_TF}")
        o("s_waitcnt vmcnt(0)")
        o.c("the wave whose table store is the last to complete publishes the block's flag")
        o("s_mov_b64 exec, 1")
        o("ds_add_rtn_u32 v65, v5, v6")
        o("s_waitcnt lgkmcnt(0)")
        o("v_cmpx_eq_u32 vcc, 15, v65")
        o("s_cbranch_execz L2_ntf")
        o("buffer_store_dwordx2 v[66:67], v64, s[12:15], s73 offen sc1")
        o.lab("L2_ntf")
        o("s_mov_b64 exec, -1")
        o("s_branch L2_pc")
    o.lab("L2_poll")
    o("buffer_load_dwordx2 v[2:3], v4, s[12:15], s72 offen sc1")
    o("s_sub_u32 s87, s87, 1")
    o("s_waitcnt vmcnt(0)")
    o.lab("L2_pc")
    o("v_xor_b32 v2, s74, v2")
    o("v_cmp_ne_u32 vcc, s75, v3")
    o("v_lshrrev_b32 v3, 24, v2")
    o("v_cmp_ne_u32 s[84:85], 0, v3")
    o("s_or_b64 vcc, vcc, s[84:85]")
    o("s_cbranch_scc0 L2_g")
    o("s_cmp_le_i32 s87, 0")
    o("s_cbranch_scc1 L2_gno")
    tail.lab("L2_gno")
    tail(f"v_mov_b32 v5, {CNT+280}")
    tail("ds_write_b32 v5, v5")
    tail("v_mov_b32 v2, 0")
    tail("s_branch L2_g")
    o(f"s_sleep {cfg['sleep']}")
    o("s_branch L2_poll")
    o.lab("L2_g")
    o("v_and_b32 v3, 0xfff, v2")
    o("v_bfe_u32 v2, v2, 12, 12")
    o("v_mul_u32_u24 v3, 12, v3")
    o(f"v_lshl_or_b32 v{V_DESC}, v2, 16, v3")
    if cfg["tdef"]: o(f"s_mov_b32 s79, {cfg['spin']}")
    T(o, 11); T(o, 29, True)

def offsets(o, reg, batch):
    for q in range(4): o(f"ds_read_b128 {vr(reg+4*q,4)}, v{V_SA} offset:{batch*64+16*q}")
def rowload(o, r, cfg): o(f"buffer_load_dword v{r}, v{r}, s[8:11], 0 offen {cfg['ldt']}")

def prefetch(o, cfg):
    o.c("pull part of the table into this XCD's L2 while the records are being placed")
    if cfg.get("wfew", 0):
        o(f"s_cmp_ge_u32 s3, {cfg['wfew']}")
        o("s_cbranch_scc1 L2_nwb")
        o(f"s_mul_i32 s84, s3, {cfg['wb']*1024}")
        o("s_add_u32 s84, s84, s82")
        o(f"v_lshlrev_b32 v{DUM+4}, 4, v{L}")
        for i in range(cfg["wb"]):
            o(f"buffer_load_dwordx4 {vr(DUM,4)}, v{DUM+4}, s[12:15], s84 offen sc1")
            o("s_add_u32 s84, s84, 1024")
        o.lab("L2_nwb")
        return
    o("s_mov_b32 s84, s82")
    for i in range(cfg["wb"]):
        o(f"buffer_load_dwordx4 {vr(DUM,4)}, v{V_T16}, s[12:15], s84 offen sc1")
        o("s_add_u32 s84, s84, 16384")

def alone(o, cfg):
    o.lab("L9_alone")
    o("s_load_dwordx8 s[84:91], s[0:1], 0")
    o("s_load_dwordx2 s[92:93], s[0:1], 40")
    o("s_waitcnt vmcnt(0) lgkmcnt(0)")
    srd(o, 32, 84, N * 128); srd(o, 36, 86, E * 8); srd(o, 40, 88, E * 4); srd(o, 44, 90, E * 4); srd(o, 56, 92, 8192)
    o(f"v_lshlrev_b32 v32, 1, v{L}")
    o(f"v_lshlrev_b32 v33, 16, v{CW}")
    o(f"v_and_b32 v34, 0xffff0000, v{CW}")
    o(f"v_lshlrev_b32 v35, 16, v{CW+1}")
    o(f"v_and_b32 v36, 0xffff0000, v{CW+1}")
    o("v_lshlrev_b32 v37, 2, v0")
    o(f"s_mov_b32 s84, {(E + 1023) // 1024}")
    o.lab("L9_scan")
    o("v_lshlrev_b32 v38, 1, v37")
    o("buffer_load_dword v40, v37, s[44:47], 0 offen")
    o("buffer_load_dword v41, v37, s[40:43], 0 offen")
    o("buffer_load_dwordx2 v[42:43], v38, s[36:39], 0 offen")
    o(f"s_mov_b32 s85, {E*4}")
    o("v_cmp_gt_u32 s[86:87], s85, v37")
    o("s_waitcnt vmcnt(0)")
    o("v_subrev_u32 v40, s78, v40")
    o("v_cmp_gt_u32 vcc, 49, v40")
    o("s_and_b64 s[86:87], s[86:87], vcc")
    o.lab("L9_edge")
    o("s_cmp_eq_u64 s[86:87], 0")
    o("s_cbranch_scc1 L9_next")
    o("s_ff1_i32_b64 s85, s[86:87]")
    o("s_bitset0_b64 s[86:87], s85")
    o("v_readlane_b32 s88, v40, s85")
    o("v_readlane_b32 s89, v41, s85")
    o("v_readlane_b32 s90, v42, s85")
    o("v_readlane_b32 s91, v43, s85")
    o("s_lshl_b32 s89, s89, 7")
    o("v_add_u32 v44, s89, v32")
    o("buffer_load_ushort v45, v44, s[32:35], 0 offen")
    o("s_lshl_b32 s88, s88, 8")
    o(f"v_lshl_add_u32 v44, v{L}, 2, s88")
    o(f"ds_read_b32 v46, v44 offset:{PT}")
    o("v_mov_b32 v52, 0")
    o("v_mov_b32 v53, 0")
    o("s_mov_b32 s92, 0")
    o("s_waitcnt vmcnt(0)")
    o("v_lshlrev_b32 v45, 16, v45")
    o.lab("L9_k")
    o("s_lshl_b32 s93, s92, 7")
    o("s_add_u32 s94, s93, 8192")
    o("buffer_load_ushort v54, v32, s[52:55], s94 offen")
    o("buffer_load_ushort v55, v32, s[56:59], s93 offen")
    o("v_readlane_b32 s95, v45, s92")
    o("s_waitcnt vmcnt(0)")
    o("v_lshlrev_b32 v54, 16, v54")
    o("v_lshlrev_b32 v55, 16, v55")
    o("v_fmac_f32 v52, s95, v54")
    o("v_fmac_f32 v53, s95, v55")
    o("s_add_u32 s92, s92, 1")
    o("s_cmp_lt_u32 s92, 64")
    o("s_cbranch_scc1 L9_k")
    o("s_lshl_b32 s92, s90, 16")
    o("s_and_b32 s93, s90, 0xffff0000")
    o("s_lshl_b32 s94, s91, 16")
    o("s_and_b32 s95, s91, 0xffff0000")
    o("s_waitcnt lgkmcnt(0)")
    o("v_add_f32 v46, 0x41f80000, v46")
    o(f"v_fmac_f32 v46, {NEG_LOG2E:#x}, v52")
    for i in range(4): o(f"v_fmac_f32 v46, s{92+i}, v{33+i}")
    o("v_exp_f32 v46, v46")
    o("s_nop 0")
    o("v_add_f32 v46, 1.0, v46")
    o("v_rcp_f32 v46, v46")
    o("v_add_u32 v44, v44, v44")
    o("v_mul_f32 v46, v46, v53")
    o("v_cvt_f64_f32 v[54:55], v46")
    o(f"ds_add_f64 v44, v[54:55] offset:{AGG}")
    o("s_branch L9_edge")
    o.lab("L9_next")
    o("v_add_u32 v37, 0x1000, v37")
    o("s_sub_u32 s84, s84, 1")
    o("s_cmp_lg_u32 s84, 0")
    o("s_cbranch_scc1 L9_scan")
    o(f"s_mov_b32 s{S_MORE}, 0")
    o(f"s_mov_b32 s{S_PEND}, 0")
    o("s_branch L2_done")

def sort(o, tail, T, cfg):
    o.lab("L2_pass")
    o(f"v_and_b32 v3, 15, v{L}")
    o(f"v_add_u32 v1, s{S_OFF}, v3")
    o("v_add_u32 v2, 16, v1")
    o(f"s_add_u32 s83, s{S_OFF}, 32")
    o(f"v_lshrrev_b32 v4, 16, v{V_DESC}")
    o("v_cmp_lt_u32 vcc, s83, v4")
    o("s_cmp_lg_u64 vcc, 0")
    o(f"s_cselect_b32 s{S_MORE}, 1, 0")
    for i in range(4):
        o(f"v_mov_b32_dpp v{BS}, v4 row_newbcast:{i} row_mask:0xf bank_mask:0xf")
        o(f"v_cmp_lt_u32 {sr(MASK+2*i,2)}, v1, v{BS}")
        o(f"v_cmp_lt_u32 {sr(MASK+8+2*i,2)}, v2, v{BS}")
    o.lab("L2_again")
    o(f"s_mul_i32 s84, s{S_OFF}, 12")
    o(f"v_add_u32 v6, s84, v{V_LB}")
    o(f"v_and_b32 v5, 0xffff, v{V_DESC}")
    o("s_nop 1")
    for i in range(4):
        o(f"v_add_u32_dpp v{BS+1+i}, v5, v6 row_newbcast:{i} row_mask:0xf bank_mask:0xf")
    for i in range(4):
        o(f"s_mov_b64 exec, {sr(MASK+8+2*i,2)}")
        o(f"s_cbranch_execz L2_r2_{i}")
        o(f"buffer_load_dwordx3 {vr(REC+16+4*i,3)}, v{BS+1+i}, s[12:15], s{SOFF+i} offen offset:192 {cfg['ldr']}")
        o.lab(f"L2_r2_{i}")
    for i in range(4):
        o(f"s_mov_b64 exec, {sr(MASK+2*i,2)}")
        o(f"buffer_load_dwordx3 {vr(REC+4*i,3)}, v{BS+1+i}, s[12:15], s{SOFF+i} offen {cfg['ldr']}")
    o("s_mov_b64 exec, -1")
    o("v_mov_b32 v1, 4")
    o(f"v_mov_b32 v2, {CNT}")
    o(f"s_cmp_eq_u32 s{S_MORE}, 0")
    o("s_cbranch_scc1 L2_nomore")
    o("ds_write_b32 v2, v1 offset:256")
    o.lab("L2_nomore")
    o(f"v_cmp_gt_u32 s[92:93], 49, v{L}")
    o("v_mov_b32 v6, 16")
    o(f"v_mov_b32 v5, {CAPN*4}")
    o("v_cndmask_b32 v6, 0, v6, s[92:93]")
    def rank(i):
        o(f"v_add_u32_sdwa v{CA+i}, v{REC+4*i+2}, v2 dst_sel:DWORD dst_unused:UNUSED_PAD src0_sel:BYTE_3 src1_sel:DWORD")
        o(f"ds_add_rtn_u32 v{REC+4*i+3}, v{CA+i}, v1")
        o(f"v_lshrrev_b32 v{CA+i}, 26, v{REC+4*i+2}")
        o(f"v_and_b32 v{REC+4*i+2}, 0xffffff, v{REC+4*i+2}")
    def scat(i):
        o(f"v_lshl_add_u32 v{CA+i}, v{CA+i}, 9, v{REC+4*i+3}")
        o(f"v_cmpx_lt_u32 vcc, v{REC+4*i+3}, v5")
        o(f"v_add_u32 v{BS+i}, v{CA+i}, v{CA+i}")
        o(f"ds_write_b32 v{CA+i}, v{REC+4*i+2} offset:{LS}")
        o(f"ds_write_b64 v{BS+i}, {vr(REC+4*i,2)} offset:{LE}")
    for i in range(4):
        o(f"s_waitcnt vmcnt({3-i})")
        o(f"s_mov_b64 exec, {sr(MASK+2*i,2)}")
        rank(i)
    for i in range(4, 8):
        o(f"s_mov_b64 exec, {sr(MASK+2*i,2)}")
        o(f"s_cbranch_execz L2_rk{i}")
        rank(i)
        o.lab(f"L2_rk{i}")
    o("s_waitcnt lgkmcnt(0)")
    T(o, 12)
    for i in range(4):
        o(f"s_mov_b64 exec, {sr(MASK+2*i,2)}")
        scat(i)
    for i in range(4, 8):
        o(f"s_mov_b64 exec, {sr(MASK+2*i,2)}")
        o(f"s_cbranch_execz L2_sc{i}")
        scat(i)
        o.lab(f"L2_sc{i}")
    o("s_mov_b64 exec, -1")
    o(f"v_lshl_add_u32 v1, v{L}, 2, v2")
    if cfg["wpos"] == "P": prefetch(o, cfg)
    if cfg.get("wq", 0):
        o.c("waves whose producers tend to finish first pull part of the table while the others still wait")
        o("s_bitcmp1_b32 s3, 0")
        o("s_cbranch_scc1 L2_nwq")
        o("s_lshr_b32 s84, s3, 1")
        o(f"s_mul_i32 s84, s84, {cfg['wq']*1024}")
        o("s_add_u32 s84, s84, s82")
        o(f"s_add_u32 s84, s84, {16384*cfg['wb']}")
        o(f"v_lshlrev_b32 v{DUM+4}, 4, v{L}")
        for i in range(cfg["wq"]):
            o(f"buffer_load_dwordx4 {vr(DUM,4)}, v{DUM+4}, s[12:15], s84 offen sc1")
            o("s_add_u32 s84, s84, 1024")
        o.lab("L2_nwq")
    o("s_waitcnt lgkmcnt(0)")
    T(o, 13)
    o("s_setprio 3")
    o("s_barrier")
    T(o, 14)
    o("ds_read_b32 v3, v1")
    o("ds_read2_b32 v[4:5], v2 offset0:64 offset1:70")
    if cfg["tdef"]:
        o(f"v_lshlrev_b32 v61, 5, v{L}")
        o("buffer_load_dwordx4 v[116:119], v61, s[12:15], s73 offen sc1")
        o("buffer_load_dwordx4 v[120:123], v61, s[12:15], s73 offen offset:16 sc1")
    if cfg["wpos"] == "A": prefetch(o, cfg)
    o(f"s_movk_i32 s84, {CAPN*4}")
    o("s_waitcnt lgkmcnt(0)")
    o(f"v_readfirstlane_b32 s{S_MORE}, v4")
    o("v_readfirstlane_b32 s85, v5")
    o("s_cmp_lg_u32 s85, 0" if not cfg.get("force", 0) else "s_cmp_eq_u32 s85, s85")
    o("s_cbranch_scc1 L9_alone")
    alone(tail, cfg)
    o.lab("L2_cap")
    o("v_cmp_lt_u32 vcc, s84, v3")
    o("v_min_u32 v4, s84, v3")
    o("v_add_u32 v5, 15, v4")
    o("v_and_b32 v5, -16, v5")
    o("v_max_u32 v5, v5, v6")
    o(f"v_mov_b32 v{BS}, v5")
    o("s_cmp_lg_u64 vcc, 0")
    o(f"s_cselect_b32 s{S_PEND}, 1, 0")
    wave_scan(o, BS)
    o("s_nop 0")
    o(f"v_readlane_b32 s{S_TOT}, v{BS}, 63")
    o(f"v_sub_u32 v5, v{BS}, v5")
    o(f"s_cmp_gt_u32 s{S_TOT}, {CAPU*4}")
    o("s_cbranch_scc1 L2_over")
    tail.lab("L2_over")
    tail(f"s_movk_i32 s84, {CAPL*4}")
    tail("s_branch L2_cap")
    o(f"s_cmp_lg_u32 s{S_PEND}, 0")
    o("s_cbranch_scc1 L2_pend")
    o.lab("L2_pendb")
    tail.lab("L2_pend")
    tail.c("records ranked past the cap stay pending for another pass over the same window")
    for i in range(8):
        tail(f"v_cmp_le_u32 vcc, s84, v{REC+4*i+3}")
        tail(f"s_and_b64 {sr(MASK+2*i,2)}, {sr(MASK+2*i,2)}, vcc")
    tail("s_branch L2_pendb")
    T(o, 21)
    o("v_lshl_or_b32 v4, v4, 16, v5")
    o.c("this wave's range of batches (16 slots each)")
    o(f"s_add_u32 s86, s{S_TOT}, 63")
    o("s_lshr_b32 s86, s86, 6")
    o(f"s_lshr_b32 s{S_NB}, s86, 4")
    o("s_and_b32 s88, s86, 15")
    o(f"s_mul_i32 s87, s{S_NB}, s3")
    o("s_min_u32 s89, s3, s88")
    o("s_add_u32 s87, s87, s89")
    o("s_cmp_lt_u32 s3, s88")
    o(f"s_addc_u32 s{S_NB}, s{S_NB}, 0")
    o(f"s_add_u32 s88, s87, s{S_NB}")
    o("s_lshl_b32 s89, s87, 6")
    o("s_lshl_b32 s90, s88, 6")
    o("v_cmp_ge_u32 vcc, s89, v5")
    o("s_and_b64 s[94:95], vcc, s[92:93]")
    o("s_bcnt1_i32_b64 s91, s[94:95]")
    o("s_sub_u32 s91, s91, 1")
    o("v_cmp_gt_u32 vcc, s90, v5")
    o("s_andn2_b64 s[94:95], vcc, s[94:95]")
    o("s_and_b64 s[94:95], s[94:95], s[92:93]")
    o("s_lshl_b32 s96, s91, 8")
    o(f"v_lshl_add_u32 v{V_PA}, v{L}, 2, s96")
    o(f"ds_read_b32 v{PC}, v{V_PA} offset:{PT}")
    o(f"ds_read_b32 v{PN}, v{V_PA} offset:{PT+256}")
    o.c("one bit per group (4 slots) that starts a new node: every such node pushes a one to the lane of its group")
    o("v_subrev_u32 v5, s89, v5")
    o("v_lshrrev_b32 v5, 2, v5")
    o("v_cndmask_b32 v5, 0, v5, s[94:95]")
    o("v_mov_b32 v3, 1")
    o("ds_permute_b32 v76, v5, v3")
    o("s_waitcnt lgkmcnt(0)")
    o(f"v_cmp_ne_u32 {sr(MK,2)}, 0, v76")
    o(f"s_and_b32 s{MK}, s{MK}, -2")
    T(o, 22)
    o.c("build the wave's stream: for every slot its node, then source row and edge attributes from the node's list")
    N_, B_, X_ = 64, 68, 72
    o(f"s_mov_b64 s[84:85], {sr(MK,2)}")
    o("s_mov_b32 s86, s91")
    for j in range(4):
        o(f"v_and_b32 v{N_+j}, s84, v{V_LM}")
        o(f"v_bcnt_u32_b32 v{N_+j}, v{N_+j}, s86") if False else None
        o(f"v_bcnt_u32_b32 v{N_+j}, v{N_+j}, 0")
        o(f"v_add_lshl_u32 v{N_+j}, v{N_+j}, s86, 2")
        o(f"ds_bpermute_b32 v{B_+j}, v{N_+j}, v4")
        if j < 3:
            o("s_and_b32 s87, s84, 0xffff")
            o("s_bcnt1_i32_b32 s87, s87")
            o("s_add_u32 s86, s86, s87")
            o("s_lshr_b64 s[84:85], s[84:85], 16")
    o(f"v_lshl_add_u32 v3, v{V_SG}, 2, s89")
    o(f"v_mov_b32 v5, {NULLSLOT*4}")
    o("s_lshl_b32 s96, s3, 10")
    o(f"s_add_u32 s96, s96, {CS}")
    o(f"v_mov_b32 v{V_SA}, s96")
    o(f"v_lshl_add_u32 v6, v{L}, 2, s96")
    for j in range(4):
        o(f"s_waitcnt lgkmcnt({3-j + 2*j})")
        o(f"v_sub_u32_sdwa v{X_+j}, v3, v{B_+j} dst_sel:DWORD dst_unused:UNUSED_PAD src0_sel:DWORD src1_sel:WORD_0")
        o(f"v_lshrrev_b32 v{B_+j}, 16, v{B_+j}")
        o(f"v_cmp_lt_u32 vcc, v{X_+j}, v{B_+j}")
        o(f"v_lshl_add_u32 v{X_+j}, v{N_+j}, 7, v{X_+j}")
        if j < 3: o("v_add_u32 v3, 0x100, v3")
        else: o("s_nop 0")
        o(f"v_cndmask_b32 v{X_+j}, v5, v{X_+j}, vcc")
        o(f"ds_read_b32 v{N_+j}, v{X_+j} offset:{LS}")
        o(f"v_add_u32 v{X_+j}, v{X_+j}, v{X_+j}")
        o(f"ds_read_b64 {vr(EAR if j == 0 else EW+2*j-2, 2)}, v{X_+j} offset:{LE}")
    if cfg.get("nomask", 0): o(f"s_mov_b64 {sr(MK,2)}, 0")
    o.c("per-stage flags, one nibble each: 1 slow head, 2 flush, 4 no more loads, 8 past the last batch")
    o(f"s_lshr_b64 s[84:85], {sr(MK,2)}, 1")
    o(f"s_or_b64 s[84:85], s[84:85], {sr(MK,2)}")
    o("s_lshr_b64 s[86:87], s[84:85], 2")
    o("s_or_b64 s[84:85], s[84:85], s[86:87]")
    o("s_mov_b32 s86, 0x11111111")
    o("s_mov_b32 s87, 0x11111111")
    o("s_and_b64 s[84:85], s[84:85], s[86:87]")
    for j in range(4):
        o(f"s_waitcnt lgkmcnt({7-2*j + j})")
        o(f"ds_write_b32 v6, v{N_+j} offset:{256*j}")
    offsets(o, R[0], 0)
    o(f"s_lshl_b64 {sr(FL,2)}, s[84:85], 5")
    o(f"s_or_b64 {sr(FL,2)}, {sr(FL,2)}, s[84:85]")
    o(f"s_lshl_b64 {sr(MF,2)}, {sr(MK,2)}, 4")
    o(f"s_lshl_b32 s88, s{S_NB}, 2")
    o("s_max_u32 s90, s88, 4")
    o("s_sub_u32 s90, s90, 4")
    o(f"s_lshr_b64 s[84:85], {sr(MK,2)}, s90")
    o(f"s_and_b32 s{S_LF}, s84, 15")
    o(f"s_cmp_eq_u32 s{S_NB}, 0")
    o("s_cbranch_scc1 L2_done")
    if cfg["tdef"]:
        o(f"s_waitcnt vmcnt({cfg['wb'] if cfg['wpos'] == 'A' else 0})")
        o.lab("L2_tfc")
        for j in range(4):
            o(f"v_xor_b32 v{116+2*j}, s74, v{116+2*j}")
            o(f"v_xor_b32 v{117+2*j}, s75, v{117+2*j}")
        o("v_or3_b32 v116, v116, v117, v118")
        o("v_or3_b32 v119, v119, v120, v121")
        o("v_or3_b32 v116, v116, v122, v123")
        o("v_or_b32 v116, v116, v119")
        o("v_cmp_ne_u32 vcc, 0, v116")
        o("s_cbranch_vccnz L2_tfw")
        o.lab("L2_tfd")
        tail.lab("L2_tfw")
        tail("s_sub_u32 s79, s79, 1")
        tail("s_cmp_eq_u32 s79, 0")
        tail("s_cbranch_scc1 L2_tfd")
        tail("s_sleep 2")
        tail("buffer_load_dwordx4 v[116:119], v61, s[12:15], s73 offen sc1")
        tail("buffer_load_dwordx4 v[120:123], v61, s[12:15], s73 offen offset:16 sc1")
        tail("s_waitcnt vmcnt(0)")
        tail("s_branch L2_tfc")
    o("s_waitcnt lgkmcnt(0)")
    if cfg.get("warmtest", 0):
        o("s_waitcnt vmcnt(0)")
        for i in range(cfg["warmtest"]): o("s_sleep 127")
    T(o, 23)
    for r in range(16): rowload(o, R[0] + r, cfg)
    if cfg["wpos"] == "C": prefetch(o, cfg)
    offsets(o, R[1], 1)
    o("s_mov_b32 s84, 0x55555555")
    o("s_mov_b32 s85, 0x55555555")
    o("s_lshl_b64 s[84:85], s[84:85], s90")
    o(f"s_or_b64 {sr(FL,2)}, {sr(FL,2)}, s[84:85]")
    o("s_mov_b64 s[84:85], 8")
    o("s_lshl_b64 s[84:85], s[84:85], s88")
    o(f"s_or_b64 {sr(FL,2)}, {sr(FL,2)}, s[84:85]")
    o.c("the wave lowers its priority as it nears its end so that the waves of a SIMD finish together")
    o(f"s_mov_b32 s{S_PL}, 0")
    o(f"s_mov_b32 s{S_LV}, 3")
    if cfg["pk"]:
        o.c("the first stages also pull the rest of this workgroup's table slice into L2 (landing in a dead LDS area)")
        o(f"s_mov_b32 s{S_PL}, {((1 << cfg['ps']) - 1) << 16:#x}")
        o(f"s_or_b32 s{FL}, s{FL}, {sum(1 << (4*i) for i in range(cfg['ps'])):#x}")
        o(f"s_add_u32 s24, s82, {16384*cfg['wb']}")
        o(f"s_mov_b32 m0, {DSV}")
    for i, rem in enumerate(int(x) for x in str(cfg["pp"])):
        o(f"s_cmp_gt_u32 s{S_NB}, {rem}")
        o(f"s_cbranch_scc0 L3_np{i}")
        o(f"s_sub_u32 s90, s{S_NB}, {rem}")
        o(f"s_bitset1_b32 s{S_PL}, s90")
        o("s_lshl_b32 s90, s90, 2")
        o(f"s_bitset1_b64 {sr(FL,2)}, s90")
        o.lab(f"L3_np{i}")
    o(f"v_add_u32 v{V_FA}, v{V_PA}, v{V_PA}")
    o(f"v_add_u32 v{V_PA}, 0x100, v{V_PA}")
    o(f"v_mov_b32 v{ACC}, 0")
    o(f"v_mov_b32 v{ACC+1}, 0")
    for c in range(1, 4): o(f"v_mov_b32 v{PC+c}, v{PC}")

def flush(o):
    o(f"v_add_f32 v{FT}, v{ACC}, v{ACC+1}")
    o(f"v_mul_f32 v{FT}, {QC:#x}, v{FT}")
    o(f"v_cvt_f64_f32 {vr(F64,2)}, v{FT}")
    o(f"ds_add_f64 v{V_FA}, {vr(F64,2)} offset:{AGG}")

def head(oo, late, u, cfg, slow):
    rc = R[u]; rl = R[(u + 1) & 3]; rp = R[(u + 3) & 3]
    if slow:
        oo(f"s_bitcmp1_b32 s{FL}, {4*u+2}")
        oo("s_waitcnt lgkmcnt(0)")
        oo(f"s_cbranch_scc1 L3_nl{u}")
        if not cfg.get("noload", 0):
            for r in range(16): rowload(oo, rl + r, cfg)
        if cfg["pk"]:
            oo(f"s_bitcmp1_b32 s{S_PL}, {16+u}")
            oo(f"s_cbranch_scc1 L3_pf{u}")
            late.lab(f"L3_pf{u}")
            for i in range(cfg["pk"]):
                late(f"buffer_load_dwordx4 v{V_T16}, s[12:15], s24 offen sc1 lds")
                late("s_add_u32 s24, s24, 16384")
            late(f"s_waitcnt vmcnt({16+cfg['pk']})")
            late(f"s_branch L3_lb{u}")
        oo("s_waitcnt vmcnt(16)")
        oo.lab(f"L3_lb{u}")
        late.lab(f"L3_nl{u}")
        late("s_waitcnt vmcnt(0)")
        late(f"s_branch L3_lb{u}")
        oo(f"s_bitcmp1_b32 s{S_PL}, {u}")
        oo(f"s_cbranch_scc1 L3_pd{u}")
        oo.lab(f"L3_pe{u}")
        late.lab(f"L3_pd{u}")
        late(f"s_sub_u32 s{S_LV}, s{S_LV}, 1")
        late("s_setprio 0")
        late(f"s_cmp_eq_u32 s{S_LV}, 0")
        late(f"s_cbranch_scc1 L3_pe{u}")
        late("s_setprio 1")
        late(f"s_cmp_eq_u32 s{S_LV}, 1")
        late(f"s_cbranch_scc1 L3_pe{u}")
        late("s_setprio 2")
        late(f"s_branch L3_pe{u}")
    else:
        oo("s_waitcnt vmcnt(0) lgkmcnt(0)")
    E = lambda t: oo(m4(G+4*t, EAR, CW, PC, f" cbsz:4 abid:{4*u+t}"))
    QA = lambda g: oo(m4(G+4*g, SELA, rc+4*g, G+4*g))
    QB = lambda g: oo(m4(G+4*g, SELB, rc+4*g+2, G+4*g))
    rr = [rp+2, rp+3, rp+10, rp+11]
    rcp = lambda i: oo(f"v_rcp_f32 v{rr[i]}, v{rr[i]}")
    def block(b):
        for j in range(2):
            n = f"{u}_{2*b+j}"
            oo(f"s_bitcmp1_b32 s{MK}, {4*u+2*b+j}")
            oo(f"s_cbranch_scc1 L3_ps{n}")
            oo.lab(f"L3_pb{n}")
            late.lab(f"L3_ps{n}")
            late("s_waitcnt lgkmcnt(0)")
            late(f"v_mov_b32 v{PC+1}, v{PN}")
            late(f"v_add_u32 v{V_PA}, 0x100, v{V_PA}")
            late(f"ds_read_b32 v{PN}, v{V_PA} offset:{PT}")
            late(f"s_branch L3_pb{n}")
            if j == 0:
                oo(f"v_mov_b32 v{PC}, v{PC+1}")
                oo(f"v_mov_b32 v{PC+2}, v{PC+1}")
            else:
                oo(f"v_mov_b32 v{PC+3}, v{PC+1}")
                oo("s_nop 1")
    if slow: block(0)
    E(0); rcp(0); E(1); rcp(1); QA(0); rcp(2)
    if slow: block(1)
    E(2); rcp(3); QB(0); E(3); QA(1); QA(2)
    if slow:
        oo(f"v_mov_b32 v{PC}, v{PC+1}")
        oo(f"v_mov_b32 v{PC+2}, v{PC+1}")
    oo(f"s_bitcmp1_b32 s{FL}, {4*u+1}")
    QB(1)
    for r in range(16):
        oo(f"v_exp_f32_e64 v{G+r}, v{G+r} clamp")
        if not slow and not cfg.get("noload", 0): rowload(oo, rl + r, cfg)
        if r == 0: QA(3)
        if r == 1: QB(2)
        if r == 2: QB(3)

def accum(o, tail, name, rp, reg, bit0):
    o(f"s_cbranch_scc1 L3_sf{name}")
    for b in range(2): o(pk("fma", ACC, rp+8*b, rp+8*b+2, ACC))
    o.lab(f"L3_fb{name}")
    tail.lab(f"L3_sf{name}")
    for g in range(4):
        b, j = g >> 1, g & 1
        tail(f"s_bitcmp1_b32 s{reg}, {bit0+g}")
        tail(f"s_cbranch_scc0 L3_sk{name}_{g}")
        flush(tail)
        tail(f"v_add_u32 v{V_FA}, 0x200, v{V_FA}")
        tail(f"v_mov_b32 v{ACC}, 0")
        tail(f"v_mov_b32 v{ACC+1}, 0")
        tail.lab(f"L3_sk{name}_{g}")
        tail(f"v_fmac_f32 v{ACC+j}, v{rp+8*b+j}, v{rp+8*b+2+j}")
    tail(f"s_branch L3_fb{name}")

def stage(o, tail, u, cfg):
    rc = R[u]; rp = R[(u + 3) & 3]; ro = R[(u + 2) & 3]
    o(f"s_bitcmp1_b32 s{FL}, {4*u}")
    o(f"s_cbranch_scc1 L3_se{u}")
    head(o, None, u, cfg, False)
    o.lab(f"L3_xb{u}")
    tail.lab(f"L3_se{u}")
    tail(f"s_bitcmp1_b32 s{FL}, {4*u+3}")
    tail(f"s_cbranch_scc1 L3_last{(u+3)&3}")
    late = Asm()
    head(tail, late, u, cfg, True)
    tail(f"s_branch L3_xb{u}")
    tail.l += late.l
    accum(o, tail, str(u), rp, MF, 4*u)
    offsets(o, ro, u + 2)
    for r in range(0, 16, 2): o(pk("add", G+r, G+r, VC2))
    seq = [lambda d, h: pk("mul", h, h, d+2), lambda d, h: pk("mul", h+4, h+4, d+6),
           lambda d, h: pk("fma", h, h+2, d, h), lambda d, h: pk("fma", h+4, h+6, d+4, h+4),
           lambda d, h: pk("mul", d, d, d+2), lambda d, h: pk("mul", d+4, d+4, d+6),
           lambda d, h: pk("mul", h, h, d+4), lambda d, h: pk("mul", h+2, d, d+4),
           lambda d, h: pk("fma", h, h+4, d, h)]
    for f in seq:
        for b in range(2): o(f(G+8*b, rc+8*b))
    if u == 3:
        o(f"v_add_u32 v{V_SA}, 0x100, v{V_SA}")
        o(f"v_mov_b64 {vr(EAR,2)}, {vr(EW,2)}")
        o(f"v_mov_b64 {vr(EW,2)}, {vr(EW+2,2)}")
        o(f"v_mov_b64 {vr(EW+2,2)}, {vr(EW+4,2)}")
        for r in (FL, MK, MF): o(f"s_lshr_b64 {sr(r,2)}, {sr(r,2)}, 16")
        if cfg["pk"]: o(f"s_and_b32 s{S_PL}, s{S_PL}, 0xffff")
        o(f"s_lshr_b32 s{S_PL}, s{S_PL}, 4")
        o("s_branch L2_loop")

def mainloop(o, tail, T, cfg):
    o(f"s_waitcnt vmcnt({16 if cfg['wpos'] != 'C' else 0}) lgkmcnt(0)")
    for b in range(2):
        for j in range(2):
            o(f"v_mov_b32 v{R[3]+8*b+j}, 0")
            o(f"v_mov_b32 v{R[3]+8*b+2+j}, 1.0")
    T(o, 15); T(o, 16, True)
    o(".p2align 3")
    if cfg.get("clk", 0): o("s_mov_b32 m0, 24")
    o.lab("L2_loop")
    if cfg.get("clk", 0):
        o("s_memtime s[100:101]"); o("s_memrealtime s[98:99]"); o("s_waitcnt lgkmcnt(0)")
        o(f"v_writelane_b32 v{V_ST}, s100, m0"); o("s_add_u32 m0, m0, 1"); o("s_nop 1"); o(f"v_writelane_b32 v{V_ST}, s98, m0"); o("s_add_u32 m0, m0, 1")
    o.c("per block of two groups: sum h_i / d_i = N / D with d_i = 2^-31 + min(1, 2^(t_i - 31)); one reciprocal per group")
    for u in range(4): stage(o, tail, u, cfg)
    for u in range(4):
        oo = o if u == 0 else tail
        oo.lab(f"L3_last{u}")
        for r in (2, 3, 10, 11): oo(f"v_rcp_f32 v{R[u]+r}, v{R[u]+r}")
        oo(f"s_cmp_lg_u32 s{S_LF}, 0")
        t2 = Asm()
        accum(oo, t2, f"e{u}", R[u], S_LF, 0)
        if u != 0: oo("s_branch L2_last")
        tail.l += t2.l
    o.lab("L2_last")
    flush(o)
    o.lab("L2_done")
    o("s_waitcnt vmcnt(0) lgkmcnt(0)")
    T(o, 17); T(o, 18, True)
    o("s_barrier")
    o(f"s_or_b32 s84, s{S_MORE}, s{S_PEND}")
    o("s_cbranch_scc1 L2_next")
    tail.lab("L2_next")
    tail("v_mov_b32 v3, 0")
    tail("ds_write_b32 v1, v3")
    tail("ds_write_b32 v2, v3 offset:256")
    tail("s_waitcnt lgkmcnt(0)")
    tail("s_barrier")
    tail(f"s_cmp_lg_u32 s{S_PEND}, 0")
    tail("s_cbranch_scc1 L2_again")
    tail(f"s_add_u32 s{S_OFF}, s{S_OFF}, 32")
    tail("s_branch L2_pass")
    o("v_lshlrev_b32 v1, 5, v0")
    o(f"ds_read_b128 v[80:83], v1 offset:{AGG}")
    o(f"ds_read_b128 v[84:87], v1 offset:{AGG+16}")
    o("v_cmp_gt_u32 vcc, 784, v0")
    o("s_lshl_b32 s93, s78, 7")
    o("v_lshl_add_u32 v2, v0, 3, s93")
    o("s_and_saveexec_b64 s[94:95], vcc")
    o("s_cbranch_execz L2_fin")
    o("s_waitcnt lgkmcnt(0)")
    for r in range(4): o(f"v_cvt_f32_f64 v{64+r}, {vr(80+2*r,2)}")
    for r in range(4): o(f"v_mul_f32 v{72+r}, {NEG_LOG2E:#x}, v{64+r}")
    for r in range(4): o(f"v_exp_f32 v{72+r}, v{72+r}")
    for r in range(4): o(f"v_add_f32 v{72+r}, 1.0, v{72+r}")
    for r in range(4): o(f"v_rcp_f32 v{72+r}, v{72+r}")
    for r in range(4): o(f"v_mul_f32 v{64+r}, v{64+r}, v{72+r}")
    for r in range(2): o(f"v_cvt_pk_bf16_f32 v{72+r}, v{64+2*r}, v{65+2*r}")
    o(f"buffer_store_dwordx2 v[72:73], v2, s[16:19], 0 offen {cfg['sto']}")
    o.lab("L2_fin")
    if T.on:
        o("s_waitcnt vmcnt(0)"); T(o, 19); T(o, 20, True); T.dump(o)
        if cfg.get("gdbg", 0):
            o("s_mov_b64 exec, 1")
            for k, (lane, inv) in enumerate([(0, 1), (0, 0), (26, 0), (27, 0), (28, 0), (29, 0), (16, 1), (16, 0), (18, 1), (18, 0), (20, 0)]):
                o(f"v_readlane_b32 s4, v{V_ST}, {lane}")
                if inv: o("s_not_b32 s4, s4")
                o("s_nop 1")
                o("v_mov_b32 v2, s4")
                o(f"v_mov_b32 v1, {8+4*k}")
                o("buffer_atomic_umax v2, v1, s[68:71], 0 offen")
                o("s_nop 1")

HEADER = """; Edge-gated MPNN layer: out = silu(x@U + sum over edges with dst=i of sigmoid(x[dst]@A + x[src]@B + e@C) * (x[src]@V))
; @launch grid=(256,1,1) block=(1024,1,1) lds={l}
.amdgcn_target "amdgcn-amd-amdhsa--gfx950"
.text
.globl {n}
.p2align 8
.type {n},@function
"""
FOOTER = """.section .rodata,"a"
.p2align 6
.amdhsa_kernel {n}
  .amdhsa_next_free_vgpr 128
  .amdhsa_next_free_sgpr 102
  .amdhsa_accum_offset 128
  .amdhsa_group_segment_fixed_size 0
  .amdhsa_kernarg_size 80
  .amdhsa_user_sgpr_count 2
  .amdhsa_user_sgpr_kernarg_segment_ptr 1
  .amdhsa_system_sgpr_workgroup_id_x 1
  .amdhsa_float_denorm_mode_32 3
  .amdhsa_dx10_clamp 0
.end_amdhsa_kernel
"""
DEFAULTS = dict(st="sc1", ld1="nt", ldt="", sto="", wb=1, wpos="A", early=0, cpf=1, dfr=0, ldx='nt', wf=1, wq=1, pk=0, ps=3, tdef=0, we=0, ldr="sc1", mkp=1, pp=631, sleep=2, spin=50000, stamp=0)
def build(cfg):
    cfg = dict(DEFAULTS, **cfg)
    o = Asm(); tail = Asm(); T = Stamper(cfg["stamp"])
    o.lab(NAME)
    o("s_cmp_ge_u32 s2, 256")
    o("s_cbranch_scc1 L_end")
    T(o, 0, True); T(o, 1)
    phase1(o, tail, T, cfg); handoff(o, tail, T, cfg); sort(o, tail, T, cfg); mainloop(o, tail, T, cfg)
    o.lab("L_end")
    o("s_endpgm")
    return HEADER.format(l=LDS, n=NAME) + o.text() + tail.text() + "L_codeend:\n" + FOOTER.format(n=NAME)

if __name__ == "__main__":
    cfg = {}
    for a in sys.argv[2:]:
        k, v = a.split("=")
        cfg[k] = int(v) if v.lstrip("-").isdigit() else v
    open(sys.argv[1], "w").write(build(cfg))
```
